```python
import torch

def _softmax(x, axis=-1):
    return torch.softmax(x, dim=axis)
def _gelu(x):
    return torch.nn.functional.gelu(x, approximate="tanh")
def _silu(x):
    return torch.nn.functional.silu(x)
def _sigmoid(x):
    return torch.sigmoid(x)
def _layernorm(x, axis=-1, eps=1e-5):
    m = x.mean(dim=axis, keepdim=True)
    v = x.var(dim=axis, keepdim=True, unbiased=False)
    return (x - m) / torch.sqrt(v + eps)
def _scatter_add(tgt, idx, src, axis=0):
    return tgt.clone().index_add_(axis, idx, src)
def _segment_sum(src, seg, n):
    out = torch.zeros((n,) + src.shape[1:], dtype=src.dtype)
    return out.index_add_(0, seg, src)
def _pad(x, pw):
    flat = tuple(v for pair in reversed(pw) for v in pair)
    return torch.nn.functional.pad(x, flat)

kernel_name = 'recurrent_scan__ssm_conv_s4d__mixer_channel_mlp__prompt'

def setup_inputs():

    _w = (lambda a: (lambda t: t.to(torch.bfloat16) if t.is_floating_point() else t)(torch.as_tensor(a)))
    def _A_setup():
        Bsz, L, D, N = 1, 2048, 640, 128
        return {
            "u": _w((lambda *s: torch.randn(*s, dtype=torch.bfloat16) * 0.05)(Bsz, L, D)),
            "log_A_real": _w((lambda *s: torch.randn(*s, dtype=torch.bfloat16) * 3.2)(D, N) * 0.5),
            "A_imag": _w((lambda *s: torch.randn(*s, dtype=torch.bfloat16) * 0.2)(D, N) * 3.14),
            "C_real": _w((lambda *s: torch.randn(*s, dtype=torch.bfloat16) * 0.8)(D, N) / N ** 0.5),
            "C_imag": _w((lambda *s: torch.randn(*s, dtype=torch.bfloat16) * 0.8)(D, N) / N ** 0.5),
            "log_dt": _w((lambda *s: torch.randn(*s, dtype=torch.bfloat16) * 0.2)(D) * 0.5 - 4.0),
            "D_skip": _w((lambda *s: torch.randn(*s, dtype=torch.bfloat16) * 0.2)(D)),
        }
    _A_in = _A_setup()

    def _B_setup():
        B, S, D, F = 1, 2048, 640, 1728
        return {
            "x": _w((lambda *s: torch.randn(*s, dtype=torch.bfloat16) * 0.05)(B, S, D)),
            "w1": _w((lambda *s: torch.randn(*s, dtype=torch.bfloat16) * 1.6)(D, F) * (D ** -0.5)),
            "b1": _w((lambda *s: torch.randn(*s, dtype=torch.bfloat16) * 0.8)(F)),
            "w2": _w((lambda *s: torch.randn(*s, dtype=torch.bfloat16) * 0.1)(F, D) * (F ** -0.5)),
            "b2": _w((lambda *s: torch.randn(*s, dtype=torch.bfloat16) * 0.1)(D)),
        }
    _B_in = _B_setup()

    return {
        "A_u": _A_in["u"],
        "A_log_A_real": _A_in["log_A_real"],
        "A_A_imag": _A_in["A_imag"],
        "A_C_real": _A_in["C_real"],
        "A_C_imag": _A_in["C_imag"],
        "A_log_dt": _A_in["log_dt"],
        "A_D_skip": _A_in["D_skip"],
        "B_x": _B_in["x"],
        "B_w1": _B_in["w1"],
        "B_b1": _B_in["b1"],
        "B_w2": _B_in["w2"],
        "B_b2": _B_in["b2"],
    }

def reference(A_u, A_log_A_real, A_A_imag, A_C_real, A_C_imag, A_log_dt, A_D_skip, B_x, B_w1, B_b1, B_w2, B_b2):
    def _A_ref(u, log_A_real, A_imag, C_real, C_imag, log_dt, D_skip):
        L = u.shape[1]
        dt = torch.exp(log_dt)
        A = -torch.exp(log_A_real) + 1j * A_imag
        C = (C_real + 1j * C_imag) * dt[:, None]
        pos = (lambda x, dt: x.to(dt))(torch.arange(L), log_dt.dtype)
        P = torch.exp((A * dt[:, None])[:, :, None] * pos[None, None, :])
        K = 2.0 * torch.einsum("dn,dnl->dl", C, P).real
        L2 = 2 * L
        u_t = (lambda x, *d: x.permute(*d))(u, 0, 2, 1)
        Kf = (lambda x, *a, **k: torch.fft.rfft(x.float(), *a, **k))(K, L2)
        Uf = (lambda x, *a, **k: torch.fft.rfft(x.float(), *a, **k))(u_t, L2)
        y = (lambda x, *a, **k: torch.fft.irfft(x, *a, **k).to(torch.bfloat16))(Uf * Kf[None, :, :], L2)[:, :, :L]
        y = (lambda x, *d: x.permute(*d))(y, 0, 2, 1)
        return y + u * D_skip[None, None, :]

    def _B_ref(x, w1, b1, w2, b2):
        y = _layernorm(x, axis=-1)
        h = _gelu(torch.einsum("bsd,df->bsf", y, w1) + b1)
        return torch.einsum("bsf,fd->bsd", h, w2) + b2

    x = A_u
    xn = _layernorm(x, axis=-1)
    s = _A_ref(xn, A_log_A_real, A_A_imag, A_C_real, A_C_imag, A_log_dt, A_D_skip)
    g = _silu(_B_ref(xn, B_w1, B_b1, B_w2, B_b2))
    return x + s * g
```

```python
import re
TRANS = ("v_exp_f32","v_log_f32","v_rcp_f32","v_rsq_f32","v_sqrt_f32","v_sin_f32","v_cos_f32")
def regs_of(op):
    op = op.strip()
    op = re.sub(r"^-|^abs\(|\)$", "", op)
    m = re.fullmatch(r"([vs])\[(\d+):(\d+)\]", op)
    if m: return {(m.group(1), i) for i in range(int(m.group(2)), int(m.group(3))+1)}
    m = re.fullmatch(r"([vs])(\d+)", op)
    if m: return {(m.group(1), int(m.group(2)))}
    if op in ("vcc",): return {("vcc",0)}
    if op in ("exec",): return {("exec",0)}
    if op == "m0": return {("m0",0)}
    return set()
class Ins:
    def __init__(self, text):
        self.text = text
        t = text.split(";")[0].strip()
        self.label = t.endswith(":")
        self.dir = t.startswith(".")
        self.w = set(); self.r = set(); self.cls = None; self.mn = ""
        self.A=set(); self.B=set(); self.C=set(); self.sdata=set()
        if self.label or self.dir or not t: return
        parts = t.split(None, 1)
        mn = parts[0]; self.mn = mn
        rest = parts[1] if len(parts) > 1 else ""
        ops = []; depth = 0; cur = ""
        for ch in rest:
            if ch == "[": depth += 1
            if ch == "]": depth -= 1
            if ch == "," and depth == 0: ops.append(cur.strip()); cur = ""
            else: cur += ch
        if cur.strip(): ops.append(cur.strip())
        mods = ""
        if ops:
            sp = ops[-1].split(None, 1)
            ops[-1] = sp[0]
            mods = sp[1] if len(sp) > 1 else ""
        self.ops = ops; self.mods = mods
        if mn.startswith("v_pk_") and mn.endswith("_f32"):
            assert not re.search(r"op_sel:\[0,1", mods), "unsafe op_sel pattern (HW bug beside MFMA): " + text
        R = [regs_of(o) for o in ops]
        U = lambda l: set().union(*l) if l else set()
        if mn.startswith("v_mfma"):
            self.cls = "mfma"; self.w = R[0]; self.A = R[1]; self.B = R[2]; self.C = R[3]; self.r = R[1]|R[2]|R[3]
        elif mn.startswith("v_"):
            self.cls = "valu"
            self.w = R[0]; self.r = U(R[1:])
            if mn.startswith(("v_fmac","v_dot2c","v_pk_fmac","v_writelane")): self.r |= R[0]
            if mn.startswith(("v_add_co","v_sub_co","v_addc_co")): self.w = R[0]|R[1]; self.r = U(R[2:])
            self.trans = mn.replace("_e32","").replace("_e64","") in TRANS
            self.dpp = "_dpp" in mn
            self.dot = mn.startswith("v_dot")
            if self.dpp and ("bound_ctrl" not in mods): self.r |= R[0]
        elif mn.startswith("ds_"):
            self.cls = "ds"
            if mn.startswith(("ds_read","ds_bpermute","ds_permute","ds_swizzle")): self.w = R[0]; self.r = U(R[1:])
            else: self.r = U(R)
        elif mn.startswith(("buffer_","global_")):
            self.cls = "vmem"
            lds = re.search(r"\blds\b", mods) is not None
            self.lds = lds
            if mn.startswith("buffer_inv") or mn.startswith("buffer_wbl2"): pass
            elif "_load_" in mn:
                if lds: self.r = U(R) | {("m0",0)}
                else: self.w = R[0]; self.r = U(R[1:])
            else:
                self.r = U(R)
                if mn.endswith(("x3","x4")):
                    self.sdata = R[0] if mn.startswith("buffer_") else R[1]
        elif mn.startswith("s_"):
            self.cls = "salu"
            if mn.startswith(("s_cmp","s_cbranch","s_branch","s_waitcnt","s_barrier","s_nop","s_sleep","s_setprio","s_endpgm","s_bitcmp")):
                self.r = U(R)
                if mn.startswith("s_cbranch_vcc"): self.r |= {("vcc",0)}
            else:
                self.w = R[0] if R else set(); self.r = U(R[1:])
                if "saveexec" in mn: self.w |= {("exec",0)}
        else:
            raise ValueError("unknown instr: " + text)
    def states(self):
        if self.label or self.dir or not self.cls: return 0
        if self.mn == "s_nop": return int(self.ops[0]) + 1
        return 1
def V(s): return {x for x in s if x[0] == "v"}
def S(s): return {x for x in s if x[0] in ("s","vcc")}
def need(p, c):
    n = 0
    if p.cls == "valu":
        vw = V(p.w); sw = S(p.w)
        if c.cls == "mfma" and vw & c.r: n = max(n, 2)
        if p.trans and c.cls in ("valu","ds","vmem") and vw & c.r and not (c.cls=="valu" and c.trans): n = max(n, 1)
        if c.cls == "valu":
            if sw & c.r: n = max(n, 4 if c.mn.startswith(("v_readlane","v_writelane")) else 2)
            if c.mn.startswith(("v_readfirstlane","v_readlane")) and vw & c.r: n = max(n, 1)
            if (c.dpp or c.mn.startswith("v_permlane")) and vw & c.r: n = max(n, 2)
            if p.dot and vw & (c.r | c.w):
                same_c = (c.mn == p.mn and not (vw & set().union(*[regs_of(o) for o in c.ops[1:3]])))
                if not same_c: n = max(n, 3)
            if "sdwa" in p.mn and "dst_sel:DWORD" not in p.mods and vw & (c.r|c.w): n = max(n, 1)
        elif p.dot and vw & (c.r | c.w): n = max(n, 3)
        if c.cls == "vmem" and sw & c.r: n = max(n, 5)
        if c.cls == "salu" and sw & c.r: n = max(n, 1)
    if p.cls == "mfma":
        if c.cls == "mfma":
            if p.w & (c.A | c.B): n = max(n, 8)
            if p.w & c.C and p.w != c.C: n = max(n, 6)
            if p.w & c.w and not (p.w == c.C): n = max(n, 6)
        elif c.cls in ("valu","ds","vmem"):
            if p.w & (c.r | c.w): n = max(n, 8)
            if c.cls == "valu" and p.C & c.w: n = max(n, 3)
    if p.cls == "salu" and ("m0",0) in p.w and c.cls == "vmem" and ("m0",0) in c.r: n = max(n, 1)
    if p.cls == "vmem" and p.sdata and p.sdata & c.w: n = max(n, 2 if c.cls == "valu" else 1)
    return n
class Em:
    def __init__(self):
        self.I = []; self.nl = 0
    def __call__(self, s):
        for l in s.split("\n"):
            l = l.strip()
            if l: self.I.append(Ins(l))
    def lab(self, p="L"):
        self.nl += 1; return f"{p}_{self.nl}"
    def _req(self, hist, c):
        d = 0; req = 0
        for p in reversed(hist):
            if d >= 20: break
            if p.cls:
                req = max(req, need(p, c) - d)
            d += p.states()
        return req
    def fix(self):
        changed = True; total = 0
        while changed:
            changed = False
            out = []
            for c in self.I:
                if c.cls:
                    h = []
                    for p in reversed(out[-40:]):
                        if p.mn in ("s_branch","s_endpgm","s_setpc_b64"): break
                        h.append(p)
                    h.reverse()
                    r = self._req(h, c)
                    if r > 0:
                        out.append(Ins(f"s_nop {r-1}")); total += 1; changed = True
                out.append(c)
            self.I = out
            labs = {c.text.split(";")[0].strip()[:-1]: i for i, c in enumerate(self.I) if c.label}
            for i, c in enumerate(self.I):
                if c.mn.startswith(("s_cbranch","s_branch")):
                    t = labs[c.ops[0]]
                    h = self.I[max(0,i-40):i+1]
                    r = 0; d = 0; hh = list(h)
                    for k in range(t, min(len(self.I), t+30)):
                        x = self.I[k]
                        if x.cls:
                            r = max(r, self._req(hh, x))
                            if x.mn in ("s_branch","s_endpgm"): break
                        hh.append(x); d += x.states()
                        if d > 20: break
                    if r > 0:
                        self.I.insert(i, Ins(f"s_nop {r-1}")); total += 1; changed = True
                        break
        return total
    def text(self):
        return "\n".join((c.text if (c.label or c.dir) else "    " + c.text) for c in self.I) + "\n"

class Q:
    def __init__(self, em, name, cap):
        self.em = em; self.name = name; self.cap = cap; self.q = []
    def issue(self, tag): self.q.append(tag)
    def count_for(self, tags):
        if not isinstance(tags, (list, set)): tags = [tags]
        idx = [i for i, t in enumerate(self.q) if t in tags]
        if not idx: return None
        return len(self.q) - 1 - max(idx)
    def wait(self, tags):
        n = self.count_for(tags)
        if n is None: return
        n = min(n, self.cap)
        self.em(f"s_waitcnt {self.name}({n})")
        self.q = self.q[len(self.q)-n:] if n else []
    def wait_all(self):
        self.em(f"s_waitcnt {self.name}(0)"); self.q = []
    def clear(self): self.q = []
```

```python
import sys
from emit import Em, Q
NAME = "recurrent_scan__ssm_conv_s4d__mixer_channel_mlp__prompt"
STAMPS = "--stamps" in sys.argv
OUT = [a for a in sys.argv[1:] if not a.startswith("--")]
OUT = OUT[0] if OUT else "k.s"

FL_S, FL_W, FL_H, FL_C = 0, 1024, 2048, 6144
STATS = 0x4000
XNB = 0x10000
W2F = 0x300000
HF = 0x600000
ST = 0xD00000
STAMP = 0xFC0000
WS_SIZE = 0x1000000
OOB = 0x20000000
KSTEP = 8320
RING = 0
CH0 = 8 * KSTEP
CHSZ = 25792
SB = CH0 + 3 * CHSZ
CNT = SB + 10752
CS = 155136 + 512
assert CS % 512 == 0 and CS >= CNT + 1024 - 64
CNT = 154624
assert CNT >= SB + 10688
LDS_TOTAL = CS + 512
U1OFF, K0OFF, KCP = 4576, 9152, 4160
TBOFF = 5120 + 64
SPIN_MAX = 8192
LOG2E = 0x3fb8aa3b
INV2PI = 0x3e22f983

e = Em()
tail = []

def f32(x):
    import struct
    return "0x%08x" % struct.unpack("<I", struct.pack("<f", x))[0]
def srd(r, ptr, size):
    e(f"s_mov_b32 s{r}, s{ptr}\ns_mov_b32 s{r+1}, s{ptr+1}\ns_mov_b32 s{r+2}, {size}\ns_mov_b32 s{r+3}, 0x20000")
def vr(a, n): return f"v[{a}:{a+n-1}]"

class Stamper:
    def __init__(self, regs): self.regs = regs; self.n = 0
    def __call__(self, em=None):
        if not STAMPS: return
        r = self.regs[self.n]; self.n += 1
        e(f"s_memrealtime s[{r}:{r+1}]")
    def flush(self, v0, v1):
        if not STAMPS: return
        e("s_waitcnt lgkmcnt(0)")
        e("s_lshl_b32 s6, s2, 3\ns_add_u32 s6, s6, s3\ns_lshl_b32 s6, s6, 6")
        e(f"s_add_u32 s6, s6, {STAMP}")
        e(f"v_mov_b32 v{v1}, 0")
        e("s_mov_b64 exec, 1")
        for i, r in enumerate([46] + self.regs[:self.n]):
            e(f"v_mov_b32 v{v0}, s{r}")
            e(f"buffer_store_dword v{v0}, v{v1}, s[48:51], s6 offen offset:{4*i}")
            e("s_nop 0")
        e("s_waitcnt vmcnt(0)")

def spin_global(loads, combine, chk):
    L = e.lab("SPIN"); B = e.lab("BACK")
    e(f"s_cbranch_vccnz {L}")
    e(f"{B}:")
    t = [f"{L}:", f"s_mov_b32 s12, {SPIN_MAX}", f"{L}_a:", "s_sleep 2"] + loads + ["s_waitcnt vmcnt(0)"] + combine
    t += [f"v_cmp_ne_u32 vcc, 1, v{chk}", f"s_cbranch_vccz {B}", "s_sub_u32 s12, s12, 1", f"s_cbranch_scc0 {L}_a", f"s_branch {B}"]
    tail.extend(t)

def spin_lds(vchk, vaddr, vval):
    L = e.lab("SPIN"); B = e.lab("BACK")
    e(f"v_cmp_gt_u32 vcc, v{vval}, v{vchk}")
    e(f"s_cbranch_vccnz {L}")
    e(f"{B}:")
    tail.extend([f"{L}:", f"s_mov_b32 s12, {SPIN_MAX*16}", f"{L}_a:", f"ds_read_b32 v{vchk}, v{vaddr}", "s_waitcnt lgkmcnt(0)",
                 f"v_cmp_gt_u32 vcc, v{vval}, v{vchk}", f"s_cbranch_vccz {B}", "s_sub_u32 s12, s12, 1", f"s_cbranch_scc0 {L}_a", f"s_branch {B}"])

def go_check(vt, vz, srd_dbg):
    e(f"v_cmp_ne_u32 vcc, 1, v{vt}")
    spin_global([f"buffer_load_dword v{vt}, v{vz}, s[{srd_dbg}:{srd_dbg+3}], 0 offen sc1"], [], vt)

def rb(dst, src):
    e(f"v_cvt_pk_bf16_f32 v{dst}, v{src}, v{src}\nv_and_b32 v{dst}, 0xffff0000, v{dst}")
def cmul(z, x, y, t=None):
    t = z if t is None else t
    e(f"v_pk_mul_f32 {vr(t,2)}, {vr(x,2)}, {vr(y,2)} op_sel_hi:[1,0]")
def cmul2(z, x, y, t=None):
    t = z if t is None else t
    e(f"v_pk_fma_f32 {vr(z,2)}, {vr(x,2)}, {vr(y,2)}, {vr(t,2)} op_sel:[1,1,0] op_sel_hi:[0,1,1] neg_lo:[0,1,0]")

e("s_cmp_ge_u32 s2, 256")
e("s_cbranch_scc1 L_END")
if STAMPS: e("s_memrealtime s[46:47]")
e("s_load_dwordx16 s[16:31], s[0:1], 0")
e("s_load_dwordx8 s[32:39], s[0:1], 64")
e("s_load_dwordx4 s[40:43], s[0:1], 96")
e("s_load_dwordx2 s[44:45], s[0:1], 112")
e("v_lshrrev_b32 v1, 6, v0")
e("v_and_b32 v0, 63, v0")
e("v_readfirstlane_b32 s3, v1")
e("s_and_b32 s4, s2, 7")
e("s_lshr_b32 s5, s2, 3")
e("s_cmp_ge_u32 s3, 4")
e("s_cbranch_scc1 L_AUX")

stG = Stamper([30,32,34,36,38,96,98,100])
vm = Q(e, "vmcnt", 63); lg = Q(e, "lgkmcnt", 15)
XR, WB, ONES = 12, 76, 108
ACC, CSA = 112, 176
VCHK, VGO, VB1, VST, VCS, VT = 184, 185, 186, 202, 208, 216
sW = [76+i for i in range(10)]; sX = [86+i for i in range(10)]; sK = [16+i for i in range(14)]
e("s_setprio 2")
e(f"v_lshlrev_b32 v9, 2, v0")
e(f"s_lshl_b32 s6, s3, 8\ns_add_u32 s6, s6, {CNT}")
e("v_add_u32 v9, s6, v9")
e("v_mov_b32 v11, 0")
e("ds_write_b32 v9, v11")
e("v_lshrrev_b32 v10, 4, v0")
e("v_and_b32 v8, 15, v0")
e("s_lshr_b32 s6, s5, 3\ns_lshl_b32 s13, s4, 2\ns_add_u32 s13, s13, s6\ns_and_b32 s14, s5, 7")
e("s_mul_i32 s15, s14, 7\ns_lshr_b32 s15, s15, 2\ns_mul_i32 s6, s6, 7\ns_lshr_b32 s6, s6, 1\ns_add_u32 s15, s15, s6")
e("s_cmp_ge_u32 s15, 14\ns_cselect_b32 s6, 14, 0\ns_sub_u32 s15, s15, s6")
e("s_cmp_lt_u32 s5, 4")
e("s_cbranch_scc1 L_WTASK")
e("s_sub_u32 s6, s5, 4\ns_mul_i32 s7, s6, 37\ns_lshr_b32 s7, s7, 8\ns_mul_i32 s8, s7, 7\ns_sub_u32 s6, s6, s8")
e("s_mul_i32 s10, s6, 370\ns_lshr_b32 s10, s10, 8\ns_mul_i32 s11, s7, 5\ns_lshr_b32 s11, s11, 1\ns_add_u32 s10, s10, s11")
e("s_cmp_ge_u32 s10, 10\ns_cselect_b32 s11, 10, 0\ns_sub_u32 s10, s10, s11")
e("s_lshr_b32 s8, s4, 1\ns_lshl_b32 s8, s8, 2\ns_add_u32 s8, s8, s7")
e("s_and_b32 s9, s4, 1\ns_mul_i32 s9, s9, 7\ns_add_u32 s9, s9, s6")
e("s_lshl_b32 s11, s9, 8")
for p in range(10):
    if p:
        e("s_add_u32 s10, s10, 1\ns_cmp_eq_u32 s10, 10\ns_cselect_b32 s10, 0, s10")
    e(f"s_mul_i32 s{sW[p]}, s10, 221184\ns_add_u32 s{sW[p]}, s{sW[p]}, s11\ns_lshl_b32 s{sX[p]}, s10, 7")
e("v_bfe_u32 v1, v0, 2, 2")
e("s_lshl_b32 s6, s3, 3")
e("v_add_u32 v1, s6, v1")
e("s_mov_b32 s7, 3456")
e("v_mul_lo_u32 v1, v1, s7")
e("v_lshl_add_u32 v1, v10, 6, v1")
e("v_and_b32 v2, 3, v0")
e("v_lshl_add_u32 v1, v2, 4, v1")
e(f"v_add_u32 v2, {4*3456-1024}, v1")
e("s_lshl_b32 s6, s8, 7\ns_lshl_b32 s7, s3, 5\ns_add_u32 s6, s6, s7")
e("v_add_u32 v3, s6, v8")
e("s_movk_i32 s7, 1280")
e("v_mul_lo_u32 v3, v3, s7")
e("v_lshl_add_u32 v3, v10, 4, v3")
e("v_add_u32 v4, 20480, v3")
e("s_waitcnt lgkmcnt(0)")
e("s_mul_i32 s1, s3, 2080")
srd(52, 16, 2621440); srd(56, 32, 2211840)

def chunk_ops(c):
    ops = []
    slot0 = (c % 4) * 2
    for k2 in (0, 1):
        def dma(k2=k2):
            e(f"s_add_u32 m0, s1, {(slot0+k2)*KSTEP}")
            if k2: e(f"s_add_u32 s6, s{sW[c]}, 110592")
            else: e("s_nop 0")
            so = "s6" if k2 else f"s{sW[c]}"
            e(f"buffer_load_dwordx4 v1, s[56:59], {so} offen lds"); vm.issue(("dma", c))
            e(f"buffer_load_dwordx4 v2, s[56:59], {so} offen offset:1024 lds"); vm.issue(("dma", c))
        ops.append(dma)
    for mt in (0, 1):
        def xl(mt=mt):
            for k2 in (0, 1):
                r = XR + (c % 4) * 16 + k2 * 8 + mt * 4
                e(f"buffer_load_dwordx4 {vr(r,4)}, v{3+mt}, s[52:55], s{sX[c]} offen offset:{64*k2}"); vm.issue(("x", c))
        ops.append(xl)
    return ops
for op in chunk_ops(0): op()
srd(48, 44, WS_SIZE); srd(60, 34, 3456); srd(64, 38, 1280); srd(68, 40, 2621440); srd(72, 42, 256)
for op in chunk_ops(1): op()
e("v_mul_u32_u24 v5, 2080, v10")
e("v_bfe_u32 v6, v0, 2, 2")
e("v_lshl_add_u32 v5, v6, 6, v5")
e("v_and_b32 v6, 3, v0")
e("v_lshl_add_u32 v184, v6, 3, v5")
for tp in range(4):
    e(f"s_xor_b32 s6, s3, {tp}\ns_lshl_b32 s6, s6, 8")
    e(f"v_add_u32 v{5+tp}, s6, v184")
for i in range(4): e(f"v_mov_b32 v{ONES+i}, 0x3f803f80")
for op in chunk_ops(2): op()
e("v_lshlrev_b32 v184, 3, v10")
e("s_lshl_b32 s6, s3, 6")
e("v_add_u32 v184, s6, v184")
for tp in range(4):
    e(f"v_xor_b32 v185, {64*tp}, v184")
    for h in (0, 1):
        r = VB1 + (2*tp+h)*2
        e(f"buffer_load_dwordx2 {vr(r,2)}, v185, s[60:63], s11 offen offset:{32*h}"); vm.issue("b1")
def kappa_table():
    e("s_mov_b32 s6, s15")
    for i in range(14):
        if i: e("s_add_u32 s6, s6, 1\ns_cmp_eq_u32 s6, 14\ns_cselect_b32 s6, 0, s6")
        e(f"s_lshl2_add_u32 s7, s6, s3\ns_cmp_ge_u32 s7, 54\ns_cselect_b32 s7, {0x8000000>>10}, s7\ns_lshl_b32 s{sK[i]}, s7, 10")
def gcommon():
    kappa_table()
    e("v_and_b32 v209, 15, v0")
    e("v_lshlrev_b32 v10, 8, v10")
    e("v_lshl_add_u32 v10, v209, 2, v10")
    e(f"v_add_u32 v10, {CNT}, v10")
    e("s_barrier")
gcommon()
stG()
def signal():
    e("v_add_u32 v11, 1, v11")
    e("ds_write_b32 v9, v11"); lg.issue("sig")
def chk_read():
    e(f"ds_read_b32 v{VCHK}, v10"); lg.issue("chk")
def chk_eval():
    lg.wait("chk")
    spin_lds(VCHK, 10, 11)
def tr_reads(step, t):
    base = (step % 8) * KSTEP + 32 * (t & 1)
    for hf_ in (0, 1):
        r = WB + 4*t + 2*hf_
        e(f"ds_read_b64_tr_b16 {vr(r,2)}, v{5+(t>>1)} offset:{base + 1024*hf_}"); lg.issue(("w", step, t))
vm.wait(("dma", 0))
signal(); chk_read(); chk_eval()
stG()
for t in range(8): tr_reads(0, t)
VFL = 216
for i in range(20):
    c, k2 = divmod(i, 2)
    fill = {t: [] for t in range(8)}
    if k2 == 0 and c + 1 <= 9:
        def sg(c=c):
            vm.wait(("dma", c+1)); signal()
        fill[1].append(sg); fill[5].append(chk_read)
    if k2 == 1 and c + 3 <= 9:
        ops = chunk_ops(c+3)
        for n, op in enumerate(ops): fill[2*n].append(op)
    if i == 4:
        def f():
            e(f"v_mov_b32 v{VFL+6}, 0")
            e(f"buffer_load_dword v{VGO}, v{VFL+6}, s[72:75], 0 offen sc1"); vm.issue("go")
        fill[3].append(f)
    if i == 8:
        def f():
            vm.wait("go"); go_check(VGO, VFL+6, 72)
        fill[3].append(f)
    FLD = [f"buffer_load_dwordx4 {vr(VFL,4)}, v{VFL+6}, s[48:51], 0 offen sc1",
           f"buffer_load_dwordx2 {vr(VFL+4,2)}, v{VFL+7}, s[48:51], 0 offen offset:{FL_W} sc1"]
    FCMB = [f"v_and_b32 v{VFL}, v{VFL}, v{VFL+1}", f"v_and_b32 v{VFL+2}, v{VFL+2}, v{VFL+3}", f"v_and_b32 v{VFL+4}, v{VFL+4}, v{VFL+5}",
            f"v_and_b32 v{VFL}, v{VFL}, v{VFL+2}", f"v_and_b32 v{VFL}, v{VFL}, v{VFL+4}"]
    if i == 14:
        def f():
            e(f"v_lshlrev_b32 v{VFL+6}, 4, v0")
            e(f"v_min_u32 v{VFL+7}, 53, v0\nv_lshlrev_b32 v{VFL+7}, 3, v{VFL+7}")
            for l in FLD: e(l); vm.issue("fl")
        fill[3].append(f)
    if i == 17:
        def f():
            vm.wait("fl")
            for l in FCMB: e(l)
            e(f"v_cmp_ne_u32 vcc, 1, v{VFL}")
            spin_global(FLD, FCMB, VFL)
            e(f"v_and_b32 v{VFL+6}, 15, v0\nv_lshlrev_b32 v{VFL+6}, 3, v{VFL+6}")
            e(f"s_lshl_b32 s6, s8, 10\ns_lshl_b32 s7, s3, 8\ns_add_u32 s6, s6, s7\ns_add_u32 s6, s6, {STATS}")
            e(f"buffer_load_dwordx2 {vr(VST,2)}, v{VFL+6}, s[48:51], s6 offen sc1"); vm.issue("st")
            e(f"buffer_load_dwordx2 {vr(VST+2,2)}, v{VFL+6}, s[48:51], s6 offen offset:128 sc1"); vm.issue("st")
        fill[3].append(f)
    for t in range(8):
        if t % 2 == 0: lg.wait([("w", i, t), ("w", i, t+1)])
        if t == 0 and k2 == 0: vm.wait(("x", c))
        for mt in (0, 1):
            a = ACC + (2*t+mt)*4
            x = XR + (c % 4)*16 + k2*8 + mt*4
            e(f"v_mfma_f32_16x16x32_bf16 {vr(a,4)}, {vr(WB+4*t,4)}, {vr(x,4)}, {vr(a,4) if i else 0}")
        if t < 2:
            a = CSA + 4*t
            e(f"v_mfma_f32_16x16x32_bf16 {vr(a,4)}, {vr(WB+4*t,4)}, {vr(ONES,4)}, {vr(a,4) if i else 0}")
        if i < 19: tr_reads(i+1, t)
        for f in fill[t]: f()
    if k2 == 0 and c + 1 <= 9: chk_eval()
stG()
e("v_lshrrev_b32 v5, 4, v0")
e(f"v_lshlrev_b32 v5, 4, v5")
e(f"s_lshl_b32 s6, s3, 7\ns_add_u32 s6, s6, {CS}")
e("v_add_u32 v5, s6, v5")
e("s_mov_b32 s6, 0x00010001\ns_mov_b32 s7, 0x00010001\ns_mov_b64 exec, s[6:7]")
e(f"ds_write_b128 v5, {vr(CSA,4)}"); lg.issue("csw")
e(f"ds_write_b128 v5, {vr(CSA+4,4)} offset:64"); lg.issue("csw")
e("s_mov_b64 exec, -1")
signal(); chk_read()
e("L_PREF:")
e("v_lshlrev_b32 v1, 4, v0")
e("v_add_u32 v2, 4096, v1")
e(f"s_mul_i32 s10, s14, 276480\ns_add_u32 s10, s10, {W2F}")
e(f"s_mul_i32 s11, s13, 221184\ns_add_u32 s11, s11, {HF}")
def w2_load(i):
    e(f"s_lshl2_add_u32 s6, s{sK[i]}, s10\ns_add_u32 s6, s6, s{sK[i]}")
    for dt in range(5):
        r = 12 + (i % 5)*20 + dt*4
        if dt < 4: e(f"buffer_load_dwordx4 {vr(r,4)}, v1, s[48:51], s6 offen offset:{1024*dt} sc1")
        else: e(f"buffer_load_dwordx4 {vr(r,4)}, v2, s[48:51], s6 offen sc1")
        vm.issue(("w2", i))
for i in range(5): w2_load(i)
e("s_cmp_lt_u32 s5, 4")
e("s_cbranch_scc1 L_G2")
chk_eval()
VC = 206
e(f"v_mov_b32 v{VC}, {f32(-2*0.7978845608028654*1.4426950408889634)}")
e(f"v_mov_b32 v{VC+1}, {f32(-2*0.7978845608028654*1.4426950408889634*0.044715)}")
e(f"s_lshr_b32 s6, s3, 1\ns_lshl_b32 s7, s8, 1\ns_add_u32 s6, s6, s7\ns_mul_i32 s44, s6, 221184\ns_and_b32 s7, s3, 1\ns_lshl_b32 s7, s7, 11")
e(f"s_add_u32 s44, s44, s7\ns_add_u32 s44, s44, {HF}")
e(f"s_lshl_b32 s45, s6, 7\ns_and_b32 s7, s3, 1\ns_lshl1_add_u32 s7, s9, s7\ns_lshl2_add_u32 s45, s7, s45\ns_add_u32 s45, s45, {FL_H}")
def cs_read(tp):
    b = VCS if tp % 2 == 0 else VT + 32
    e(f"v_xor_b32 v6, {128*tp}, v5")
    e(f"ds_read_b128 {vr(b,4)}, v6"); lg.issue(("cs", tp))
    e(f"ds_read_b128 {vr(b+4,4)}, v6 offset:64"); lg.issue(("cs", tp))
cs_read(0)
vm.wait(["b1", "st"])
TB1, TP, TQ, TE, TO = VT, VT+8, VT+16, VT+24, 176
for tp in range(4):
    csb = VCS if tp % 2 == 0 else VT + 32
    if tp < 3: cs_read(tp+1)
    for h in (0, 1):
        for k in (0, 1):
            s = VB1 + (2*tp+h)*2 + k
            e(f"v_lshlrev_b32 v{TB1+4*h+2*k}, 16, v{s}\nv_and_b32 v{TB1+4*h+2*k+1}, 0xffff0000, v{s}")
    e(f"s_xor_b32 s6, s3, {tp}\ns_lshl2_add_u32 s6, s9, s6\ns_cmp_ge_u32 s6, 54\ns_cselect_b32 s7, {OOB}, s44\ns_lshl_b32 s6, s6, 12\ns_add_u32 s6, s6, s7")
    lg.wait(("cs", tp))
    for mt in (0, 1):
        st = VST + 2*mt
        P = range(4)
        acc = lambda q: ACC + (2*(2*tp + (q >> 1)) + mt)*4 + 2*(q & 1)
        for q in P: e(f"v_pk_fma_f32 {vr(TP+2*q,2)}, {vr(st,2)}, {vr(csb+2*q,2)}, {vr(TB1+2*q,2)} op_sel:[1,0,0] op_sel_hi:[1,1,1] neg_lo:[1,0,0] neg_hi:[1,0,0]")
        for q in P: e(f"v_pk_fma_f32 {vr(TP+2*q,2)}, {vr(acc(q),2)}, {vr(st,2)}, {vr(TP+2*q,2)} op_sel_hi:[1,0,1]")
        for q in P: e(f"v_pk_mul_f32 {vr(TQ+2*q,2)}, {vr(TP+2*q,2)}, {vr(TP+2*q,2)}")
        for q in P: e(f"v_pk_fma_f32 {vr(TQ+2*q,2)}, {vr(VC,2)}, {vr(TQ+2*q,2)}, {vr(VC,2)} op_sel:[1,0,0] op_sel_hi:[1,1,0]")
        for q in P: e(f"v_pk_mul_f32 {vr(TQ+2*q,2)}, {vr(TQ+2*q,2)}, {vr(TP+2*q,2)}")
        for q in range(8): e(f"v_exp_f32 v{TE+q}, v{TQ+q}")
        for q in P: e(f"v_pk_add_f32 {vr(TE+2*q,2)}, {vr(TE+2*q,2)}, 1.0 op_sel_hi:[1,0]")
        for q in range(8): e(f"v_rcp_f32 v{TE+q}, v{TE+q}")
        for q in P: e(f"v_pk_mul_f32 {vr(TP+2*q,2)}, {vr(TP+2*q,2)}, {vr(TE+2*q,2)}")
        o = TO + 4*mt
        for q in P: e(f"v_cvt_pk_bf16_f32 v{o+q}, v{TP+2*q}, v{TP+2*q+1}")
        e(f"buffer_store_dwordx4 {vr(o,4)}, v1, s[48:51], s6 offen offset:{1024*mt} sc1"); vm.issue("hst")
vm.wait_all()
e("v_mov_b32 v6, 0\nv_mov_b32 v7, 1\ns_mov_b64 exec, 1")
e("buffer_store_dword v7, v6, s[48:51], s45 offen sc1")
e("s_mov_b64 exec, -1")
stG()
e("L_G2:")
A2, HR = 112, 192
for ml in range(4):
    e(f"s_xor_b32 s6, s3, {ml}\ns_lshl_b32 s6, s6, 10")
    e(f"v_add_u32 v{3+ml}, s6, v1")
e("v_min_u32 v7, 27, v0\nv_lshlrev_b32 v7, 2, v7")
e(f"s_lshl_b32 s9, s13, 7\ns_add_u32 s9, s9, {FL_H}")
HL = ["buffer_load_dword v8, v7, s[48:51], s9 offen sc1"]
e(HL[0]); e("s_waitcnt vmcnt(0)"); vm.clear()
e("v_cmp_ne_u32 vcc, 1, v8")
spin_global(HL, [], 8)
stG()
def h_load(i):
    e(f"s_lshl2_add_u32 s6, s{sK[i]}, s11")
    for ml in range(4):
        r = HR + (i % 4)*16 + ml*4
        e(f"buffer_load_dwordx4 {vr(r,4)}, v{3+ml}, s[48:51], s6 offen sc1"); vm.issue(("h", i))
for i in range(4): h_load(i)
FX, FB2, FCF, FS = 92, 102, 8, 12
FCF = 32
CL = [f"buffer_load_dwordx2 {vr(FCF,2)}, v7, s[48:51], s9 offen sc1"]
CCMB = [f"v_and_b32 v{FCF}, v{FCF}, v{FCF+1}"]
for i in range(14):
    vm.wait([("w2", i), ("h", i)])
    for ml in range(4):
        for dt in range(5):
            a = A2 + (ml*5+dt)*4
            e(f"v_mfma_f32_16x16x32_bf16 {vr(a,4)}, {vr(12+(i%5)*20+dt*4,4)}, {vr(HR+(i%4)*16+ml*4,4)}, {vr(a,4) if i else 0}")
    if i + 5 < 14: w2_load(i+5)
    if i + 4 < 14: h_load(i+4)
    if i == 9:
        e("v_and_b32 v7, 15, v0\nv_lshrrev_b32 v8, 4, v0")
        e("s_lshl_b32 s6, s13, 6\ns_lshl_b32 s7, s3, 4\ns_add_u32 s6, s6, s7")
        e("v_add_u32 v7, s6, v7\ns_movk_i32 s7, 1280\nv_mul_lo_u32 v7, v7, s7")
        e("v_lshlrev_b32 v8, 3, v8\nv_add_u32 v2, v7, v8")
        e("s_mul_i32 s8, s14, 160")
        for dt in range(5):
            e(f"buffer_load_dwordx2 {vr(FX+2*dt,2)}, v2, s[52:55], s8 offen offset:{32*dt}"); vm.issue("fx")
            e(f"buffer_load_dwordx2 {vr(FB2+2*dt,2)}, v8, s[64:67], s8 offen offset:{32*dt}"); vm.issue("fx")
    if i == 11:
        e("v_min_u32 v7, 39, v0\nv_lshlrev_b32 v7, 3, v7")
        e(f"s_mul_i32 s9, s14, 320\ns_add_u32 s9, s9, {FL_C}")
        e(CL[0]); vm.issue("cf")
stG()
for ml in (1, 2, 3):
    e(f"s_xor_b32 s6, s3, {ml}\ns_mul_i32 s6, s6, 15360\ns_add_u32 s6, s6, {(ml-1)*5120}")
    e(f"v_add_u32 v{3+ml}, s6, v1")
vm.wait("cf")
e(CCMB[0]); e(f"v_cmp_ne_u32 vcc, 1, v{FCF}")
spin_global(CL, CCMB, FCF)
e("v_lshrrev_b32 v7, 1, v0\nv_and_b32 v8, 1, v0\nv_lshlrev_b32 v34, 12, v7\nv_lshl_add_u32 v34, v8, 4, v34")
e(f"s_mul_i32 s6, s14, 327680\ns_lshl_b32 s7, s13, 7\ns_add_u32 s6, s6, s7\ns_lshl_b32 s7, s3, 5\ns_add_u32 s6, s6, s7\ns_add_u32 s6, s6, {ST}")
for i in range(3):
    if i == 2: e("s_mov_b32 exec_hi, 0")
    e(f"buffer_load_dwordx4 {vr(FS+4*i,4)}, v34, s[48:51], s6 offen sc1"); vm.issue("sT")
    if i < 2: e(f"s_add_u32 s6, s6, {32*4096}")
e("s_mov_b64 exec, -1")
for ml in (1, 2, 3):
    for dt in range(5):
        e(f"ds_write_b128 v{3+ml}, {vr(A2+(ml*5+dt)*4,4)} offset:{1024*dt}"); lg.issue("red")
signal(); chk_read()
stG()
e(f"s_mul_i32 s6, s3, 2560\ns_add_u32 s6, s6, {SB}")
e("v_lshlrev_b32 v35, 4, v0\nv_add_u32 v35, s6, v35")
vm.wait("sT")
for i in range(3):
    if i == 2: e("s_mov_b32 exec_hi, 0")
    e(f"ds_write_b128 v35, {vr(FS+4*i,4)} offset:{1024*i}"); lg.issue("sw")
e("s_mov_b64 exec, -1")
e("v_lshlrev_b32 v35, 3, v0\nv_add_u32 v35, s6, v35")
for dt in range(5):
    e(f"ds_read_b64_tr_b16 {vr(36+2*dt,2)}, v35 offset:{512*dt}"); lg.issue("str")
chk_eval()
e(f"s_mul_i32 s6, s3, 15360")
e("v_add_u32 v3, s6, v1")
RD = 192
for s_ in range(3):
    for dt in range(5):
        e(f"ds_read_b128 {vr(RD+(s_*5+dt)*4,4)}, v3 offset:{5120*s_+1024*dt}"); lg.issue(("rd", dt))
vm.wait("fx")
lg.wait_all()
T = 48
for dt in range(5):
    a = A2 + dt*4
    for k in (0, 1):
        e(f"v_lshlrev_b32 v{T+2*k}, 16, v{FB2+2*dt+k}\nv_and_b32 v{T+2*k+1}, 0xffff0000, v{FB2+2*dt+k}")
    for k in (0, 1):
        e(f"v_pk_add_f32 {vr(a+2*k,2)}, {vr(a+2*k,2)}, {vr(RD+dt*4+2*k,2)}")
        e(f"v_pk_add_f32 {vr(T+4+2*k,2)}, {vr(RD+(5+dt)*4+2*k,2)}, {vr(RD+(10+dt)*4+2*k,2)}")
    for k in (0, 1):
        e(f"v_pk_add_f32 {vr(a+2*k,2)}, {vr(a+2*k,2)}, {vr(T+2*k,2)}")
    for k in (0, 1):
        e(f"v_pk_add_f32 {vr(a+2*k,2)}, {vr(a+2*k,2)}, {vr(T+4+2*k,2)}")
    for k in range(4): e(f"v_mul_f32 v{T+k}, {f32(-1.4426950408889634)}, v{a+k}")
    for k in range(4): e(f"v_exp_f32 v{T+k}, v{T+k}")
    for k in (0, 1):
        e(f"v_lshlrev_b32 v{T+4+2*k}, 16, v{36+2*dt+k}\nv_and_b32 v{T+5+2*k}, 0xffff0000, v{36+2*dt+k}")
    for k in (0, 1): e(f"v_pk_add_f32 {vr(T+2*k,2)}, {vr(T+2*k,2)}, 1.0 op_sel_hi:[1,0]")
    for k in range(4): e(f"v_rcp_f32 v{T+k}, v{T+k}")
    for k in (0, 1): e(f"v_pk_mul_f32 {vr(a+2*k,2)}, {vr(a+2*k,2)}, {vr(T+4+2*k,2)}")
    for k in (0, 1):
        e(f"v_lshlrev_b32 v{T+4+2*k}, 16, v{FX+2*dt+k}\nv_and_b32 v{T+5+2*k}, 0xffff0000, v{FX+2*dt+k}")
    for k in (0, 1): e(f"v_pk_fma_f32 {vr(a+2*k,2)}, {vr(a+2*k,2)}, {vr(T+2*k,2)}, {vr(T+4+2*k,2)}")
    for k in (0, 1): e(f"v_cvt_pk_bf16_f32 v{T+8+2*dt+k}, v{a+2*k}, v{a+2*k+1}")
    e(f"buffer_store_dwordx2 {vr(T+8+2*dt,2)}, v2, s[68:71], s8 offen offset:{32*dt}")
stG()
stG.flush(60, 61)
e("s_endpgm")

e("L_WTASK:")
e("v_lshrrev_b32 v10, 4, v0")
e("s_lshl_b32 s8, s2, 2\ns_add_u32 s8, s8, s3")
for i in range(5):
    e(f"v_add_u32 v1, {64*i}, v0\nv_mul_u32_u24 v2, 3277, v1\nv_lshrrev_b32 v2, 16, v2")
    e("v_mul_u32_u24 v3, 20, v2\nv_sub_u32 v3, v1, v3")
    e(f"v_mul_u32_u24 v{112+i}, 1280, v2\nv_lshl_add_u32 v{112+i}, v3, 4, v{112+i}")
    e(f"v_mul_u32_u24 v{117+i}, 352, v2\nv_lshl_add_u32 v{117+i}, v3, 4, v{117+i}")
e("s_mul_i32 s9, s3, 11264")
for i in range(5): e(f"v_add_u32 v{117+i}, s9, v{117+i}")
e("s_lshr_b32 s6, s8, 1\ns_mul_i32 s10, s6, 40960\ns_and_b32 s7, s8, 1\ns_mul_i32 s11, s7, 640\ns_add_u32 s10, s10, s11")
e("s_add_u32 s11, s10, 20480")
e("s_waitcnt lgkmcnt(0)")
srd(56, 36, 2211840)
for a in (0, 1):
    for i in range(10):
        r = 128 + (a*10+i)*4
        e(f"buffer_load_dwordx4 {vr(r,4)}, v{112+i%5}, s[56:59], s{10 + i//5} offen offset:{320*a}")
srd(52, 16, 2621440); srd(48, 44, WS_SIZE); srd(64, 38, 1280); srd(68, 40, 2621440); srd(72, 42, 256)
e(f"v_mov_b32 v{VFL+6}, 0")
gcommon()
e("v_lshrrev_b32 v1, 2, v0\nv_mul_u32_u24 v1, 352, v1\nv_and_b32 v2, 3, v0\nv_lshl_add_u32 v1, v2, 3, v1\nv_add_u32 v1, s9, v1")
e("v_lshlrev_b32 v2, 4, v0")
e(f"s_lshr_b32 s6, s8, 1\ns_mul_i32 s10, s6, 5120\ns_and_b32 s7, s8, 1\ns_mul_i32 s7, s7, {4*276480}\ns_add_u32 s10, s10, s7\ns_add_u32 s10, s10, {W2F}")
e(f"s_cmp_ge_u32 s8, 108\ns_cselect_b32 s10, {OOB}, s10")
for a in (0, 1):
    if a == 0: e("s_waitcnt vmcnt(10)")
    for i in range(10):
        r = 128 + (a*10+i)*4
        e(f"ds_write_b128 v{117+i%5}, {vr(r,4)} offset:{(i//5)*16*352}")
    e("s_waitcnt lgkmcnt(0)")
    for dt in range(10):
        r = 12 + dt*4
        e(f"ds_read_b64_tr_b16 {vr(r,2)}, v1 offset:{32*dt}")
        e(f"ds_read_b64_tr_b16 {vr(r+2,2)}, v1 offset:{32*dt+16*352}")
    for half in (0, 1):
        e(f"s_add_u32 s6, s10, {(2*a+half)*276480}\ns_add_u32 s7, s6, 4096")
        e(f"s_waitcnt lgkmcnt({10 if half == 0 else 0})")
        if a == 0 and half == 0: e("s_waitcnt vmcnt(0)")
        for d5 in range(5):
            r = 12 + (half*5+d5)*4
            if d5 < 4: e(f"buffer_store_dwordx4 {vr(r,4)}, v2, s[48:51], s6 offen offset:{1024*d5} sc1")
            else: e(f"buffer_store_dwordx4 {vr(r,4)}, v2, s[48:51], s7 offen sc1")
e(f"buffer_load_dword v{VGO}, v{VFL+6}, s[72:75], 0 offen sc1")
e("s_waitcnt vmcnt(0)")
go_check(VGO, VFL+6, 72)
e(f"s_lshl_b32 s6, s8, 2\ns_add_u32 s6, s6, {FL_W}\ns_cmp_ge_u32 s8, 108\ns_cselect_b32 s6, {OOB}, s6")
e(f"v_mov_b32 v7, 1\ns_mov_b64 exec, 1")
e(f"buffer_store_dword v7, v{VFL+6}, s[48:51], s6 offen sc1")
e("s_mov_b64 exec, -1")
e(f"v_lshlrev_b32 v{VFL+6}, 4, v0")
e(f"v_min_u32 v{VFL+7}, 53, v0\nv_lshlrev_b32 v{VFL+7}, 3, v{VFL+7}")
for l in FLD: e(l)
e("s_waitcnt vmcnt(0)")
for l in FCMB: e(l)
e(f"v_cmp_ne_u32 vcc, 1, v{VFL}")
spin_global(FLD, FCMB, VFL)
if STAMPS:
    for r in stG.regs[:4]: e(f"s_memrealtime s[{r}:{r+1}]")
e("s_branch L_PREF")

e("L_AUX:")
e("s_cmp_eq_u32 s3, 7")
e("s_cbranch_scc1 L_S")
stC = Stamper([76,78,80,82,84,86,88,90])
e("s_sub_u32 s6, s3, 4")
e("s_mul_i32 s7, s5, 3\ns_lshl1_add_u32 s8, s5, 16\ns_cmp_lt_u32 s5, 16\ns_cselect_b32 s8, s7, s8\ns_cselect_b32 s7, 3, 2")
e("s_cmp_ge_u32 s6, s7")
e("s_cbranch_scc1 L_END")
e("s_add_u32 s8, s8, s6\ns_mul_i32 s7, s4, 80\ns_add_u32 s8, s8, s7")
e(f"s_mul_i32 s9, s6, {CHSZ}\ns_add_u32 s9, s9, {CH0}")
e("s_lshl_b32 s6, s8, 8")
e("v_lshlrev_b32 v1, 2, v0\nv_add_u32 v1, s6, v1")
e("s_lshl_b32 s6, s8, 1\nv_mov_b32 v2, s6")
e("s_waitcnt lgkmcnt(0)")
e("global_load_ushort v8, v2, s[26:27]")
e("global_load_dword v4, v1, s[18:19]")
e("global_load_dword v5, v1, s[20:21]")
e("global_load_dword v6, v1, s[22:23]")
e("global_load_dword v7, v1, s[24:25]")
e("global_load_ushort v9, v2, s[28:29]")
srd(48, 44, WS_SIZE); srd(72, 42, 256)
e("s_barrier")
e("v_and_b32 v10, 15, v0\nv_lshrrev_b32 v11, 4, v0")
e("v_lshrrev_b32 v12, 1, v10\nv_lshlrev_b32 v12, 5, v12\nv_and_b32 v13, 1, v10\nv_add_u32 v12, v12, v13")
e("v_lshlrev_b32 v13, 5, v10\nv_subrev_u32 v13, 128, v13\nv_cmp_gt_u32 vcc, 8, v10\nv_cndmask_b32 v12, v13, v12, vcc")
e("v_cvt_f32_u32 v12, v12\nv_lshlrev_b32 v13, 1, v10\nv_cvt_f32_u32 v13, v13")
e("v_lshlrev_b32 v14, 5, v11\nv_add_u32 v14, s9, v14")
e("v_mov_b32 v16, 2048\nv_mov_b32 v17, 1024\nv_cndmask_b32 v15, v16, v17, vcc\nv_add_u32 v15, v15, v14")
e("v_lshlrev_b32 v16, 4, v0\nv_add_u32 v16, s9, v16")
e("s_waitcnt vmcnt(1)")
stC()
e(f"v_lshlrev_b32 v8, 16, v8\nv_mul_f32 v8, {LOG2E}, v8\nv_exp_f32 v8, v8"); rb(8, 8)
LAM, CC, TE_, TM = 20, 24, 28, 36
for n in (0, 1):
    up = (lambda d, s: e(f"v_lshlrev_b32 v{d}, 16, v{s}")) if n == 0 else (lambda d, s: e(f"v_and_b32 v{d}, 0xffff0000, v{s}"))
    up(LAM+2*n, 4); up(LAM+2*n+1, 5); up(CC+2*n, 6); up(CC+2*n+1, 7)
    e(f"v_mul_f32 v{LAM+2*n}, {LOG2E}, v{LAM+2*n}\nv_exp_f32 v{LAM+2*n}, v{LAM+2*n}"); rb(LAM+2*n, LAM+2*n)
for n in (0, 1):
    e(f"v_mul_f32 v{LAM+2*n}, v{LAM+2*n}, v8\nv_mul_f32 v{LAM+2*n+1}, v{LAM+2*n+1}, v8")
    e(f"v_mul_f32 v{LAM+2*n}, {f32(-1.4426950408889634)}, v{LAM+2*n}\nv_mul_f32 v{LAM+2*n+1}, {INV2PI}, v{LAM+2*n+1}")
    e(f"v_mul_f32 v{CC+2*n}, v{CC+2*n}, v8\nv_mul_f32 v{CC+2*n+1}, v{CC+2*n+1}, v8")
    e(f"v_add_f32 v{CC+2*n}, v{CC+2*n}, v{CC+2*n}\nv_add_f32 v{CC+2*n+1}, v{CC+2*n+1}, v{CC+2*n+1}")
e(f"ds_write_b128 v16, {vr(LAM,4)}")
e(f"ds_write_b128 v16, {vr(CC,4)} offset:1024")
for k, p in enumerate((1920.0, 128.0, 512.0)):
    b = 40 + 12*k
    for n in (0, 1):
        e(f"v_mul_f32 v{b+2*n}, {f32(p)}, v{LAM+2*n}\nv_mul_f32 v{b+2*n+1}, {f32(p)}, v{LAM+2*n+1}")
    for n in (0, 1):
        e(f"v_exp_f32 v{b+2*n}, v{b+2*n}\nv_fract_f32 v{b+2*n+1}, v{b+2*n+1}")
    for n in (0, 1):
        e(f"v_cos_f32 v{b+4+2*n}, v{b+2*n+1}\nv_sin_f32 v{b+5+2*n}, v{b+2*n+1}")
    for n in (0, 1):
        e(f"v_pk_mul_f32 {vr(b+4+2*n,2)}, {vr(b+4+2*n,2)}, {vr(b+2*n,2)} op_sel_hi:[1,0]")
    for n in (0, 1): cmul(b+8+2*n, CC+2*n, b+4+2*n)
    for n in (0, 1): cmul2(b+8+2*n, CC+2*n, b+4+2*n)
    e(f"ds_write_b128 v16, {vr(b+8,4)} offset:{2048+1024*k}")
RL, RX, RP, RB = 20, 28, 36, 44
AQ_, AY, EQ, Y2, TT = 52, 60, 68, 76, 84
FQ, FP_, FB, FY2, FY8 = 92, 96, 100, 104, 108
KQ, KP, KB = 112, 116, 120
for r in range(KQ, KQ+12): e(f"v_mov_b32 v{r}, 0")
e("s_waitcnt lgkmcnt(0)")
e(f"ds_read_b128 {vr(RL,4)}, v14\nds_read_b128 {vr(RL+4,4)}, v14 offset:16")
e("s_mov_b32 s10, 8")
e("L_KG:")
e(f"ds_read_b128 {vr(RX,4)}, v15\nds_read_b128 {vr(RX+4,4)}, v15 offset:16")
e(f"ds_read_b128 {vr(RP,4)}, v14 offset:3072\nds_read_b128 {vr(RP+4,4)}, v14 offset:3088")
e(f"ds_read_b128 {vr(RB,4)}, v14 offset:4096\nds_read_b128 {vr(RB+4,4)}, v14 offset:4112")
e("s_waitcnt lgkmcnt(6)")
N4 = range(4)
for n in N4:
    e(f"v_pk_mul_f32 {vr(AQ_+2*n,2)}, {vr(RL+2*n,2)}, v[12:13] op_sel_hi:[1,0]")
    e(f"v_pk_mul_f32 {vr(AY+2*n,2)}, v[12:13], {vr(RL+2*n,2)} op_sel:[1,0] op_sel_hi:[1,1]")
e("v_add_u32 v14, 128, v14\nv_add_u32 v15, 128, v15")
e(f"ds_read_b128 {vr(RL,4)}, v14\nds_read_b128 {vr(RL+4,4)}, v14 offset:16")
for (a, E_) in ((AQ_, EQ), (AY, Y2)):
    for n in N4: e(f"v_exp_f32 v{a+2*n}, v{a+2*n}\nv_fract_f32 v{a+2*n+1}, v{a+2*n+1}")
    for n in N4: e(f"v_cos_f32 v{E_+2*n}, v{a+2*n+1}\nv_sin_f32 v{E_+2*n+1}, v{a+2*n+1}")
    for n in N4: e(f"v_pk_mul_f32 {vr(E_+2*n,2)}, {vr(E_+2*n,2)}, {vr(a+2*n,2)} op_sel_hi:[1,0]")
e("s_waitcnt lgkmcnt(2)")
for (cst, fr, t) in ((RX, FQ, AQ_), (RP, FP_, AY)):
    for n in N4: cmul(t+2*n, cst+2*n, EQ+2*n)
    for n in N4: cmul2(t+2*n, cst+2*n, EQ+2*n)
    for n in N4: e(f"v_cvt_pk_bf16_f32 v{fr+n}, v{t+2*n}, v{t+2*n+1}")
for n in N4: e(f"v_cvt_pk_bf16_f32 v{FY2+n}, v{Y2+2*n}, -v{Y2+2*n+1}")
for (x, t) in ((EQ, AQ_), (Y2, AY)):
    for n in N4: cmul(t+2*n, x+2*n, x+2*n)
for (x, t) in ((EQ, AQ_), (Y2, AY)):
    for n in N4: cmul2(t+2*n, x+2*n, x+2*n)
e(f"v_mfma_f32_16x16x32_bf16 {vr(KQ,4)}, {vr(FQ,4)}, {vr(FY2,4)}, {vr(KQ,4)}")
for (x, t) in ((EQ, AQ_), (Y2, AY)):
    for n in N4: cmul(x+2*n, t+2*n, t+2*n)
e(f"v_mfma_f32_16x16x32_bf16 {vr(KP,4)}, {vr(FP_,4)}, {vr(FY2,4)}, {vr(KP,4)}")
for (x, t) in ((EQ, AQ_), (Y2, AY)):
    for n in N4: cmul2(x+2*n, t+2*n, t+2*n)
for n in N4: cmul(AQ_+2*n, RB+2*n, EQ+2*n)
for n in N4: e(f"v_cvt_pk_bf16_f32 v{FY8+n}, v{Y2+2*n}, -v{Y2+2*n+1}")
for n in N4: cmul2(AQ_+2*n, RB+2*n, EQ+2*n)
for n in N4: e(f"v_cvt_pk_bf16_f32 v{FB+n}, v{AQ_+2*n}, v{AQ_+2*n+1}")
e("s_sub_u32 s10, s10, 1")
e("s_cmp_lg_u32 s10, 0")
e(f"v_mfma_f32_16x16x32_bf16 {vr(KB,4)}, {vr(FB,4)}, {vr(FY8,4)}, {vr(KB,4)}")
e("s_cbranch_scc1 L_KG")
stC()
e("v_mov_b32 v2, 0")
e("buffer_load_dword v3, v2, s[72:75], 0 offen sc1")
e("v_cmp_gt_u32 vcc, 2, v11")
e(f"s_add_u32 s10, s9, {TBOFF}")
e("v_lshlrev_b32 v20, 1, v10\nv_lshlrev_b32 v21, 2, v10\nv_cndmask_b32 v20, v20, v21, vcc")
e("v_lshl_add_u32 v20, v11, 7, v20\nv_add_u32 v20, s10, v20\nv_add_u32 v20, 256, v20")
e("v_mov_b32 v22, 32\nv_cndmask_b32 v21, v22, 2, vcc\nv_add_u32 v21, v21, v20")
e("v_mov_b32 v22, 768\nv_mov_b32 v23, -256\nv_cndmask_b32 v22, v22, v23, vcc\nv_add_u32 v23, v22, v21\nv_add_u32 v22, v22, v20")
e("s_waitcnt lgkmcnt(0)")
for (k, a0, a1, off) in ((KQ, 22, 23, 0), (KP, 20, 21, 0), (KB, 20, 21, 512)):
    for hh in (0, 1):
        e(f"v_cvt_pk_bf16_f32 v{24+hh}, v{k+2*hh}, v{k+2*hh+1}")
    for hh in (0, 1):
        e(f"ds_write_b16 v{a0}, v{24+hh} offset:{off+64*hh}\nds_write_b16_d16_hi v{a1}, v{24+hh} offset:{off+64*hh}")
e("v_lshlrev_b32 v24, 2, v10\nv_add_u32 v24, s9, v24\nv_mov_b32 v25, 0")
e(f"ds_write_b32 v24, v25 offset:{TBOFF-64}")
e("s_waitcnt vmcnt(0)")
go_check(3, 2, 72)
SL = ["buffer_load_dwordx4 v[4:7], v2, s[48:51], 0 offen sc1"]
SC = ["v_and_b32 v4, v4, v5", "v_and_b32 v6, v6, v7", "v_and_b32 v4, v4, v6"]
e("v_lshlrev_b32 v2, 4, v0")
e(SL[0]); e("s_waitcnt vmcnt(0)")
for l in SC: e(l)
e("v_cmp_ne_u32 vcc, 1, v4")
spin_global(SL, SC, 4)
stC()
UR = 128
e("s_mov_b32 s6, 40960\nv_mul_lo_u32 v2, v0, s6")
e(f"s_lshl_b32 s6, s8, 4\ns_add_u32 s6, s6, {XNB}")
for i in range(4):
    e(f"buffer_load_dwordx4 {vr(UR+4*i,4)}, v2, s[48:51], s6 offen sc1")
    if i < 3: e("s_add_u32 s6, s6, 10240")
e(f"v_subrev_u32 v3, {40960-12}, v2\nv_mov_b32 v4, {OOB}\nv_cmp_eq_u32 vcc, 0, v0\nv_cndmask_b32 v3, v3, v4, vcc")
e(f"buffer_load_dword v{UR-1}, v3, s[48:51], s6 offen sc1")
e("v_lshlrev_b32 v24, 1, v0\nv_sub_u32 v22, 2047, v24\nv_sub_u32 v23, 2046, v24")
e("v_add_u32 v20, 32, v22\nv_add_u32 v25, 32, v23\nv_lshl_or_b32 v20, v25, 16, v20")
e("v_cvt_f32_i32 v22, v22\nv_cvt_f32_i32 v23, v23")
e(f"v_lshlrev_b32 v21, 2, v0\ns_add_u32 s6, s9, {K0OFF-12}\nv_add_u32 v21, s6, v21")
e(f"s_add_u32 s6, s9, {TBOFF-64}\nv_mov_b32 v26, s6")
e("v_mov_b32 v27, 0x42604260\nv_mov_b32 v28, 0x009f009f\nv_mov_b32 v29, 0xff80ff80")
e(f"v_mov_b32 v30, {f32(-128.0)}")
e("s_waitcnt lgkmcnt(0)")
def exp_rounds(n, last=False):
    for k in range(n):
        t = 32 + 4*k
        e(f"v_cvt_pk_bf16_f32 v{t}, v22, v23")
        e(f"v_pk_add_f32 v[22:23], v[22:23], v[30:31] op_sel_hi:[1,0]")
        e(f"v_pk_sub_i16 v{t}, v{t}, v27")
        e(f"v_pk_max_i16 v{t}, v{t}, v28")
        e(f"v_pk_min_i16 v{t}, v{t}, v20")
        e(f"v_pk_add_u16 v20, v20, v29")
        if last: e(f"v_pk_max_i16 v{t}, v{t}, 0")
        e(f"v_pk_lshlrev_b16 v{t}, 1, v{t} op_sel_hi:[0,1]")
        e(f"v_add_u32_sdwa v{t+1}, v26, v{t} dst_sel:DWORD dst_unused:UNUSED_PAD src0_sel:DWORD src1_sel:WORD_0")
        e(f"v_add_u32_sdwa v{t+2}, v26, v{t} dst_sel:DWORD dst_unused:UNUSED_PAD src0_sel:DWORD src1_sel:WORD_1")
        e(f"ds_read_u16 v{t+1}, v{t+1}\nds_read_u16 v{t+2}, v{t+2}")
    for k in range(n):
        t = 32 + 4*k
        e(f"s_waitcnt lgkmcnt({min(15, 2*(n-1-k) + 4*k)})")
        e(f"v_lshl_or_b32 v{t}, v{t+2}, 16, v{t+1}")
        for c in range(4): e(f"ds_write_b32 v21, v{t} offset:{c*(KCP+4) + 256*k}")
e("s_mov_b32 s10, 4")
e("L_EXP:")
exp_rounds(4)
e("v_add_u32 v21, 1024, v21")
e("s_sub_u32 s10, s10, 1\ns_cmp_lg_u32 s10, 0\ns_waitcnt lgkmcnt(0)\ns_cbranch_scc1 L_EXP")
e("s_mov_b64 exec, 0x7fff")
exp_rounds(1, True)
e("s_mov_b64 exec, -1")
stC()
e("v_lshlrev_b32 v2, 6, v0\nv_add_u32 v2, s9, v2")
e("v_lshlrev_b32 v3, 4, v0\nv_add_u32 v3, s9, v3")
for r in range(4, 8): e(f"v_mov_b32 v{r}, 0")
e("s_waitcnt vmcnt(0) lgkmcnt(0)")
for i in range(16): e(f"v_alignbit_b32 v{144+i}, v{UR+i}, v{UR+i-1}, 16")
for i in range(4):
    e(f"ds_write_b128 v2, {vr(UR+4*i,4)} offset:{448+16*i}")
    e(f"ds_write_b128 v2, {vr(144+4*i,4)} offset:{U1OFF+448+16*i}")
e("s_mov_b64 exec, 0xfffffff")
e(f"ds_write_b128 v3, v[4:7]\nds_write_b128 v3, v[4:7] offset:{U1OFF}")
e("s_mov_b64 exec, -1")
e("v_lshrrev_b32 v12, 1, v10\nv_lshlrev_b32 v12, 6, v12\nv_lshl_add_u32 v12, v11, 4, v12")
e(f"v_and_b32 v13, 1, v10\nv_xor_b32 v13, 1, v13\nv_mul_u32_u24 v13, {U1OFF}, v13\nv_add_u32 v12, v12, v13")
e(f"s_add_u32 s6, s9, 448\nv_add_u32 v12, s6, v12")
e(f"v_and_b32 v13, 3, v10\nv_mul_u32_u24 v13, {KCP}, v13\nv_lshrrev_b32 v14, 2, v10\nv_sub_u32 v14, v11, v14\nv_lshl_add_u32 v13, v14, 4, v13")
e(f"s_add_u32 s6, s9, {K0OFF+4080-3584}\nv_add_u32 v13, s6, v13")
CA, BU, BK = 16, [48, 112], [80, 144]
for r in range(CA, CA+32): e(f"v_mov_b32 v{r}, 0")
e("s_waitcnt lgkmcnt(0)")
def conv_reads(b):
    l = []
    for t in range(8):
        l.append(f"ds_read_b128 {vr(BU[b]+4*t,4)}, v12 offset:{512*t}")
        l.append(f"ds_read_b128 {vr(BK[b]+4*t,4)}, v13 offset:{512*(7-t)}")
    l.append("v_subrev_u32 v12, 64, v12\nv_subrev_u32 v13, 64, v13")
    return l
for l in conv_reads(0): e(l)
e("s_mov_b32 s10, 4")
e("L_CV:")
for b in (0, 1):
    e("s_waitcnt lgkmcnt(0)")
    rd = conv_reads(1-b)
    n = 0
    for s_ in range(8):
        for t in range(8 - s_):
            a = CA + 4*(s_+t)
            e(f"v_mfma_f32_16x16x32_bf16 {vr(a,4)}, {vr(BU[b]+4*t,4)}, {vr(BK[b]+4*s_,4)}, {vr(a,4)}")
            if n < len(rd): e(rd[n])
            n += 1
e("s_sub_u32 s10, s10, 1\ns_cmp_lg_u32 s10, 0\ns_cbranch_scc1 L_CV")
stC()
e(f"v_lshlrev_b32 v2, 7, v11\nv_lshl_add_u32 v2, v10, 2, v2\ns_add_u32 s6, s9, {K0OFF}\nv_add_u32 v2, s6, v2")
e("s_waitcnt lgkmcnt(0)")
for t in range(8):
    for hh in (0, 1):
        e(f"v_cvt_pk_bf16_f32 v{48+2*t+hh}, v{CA+4*t+2*hh}, v{CA+4*t+2*hh+1}")
        e(f"ds_write_b32 v2, v{48+2*t+hh} offset:{512*t+64*hh}")
e("v_lshlrev_b32 v9, 16, v9")
e("s_waitcnt lgkmcnt(0)")
for i in range(4):
    e(f"ds_read_b128 {vr(64+4*i,4)}, v3 offset:{K0OFF+1024*i}")
    e(f"ds_read_b128 {vr(80+4*i,4)}, v3 offset:{448+1024*i}")
e(f"v_lshlrev_b32 v2, 4, v0\ns_lshl_b32 s6, s8, 12\ns_add_u32 s6, s6, {ST}")
e("v_mov_b32 v8, v9")
for i in range(4):
    e(f"s_waitcnt lgkmcnt({6-2*i})")
    for k in range(4):
        u = 80+4*i+k; t = 16+2*k
        e(f"v_lshlrev_b32 v{t}, 16, v{u}\nv_and_b32 v{t+1}, 0xffff0000, v{u}")
    for k in range(4): e(f"v_pk_mul_f32 {vr(16+2*k,2)}, {vr(16+2*k,2)}, v[8:9]")
    for k in range(4): e(f"v_cvt_pk_bf16_f32 v{24+k}, v{16+2*k}, v{17+2*k}")
    for k in range(4):
        y = 64+4*i+k
        e(f"v_lshlrev_b32 v{16+2*k}, 16, v{24+k}\nv_and_b32 v{17+2*k}, 0xffff0000, v{24+k}")
        e(f"v_lshlrev_b32 v{28+2*k}, 16, v{y}\nv_and_b32 v{29+2*k}, 0xffff0000, v{y}")
    for k in range(4): e(f"v_pk_add_f32 {vr(16+2*k,2)}, {vr(16+2*k,2)}, {vr(28+2*k,2)}")
    for k in range(4): e(f"v_cvt_pk_bf16_f32 v{96+4*i+k}, v{16+2*k}, v{17+2*k}")
    e(f"buffer_store_dwordx4 {vr(96+4*i,4)}, v2, s[48:51], s6 offen offset:{1024*i} sc1")
e("s_waitcnt vmcnt(0)")
e(f"s_lshl_b32 s6, s8, 2\ns_add_u32 s6, s6, {FL_C}")
e("v_mov_b32 v2, 0\nv_mov_b32 v3, 1\ns_mov_b64 exec, 1")
e("buffer_store_dword v3, v2, s[48:51], s6 offen sc1")
stC()
stC.flush(4, 5)
e("s_endpgm")

e("L_S:")
stS = Stamper([76,78,80,82,84,86])
e("s_lshl_b32 s8, s4, 5\ns_add_u32 s8, s8, s5")
e("v_lshrrev_b32 v1, 3, v0\nv_and_b32 v2, 7, v0")
e("v_mul_u32_u24 v3, 1280, v1\nv_lshl_add_u32 v3, v2, 4, v3")
e("s_mul_i32 s9, s8, 10240")
e("v_lshlrev_b32 v4, 4, v0")
e("v_mov_b32 v5, 0")
e("s_waitcnt lgkmcnt(0)")
srd(52, 16, 2621440); srd(48, 44, WS_SIZE); srd(72, 42, 256)
XS = 16
for i in range(10): e(f"buffer_load_dwordx4 {vr(XS+4*i,4)}, v3, s[52:55], s9 offen offset:{128*i}")
e("s_cmp_lg_u32 s2, 0")
e("s_cbranch_scc1 L_S1")
for r in range(8, 12): e(f"v_mov_b32 v{r}, 0")
for i in range(9):
    e(f"s_mov_b32 s6, {1024*i}")
    e("buffer_store_dwordx4 v[8:11], v4, s[48:51], s6 offen sc1")
e("s_waitcnt vmcnt(0)")
e("v_mov_b32 v8, 1\ns_mov_b64 exec, 1")
e("buffer_store_dword v8, v5, s[72:75], 0 offen sc1")
e("s_mov_b64 exec, -1")
e("L_S1:")
e("s_barrier")
e("v_mov_b32 v6, 0x3f803f80")
e(f"v_mul_u32_u24 v12, 1344, v1\nv_lshl_add_u32 v12, v2, 4, v12\nv_add_u32 v12, {SB}, v12")
e(f"v_bfe_u32 v13, v0, 2, 2\nv_mul_u32_u24 v13, 1344, v13\nv_lshrrev_b32 v14, 4, v0\nv_lshl_add_u32 v13, v14, 5, v13")
e(f"v_and_b32 v14, 3, v0\nv_lshl_add_u32 v13, v14, 3, v13\nv_add_u32 v13, {SB}, v13")
def row_stats(src):
    for r in range(8, 12): e(f"v_mov_b32 v{r}, 0")
    for k in range(40):
        e(f"v_dot2c_f32_bf16 v{8+(k&1)}, v{src+k}, v6")
        e(f"v_dot2c_f32_bf16 v{10+(k&1)}, v{src+k}, v{src+k}")
    e("v_add_f32 v8, v8, v9\nv_add_f32 v10, v10, v11")
    for m in ("quad_perm:[1,0,3,2]", "quad_perm:[2,3,0,1]", "row_half_mirror"):
        e(f"v_add_f32_dpp v8, v8, v8 {m} row_mask:0xf bank_mask:0xf")
        e(f"v_add_f32_dpp v10, v10, v10 {m} row_mask:0xf bank_mask:0xf")
    e(f"v_mul_f32 v8, {f32(1/640)}, v8\nv_mul_f32 v10, {f32(1/640)}, v10")
    e("v_fma_f32 v10, -v8, v8, v10\nv_max_f32 v10, 0, v10")
def mean_std(m, s):
    rb(m, 8); rb(10, 10)
    e(f"v_add_f32 v10, {f32(1e-5)}, v10"); rb(10, 10)
    e("v_sqrt_f32 v10, v10"); rb(s, 10)
e("s_waitcnt vmcnt(0)")
stS()
row_stats(XS)
mean_std(60, 62)
e("v_rcp_f32 v61, v62")
for k0 in range(0, 40, 4):
    K4 = range(4)
    for k in K4: e(f"v_lshlrev_b32 v{64+2*k}, 16, v{XS+k0+k}\nv_and_b32 v{65+2*k}, 0xffff0000, v{XS+k0+k}")
    for k in K4: e(f"v_pk_add_f32 {vr(64+2*k,2)}, {vr(64+2*k,2)}, v[60:61] op_sel_hi:[1,0] neg_lo:[0,1] neg_hi:[0,1]")
    for k in K4: e(f"v_cvt_pk_bf16_f32 v{72+k}, v{64+2*k}, v{65+2*k}")
    for k in K4: e(f"v_lshlrev_b32 v{64+2*k}, 16, v{72+k}\nv_and_b32 v{65+2*k}, 0xffff0000, v{72+k}")
    for k in K4: e(f"v_pk_mul_f32 {vr(64+2*k,2)}, v[60:61], {vr(64+2*k,2)} op_sel:[1,0] op_sel_hi:[1,1]")
    for k in K4: e(f"v_cvt_pk_bf16_f32 v{XS+k0+k}, v{64+2*k}, v{65+2*k}")
    e(f"ds_write_b128 v12, {vr(XS+k0,4)} offset:{32*k0}")
e("buffer_load_dword v7, v5, s[72:75], 0 offen sc1")
e("s_waitcnt lgkmcnt(0)")
for i in range(10):
    e(f"ds_read_b64_tr_b16 {vr(80+4*i,2)}, v13 offset:{128*i}")
    e(f"ds_read_b64_tr_b16 {vr(82+4*i,2)}, v13 offset:{128*i+4*1344}")
row_stats(XS)
e(f"s_add_u32 s9, s9, {XNB}")
e("s_waitcnt lgkmcnt(0)")
for i in range(10):
    if i in (4, 8): e("s_add_u32 s9, s9, 4096")
    e(f"buffer_store_dwordx4 {vr(80+4*i,4)}, v4, s[48:51], s9 offen offset:{1024*(i%4)} sc1")
mean_std(64, 65)
e("v_mul_f32 v66, v62, v65\nv_rcp_f32 v66, v66\nv_fma_f32 v67, v64, v62, v60\nv_mul_f32 v67, v67, v66")
e(f"v_lshlrev_b32 v1, 3, v1\ns_lshl_b32 s6, s8, 6\ns_add_u32 s6, s6, {STATS}")
e("s_mov_b32 s10, 0x01010101\ns_mov_b32 s11, 0x01010101\ns_mov_b64 exec, s[10:11]")
e("buffer_store_dwordx2 v[66:67], v1, s[48:51], s6 offen sc1")
e("s_mov_b64 exec, -1")
stS()
e("s_waitcnt vmcnt(0)")
stS()
go_check(7, 5, 72)
e("s_lshl_b32 s6, s8, 2\nv_mov_b32 v8, 1\ns_mov_b64 exec, 1")
e("buffer_store_dword v8, v5, s[48:51], s6 offen sc1")
stS()
stS.flush(8, 9)
e("L_END:")
e("s_endpgm")
for l in tail: e(l)
nn = e.fix()

hdr = open("cdna_kernels/" + NAME + ".s.ref").read().split("; Override")[0]
s = hdr + f"; @launch grid=(256,1,1) block=(512,1,1) lds={LDS_TOTAL}\n"
s += f""".amdgcn_target "amdgcn-amd-amdhsa--gfx950"
.text
.globl {NAME}_kernel
.p2align 8
.type {NAME}_kernel,@function
{NAME}_kernel:
"""
s += e.text()
s += f""".section .rodata,"a"
.p2align 6
.amdhsa_kernel {NAME}_kernel
  .amdhsa_next_free_vgpr 256
  .amdhsa_next_free_sgpr 102
  .amdhsa_accum_offset 256
  .amdhsa_group_segment_fixed_size 0
  .amdhsa_kernarg_size 120
  .amdhsa_user_sgpr_count 2
  .amdhsa_user_sgpr_kernarg_segment_ptr 1
  .amdhsa_system_sgpr_workgroup_id_x 1
.end_amdhsa_kernel
"""
open(OUT, "w").write(s)
print("instrs", sum(1 for c in e.I if c.cls), "nops inserted", nn, "lds", LDS_TOTAL)
```

```python
import sys
from emit import Em, Q
NAME = "recurrent_scan__ssm_conv_s4d__mixer_channel_mlp__prompt"
DBGST = "--dbg" in sys.argv
STAMPS = "--stamps" in sys.argv or DBGST
OUT = [a for a in sys.argv[1:] if not a.startswith("--")]
OUT = OUT[0] if OUT else "k.s"

FL_S, FL_W, FL_H, FL_C = 0, 1024, 2048, 6144
STATS = 0x4000
XNB = 0x10000
W2F = 0x300000
HF = 0x600000
ST = 0xD00000
STAMP = 0xFC0000
WS_SIZE = 0x1000000
OOB = 0x20000000
KSTEP = 8320
RING = 0
CH0 = 8 * KSTEP
CHSZ = 25792
SB = CH0 + 3 * CHSZ
CNT = SB + 10752
CS = 155136 + 512
assert CS % 512 == 0 and CS >= CNT + 1024 - 64
CNT = 154624
assert CNT >= SB + 10688
LDS_TOTAL = CS + 512
U1OFF, K0OFF, KCP = 4576, 9152, 4160
TBOFF = 5120 + 64
SPIN_MAX = 8192
LOG2E = 0x3fb8aa3b
INV2PI = 0x3e22f983

e = Em()
tail = []

def f32(x):
    import struct
    return "0x%08x" % struct.unpack("<I", struct.pack("<f", x))[0]
def srd(r, ptr, size):
    e(f"s_mov_b32 s{r}, s{ptr}\ns_mov_b32 s{r+1}, s{ptr+1}\ns_mov_b32 s{r+2}, {size}\ns_mov_b32 s{r+3}, 0x20000")
def vr(a, n): return f"v[{a}:{a+n-1}]"

class Stamper:
    def __init__(self, regs): self.regs = regs; self.n = 0
    def __call__(self, em=None):
        if not STAMPS: return
        r = self.regs[self.n]; self.n += 1
        e(f"s_memrealtime s[{r}:{r+1}]")
    def flush(self, v0, v1, dbg=None):
        if not STAMPS: return
        e("s_waitcnt lgkmcnt(0)")
        if DBGST:
            if dbg is None: return
            wave, off, n = dbg
            L = e.lab("NODBG")
            e(f"s_cmp_lg_u32 s2, 100\ns_cbranch_scc1 {L}\ns_cmp_lg_u32 s3, {wave}\ns_cbranch_scc1 {L}")
            e(f"v_mov_b32 v{v1}, 0\ns_mov_b64 exec, 1")
            for i, r in enumerate(self.regs[:n]):
                e(f"s_sub_u32 s{r}, s{r}, s46\nv_mov_b32 v{v0}, s{r}")
                e(f"buffer_store_dword v{v0}, v{v1}, s[72:75], 0 offen offset:{4*(off+i)}")
                e("s_nop 0")
            e("s_waitcnt vmcnt(0)")
            e(f"{L}:")
            return
        e("s_lshl_b32 s6, s2, 3\ns_add_u32 s6, s6, s3\ns_lshl_b32 s6, s6, 6")
        e(f"s_add_u32 s6, s6, {STAMP}")
        e(f"v_mov_b32 v{v1}, 0")
        e("s_mov_b64 exec, 1")
        for i, r in enumerate([46] + self.regs[:self.n]):
            e(f"v_mov_b32 v{v0}, s{r}")
            e(f"buffer_store_dword v{v0}, v{v1}, s[48:51], s6 offen offset:{4*i}")
            e("s_nop 0")
        e("s_waitcnt vmcnt(0)")

def spin_global(loads, combine, chk):
    L = e.lab("SPIN"); B = e.lab("BACK")
    e(f"s_cbranch_vccnz {L}")
    e(f"{B}:")
    t = [f"{L}:", f"s_mov_b32 s12, {SPIN_MAX}", f"{L}_a:", "s_sleep 2"] + loads + ["s_waitcnt vmcnt(0)"] + combine
    t += [f"v_cmp_ne_u32 vcc, 1, v{chk}", f"s_cbranch_vccz {B}", "s_sub_u32 s12, s12, 1", f"s_cbranch_scc0 {L}_a", f"s_branch {B}"]
    tail.extend(t)

def spin_lds(vchk, vaddr, vval):
    L = e.lab("SPIN"); B = e.lab("BACK")
    e(f"v_cmp_gt_u32 vcc, v{vval}, v{vchk}")
    e(f"s_cbranch_vccnz {L}")
    e(f"{B}:")
    tail.extend([f"{L}:", f"s_mov_b32 s12, {SPIN_MAX*16}", f"{L}_a:", f"ds_read_b32 v{vchk}, v{vaddr}", "s_waitcnt lgkmcnt(0)",
                 f"v_cmp_gt_u32 vcc, v{vval}, v{vchk}", f"s_cbranch_vccz {B}", "s_sub_u32 s12, s12, 1", f"s_cbranch_scc0 {L}_a", f"s_branch {B}"])

def go_check(vt, vz, srd_dbg):
    e(f"v_cmp_ne_u32 vcc, 1, v{vt}")
    spin_global([f"buffer_load_dword v{vt}, v{vz}, s[{srd_dbg}:{srd_dbg+3}], 0 offen sc1"], [], vt)

def rb(dst, src):
    e(f"v_cvt_pk_bf16_f32 v{dst}, v{src}, v{src}\nv_and_b32 v{dst}, 0xffff0000, v{dst}")
def cmul(z, x, y, t=None):
    t = z if t is None else t
    e(f"v_pk_mul_f32 {vr(t,2)}, {vr(x,2)}, {vr(y,2)} op_sel_hi:[1,0]")
def cmul2(z, x, y, t=None):
    t = z if t is None else t
    e(f"v_pk_fma_f32 {vr(z,2)}, {vr(x,2)}, {vr(y,2)}, {vr(t,2)} op_sel:[1,1,0] op_sel_hi:[0,1,1] neg_lo:[0,1,0]")

e("s_cmp_ge_u32 s2, 256")
e("s_cbranch_scc1 L_END")
if STAMPS: e("s_memrealtime s[46:47]")
e("s_load_dwordx16 s[16:31], s[0:1], 0")
e("s_load_dwordx8 s[32:39], s[0:1], 64")
e("s_load_dwordx4 s[40:43], s[0:1], 96")
e("s_load_dwordx2 s[44:45], s[0:1], 112")
e("v_lshrrev_b32 v1, 6, v0")
e("v_and_b32 v0, 63, v0")
e("v_readfirstlane_b32 s3, v1")
e("s_and_b32 s4, s2, 7")
e("s_lshr_b32 s5, s2, 3")
e("s_cmp_ge_u32 s3, 4")
e("s_cbranch_scc1 L_AUX")

stG = Stamper([30,32,34,36,38,96,98,100])
vm = Q(e, "vmcnt", 63); lg = Q(e, "lgkmcnt", 15)
XR, WB, ONES = 12, 76, 108
ACC, CSA = 112, 176
VCHK, VGO, VB1, VST, VCS, VT = 184, 185, 186, 202, 208, 216
sW = [76+i for i in range(10)]; sX = [86+i for i in range(10)]; sK = [16+i for i in range(14)]
e("s_setprio 2")
e(f"v_lshlrev_b32 v9, 2, v0")
e(f"s_lshl_b32 s6, s3, 8\ns_add_u32 s6, s6, {CNT}")
e("v_add_u32 v9, s6, v9")
e("v_mov_b32 v11, 0")
e("ds_write_b32 v9, v11")
e("v_lshrrev_b32 v10, 4, v0")
e("v_and_b32 v8, 15, v0")
e("s_lshr_b32 s6, s5, 3\ns_lshl_b32 s13, s4, 2\ns_add_u32 s13, s13, s6\ns_and_b32 s14, s5, 7")
e("s_mul_i32 s15, s14, 7\ns_lshr_b32 s15, s15, 2\ns_mul_i32 s6, s6, 7\ns_lshr_b32 s6, s6, 1\ns_add_u32 s15, s15, s6")
e("s_cmp_ge_u32 s15, 14\ns_cselect_b32 s6, 14, 0\ns_sub_u32 s15, s15, s6")
e("s_cmp_lt_u32 s5, 4")
e("s_cbranch_scc1 L_WTASK")
e("s_sub_u32 s6, s5, 4\ns_mul_i32 s7, s6, 37\ns_lshr_b32 s7, s7, 8\ns_mul_i32 s8, s7, 7\ns_sub_u32 s6, s6, s8")
e("s_mul_i32 s10, s6, 370\ns_lshr_b32 s10, s10, 8\ns_mul_i32 s11, s7, 5\ns_lshr_b32 s11, s11, 1\ns_add_u32 s10, s10, s11")
e("s_cmp_ge_u32 s10, 10\ns_cselect_b32 s11, 10, 0\ns_sub_u32 s10, s10, s11")
e("s_lshr_b32 s8, s4, 1\ns_lshl_b32 s8, s8, 2\ns_add_u32 s8, s8, s7")
e("s_and_b32 s9, s4, 1\ns_mul_i32 s9, s9, 7\ns_add_u32 s9, s9, s6")
e("s_lshl_b32 s11, s9, 8")
for p in range(10):
    if p:
        e("s_add_u32 s10, s10, 1\ns_cmp_eq_u32 s10, 10\ns_cselect_b32 s10, 0, s10")
    e(f"s_mul_i32 s{sW[p]}, s10, 221184\ns_add_u32 s{sW[p]}, s{sW[p]}, s11\ns_lshl_b32 s{sX[p]}, s10, 7")
e("v_bfe_u32 v1, v0, 2, 2")
e("s_lshl_b32 s6, s3, 3")
e("v_add_u32 v1, s6, v1")
e("s_mov_b32 s7, 3456")
e("v_mul_lo_u32 v1, v1, s7")
e("v_lshl_add_u32 v1, v10, 6, v1")
e("v_and_b32 v2, 3, v0")
e("v_lshl_add_u32 v1, v2, 4, v1")
e(f"v_add_u32 v2, {4*3456-1024}, v1")
e("s_lshl_b32 s6, s8, 7\ns_lshl_b32 s7, s3, 5\ns_add_u32 s6, s6, s7")
e("v_add_u32 v3, s6, v8")
e("s_movk_i32 s7, 1280")
e("v_mul_lo_u32 v3, v3, s7")
e("v_lshl_add_u32 v3, v10, 4, v3")
e("v_add_u32 v4, 20480, v3")
e("s_waitcnt lgkmcnt(0)")
e("s_mul_i32 s1, s3, 2080")
srd(52, 16, 2621440); srd(56, 32, 2211840)

def chunk_ops(c):
    ops = []
    slot0 = (c % 4) * 2
    for k2 in (0, 1):
        def dma(k2=k2):
            e(f"s_add_u32 m0, s1, {(slot0+k2)*KSTEP}")
            if k2: e(f"s_add_u32 s6, s{sW[c]}, 110592")
            else: e("s_nop 0")
            so = "s6" if k2 else f"s{sW[c]}"
            e(f"buffer_load_dwordx4 v1, s[56:59], {so} offen lds"); vm.issue(("dma", c))
            e(f"buffer_load_dwordx4 v2, s[56:59], {so} offen offset:1024 lds"); vm.issue(("dma", c))
        ops.append(dma)
    for mt in (0, 1):
        def xl(mt=mt):
            for k2 in (0, 1):
                r = XR + (c % 4) * 16 + k2 * 8 + mt * 4
                e(f"buffer_load_dwordx4 {vr(r,4)}, v{3+mt}, s[52:55], s{sX[c]} offen offset:{64*k2}"); vm.issue(("x", c))
        ops.append(xl)
    return ops
for op in chunk_ops(0): op()
srd(48, 44, WS_SIZE); srd(60, 34, 3456); srd(64, 38, 1280); srd(68, 40, 2621440); srd(72, 42, 256)
for op in chunk_ops(1): op()
e("v_mul_u32_u24 v5, 2080, v10")
e("v_bfe_u32 v6, v0, 2, 2")
e("v_lshl_add_u32 v5, v6, 6, v5")
e("v_and_b32 v6, 3, v0")
e("v_lshl_add_u32 v184, v6, 3, v5")
for tp in range(4):
    e(f"s_xor_b32 s6, s3, {tp}\ns_lshl_b32 s6, s6, 8")
    e(f"v_add_u32 v{5+tp}, s6, v184")
for i in range(4): e(f"v_mov_b32 v{ONES+i}, 0x3f803f80")
for op in chunk_ops(2): op()
e("v_lshlrev_b32 v184, 3, v10")
e("s_lshl_b32 s6, s3, 6")
e("v_add_u32 v184, s6, v184")
for tp in range(4):
    e(f"v_xor_b32 v185, {64*tp}, v184")
    for h in (0, 1):
        r = VB1 + (2*tp+h)*2
        e(f"buffer_load_dwordx2 {vr(r,2)}, v185, s[60:63], s11 offen offset:{32*h}"); vm.issue("b1")
def kappa_table():
    e("s_mov_b32 s6, s15")
    for i in range(14):
        if i: e("s_add_u32 s6, s6, 1\ns_cmp_eq_u32 s6, 14\ns_cselect_b32 s6, 0, s6")
        e(f"s_lshl2_add_u32 s7, s6, s3\ns_cmp_ge_u32 s7, 54\ns_cselect_b32 s7, {0x8000000>>10}, s7\ns_lshl_b32 s{sK[i]}, s7, 10")
def gcommon():
    kappa_table()
    e("v_and_b32 v209, 15, v0")
    e("v_lshlrev_b32 v10, 8, v10")
    e("v_lshl_add_u32 v10, v209, 2, v10")
    e(f"v_add_u32 v10, {CNT}, v10")
    e("s_barrier")
gcommon()
stG()
def signal():
    e("v_add_u32 v11, 1, v11")
    e("ds_write_b32 v9, v11"); lg.issue("sig")
def chk_read():
    e(f"ds_read_b32 v{VCHK}, v10"); lg.issue("chk")
def chk_eval():
    lg.wait("chk")
    spin_lds(VCHK, 10, 11)
def tr_reads(step, t):
    base = (step % 8) * KSTEP + 32 * (t & 1)
    for hf_ in (0, 1):
        r = WB + 4*t + 2*hf_
        e(f"ds_read_b64_tr_b16 {vr(r,2)}, v{5+(t>>1)} offset:{base + 1024*hf_}"); lg.issue(("w", step, t))
vm.wait(("dma", 0))
signal(); chk_read(); chk_eval()
stG()
for t in range(8): tr_reads(0, t)
VFL = 216
for i in range(20):
    c, k2 = divmod(i, 2)
    fill = {t: [] for t in range(8)}
    if k2 == 0 and c + 1 <= 9:
        def sg(c=c):
            vm.wait(("dma", c+1)); signal()
        fill[1].append(sg); fill[5].append(chk_read)
    if k2 == 1 and c + 3 <= 9:
        ops = chunk_ops(c+3)
        for n, op in enumerate(ops): fill[2*n].append(op)
    if i == 4:
        def f():
            e(f"v_mov_b32 v{VFL+6}, 0")
            e(f"buffer_load_dword v{VGO}, v{VFL+6}, s[72:75], 0 offen sc1"); vm.issue("go")
        fill[3].append(f)
    if i == 8:
        def f():
            vm.wait("go"); go_check(VGO, VFL+6, 72)
        fill[3].append(f)
    FLD = [f"buffer_load_dwordx4 {vr(VFL,4)}, v{VFL+6}, s[48:51], 0 offen sc1",
           f"buffer_load_dwordx2 {vr(VFL+4,2)}, v{VFL+7}, s[48:51], 0 offen offset:{FL_W} sc1"]
    FCMB = [f"v_and_b32 v{VFL}, v{VFL}, v{VFL+1}", f"v_and_b32 v{VFL+2}, v{VFL+2}, v{VFL+3}", f"v_and_b32 v{VFL+4}, v{VFL+4}, v{VFL+5}",
            f"v_and_b32 v{VFL}, v{VFL}, v{VFL+2}", f"v_and_b32 v{VFL}, v{VFL}, v{VFL+4}"]
    if i == 14:
        def f():
            e(f"v_lshlrev_b32 v{VFL+6}, 4, v0")
            e(f"v_min_u32 v{VFL+7}, 53, v0\nv_lshlrev_b32 v{VFL+7}, 3, v{VFL+7}")
            for l in FLD: e(l); vm.issue("fl")
        fill[3].append(f)
    if i == 17:
        def f():
            vm.wait("fl")
            for l in FCMB: e(l)
            e(f"v_cmp_ne_u32 vcc, 1, v{VFL}")
            spin_global(FLD, FCMB, VFL)
            e(f"v_and_b32 v{VFL+6}, 15, v0\nv_lshlrev_b32 v{VFL+6}, 3, v{VFL+6}")
            e(f"s_lshl_b32 s6, s8, 10\ns_lshl_b32 s7, s3, 8\ns_add_u32 s6, s6, s7\ns_add_u32 s6, s6, {STATS}")
            e(f"buffer_load_dwordx2 {vr(VST,2)}, v{VFL+6}, s[48:51], s6 offen sc1"); vm.issue("st")
            e(f"buffer_load_dwordx2 {vr(VST+2,2)}, v{VFL+6}, s[48:51], s6 offen offset:128 sc1"); vm.issue("st")
        fill[3].append(f)
    for t in range(8):
        if t % 2 == 0: lg.wait([("w", i, t), ("w", i, t+1)])
        if t == 0 and k2 == 0: vm.wait(("x", c))
        for mt in (0, 1):
            a = ACC + (2*t+mt)*4
            x = XR + (c % 4)*16 + k2*8 + mt*4
            e(f"v_mfma_f32_16x16x32_bf16 {vr(a,4)}, {vr(WB+4*t,4)}, {vr(x,4)}, {vr(a,4) if i else 0}")
        if t < 2:
            a = CSA + 4*t
            e(f"v_mfma_f32_16x16x32_bf16 {vr(a,4)}, {vr(WB+4*t,4)}, {vr(ONES,4)}, {vr(a,4) if i else 0}")
        if i < 19: tr_reads(i+1, t)
        for f in fill[t]: f()
    if k2 == 0 and c + 1 <= 9: chk_eval()
stG()
e("v_lshrrev_b32 v5, 4, v0")
e(f"v_lshlrev_b32 v5, 4, v5")
e(f"s_lshl_b32 s6, s3, 7\ns_add_u32 s6, s6, {CS}")
e("v_add_u32 v5, s6, v5")
e("s_mov_b32 s6, 0x00010001\ns_mov_b32 s7, 0x00010001\ns_mov_b64 exec, s[6:7]")
e(f"ds_write_b128 v5, {vr(CSA,4)}"); lg.issue("csw")
e(f"ds_write_b128 v5, {vr(CSA+4,4)} offset:64"); lg.issue("csw")
e("s_mov_b64 exec, -1")
signal(); chk_read()
e("L_PREF:")
e("v_lshlrev_b32 v1, 4, v0")
e("v_add_u32 v2, 4096, v1")
e(f"s_mul_i32 s10, s14, 276480\ns_add_u32 s10, s10, {W2F}")
e(f"s_mul_i32 s11, s13, 221184\ns_add_u32 s11, s11, {HF}")
def w2_load(i):
    e(f"s_lshl2_add_u32 s6, s{sK[i]}, s10\ns_add_u32 s6, s6, s{sK[i]}")
    for dt in range(5):
        r = 12 + (i % 5)*20 + dt*4
        if dt < 4: e(f"buffer_load_dwordx4 {vr(r,4)}, v1, s[48:51], s6 offen offset:{1024*dt} sc1")
        else: e(f"buffer_load_dwordx4 {vr(r,4)}, v2, s[48:51], s6 offen sc1")
        vm.issue(("w2", i))
for i in range(5): w2_load(i)
e("s_cmp_lt_u32 s5, 4")
e("s_cbranch_scc1 L_G2")
chk_eval()
VC = 206
e(f"v_mov_b32 v{VC}, {f32(-2*0.7978845608028654*1.4426950408889634)}")
e(f"v_mov_b32 v{VC+1}, {f32(-2*0.7978845608028654*1.4426950408889634*0.044715)}")
e(f"s_lshr_b32 s6, s3, 1\ns_lshl_b32 s7, s8, 1\ns_add_u32 s6, s6, s7\ns_mul_i32 s44, s6, 221184\ns_and_b32 s7, s3, 1\ns_lshl_b32 s7, s7, 11")
e(f"s_add_u32 s44, s44, s7\ns_add_u32 s44, s44, {HF}")
e(f"s_lshl_b32 s45, s6, 7\ns_and_b32 s7, s3, 1\ns_lshl1_add_u32 s7, s9, s7\ns_lshl2_add_u32 s45, s7, s45\ns_add_u32 s45, s45, {FL_H}")
def cs_read(tp):
    b = VCS if tp % 2 == 0 else VT + 32
    e(f"v_xor_b32 v6, {128*tp}, v5")
    e(f"ds_read_b128 {vr(b,4)}, v6"); lg.issue(("cs", tp))
    e(f"ds_read_b128 {vr(b+4,4)}, v6 offset:64"); lg.issue(("cs", tp))
cs_read(0)
vm.wait(["b1", "st"])
TB1, TP, TQ, TE, TO = VT, VT+8, VT+16, VT+24, 176
for tp in range(4):
    csb = VCS if tp % 2 == 0 else VT + 32
    if tp < 3: cs_read(tp+1)
    for h in (0, 1):
        for k in (0, 1):
            s = VB1 + (2*tp+h)*2 + k
            e(f"v_lshlrev_b32 v{TB1+4*h+2*k}, 16, v{s}\nv_and_b32 v{TB1+4*h+2*k+1}, 0xffff0000, v{s}")
    e(f"s_xor_b32 s6, s3, {tp}\ns_lshl2_add_u32 s6, s9, s6\ns_cmp_ge_u32 s6, 54\ns_cselect_b32 s7, {OOB}, s44\ns_lshl_b32 s6, s6, 12\ns_add_u32 s6, s6, s7")
    lg.wait(("cs", tp))
    for mt in (0, 1):
        st = VST + 2*mt
        P = range(4)
        acc = lambda q: ACC + (2*(2*tp + (q >> 1)) + mt)*4 + 2*(q & 1)
        for q in P: e(f"v_pk_fma_f32 {vr(TP+2*q,2)}, {vr(st,2)}, {vr(csb+2*q,2)}, {vr(TB1+2*q,2)} op_sel:[1,0,0] op_sel_hi:[1,1,1] neg_lo:[1,0,0] neg_hi:[1,0,0]")
        for q in P: e(f"v_pk_fma_f32 {vr(TP+2*q,2)}, {vr(acc(q),2)}, {vr(st,2)}, {vr(TP+2*q,2)} op_sel_hi:[1,0,1]")
        for q in P: e(f"v_pk_mul_f32 {vr(TQ+2*q,2)}, {vr(TP+2*q,2)}, {vr(TP+2*q,2)}")
        for q in P: e(f"v_pk_fma_f32 {vr(TQ+2*q,2)}, {vr(VC,2)}, {vr(TQ+2*q,2)}, {vr(VC,2)} op_sel:[1,0,0] op_sel_hi:[1,1,0]")
        for q in P: e(f"v_pk_mul_f32 {vr(TQ+2*q,2)}, {vr(TQ+2*q,2)}, {vr(TP+2*q,2)}")
        for q in range(8): e(f"v_exp_f32 v{TE+q}, v{TQ+q}")
        for q in P: e(f"v_pk_add_f32 {vr(TE+2*q,2)}, {vr(TE+2*q,2)}, 1.0 op_sel_hi:[1,0]")
        for q in range(8): e(f"v_rcp_f32 v{TE+q}, v{TE+q}")
        for q in P: e(f"v_pk_mul_f32 {vr(TP+2*q,2)}, {vr(TP+2*q,2)}, {vr(TE+2*q,2)}")
        o = TO + 4*mt
        for q in P: e(f"v_cvt_pk_bf16_f32 v{o+q}, v{TP+2*q}, v{TP+2*q+1}")
        e(f"buffer_store_dwordx4 {vr(o,4)}, v1, s[48:51], s6 offen offset:{1024*mt} sc1"); vm.issue("hst")
vm.wait_all()
e("v_mov_b32 v6, 0\nv_mov_b32 v7, 1\ns_mov_b64 exec, 1")
e("buffer_store_dword v7, v6, s[48:51], s45 offen sc1")
e("s_mov_b64 exec, -1")
stG()
e("L_G2:")
A2, HR = 112, 192
for ml in range(4):
    e(f"s_xor_b32 s6, s3, {ml}\ns_lshl_b32 s6, s6, 10")
    e(f"v_add_u32 v{3+ml}, s6, v1")
e("v_min_u32 v7, 27, v0\nv_lshlrev_b32 v7, 2, v7")
e(f"s_lshl_b32 s9, s13, 7\ns_add_u32 s9, s9, {FL_H}")
HL = ["buffer_load_dword v8, v7, s[48:51], s9 offen sc1"]
e(HL[0]); e("s_waitcnt vmcnt(0)"); vm.clear()
e("v_cmp_ne_u32 vcc, 1, v8")
spin_global(HL, [], 8)
stG()
def h_load(i):
    e(f"s_lshl2_add_u32 s6, s{sK[i]}, s11")
    for ml in range(4):
        r = HR + (i % 4)*16 + ml*4
        e(f"buffer_load_dwordx4 {vr(r,4)}, v{3+ml}, s[48:51], s6 offen sc1"); vm.issue(("h", i))
for i in range(4): h_load(i)
FX, FB2, FCF, FS = 92, 102, 8, 12
FCF = 32
CL = [f"buffer_load_dwordx2 {vr(FCF,2)}, v7, s[48:51], s9 offen sc1"]
CCMB = [f"v_and_b32 v{FCF}, v{FCF}, v{FCF+1}"]
for i in range(14):
    vm.wait([("w2", i), ("h", i)])
    for ml in range(4):
        for dt in range(5):
            a = A2 + (ml*5+dt)*4
            e(f"v_mfma_f32_16x16x32_bf16 {vr(a,4)}, {vr(12+(i%5)*20+dt*4,4)}, {vr(HR+(i%4)*16+ml*4,4)}, {vr(a,4) if i else 0}")
    if i + 5 < 14: w2_load(i+5)
    if i + 4 < 14: h_load(i+4)
    if i == 9:
        e("v_and_b32 v7, 15, v0\nv_lshrrev_b32 v8, 4, v0")
        e("s_lshl_b32 s6, s13, 6\ns_lshl_b32 s7, s3, 4\ns_add_u32 s6, s6, s7")
        e("v_add_u32 v7, s6, v7\ns_movk_i32 s7, 1280\nv_mul_lo_u32 v7, v7, s7")
        e("v_lshlrev_b32 v8, 3, v8\nv_add_u32 v2, v7, v8")
        e("s_mul_i32 s8, s14, 160")
        for dt in range(5):
            e(f"buffer_load_dwordx2 {vr(FX+2*dt,2)}, v2, s[52:55], s8 offen offset:{32*dt}"); vm.issue("fx")
            e(f"buffer_load_dwordx2 {vr(FB2+2*dt,2)}, v8, s[64:67], s8 offen offset:{32*dt}"); vm.issue("fx")
    if i == 11:
        e("v_min_u32 v7, 39, v0\nv_lshlrev_b32 v7, 3, v7")
        e(f"s_mul_i32 s9, s14, 320\ns_add_u32 s9, s9, {FL_C}")
        e(CL[0]); vm.issue("cf")
stG()
for ml in (1, 2, 3):
    e(f"s_xor_b32 s6, s3, {ml}\ns_mul_i32 s6, s6, 15360\ns_add_u32 s6, s6, {(ml-1)*5120}")
    e(f"v_add_u32 v{3+ml}, s6, v1")
vm.wait("cf")
e(CCMB[0]); e(f"v_cmp_ne_u32 vcc, 1, v{FCF}")
spin_global(CL, CCMB, FCF)
e("v_lshrrev_b32 v7, 1, v0\nv_and_b32 v8, 1, v0\nv_lshlrev_b32 v34, 12, v7\nv_lshl_add_u32 v34, v8, 4, v34")
e(f"s_mul_i32 s6, s14, 327680\ns_lshl_b32 s7, s13, 7\ns_add_u32 s6, s6, s7\ns_lshl_b32 s7, s3, 5\ns_add_u32 s6, s6, s7\ns_add_u32 s6, s6, {ST}")
for i in range(3):
    if i == 2: e("s_mov_b32 exec_hi, 0")
    e(f"buffer_load_dwordx4 {vr(FS+4*i,4)}, v34, s[48:51], s6 offen sc1"); vm.issue("sT")
    if i < 2: e(f"s_add_u32 s6, s6, {32*4096}")
e("s_mov_b64 exec, -1")
for ml in (1, 2, 3):
    for dt in range(5):
        e(f"ds_write_b128 v{3+ml}, {vr(A2+(ml*5+dt)*4,4)} offset:{1024*dt}"); lg.issue("red")
signal(); chk_read()
stG()
e(f"s_mul_i32 s6, s3, 2560\ns_add_u32 s6, s6, {SB}")
e("v_lshlrev_b32 v35, 4, v0\nv_add_u32 v35, s6, v35")
vm.wait("sT")
for i in range(3):
    if i == 2: e("s_mov_b32 exec_hi, 0")
    e(f"ds_write_b128 v35, {vr(FS+4*i,4)} offset:{1024*i}"); lg.issue("sw")
e("s_mov_b64 exec, -1")
e("v_lshlrev_b32 v35, 3, v0\nv_add_u32 v35, s6, v35")
for dt in range(5):
    e(f"ds_read_b64_tr_b16 {vr(36+2*dt,2)}, v35 offset:{512*dt}"); lg.issue("str")
chk_eval()
e(f"s_mul_i32 s6, s3, 15360")
e("v_add_u32 v3, s6, v1")
RD = 192
for s_ in range(3):
    for dt in range(5):
        e(f"ds_read_b128 {vr(RD+(s_*5+dt)*4,4)}, v3 offset:{5120*s_+1024*dt}"); lg.issue(("rd", dt))
vm.wait("fx")
lg.wait_all()
T = 48
for dt in range(5):
    a = A2 + dt*4
    for k in (0, 1):
        e(f"v_lshlrev_b32 v{T+2*k}, 16, v{FB2+2*dt+k}\nv_and_b32 v{T+2*k+1}, 0xffff0000, v{FB2+2*dt+k}")
    for k in (0, 1):
        e(f"v_pk_add_f32 {vr(a+2*k,2)}, {vr(a+2*k,2)}, {vr(RD+dt*4+2*k,2)}")
        e(f"v_pk_add_f32 {vr(T+4+2*k,2)}, {vr(RD+(5+dt)*4+2*k,2)}, {vr(RD+(10+dt)*4+2*k,2)}")
    for k in (0, 1):
        e(f"v_pk_add_f32 {vr(a+2*k,2)}, {vr(a+2*k,2)}, {vr(T+2*k,2)}")
    for k in (0, 1):
        e(f"v_pk_add_f32 {vr(a+2*k,2)}, {vr(a+2*k,2)}, {vr(T+4+2*k,2)}")
    for k in range(4): e(f"v_mul_f32 v{T+k}, {f32(-1.4426950408889634)}, v{a+k}")
    for k in range(4): e(f"v_exp_f32 v{T+k}, v{T+k}")
    for k in (0, 1):
        e(f"v_lshlrev_b32 v{T+4+2*k}, 16, v{36+2*dt+k}\nv_and_b32 v{T+5+2*k}, 0xffff0000, v{36+2*dt+k}")
    for k in (0, 1): e(f"v_pk_add_f32 {vr(T+2*k,2)}, {vr(T+2*k,2)}, 1.0 op_sel_hi:[1,0]")
    for k in range(4): e(f"v_rcp_f32 v{T+k}, v{T+k}")
    for k in (0, 1): e(f"v_pk_mul_f32 {vr(a+2*k,2)}, {vr(a+2*k,2)}, {vr(T+4+2*k,2)}")
    for k in (0, 1):
        e(f"v_lshlrev_b32 v{T+4+2*k}, 16, v{FX+2*dt+k}\nv_and_b32 v{T+5+2*k}, 0xffff0000, v{FX+2*dt+k}")
    for k in (0, 1): e(f"v_pk_fma_f32 {vr(a+2*k,2)}, {vr(a+2*k,2)}, {vr(T+2*k,2)}, {vr(T+4+2*k,2)}")
    for k in (0, 1): e(f"v_cvt_pk_bf16_f32 v{T+8+2*dt+k}, v{a+2*k}, v{a+2*k+1}")
    e(f"buffer_store_dwordx2 {vr(T+8+2*dt,2)}, v2, s[68:71], s8 offen offset:{32*dt}")
stG()
stG.flush(60, 61, (0, 1, 8))
e("s_endpgm")

e("L_WTASK:")
e("v_lshrrev_b32 v10, 4, v0")
e("s_lshl_b32 s8, s2, 2\ns_add_u32 s8, s8, s3")
for i in range(5):
    e(f"v_add_u32 v1, {64*i}, v0\nv_mul_u32_u24 v2, 3277, v1\nv_lshrrev_b32 v2, 16, v2")
    e("v_mul_u32_u24 v3, 20, v2\nv_sub_u32 v3, v1, v3")
    e(f"v_mul_u32_u24 v{112+i}, 1280, v2\nv_lshl_add_u32 v{112+i}, v3, 4, v{112+i}")
    e(f"v_mul_u32_u24 v{117+i}, 352, v2\nv_lshl_add_u32 v{117+i}, v3, 4, v{117+i}")
e("s_mul_i32 s9, s3, 11264")
for i in range(5): e(f"v_add_u32 v{117+i}, s9, v{117+i}")
e("s_lshr_b32 s6, s8, 1\ns_mul_i32 s10, s6, 40960\ns_and_b32 s7, s8, 1\ns_mul_i32 s11, s7, 640\ns_add_u32 s10, s10, s11")
e("s_add_u32 s11, s10, 20480")
e("s_waitcnt lgkmcnt(0)")
srd(56, 36, 2211840)
for a in (0, 1):
    for i in range(10):
        r = 128 + (a*10+i)*4
        e(f"buffer_load_dwordx4 {vr(r,4)}, v{112+i%5}, s[56:59], s{10 + i//5} offen offset:{320*a}")
srd(52, 16, 2621440); srd(48, 44, WS_SIZE); srd(64, 38, 1280); srd(68, 40, 2621440); srd(72, 42, 256)
e(f"v_mov_b32 v{VFL+6}, 0")
gcommon()
e("v_lshrrev_b32 v1, 2, v0\nv_mul_u32_u24 v1, 352, v1\nv_and_b32 v2, 3, v0\nv_lshl_add_u32 v1, v2, 3, v1\nv_add_u32 v1, s9, v1")
e("v_lshlrev_b32 v2, 4, v0")
e(f"s_lshr_b32 s6, s8, 1\ns_mul_i32 s10, s6, 5120\ns_and_b32 s7, s8, 1\ns_mul_i32 s7, s7, {4*276480}\ns_add_u32 s10, s10, s7\ns_add_u32 s10, s10, {W2F}")
e(f"s_cmp_ge_u32 s8, 108\ns_cselect_b32 s10, {OOB}, s10")
for a in (0, 1):
    if a == 0: e("s_waitcnt vmcnt(10)")
    for i in range(10):
        r = 128 + (a*10+i)*4
        e(f"ds_write_b128 v{117+i%5}, {vr(r,4)} offset:{(i//5)*16*352}")
    e("s_waitcnt lgkmcnt(0)")
    for dt in range(10):
        r = 12 + dt*4
        e(f"ds_read_b64_tr_b16 {vr(r,2)}, v1 offset:{32*dt}")
        e(f"ds_read_b64_tr_b16 {vr(r+2,2)}, v1 offset:{32*dt+16*352}")
    for half in (0, 1):
        e(f"s_add_u32 s6, s10, {(2*a+half)*276480}\ns_add_u32 s7, s6, 4096")
        e(f"s_waitcnt lgkmcnt({10 if half == 0 else 0})")
        if a == 0 and half == 0: e("s_waitcnt vmcnt(0)")
        for d5 in range(5):
            r = 12 + (half*5+d5)*4
            if d5 < 4: e(f"buffer_store_dwordx4 {vr(r,4)}, v2, s[48:51], s6 offen offset:{1024*d5} sc1")
            else: e(f"buffer_store_dwordx4 {vr(r,4)}, v2, s[48:51], s7 offen sc1")
e(f"buffer_load_dword v{VGO}, v{VFL+6}, s[72:75], 0 offen sc1")
e("s_waitcnt vmcnt(0)")
go_check(VGO, VFL+6, 72)
e(f"s_lshl_b32 s6, s8, 2\ns_add_u32 s6, s6, {FL_W}\ns_cmp_ge_u32 s8, 108\ns_cselect_b32 s6, {OOB}, s6")
e(f"v_mov_b32 v7, 1\ns_mov_b64 exec, 1")
e(f"buffer_store_dword v7, v{VFL+6}, s[48:51], s6 offen sc1")
e("s_mov_b64 exec, -1")
e(f"v_lshlrev_b32 v{VFL+6}, 4, v0")
e(f"v_min_u32 v{VFL+7}, 53, v0\nv_lshlrev_b32 v{VFL+7}, 3, v{VFL+7}")
for l in FLD: e(l)
e("s_waitcnt vmcnt(0)")
for l in FCMB: e(l)
e(f"v_cmp_ne_u32 vcc, 1, v{VFL}")
spin_global(FLD, FCMB, VFL)
if STAMPS:
    for r in stG.regs[:4]: e(f"s_memrealtime s[{r}:{r+1}]")
e("s_branch L_PREF")

e("L_AUX:")
e("s_cmp_eq_u32 s3, 7")
e("s_cbranch_scc1 L_S")
stC = Stamper([76,78,80,82,84,86,88,90])
e("s_sub_u32 s6, s3, 4")
e("s_mul_i32 s7, s5, 3\ns_lshl1_add_u32 s8, s5, 16\ns_cmp_lt_u32 s5, 16\ns_cselect_b32 s8, s7, s8\ns_cselect_b32 s7, 3, 2")
e("s_cmp_ge_u32 s6, s7")
e("s_cbranch_scc1 L_END")
e("s_add_u32 s8, s8, s6\ns_mul_i32 s7, s4, 80\ns_add_u32 s8, s8, s7")
e(f"s_mul_i32 s9, s6, {CHSZ}\ns_add_u32 s9, s9, {CH0}")
e("s_lshl_b32 s6, s8, 8")
e("v_lshlrev_b32 v1, 2, v0\nv_add_u32 v1, s6, v1")
e("s_lshl_b32 s6, s8, 1\nv_mov_b32 v2, s6")
e("s_waitcnt lgkmcnt(0)")
stC()
e("global_load_ushort v8, v2, s[26:27]")
e("global_load_dword v4, v1, s[18:19]")
e("global_load_dword v5, v1, s[20:21]")
e("global_load_dword v6, v1, s[22:23]")
e("global_load_dword v7, v1, s[24:25]")
e("global_load_ushort v9, v2, s[28:29]")
srd(48, 44, WS_SIZE); srd(72, 42, 256)
e("s_barrier")
e("v_and_b32 v10, 15, v0\nv_lshrrev_b32 v11, 4, v0")
e("v_lshrrev_b32 v12, 1, v10\nv_lshlrev_b32 v12, 5, v12\nv_and_b32 v13, 1, v10\nv_add_u32 v12, v12, v13")
e("v_lshlrev_b32 v13, 5, v10\nv_subrev_u32 v13, 128, v13\nv_cmp_gt_u32 vcc, 8, v10\nv_cndmask_b32 v12, v13, v12, vcc")
e("v_cvt_f32_u32 v12, v12\nv_lshlrev_b32 v13, 1, v10\nv_cvt_f32_u32 v13, v13")
e("v_lshlrev_b32 v14, 5, v11\nv_add_u32 v14, s9, v14")
e("v_mov_b32 v16, 2048\nv_mov_b32 v17, 1024\nv_cndmask_b32 v15, v16, v17, vcc\nv_add_u32 v15, v15, v14")
e("v_lshlrev_b32 v16, 4, v0\nv_add_u32 v16, s9, v16")
e("s_waitcnt vmcnt(1)")
stC()
e(f"v_lshlrev_b32 v8, 16, v8\nv_mul_f32 v8, {LOG2E}, v8\nv_exp_f32 v8, v8"); rb(8, 8)
LAM, CC, TE_, TM = 20, 24, 28, 36
for n in (0, 1):
    up = (lambda d, s: e(f"v_lshlrev_b32 v{d}, 16, v{s}")) if n == 0 else (lambda d, s: e(f"v_and_b32 v{d}, 0xffff0000, v{s}"))
    up(LAM+2*n, 4); up(LAM+2*n+1, 5); up(CC+2*n, 6); up(CC+2*n+1, 7)
    e(f"v_mul_f32 v{LAM+2*n}, {LOG2E}, v{LAM+2*n}\nv_exp_f32 v{LAM+2*n}, v{LAM+2*n}"); rb(LAM+2*n, LAM+2*n)
for n in (0, 1):
    e(f"v_mul_f32 v{LAM+2*n}, v{LAM+2*n}, v8\nv_mul_f32 v{LAM+2*n+1}, v{LAM+2*n+1}, v8")
    e(f"v_mul_f32 v{LAM+2*n}, {f32(-1.4426950408889634)}, v{LAM+2*n}\nv_mul_f32 v{LAM+2*n+1}, {INV2PI}, v{LAM+2*n+1}")
    e(f"v_mul_f32 v{CC+2*n}, v{CC+2*n}, v8\nv_mul_f32 v{CC+2*n+1}, v{CC+2*n+1}, v8")
    e(f"v_add_f32 v{CC+2*n}, v{CC+2*n}, v{CC+2*n}\nv_add_f32 v{CC+2*n+1}, v{CC+2*n+1}, v{CC+2*n+1}")
e(f"ds_write_b128 v16, {vr(LAM,4)}")
e(f"ds_write_b128 v16, {vr(CC,4)} offset:1024")
for k, p in enumerate((1920.0, 128.0, 512.0)):
    b = 40 + 12*k
    for n in (0, 1):
        e(f"v_mul_f32 v{b+2*n}, {f32(p)}, v{LAM+2*n}\nv_mul_f32 v{b+2*n+1}, {f32(p)}, v{LAM+2*n+1}")
    for n in (0, 1):
        e(f"v_exp_f32 v{b+2*n}, v{b+2*n}\nv_fract_f32 v{b+2*n+1}, v{b+2*n+1}")
    for n in (0, 1):
        e(f"v_cos_f32 v{b+4+2*n}, v{b+2*n+1}\nv_sin_f32 v{b+5+2*n}, v{b+2*n+1}")
    for n in (0, 1):
        e(f"v_pk_mul_f32 {vr(b+4+2*n,2)}, {vr(b+4+2*n,2)}, {vr(b+2*n,2)} op_sel_hi:[1,0]")
    for n in (0, 1): cmul(b+8+2*n, CC+2*n, b+4+2*n)
    for n in (0, 1): cmul2(b+8+2*n, CC+2*n, b+4+2*n)
    e(f"ds_write_b128 v16, {vr(b+8,4)} offset:{2048+1024*k}")
RL, RX, RP, RB = 20, 28, 36, 44
AQ_, AY, EQ, Y2, TT = 52, 60, 68, 76, 84
FQ, FP_, FB, FY2, FY8 = 92, 96, 100, 104, 108
KQ, KP, KB = 112, 116, 120
for r in range(KQ, KQ+12): e(f"v_mov_b32 v{r}, 0")
e("s_waitcnt lgkmcnt(0)")
e(f"ds_read_b128 {vr(RL,4)}, v14\nds_read_b128 {vr(RL+4,4)}, v14 offset:16")
e("s_mov_b32 s10, 8")
e("L_KG:")
e(f"ds_read_b128 {vr(RX,4)}, v15\nds_read_b128 {vr(RX+4,4)}, v15 offset:16")
e(f"ds_read_b128 {vr(RP,4)}, v14 offset:3072\nds_read_b128 {vr(RP+4,4)}, v14 offset:3088")
e(f"ds_read_b128 {vr(RB,4)}, v14 offset:4096\nds_read_b128 {vr(RB+4,4)}, v14 offset:4112")
e("s_waitcnt lgkmcnt(6)")
N4 = range(4)
for n in N4:
    e(f"v_pk_mul_f32 {vr(AQ_+2*n,2)}, {vr(RL+2*n,2)}, v[12:13] op_sel_hi:[1,0]")
    e(f"v_pk_mul_f32 {vr(AY+2*n,2)}, v[12:13], {vr(RL+2*n,2)} op_sel:[1,0] op_sel_hi:[1,1]")
e("v_add_u32 v14, 128, v14\nv_add_u32 v15, 128, v15")
e(f"ds_read_b128 {vr(RL,4)}, v14\nds_read_b128 {vr(RL+4,4)}, v14 offset:16")
for (a, E_) in ((AQ_, EQ), (AY, Y2)):
    for n in N4: e(f"v_exp_f32 v{a+2*n}, v{a+2*n}\nv_fract_f32 v{a+2*n+1}, v{a+2*n+1}")
    for n in N4: e(f"v_cos_f32 v{E_+2*n}, v{a+2*n+1}\nv_sin_f32 v{E_+2*n+1}, v{a+2*n+1}")
    for n in N4: e(f"v_pk_mul_f32 {vr(E_+2*n,2)}, {vr(E_+2*n,2)}, {vr(a+2*n,2)} op_sel_hi:[1,0]")
e("s_waitcnt lgkmcnt(2)")
for (cst, fr, t) in ((RX, FQ, AQ_), (RP, FP_, AY)):
    for n in N4: cmul(t+2*n, cst+2*n, EQ+2*n)
    for n in N4: cmul2(t+2*n, cst+2*n, EQ+2*n)
    for n in N4: e(f"v_cvt_pk_bf16_f32 v{fr+n}, v{t+2*n}, v{t+2*n+1}")
for n in N4: e(f"v_cvt_pk_bf16_f32 v{FY2+n}, v{Y2+2*n}, -v{Y2+2*n+1}")
for (x, t) in ((EQ, AQ_), (Y2, AY)):
    for n in N4: cmul(t+2*n, x+2*n, x+2*n)
for (x, t) in ((EQ, AQ_), (Y2, AY)):
    for n in N4: cmul2(t+2*n, x+2*n, x+2*n)
e(f"v_mfma_f32_16x16x32_bf16 {vr(KQ,4)}, {vr(FQ,4)}, {vr(FY2,4)}, {vr(KQ,4)}")
for (x, t) in ((EQ, AQ_), (Y2, AY)):
    for n in N4: cmul(x+2*n, t+2*n, t+2*n)
e(f"v_mfma_f32_16x16x32_bf16 {vr(KP,4)}, {vr(FP_,4)}, {vr(FY2,4)}, {vr(KP,4)}")
for (x, t) in ((EQ, AQ_), (Y2, AY)):
    for n in N4: cmul2(x+2*n, t+2*n, t+2*n)
for n in N4: cmul(AQ_+2*n, RB+2*n, EQ+2*n)
for n in N4: e(f"v_cvt_pk_bf16_f32 v{FY8+n}, v{Y2+2*n}, -v{Y2+2*n+1}")
for n in N4: cmul2(AQ_+2*n, RB+2*n, EQ+2*n)
for n in N4: e(f"v_cvt_pk_bf16_f32 v{FB+n}, v{AQ_+2*n}, v{AQ_+2*n+1}")
e("s_sub_u32 s10, s10, 1")
e("s_cmp_lg_u32 s10, 0")
e(f"v_mfma_f32_16x16x32_bf16 {vr(KB,4)}, {vr(FB,4)}, {vr(FY8,4)}, {vr(KB,4)}")
e("s_cbranch_scc1 L_KG")
stC()
e("v_mov_b32 v2, 0")
e("buffer_load_dword v3, v2, s[72:75], 0 offen sc1")
e("v_cmp_gt_u32 vcc, 2, v11")
e(f"s_add_u32 s10, s9, {TBOFF}")
e("v_lshlrev_b32 v20, 1, v10\nv_lshlrev_b32 v21, 2, v10\nv_cndmask_b32 v20, v20, v21, vcc")
e("v_lshl_add_u32 v20, v11, 7, v20\nv_add_u32 v20, s10, v20\nv_add_u32 v20, 256, v20")
e("v_mov_b32 v22, 32\nv_cndmask_b32 v21, v22, 2, vcc\nv_add_u32 v21, v21, v20")
e("v_mov_b32 v22, 768\nv_mov_b32 v23, -256\nv_cndmask_b32 v22, v22, v23, vcc\nv_add_u32 v23, v22, v21\nv_add_u32 v22, v22, v20")
e("s_waitcnt lgkmcnt(0)")
for (k, a0, a1, off) in ((KQ, 22, 23, 0), (KP, 20, 21, 0), (KB, 20, 21, 512)):
    for hh in (0, 1):
        e(f"v_cvt_pk_bf16_f32 v{24+hh}, v{k+2*hh}, v{k+2*hh+1}")
    for hh in (0, 1):
        e(f"ds_write_b16 v{a0}, v{24+hh} offset:{off+64*hh}\nds_write_b16_d16_hi v{a1}, v{24+hh} offset:{off+64*hh}")
e("v_lshlrev_b32 v24, 2, v10\nv_add_u32 v24, s9, v24\nv_mov_b32 v25, 0")
e(f"ds_write_b32 v24, v25 offset:{TBOFF-64}")
e("s_waitcnt vmcnt(0)")
go_check(3, 2, 72)
SL = ["buffer_load_dwordx4 v[4:7], v2, s[48:51], 0 offen sc1"]
SC = ["v_and_b32 v4, v4, v5", "v_and_b32 v6, v6, v7", "v_and_b32 v4, v4, v6"]
e("v_lshlrev_b32 v2, 4, v0")
e(SL[0]); e("s_waitcnt vmcnt(0)")
for l in SC: e(l)
e("v_cmp_ne_u32 vcc, 1, v4")
spin_global(SL, SC, 4)
stC()
UR = 128
e("s_mov_b32 s6, 40960\nv_mul_lo_u32 v2, v0, s6")
e(f"s_lshl_b32 s6, s8, 4\ns_add_u32 s6, s6, {XNB}")
for i in range(4):
    e(f"buffer_load_dwordx4 {vr(UR+4*i,4)}, v2, s[48:51], s6 offen sc1")
    if i < 3: e("s_add_u32 s6, s6, 10240")
e(f"v_subrev_u32 v3, {40960-12}, v2\nv_mov_b32 v4, {OOB}\nv_cmp_eq_u32 vcc, 0, v0\nv_cndmask_b32 v3, v3, v4, vcc")
e(f"buffer_load_dword v{UR-1}, v3, s[48:51], s6 offen sc1")
e("v_lshlrev_b32 v24, 1, v0\nv_sub_u32 v22, 2047, v24\nv_sub_u32 v23, 2046, v24")
e("v_add_u32 v20, 32, v22\nv_add_u32 v25, 32, v23\nv_lshl_or_b32 v20, v25, 16, v20")
e("v_cvt_f32_i32 v22, v22\nv_cvt_f32_i32 v23, v23")
e(f"v_lshlrev_b32 v21, 2, v0\ns_add_u32 s6, s9, {K0OFF-12}\nv_add_u32 v21, s6, v21")
e(f"s_add_u32 s6, s9, {TBOFF-64}\nv_mov_b32 v26, s6")
e("v_mov_b32 v27, 0x42604260\nv_mov_b32 v28, 0x009f009f\nv_mov_b32 v29, 0xff80ff80")
e(f"v_mov_b32 v30, {f32(-128.0)}")
e("s_waitcnt lgkmcnt(0)")
def exp_rounds(n, last=False):
    for k in range(n):
        t = 32 + 4*k
        e(f"v_cvt_pk_bf16_f32 v{t}, v22, v23")
        e(f"v_pk_add_f32 v[22:23], v[22:23], v[30:31] op_sel_hi:[1,0]")
        e(f"v_pk_sub_i16 v{t}, v{t}, v27")
        e(f"v_pk_max_i16 v{t}, v{t}, v28")
        e(f"v_pk_min_i16 v{t}, v{t}, v20")
        e(f"v_pk_add_u16 v20, v20, v29")
        if last: e(f"v_pk_max_i16 v{t}, v{t}, 0")
        e(f"v_pk_lshlrev_b16 v{t}, 1, v{t} op_sel_hi:[0,1]")
        e(f"v_add_u32_sdwa v{t+1}, v26, v{t} dst_sel:DWORD dst_unused:UNUSED_PAD src0_sel:DWORD src1_sel:WORD_0")
        e(f"v_add_u32_sdwa v{t+2}, v26, v{t} dst_sel:DWORD dst_unused:UNUSED_PAD src0_sel:DWORD src1_sel:WORD_1")
        e(f"ds_read_u16 v{t+1}, v{t+1}\nds_read_u16 v{t+2}, v{t+2}")
    for k in range(n):
        t = 32 + 4*k
        e(f"s_waitcnt lgkmcnt({min(15, 2*(n-1-k) + 4*k)})")
        e(f"v_lshl_or_b32 v{t}, v{t+2}, 16, v{t+1}")
        for c in range(4): e(f"ds_write_b32 v21, v{t} offset:{c*(KCP+4) + 256*k}")
e("s_mov_b32 s10, 4")
e("L_EXP:")
exp_rounds(4)
e("v_add_u32 v21, 1024, v21")
e("s_sub_u32 s10, s10, 1\ns_cmp_lg_u32 s10, 0\ns_waitcnt lgkmcnt(0)\ns_cbranch_scc1 L_EXP")
e("s_mov_b64 exec, 0x7fff")
exp_rounds(1, True)
e("s_mov_b64 exec, -1")
stC()
e("v_lshlrev_b32 v2, 6, v0\nv_add_u32 v2, s9, v2")
e("v_lshlrev_b32 v3, 4, v0\nv_add_u32 v3, s9, v3")
for r in range(4, 8): e(f"v_mov_b32 v{r}, 0")
e("s_waitcnt vmcnt(0) lgkmcnt(0)")
for i in range(16): e(f"v_alignbit_b32 v{144+i}, v{UR+i}, v{UR+i-1}, 16")
for i in range(4):
    e(f"ds_write_b128 v2, {vr(UR+4*i,4)} offset:{448+16*i}")
    e(f"ds_write_b128 v2, {vr(144+4*i,4)} offset:{U1OFF+448+16*i}")
e("s_mov_b64 exec, 0xfffffff")
e(f"ds_write_b128 v3, v[4:7]\nds_write_b128 v3, v[4:7] offset:{U1OFF}")
e("s_mov_b64 exec, -1")
e("v_lshrrev_b32 v12, 1, v10\nv_lshlrev_b32 v12, 6, v12\nv_lshl_add_u32 v12, v11, 4, v12")
e(f"v_and_b32 v13, 1, v10\nv_xor_b32 v13, 1, v13\nv_mul_u32_u24 v13, {U1OFF}, v13\nv_add_u32 v12, v12, v13")
e(f"s_add_u32 s6, s9, 448\nv_add_u32 v12, s6, v12")
e(f"v_and_b32 v13, 3, v10\nv_mul_u32_u24 v13, {KCP}, v13\nv_lshrrev_b32 v14, 2, v10\nv_sub_u32 v14, v11, v14\nv_lshl_add_u32 v13, v14, 4, v13")
e(f"s_add_u32 s6, s9, {K0OFF+4080-3584}\nv_add_u32 v13, s6, v13")
CA, BU, BK = 16, [48, 112], [80, 144]
for r in range(CA, CA+32): e(f"v_mov_b32 v{r}, 0")
e("s_waitcnt lgkmcnt(0)")
def conv_reads(b):
    l = []
    for t in range(8):
        l.append(f"ds_read_b128 {vr(BU[b]+4*t,4)}, v12 offset:{512*t}")
        l.append(f"ds_read_b128 {vr(BK[b]+4*t,4)}, v13 offset:{512*(7-t)}")
    l.append("v_subrev_u32 v12, 64, v12\nv_subrev_u32 v13, 64, v13")
    return l
for l in conv_reads(0): e(l)
e("s_mov_b32 s10, 4")
e("L_CV:")
for b in (0, 1):
    e("s_waitcnt lgkmcnt(0)")
    rd = conv_reads(1-b)
    n = 0
    for s_ in range(8):
        for t in range(8 - s_):
            a = CA + 4*(s_+t)
            e(f"v_mfma_f32_16x16x32_bf16 {vr(a,4)}, {vr(BU[b]+4*t,4)}, {vr(BK[b]+4*s_,4)}, {vr(a,4)}")
            if n < len(rd): e(rd[n])
            n += 1
e("s_sub_u32 s10, s10, 1\ns_cmp_lg_u32 s10, 0\ns_cbranch_scc1 L_CV")
stC()
e(f"v_lshlrev_b32 v2, 7, v11\nv_lshl_add_u32 v2, v10, 2, v2\ns_add_u32 s6, s9, {K0OFF}\nv_add_u32 v2, s6, v2")
e("s_waitcnt lgkmcnt(0)")
for t in range(8):
    for hh in (0, 1):
        e(f"v_cvt_pk_bf16_f32 v{48+2*t+hh}, v{CA+4*t+2*hh}, v{CA+4*t+2*hh+1}")
        e(f"ds_write_b32 v2, v{48+2*t+hh} offset:{512*t+64*hh}")
e("v_lshlrev_b32 v9, 16, v9")
e("s_waitcnt lgkmcnt(0)")
for i in range(4):
    e(f"ds_read_b128 {vr(64+4*i,4)}, v3 offset:{K0OFF+1024*i}")
    e(f"ds_read_b128 {vr(80+4*i,4)}, v3 offset:{448+1024*i}")
e(f"v_lshlrev_b32 v2, 4, v0\ns_lshl_b32 s6, s8, 12\ns_add_u32 s6, s6, {ST}")
e("v_mov_b32 v8, v9")
for i in range(4):
    e(f"s_waitcnt lgkmcnt({6-2*i})")
    for k in range(4):
        u = 80+4*i+k; t = 16+2*k
        e(f"v_lshlrev_b32 v{t}, 16, v{u}\nv_and_b32 v{t+1}, 0xffff0000, v{u}")
    for k in range(4): e(f"v_pk_mul_f32 {vr(16+2*k,2)}, {vr(16+2*k,2)}, v[8:9]")
    for k in range(4): e(f"v_cvt_pk_bf16_f32 v{24+k}, v{16+2*k}, v{17+2*k}")
    for k in range(4):
        y = 64+4*i+k
        e(f"v_lshlrev_b32 v{16+2*k}, 16, v{24+k}\nv_and_b32 v{17+2*k}, 0xffff0000, v{24+k}")
        e(f"v_lshlrev_b32 v{28+2*k}, 16, v{y}\nv_and_b32 v{29+2*k}, 0xffff0000, v{y}")
    for k in range(4): e(f"v_pk_add_f32 {vr(16+2*k,2)}, {vr(16+2*k,2)}, {vr(28+2*k,2)}")
    for k in range(4): e(f"v_cvt_pk_bf16_f32 v{96+4*i+k}, v{16+2*k}, v{17+2*k}")
    e(f"buffer_store_dwordx4 {vr(96+4*i,4)}, v2, s[48:51], s6 offen offset:{1024*i} sc1")
e("s_waitcnt vmcnt(0)")
e(f"s_lshl_b32 s6, s8, 2\ns_add_u32 s6, s6, {FL_C}")
e("v_mov_b32 v2, 0\nv_mov_b32 v3, 1\ns_mov_b64 exec, 1")
e("buffer_store_dword v3, v2, s[48:51], s6 offen sc1")
stC()
stC.flush(4, 5, (4, 9, 7))
e("s_endpgm")

e("L_S:")
stS = Stamper([76,78,80,82,84,86])
e("s_lshl_b32 s8, s4, 5\ns_add_u32 s8, s8, s5")
e("v_lshrrev_b32 v1, 3, v0\nv_and_b32 v2, 7, v0")
e("v_mul_u32_u24 v3, 1280, v1\nv_lshl_add_u32 v3, v2, 4, v3")
e("s_mul_i32 s9, s8, 10240")
e("v_lshlrev_b32 v4, 4, v0")
e("v_mov_b32 v5, 0")
e("s_waitcnt lgkmcnt(0)")
srd(52, 16, 2621440); srd(48, 44, WS_SIZE); srd(72, 42, 256)
XS = 16
for i in range(10): e(f"buffer_load_dwordx4 {vr(XS+4*i,4)}, v3, s[52:55], s9 offen offset:{128*i}")
e("s_cmp_lg_u32 s2, 0")
e("s_cbranch_scc1 L_S1")
for r in range(8, 12): e(f"v_mov_b32 v{r}, 0")
for i in range(9):
    e(f"s_mov_b32 s6, {1024*i}")
    e("buffer_store_dwordx4 v[8:11], v4, s[48:51], s6 offen sc1")
e("s_waitcnt vmcnt(0)")
e("v_mov_b32 v8, 1\ns_mov_b64 exec, 1")
e("buffer_store_dword v8, v5, s[72:75], 0 offen sc1")
e("s_mov_b64 exec, -1")
e("L_S1:")
e("s_barrier")
e("v_mov_b32 v6, 0x3f803f80")
e(f"v_mul_u32_u24 v12, 1344, v1\nv_lshl_add_u32 v12, v2, 4, v12\nv_add_u32 v12, {SB}, v12")
e(f"v_bfe_u32 v13, v0, 2, 2\nv_mul_u32_u24 v13, 1344, v13\nv_lshrrev_b32 v14, 4, v0\nv_lshl_add_u32 v13, v14, 5, v13")
e(f"v_and_b32 v14, 3, v0\nv_lshl_add_u32 v13, v14, 3, v13\nv_add_u32 v13, {SB}, v13")
def row_stats(src):
    for r in range(8, 12): e(f"v_mov_b32 v{r}, 0")
    for k in range(40):
        e(f"v_dot2c_f32_bf16 v{8+(k&1)}, v{src+k}, v6")
        e(f"v_dot2c_f32_bf16 v{10+(k&1)}, v{src+k}, v{src+k}")
    e("v_add_f32 v8, v8, v9\nv_add_f32 v10, v10, v11")
    for m in ("quad_perm:[1,0,3,2]", "quad_perm:[2,3,0,1]", "row_half_mirror"):
        e(f"v_add_f32_dpp v8, v8, v8 {m} row_mask:0xf bank_mask:0xf")
        e(f"v_add_f32_dpp v10, v10, v10 {m} row_mask:0xf bank_mask:0xf")
    e(f"v_mul_f32 v8, {f32(1/640)}, v8\nv_mul_f32 v10, {f32(1/640)}, v10")
    e("v_fma_f32 v10, -v8, v8, v10\nv_max_f32 v10, 0, v10")
def mean_std(m, s):
    rb(m, 8); rb(10, 10)
    e(f"v_add_f32 v10, {f32(1e-5)}, v10"); rb(10, 10)
    e("v_sqrt_f32 v10, v10"); rb(s, 10)
e("s_waitcnt vmcnt(0)")
stS()
row_stats(XS)
mean_std(60, 62)
e("v_rcp_f32 v61, v62")
for k0 in range(0, 40, 4):
    K4 = range(4)
    for k in K4: e(f"v_lshlrev_b32 v{64+2*k}, 16, v{XS+k0+k}\nv_and_b32 v{65+2*k}, 0xffff0000, v{XS+k0+k}")
    for k in K4: e(f"v_pk_add_f32 {vr(64+2*k,2)}, {vr(64+2*k,2)}, v[60:61] op_sel_hi:[1,0] neg_lo:[0,1] neg_hi:[0,1]")
    for k in K4: e(f"v_cvt_pk_bf16_f32 v{72+k}, v{64+2*k}, v{65+2*k}")
    for k in K4: e(f"v_lshlrev_b32 v{64+2*k}, 16, v{72+k}\nv_and_b32 v{65+2*k}, 0xffff0000, v{72+k}")
    for k in K4: e(f"v_pk_mul_f32 {vr(64+2*k,2)}, v[60:61], {vr(64+2*k,2)} op_sel:[1,0] op_sel_hi:[1,1]")
    for k in K4: e(f"v_cvt_pk_bf16_f32 v{XS+k0+k}, v{64+2*k}, v{65+2*k}")
    e(f"ds_write_b128 v12, {vr(XS+k0,4)} offset:{32*k0}")
e("buffer_load_dword v7, v5, s[72:75], 0 offen sc1")
e("s_waitcnt lgkmcnt(0)")
for i in range(10):
    e(f"ds_read_b64_tr_b16 {vr(80+4*i,2)}, v13 offset:{128*i}")
    e(f"ds_read_b64_tr_b16 {vr(82+4*i,2)}, v13 offset:{128*i+4*1344}")
row_stats(XS)
e(f"s_add_u32 s9, s9, {XNB}")
e("s_waitcnt lgkmcnt(0)")
for i in range(10):
    if i in (4, 8): e("s_add_u32 s9, s9, 4096")
    e(f"buffer_store_dwordx4 {vr(80+4*i,4)}, v4, s[48:51], s9 offen offset:{1024*(i%4)} sc1")
mean_std(64, 65)
e("v_mul_f32 v66, v62, v65\nv_rcp_f32 v66, v66\nv_fma_f32 v67, v64, v62, v60\nv_mul_f32 v67, v67, v66")
e(f"v_lshlrev_b32 v1, 3, v1\ns_lshl_b32 s6, s8, 6\ns_add_u32 s6, s6, {STATS}")
e("s_mov_b32 s10, 0x01010101\ns_mov_b32 s11, 0x01010101\ns_mov_b64 exec, s[10:11]")
e("buffer_store_dwordx2 v[66:67], v1, s[48:51], s6 offen sc1")
e("s_mov_b64 exec, -1")
stS()
e("s_waitcnt vmcnt(0)")
stS()
go_check(7, 5, 72)
e("s_lshl_b32 s6, s8, 2\nv_mov_b32 v8, 1\ns_mov_b64 exec, 1")
e("buffer_store_dword v8, v5, s[48:51], s6 offen sc1")
stS()
stS.flush(8, 9)
e("L_END:")
e("s_endpgm")
for l in tail: e(l)
nn = e.fix()

hdr = open("cdna_kernels/" + NAME + ".s.ref").read().split("; Override")[0]
s = hdr + f"; @launch grid=(256,1,1) block=(512,1,1) lds={LDS_TOTAL}\n"
s += f""".amdgcn_target "amdgcn-amd-amdhsa--gfx950"
.text
.globl {NAME}_kernel
.p2align 8
.type {NAME}_kernel,@function
{NAME}_kernel:
"""
s += e.text()
s += f""".section .rodata,"a"
.p2align 6
.amdhsa_kernel {NAME}_kernel
  .amdhsa_next_free_vgpr 256
  .amdhsa_next_free_sgpr 102
  .amdhsa_accum_offset 256
  .amdhsa_group_segment_fixed_size 0
  .amdhsa_kernarg_size 120
  .amdhsa_user_sgpr_count 2
  .amdhsa_user_sgpr_kernarg_segment_ptr 1
  .amdhsa_system_sgpr_workgroup_id_x 1
.end_amdhsa_kernel
"""
open(OUT, "w").write(s)
print("instrs", sum(1 for c in e.I if c.cls), "nops inserted", nn, "lds", LDS_TOTAL)
```

```python
import sys, struct
from emit import Em, Q
NAME = "recurrent_scan__ssm_conv_s4d__mixer_channel_mlp__prompt"
DBGST = "--dbg" in sys.argv
STAMPS = "--stamps" in sys.argv or DBGST
OPT = dict(a[2:].split("=") for a in sys.argv[1:] if a.startswith("--") and "=" in a)
OUT = [a for a in sys.argv[1:] if not a.startswith("--")]
OUT = OUT[0] if OUT else "k.s"
NOAUX = OPT.get("noaux", "0")
EXP = OPT.get("exp", "")
MT = "s_memtime" if "--cyc" in sys.argv else "s_memrealtime"

FL_S, FL_H, FL_C = 0, 1024, 5120
STATS = 0x4000
XNB = 0x10000
W2F = 0x300000
HF = 0x600000
ST = 0xD00000
STAMP = 0xFC0000
WS_SIZE = 0x1000000
OOB = 0x20000000
KSTEP = 8320
XST = 8 * KSTEP
CH0 = XST + 24576
CHSZ = 18432
SB = CH0 + 3 * CHSZ
CNT = SB + 10752
CS = CNT + 1024
CNT2 = CS + 512
SST = CNT2 + 1024
REL = SST + 64
LDS_TOTAL = REL + 64
assert CS % 512 == 0 and LDS_TOTAL <= 163840
UB0, USZ, U1OFF = 61440, 9152, 4576
assert UB0 + 3*USZ <= CH0
KOFF, KCP = 1792, 4160
TBOFF, TAB, TPI = 64, 1536, 528
SPIN_MAX = 8192
LOG2E = 0x3fb8aa3b
INV2PI = 0x3e22f983

e = Em()
tail = []
def f32(x): return "0x%08x" % struct.unpack("<I", struct.pack("<f", x))[0]
def srd(r, ptr, size):
    e(f"s_mov_b32 s{r}, s{ptr}\ns_mov_b32 s{r+1}, s{ptr+1}\ns_mov_b32 s{r+2}, {size}\ns_mov_b32 s{r+3}, 0x20000")
def vr(a, n): return f"v[{a}:{a+n-1}]"

class Stamper:
    def __init__(self, regs): self.regs = regs; self.n = 0
    def __call__(self):
        if not STAMPS: return
        r = self.regs[self.n]; self.n += 1
        e(f"{MT} s[{r}:{r+1}]")
    def flush(self, v0, v1, dbg=None):
        if not STAMPS: return
        e("s_waitcnt lgkmcnt(0)")
        if DBGST:
            if dbg is None: return
            wave, off, n = dbg
            L = e.lab("NODBG")
            e(f"s_cmp_lg_u32 s2, 100\ns_cbranch_scc1 {L}\ns_cmp_lg_u32 s3, {wave}\ns_cbranch_scc1 {L}")
            e(f"v_mov_b32 v{v1}, 0\ns_mov_b64 exec, 1")
            for i, r in enumerate(self.regs[:n]):
                e(f"s_sub_u32 s{r}, s{r}, s46\nv_mov_b32 v{v0}, s{r}")
                e(f"buffer_store_dword v{v0}, v{v1}, s[72:75], 0 offen offset:{4*(off+i)}")
                e("s_nop 0")
            e("s_waitcnt vmcnt(0)")
            e(f"{L}:")
            return
        e("s_lshl_b32 s6, s2, 3\ns_add_u32 s6, s6, s3\ns_lshl_b32 s6, s6, 6")
        e(f"s_add_u32 s6, s6, {STAMP}")
        e(f"v_mov_b32 v{v1}, 0")
        e("s_mov_b64 exec, 1")
        for i, r in enumerate([46] + self.regs[:self.n]):
            e(f"v_mov_b32 v{v0}, s{r}")
            e(f"buffer_store_dword v{v0}, v{v1}, s[48:51], s6 offen offset:{4*i}")
            e("s_nop 0")
        e("s_waitcnt vmcnt(0)")

def spin_lds(vchk, vaddr, val, sleep=False, after=(), pre_cmp=True, branch="s_cbranch_vccnz"):
    if NOAUX != "0" and not val.startswith("v"): return
    L = e.lab("SPIN"); B = e.lab("BACK")
    if pre_cmp: e(f"v_cmp_gt_u32 vcc, {val}, v{vchk}")
    e(f"{branch} {L}")
    e(f"{B}:")
    D = f"{L}_d" if after else B
    tail.extend([f"{L}:", f"s_mov_b32 s12, {SPIN_MAX*16}", f"{L}_a:"] + (["s_sleep 1"] if sleep else []) +
                [f"ds_read_b32 v{vchk}, v{vaddr}", "s_waitcnt lgkmcnt(0)",
                 f"v_cmp_gt_u32 vcc, {val}, v{vchk}", f"s_cbranch_vccz {D}", "s_sub_u32 s12, s12, 1", f"s_cbranch_scc0 {L}_a"] +
                ([f"{D}:"] + list(after) if after else []) + [f"s_branch {B}"])
def wait_lds(vchk, vaddr, val, sleep=False):
    e(f"ds_read_b32 v{vchk}, v{vaddr}\ns_waitcnt lgkmcnt(0)")
    spin_lds(vchk, vaddr, val, sleep)
def rb(dst, src):
    e(f"v_cvt_pk_bf16_f32 v{dst}, v{src}, v{src}\nv_and_b32 v{dst}, 0xffff0000, v{dst}")
def zero_cnt(base):
    e(f"s_and_b32 s6, s3, 3\ns_lshl_b32 s6, s6, 8\ns_add_u32 s6, s6, {base}")
    e("v_lshlrev_b32 v9, 2, v0\nv_add_u32 v9, s6, v9\nv_mov_b32 v11, 0")
    e("ds_write_b32 v9, v11")

e("s_cmp_ge_u32 s2, 256")
e("s_cbranch_scc1 L_END")
if STAMPS: e(f"{MT} s[46:47]")
e("s_load_dwordx16 s[16:31], s[0:1], 0")
e("s_load_dwordx8 s[32:39], s[0:1], 64")
e("s_load_dwordx4 s[40:43], s[0:1], 96")
e("s_load_dwordx2 s[44:45], s[0:1], 112")
e("v_lshrrev_b32 v1, 6, v0")
e("v_and_b32 v0, 63, v0")
e("v_readfirstlane_b32 s3, v1")
e("s_and_b32 s4, s2, 7")
e("s_lshr_b32 s5, s2, 3")
e("s_cmp_ge_u32 s3, 4")
e("s_cbranch_scc1 L_AUX")

_stG = Stamper([30,32,34,36,38,96,98,100])
GSEL = OPT.get("gst", "c0,g1,ep,hp,hs,g2,rd,end").split(",")
class _G:
    def __call__(self, name):
        if name in GSEL:
            _stG.n = GSEL.index(name); _stG()
    def flush(self, *a):
        _stG.n = 8; _stG.flush(*a)
stG = _G()
vm = Q(e, "vmcnt", 63); lg = Q(e, "lgkmcnt", 15)
XR, VXA, WB, ONES = 12, 44, 76, 108
ACC, CSA = 112, 176
VCHK, VGO, VB1, VST, VC, VCS, VT = 184, 185, 186, 202, 206, 208, 216
VFL = 216
sK = [76+i for i in range(14)]
e(f"s_setprio {OPT.get('gprio', '2')}")
zero_cnt(CNT)
e("v_lshrrev_b32 v10, 4, v0")
e("v_and_b32 v8, 15, v0")
e("s_lshr_b32 s6, s5, 3\ns_lshl_b32 s13, s4, 2\ns_add_u32 s13, s13, s6\ns_and_b32 s14, s5, 7")
e("s_mul_i32 s15, s14, 7\ns_lshr_b32 s15, s15, 2\ns_mul_i32 s6, s6, 7\ns_lshr_b32 s6, s6, 1\ns_add_u32 s15, s15, s6")
e("s_cmp_ge_u32 s15, 14\ns_cselect_b32 s6, 14, 0\ns_sub_u32 s15, s15, s6")
e("s_cmp_lt_u32 s5, 4")
e("s_cbranch_scc1 L_IDLE")
e("s_sub_u32 s6, s5, 4\ns_mul_i32 s7, s6, 37\ns_lshr_b32 s7, s7, 8\ns_mul_i32 s8, s7, 7\ns_sub_u32 s6, s6, s8")
e("s_lshr_b32 s8, s4, 1\ns_lshl_b32 s8, s8, 2\ns_add_u32 s8, s8, s7")
e("s_and_b32 s9, s4, 1\ns_mul_i32 s9, s9, 7\ns_add_u32 s9, s9, s6")
e("s_lshl_b32 s11, s9, 8")
e("v_bfe_u32 v1, v0, 2, 2\ns_lshl_b32 s6, s3, 3\nv_add_u32 v1, s6, v1\nv_mul_u32_u24 v1, 3456, v1")
e("v_lshl_add_u32 v1, v10, 6, v1\nv_and_b32 v2, 3, v0\nv_lshl_add_u32 v1, v2, 4, v1")
e(f"v_add_u32 v2, {4*3456-1024}, v1")
e("s_lshl_b32 s6, s8, 7\ns_lshl_b32 s7, s3, 5\ns_add_u32 s6, s6, s7")
e("v_lshrrev_b32 v5, 3, v0\nv_add_u32 v3, s6, v5\nv_mul_u32_u24 v3, 1280, v3\nv_and_b32 v6, 7, v0\nv_lshrrev_b32 v5, 1, v5\nv_xor_b32 v6, v6, v5")
e(f"v_xor_b32 v5, 4, v6\nv_lshl_add_u32 v4, v5, 4, v3\nv_add_u32 v4, {10240-1024}, v4\nv_lshl_add_u32 v3, v6, 4, v3")
e(f"s_mul_i32 s10, s3, 6144\ns_add_u32 s10, s10, {XST}")
e("s_waitcnt lgkmcnt(0)")
e("s_mul_i32 s1, s3, 2080")
srd(56, 32, 2211840); srd(52, 16, 2621440)
def w_ops(step):
    if "d" in EXP and step > 5: return [lambda: None, lambda: None]
    def a():
        e(f"s_add_u32 m0, s1, {(step % 8)*KSTEP}\ns_add_u32 s0, s11, {step*110592}")
        e("buffer_load_dwordx4 v1, s[56:59], s0 offen lds"); vm.issue(("w", step//2))
    def b():
        e("buffer_load_dwordx4 v2, s[56:59], s0 offen offset:1024 lds"); vm.issue(("w", step//2))
    return [a, b]
def x_ops(u):
    if "x" in EXP and u > 3: return [lambda: None, lambda: None]
    def a():
        e(f"s_add_u32 m0, s10, {(u % 3)*2048}\ns_mov_b32 s0, {(u//2)*128 + (u % 2)*20480}")
        e("buffer_load_dwordx4 v3, s[52:55], s0 offen lds"); vm.issue(("x", u))
    def b():
        e("buffer_load_dwordx4 v4, s[52:55], s0 offen offset:1024 lds"); vm.issue(("x", u))
    return [a, b]
def x_reads(u):
    vm.wait(("x", u))
    for k2 in (0, 1):
        e(f"ds_read_b128 {vr(XR+(u%4)*8+4*k2,4)}, v{VXA+k2} offset:{(u%3)*2048}"); lg.issue(("xr", u))
for op in w_ops(0) + x_ops(0) + x_ops(1) + w_ops(1): op()
e("s_barrier")
srd(48, 44, WS_SIZE); srd(60, 34, 3456); srd(64, 38, 1280); srd(68, 40, 2621440); srd(72, 42, 256)
e("v_mul_u32_u24 v5, 2080, v10\nv_bfe_u32 v6, v0, 2, 2\nv_lshl_add_u32 v5, v6, 6, v5\nv_and_b32 v6, 3, v0\nv_lshl_add_u32 v184, v6, 3, v5")
e(f"v_lshrrev_b32 v{VXA}, 1, v8\nv_xor_b32 v{VXA}, v{VXA}, v10\nv_lshlrev_b32 v{VXA}, 4, v{VXA}\nv_lshl_add_u32 v{VXA}, v8, 7, v{VXA}")
e(f"v_xor_b32 v{VXA+1}, 64, v{VXA}\nv_add_u32 v{VXA}, s10, v{VXA}\nv_add_u32 v{VXA+1}, s10, v{VXA+1}")
for tp in range(4):
    e(f"s_xor_b32 s6, s3, {tp}\ns_lshl_b32 s6, s6, 8\nv_add_u32 v{5+tp}, s6, v184")
for i in range(4): e(f"v_mov_b32 v{ONES+i}, 0x3f803f80")
e("v_lshlrev_b32 v223, 3, v10\ns_lshl_b32 s6, s3, 6\nv_add_u32 v223, s6, v223")
for op in w_ops(2) + w_ops(3) + x_ops(2): op()
for tp in range(4):
    e(f"v_xor_b32 v{VGO}, {64*tp}, v223")
    for h in (0, 1):
        e(f"buffer_load_dwordx2 {vr(VB1+(2*tp+h)*2,2)}, v{VGO}, s[60:63], s11 offen offset:{32*h}"); vm.issue("b1")
def gcommon():
    e("s_mov_b32 s6, s15")
    for i in range(14):
        if i: e("s_add_u32 s6, s6, 1\ns_cmp_eq_u32 s6, 14\ns_cselect_b32 s6, 0, s6")
        e(f"s_lshl2_add_u32 s7, s6, s3\ns_cmp_ge_u32 s7, 54\ns_cselect_b32 s7, {0x8000000>>10}, s7\ns_lshl_b32 s{sK[i]}, s7, 10")
    e(f"v_and_b32 v209, 15, v0\nv_lshlrev_b32 v10, 8, v10\nv_lshl_add_u32 v10, v209, 2, v10\nv_add_u32 v10, {CNT}, v10")
gcommon()
stG("p")
def signal():
    e("v_add_u32 v11, 1, v11")
    e("ds_write_b32 v9, v11"); lg.issue("sig")
CHKR = [VCHK]
def chk_read():
    e(f"ds_read_b32 v{CHKR[0]}, v10"); lg.issue("chk")
def chk_eval():
    lg.wait("chk")
    spin_lds(CHKR[0], 10, "v11")
def tr_reads(step, t):
    base = (step % 8) * KSTEP + 32 * (t & 1)
    for hf_ in (0, 1):
        r = WB + 4*t + 2*hf_
        e(f"ds_read_b64_tr_b16 {vr(r,2)}, v{5+(t>>1)} offset:{base + 1024*hf_}"); lg.issue(("w", step, t))
vm.wait(("w", 0))
signal(); chk_read()
x_reads(0); x_reads(1)
chk_eval()
stG("c0")
def tr_one(step, t, hf_):
    base = (step % 8) * KSTEP + 32 * (t & 1)
    e(f"ds_read_b64_tr_b16 {vr(WB+4*t+2*hf_,2)}, v{5+(t>>1)} offset:{base + 1024*hf_}"); lg.issue(("w", step, t))
for t in range(8): tr_reads(0, t)
lg.wait(("xr", 0))
for op in x_ops(3): op()
carry = []
NOCS = "c" in EXP
for i in range(20):
    c, k2 = divmod(i, 2)
    stG(f"a{i}")
    mf = []
    for t in range(8):
        mf += [(t, 0), (t, 1)] + ([(t, 2)] if t < 2 and not NOCS else [])
    side = {n: [] for n in range(len(mf))}
    pos = lambda t: mf.index((t, 0))
    side[0] += carry; carry = []
    if i < 19:
        for t in range(8):
            last = max(n for n, m in enumerate(mf) if m[0] == t)
            side[last].append(lambda t=t: tr_one(i+1, t, 0))
            if last + 1 < len(mf): side[last+1].append(lambda t=t: tr_one(i+1, t, 1))
            else: carry.append(lambda t=t, i=i: tr_one(i+1, t, 1))
    WP = [1, 4] if not NOCS else [1, 3]
    if i == 0:
        o = w_ops(4) + w_ops(5)
        for n, op in zip((1, 4, 6, 8), o): side[n].append(op)
    elif i + 5 <= 19:
        for n, op in zip(WP, w_ops(i+5)): side[n].append(op)
    if i + 4 <= 19:
        o = x_ops(i+4)
        side[pos(4)].append(lambda i=i: lg.wait(("xr", i+1))); side[pos(4)].append(o[0]); side[pos(6)].append(o[1])
    if k2 == 0 and c + 1 <= 9:
        def sg(c=c):
            vm.wait(("w", c+1)); signal()
        side[pos(3)].append(sg); side[pos(5)].append(chk_read)
    if i + 2 <= 19: side[pos(7)].append(lambda i=i: x_reads(i+2))
    if i == 15:
        side[pos(5)].append(lambda: (e(f"v_mov_b32 v{VFL}, {REL}\nds_read_b32 v{VFL+1}, v{VFL}"), lg.issue("rel")))
    if i == 16:
        def f():
            lg.wait("rel")
            spin_lds(VFL+1, VFL, "1")
            e(f"v_and_b32 v{VFL+6}, 15, v0\nv_lshlrev_b32 v{VFL+6}, 3, v{VFL+6}")
            e(f"s_lshl_b32 s6, s8, 10\ns_lshl_b32 s7, s3, 8\ns_add_u32 s6, s6, s7\ns_add_u32 s6, s6, {STATS}")
            e(f"buffer_load_dwordx2 {vr(VST,2)}, v{VFL+6}, s[48:51], s6 offen sc1"); vm.issue("st")
            e(f"buffer_load_dwordx2 {vr(VST+2,2)}, v{VFL+6}, s[48:51], s6 offen offset:128 sc1"); vm.issue("st")
        side[1].append(f)
    for n, (t, mt) in enumerate(mf):
        if mt == 0:
            need = [("w", i, t), ("w", i, t+1)] if t % 2 == 0 else []
            if t == 6: need = [("w", i, 6)]
            if t == 7: need = [("w", i, 7)]
            if t == 0 and k2 == 0: need += [("xr", 2*c), ("xr", 2*c+1)]
            if need: lg.wait(need)
        if mt < 2:
            a = ACC + (2*t+mt)*4
            x = XR + ((2*c+mt) % 4)*8 + 4*k2
        else:
            a = CSA + 4*t; x = ONES
        e(f"v_mfma_f32_16x16x32_bf16 {vr(a,4)}, {vr(WB+4*t,4)}, {vr(x,4)}, {vr(a,4) if i else 0}")
        for f in side[n]: f()
    if k2 == 0 and c + 1 <= 9: chk_eval()
stG("g1")
e(f"v_lshrrev_b32 v5, 4, v0\nv_lshlrev_b32 v5, 4, v5\ns_lshl_b32 s6, s3, 7\ns_add_u32 s6, s6, {CS}\nv_add_u32 v5, s6, v5")
e("s_mov_b32 s6, 0x00010001\ns_mov_b32 s7, 0x00010001\ns_mov_b64 exec, s[6:7]")
e(f"ds_write_b128 v5, {vr(CSA,4)}"); lg.issue("csw")
e(f"ds_write_b128 v5, {vr(CSA+4,4)} offset:64"); lg.issue("csw")
e("s_mov_b64 exec, -1")
signal(); chk_read()
def g2_setup():
    e("v_lshlrev_b32 v1, 4, v0")
    e(f"s_mul_i32 s10, s14, 276480\ns_add_u32 s10, s10, {W2F}")
    e(f"s_mul_i32 s11, s13, 221184\ns_add_u32 s11, s11, {HF}")
def w2_ops(i):
    ops = []
    for dt in range(5):
        def f(dt=dt):
            if dt == 0: e(f"s_lshl2_add_u32 s0, s{sK[i]}, s10\ns_add_u32 s0, s0, s{sK[i]}")
            if dt == 4: e("s_add_u32 s0, s0, 4096")
            r = 12 + (i % 5)*20 + dt*4
            e(f"buffer_load_dwordx4 {vr(r,4)}, v1, s[48:51], s0 offen offset:{1024*(dt%4)} sc1"); vm.issue(("w2", i))
        ops.append(f)
    return ops
g2_setup()
e(f"v_mov_b32 v{VC}, {f32(-2*0.7978845608028654*1.4426950408889634)}")
e(f"v_mov_b32 v{VC+1}, {f32(-2*0.7978845608028654*1.4426950408889634*0.044715)}")
e(f"s_lshr_b32 s6, s3, 1\ns_lshl_b32 s7, s8, 1\ns_add_u32 s6, s6, s7\ns_mul_i32 s44, s6, 221184\ns_and_b32 s7, s3, 1\ns_lshl_b32 s7, s7, 11")
e(f"s_add_u32 s44, s44, s7\ns_add_u32 s44, s44, {HF}")
e(f"s_lshl_b32 s45, s6, 7\ns_add_u32 s45, s45, {FL_H}")
pre = []
chk_eval()
def cs_read(tp):
    b = VCS if tp % 2 == 0 else VT + 32
    e(f"v_xor_b32 v6, {128*tp}, v5")
    e(f"ds_read_b128 {vr(b,4)}, v6"); lg.issue(("cs", tp))
    e(f"ds_read_b128 {vr(b+4,4)}, v6 offset:64"); lg.issue(("cs", tp))
cs_read(0)
vm.wait(["b1", "st"])
TB1, TP, TQ, TE, TO = VT, VT+8, VT+16, VT+24, 176
def nxt():
    if pre: pre.pop(0)()
for tp in range(4):
    csb = VCS if tp % 2 == 0 else VT + 32
    if tp < 3: cs_read(tp+1)
    for h in (0, 1):
        for k in (0, 1):
            s = VB1 + (2*tp+h)*2 + k
            e(f"v_lshlrev_b32 v{TB1+4*h+2*k}, 16, v{s}\nv_and_b32 v{TB1+4*h+2*k+1}, 0xffff0000, v{s}")
    e(f"s_xor_b32 s6, s3, {tp}\ns_lshl2_add_u32 s6, s9, s6\ns_cmp_ge_u32 s6, 54\ns_cselect_b32 s7, {OOB}, s44\ns_lshl_b32 s6, s6, 12\ns_add_u32 s6, s6, s7")
    lg.wait(("cs", tp))
    for mt in (0, 1):
        st = VST + 2*mt
        P = range(4)
        acc = lambda q: ACC + (2*(2*tp + (q >> 1)) + mt)*4 + 2*(q & 1)
        for q in P: e(f"v_pk_fma_f32 {vr(TP+2*q,2)}, {vr(st,2)}, {vr(csb+2*q,2)}, {vr(TB1+2*q,2)} op_sel:[1,0,0] op_sel_hi:[1,1,1] neg_lo:[1,0,0] neg_hi:[1,0,0]")
        for q in P: e(f"v_pk_fma_f32 {vr(TP+2*q,2)}, {vr(acc(q),2)}, {vr(st,2)}, {vr(TP+2*q,2)} op_sel_hi:[1,0,1]")
        for q in P: e(f"v_pk_mul_f32 {vr(TQ+2*q,2)}, {vr(TP+2*q,2)}, {vr(TP+2*q,2)}")
        nxt()
        for q in P: e(f"v_pk_fma_f32 {vr(TQ+2*q,2)}, {vr(VC,2)}, {vr(TQ+2*q,2)}, {vr(VC,2)} op_sel:[1,0,0] op_sel_hi:[1,1,0]")
        for q in P: e(f"v_pk_mul_f32 {vr(TQ+2*q,2)}, {vr(TQ+2*q,2)}, {vr(TP+2*q,2)}")
        for q in range(8): e(f"v_exp_f32 v{TE+q}, v{TQ+q}")
        nxt()
        for q in P: e(f"v_pk_add_f32 {vr(TE+2*q,2)}, {vr(TE+2*q,2)}, 1.0 op_sel_hi:[1,0]")
        for q in range(8): e(f"v_rcp_f32 v{TE+q}, v{TE+q}")
        nxt()
        for q in P: e(f"v_pk_mul_f32 {vr(TP+2*q,2)}, {vr(TP+2*q,2)}, {vr(TE+2*q,2)}")
        o = TO + 4*mt
        for q in P: e(f"v_cvt_pk_bf16_f32 v{o+q}, v{TP+2*q}, v{TP+2*q+1}")
        e(f"buffer_store_dwordx4 {vr(o,4)}, v1, s[48:51], s6 offen offset:{1024*mt} sc1"); vm.issue("hst")
assert not pre
stG("ep")
signal()
vm.wait_all()
e("v_mov_b32 v6, 0\nv_mov_b32 v7, 1\ns_mov_b64 exec, 1")
e("buffer_atomic_add v7, v6, s[48:51], s45 offen sc1")
e("s_mov_b64 exec, -1")
stG("hp")
vm.clear()
e("L_G2:")
CHKR[0] = 26
A2, HR = 112, 192
for i in range(5):
    for op in w2_ops(i): op()
for ml in range(4):
    e(f"s_xor_b32 s6, s3, {ml}\ns_lshl_b32 s6, s6, 10\nv_add_u32 v{3+ml}, s6, v1")
e(f"v_mov_b32 v2, {REL}")
e("s_mul_i32 s6, s3, 15360\nv_add_u32 v7, s6, v1")
wait_lds(8, 2, "2"); lg.clear()
stG("hs")
def h_load(i):
    e(f"s_lshl2_add_u32 s6, s{sK[i]}, s11")
    for ml in range(4):
        r = HR + (i % 4)*16 + ml*4
        e(f"buffer_load_dwordx4 {vr(r,4)}, v{3+ml}, s[48:51], s6 offen sc1"); vm.issue(("h", i))
for i in range(4): h_load(i)
FB2, FXO, FLA, FX, FS, VSO = 92, 102, 105, 32, 12, 25
STL = []
for i in range(3):
    if i == 2: STL.append("s_mov_b32 exec_hi, 0")
    STL.append(f"buffer_load_dwordx4 {vr(FS+4*i,4)}, v{VSO}, s[48:51], s{44 if i == 0 else 6} offen sc1")
    if i < 2: STL.append(f"s_add_u32 s6, s44, {32*4096*(i+1)}")
STL.append("s_mov_b64 exec, -1")
for i in range(14):
    vm.wait([("w2", i), ("h", i)])
    lg.wait(("pf", i))
    if i == 7: signal()
    if i == 12: chk_read()
    stG(f"b{i}")
    for ml in range(4):
        for dt in range(5):
            a = A2 + (ml*5+dt)*4
            e(f"v_mfma_f32_16x16x32_bf16 {vr(a,4)}, {vr(12+(i%5)*20+dt*4,4)}, {vr(HR+(i%4)*16+ml*4,4)}, {vr(a,4) if i else 0}")
    if i == 0: wait_lds(8, 2, "3"); lg.clear()
    if i + 5 < 8:
        for dt in range(5):
            e(f"ds_read_b128 {vr(12+i*20+dt*4,4)}, v7 offset:{i*5120+dt*1024}"); lg.issue(("pf", i+5))
    elif i + 5 < 14:
        for op in w2_ops(i+5): op()
    if i + 4 < 14: h_load(i+4)
    if i == 9:
        e("v_lshrrev_b32 v4, 4, v0\nv_lshlrev_b32 v4, 3, v4\ns_mul_i32 s8, s14, 160")
        for dt in range(5):
            e(f"buffer_load_dwordx2 {vr(FB2+2*dt,2)}, v4, s[64:67], s8 offen offset:{32*dt}"); vm.issue("fx")
        e(f"s_lshl_b32 s6, s13, 6\ns_lshl_b32 s7, s3, 4\ns_add_u32 s6, s6, s7\ns_mul_i32 s6, s6, 1280\ns_add_u32 s8, s8, s6")
        e(f"s_mul_i32 s9, s3, 2688\ns_add_u32 s9, s9, {SB}")
        for k in range(3):
            e(f"v_add_u32 v3, {64*k}, v0\nv_mul_u32_u24 v4, 6554, v3\nv_lshrrev_b32 v4, 16, v4\nv_mul_u32_u24 v5, 10, v4\nv_sub_u32 v3, v3, v5\nv_lshlrev_b32 v3, 4, v3")
            e(f"s_movk_i32 s6, 1280\nv_mad_u32_u24 v{FXO+k}, v4, s6, v3\ns_movk_i32 s6, 168\nv_mad_u32_u24 v{FLA+k}, v4, s6, v3\nv_add_u32 v{FLA+k}, s9, v{FLA+k}")
    if i == 10:
        e("ds_read_b32 v8, v2")
        e(f"v_lshrrev_b32 v{VSO}, 1, v0\nv_and_b32 v4, 1, v0\nv_lshlrev_b32 v{VSO}, 12, v{VSO}\nv_lshl_add_u32 v{VSO}, v4, 4, v{VSO}")
        e(f"s_mul_i32 s44, s14, 327680\ns_lshl_b32 s7, s13, 7\ns_add_u32 s44, s44, s7\ns_lshl_b32 s7, s3, 5\ns_add_u32 s44, s44, s7\ns_add_u32 s44, s44, {ST}")
        e("s_waitcnt lgkmcnt(0)\nv_cmp_gt_u32 s[42:43], 4, v8"); lg.clear()
        for l in STL:
            e(l)
            if l.startswith("buffer"): vm.issue("sT")
    if i == 11:
        for k in range(3):
            if k == 2: e("s_mov_b32 exec_hi, 0")
            e(f"buffer_load_dwordx4 {vr(FX+4*k,4)}, v{FXO+k}, s[52:55], s8 offen"); vm.issue("fx")
        e("s_mov_b64 exec, -1")
stG("g2")
chk_eval()
for ml in (1, 2, 3):
    e(f"s_xor_b32 s6, s3, {ml}\ns_mul_i32 s6, s6, 15360\ns_add_u32 s6, s6, {(ml-1)*5120}\nv_add_u32 v{3+ml}, s6, v1")
for ml in (1, 2, 3):
    for dt in range(5):
        e(f"ds_write_b128 v{3+ml}, {vr(A2+(ml*5+dt)*4,4)} offset:{1024*dt}"); lg.issue("red")
signal(); chk_read()
e("s_cmp_lg_u64 s[42:43], 0")
spin_lds(8, 2, "4", after=STL, pre_cmp=False, branch="s_cbranch_scc1")
stG("rd")
e("v_add_u32 v3, s9, v1")
vm.wait_all()
for i in range(3):
    if i == 2: e("s_mov_b32 exec_hi, 0")
    e(f"ds_write_b128 v3, {vr(FS+4*i,4)} offset:{1024*i}"); lg.issue("sw")
e("s_mov_b64 exec, -1")
e("v_lshlrev_b32 v3, 3, v0\nv_add_u32 v3, s9, v3")
for dt in range(5):
    e(f"ds_read_b64_tr_b16 {vr(44+2*dt,2)}, v3 offset:{512*dt}"); lg.issue("str")
chk_eval()
e("s_mul_i32 s6, s3, 15360\nv_add_u32 v4, s6, v1")
RD = 192
for dt in range(5):
    for s_ in range(3):
        e(f"ds_read_b128 {vr(RD+(s_*5+dt)*4,4)}, v4 offset:{5120*s_+1024*dt}"); lg.issue(("rd", dt))
e("v_and_b32 v3, 15, v0\nv_mul_u32_u24 v3, 168, v3\nv_lshrrev_b32 v5, 4, v0\nv_lshl_add_u32 v3, v5, 3, v3\nv_add_u32 v3, s9, v3")
T = 56
for dt in range(5):
    a = A2 + dt*4
    for k in (0, 1):
        e(f"v_lshlrev_b32 v{T+2*k}, 16, v{FB2+2*dt+k}\nv_and_b32 v{T+2*k+1}, 0xffff0000, v{FB2+2*dt+k}")
    lg.wait(("rd", dt))
    for k in (0, 1):
        e(f"v_pk_add_f32 {vr(a+2*k,2)}, {vr(a+2*k,2)}, {vr(RD+dt*4+2*k,2)}")
        e(f"v_pk_add_f32 {vr(T+4+2*k,2)}, {vr(RD+(5+dt)*4+2*k,2)}, {vr(RD+(10+dt)*4+2*k,2)}")
    for k in (0, 1): e(f"v_pk_add_f32 {vr(a+2*k,2)}, {vr(a+2*k,2)}, {vr(T+2*k,2)}")
    for k in (0, 1): e(f"v_pk_add_f32 {vr(a+2*k,2)}, {vr(a+2*k,2)}, {vr(T+4+2*k,2)}")
    for k in range(4): e(f"v_mul_f32 v{T+k}, {f32(-1.4426950408889634)}, v{a+k}")
    for k in range(4): e(f"v_exp_f32 v{T+k}, v{T+k}")
    for k in (0, 1):
        e(f"v_lshlrev_b32 v{T+4+2*k}, 16, v{44+2*dt+k}\nv_and_b32 v{T+5+2*k}, 0xffff0000, v{44+2*dt+k}")
    for k in (0, 1): e(f"v_pk_add_f32 {vr(T+2*k,2)}, {vr(T+2*k,2)}, 1.0 op_sel_hi:[1,0]")
    for k in range(4): e(f"v_rcp_f32 v{T+k}, v{T+k}")
    for k in (0, 1): e(f"v_pk_mul_f32 {vr(a+2*k,2)}, {vr(a+2*k,2)}, {vr(T+4+2*k,2)}")
    for k in (0, 1): e(f"v_pk_mul_f32 {vr(a+2*k,2)}, {vr(a+2*k,2)}, {vr(T+2*k,2)}")
    for k in (0, 1): e(f"v_cvt_pk_bf16_f32 v{T+8+2*dt+k}, v{a+2*k}, v{a+2*k+1}")
    e(f"ds_write_b64 v3, {vr(T+8+2*dt,2)} offset:{32*dt}"); lg.issue("pw")
for k in range(3):
    e(f"ds_read_b64 {vr(RD+4*k,2)}, v{FLA+k}\nds_read_b64 {vr(RD+4*k+2,2)}, v{FLA+k} offset:8"); lg.issue(("pr", k)); lg.issue(("pr", k))
for k in range(3):
    for q in range(4):
        e(f"v_lshlrev_b32 v{T+2*q}, 16, v{FX+4*k+q}\nv_and_b32 v{T+2*q+1}, 0xffff0000, v{FX+4*k+q}")
    lg.wait(("pr", k))
    for q in range(4):
        e(f"v_lshlrev_b32 v{T+8+2*q}, 16, v{RD+4*k+q}\nv_and_b32 v{T+9+2*q}, 0xffff0000, v{RD+4*k+q}")
    for q in range(4): e(f"v_pk_add_f32 {vr(T+2*q,2)}, {vr(T+2*q,2)}, {vr(T+8+2*q,2)}")
    for q in range(4): e(f"v_cvt_pk_bf16_f32 v{RD+16+4*k+q}, v{T+2*q}, v{T+2*q+1}")
    if k == 2: e("s_mov_b32 exec_hi, 0")
    e(f"buffer_store_dwordx4 {vr(RD+16+4*k,4)}, v{FXO+k}, s[68:71], s8 offen")
stG("end")
stG.flush(60, 61, (0, 1, 8))
e("s_endpgm")

e("L_IDLE:")
e("s_waitcnt lgkmcnt(0)")
e("s_barrier")
e("v_mov_b32 v11, 12\nds_write_b32 v9, v11")
srd(52, 16, 2621440); srd(48, 44, WS_SIZE); srd(64, 38, 1280); srd(68, 40, 2621440); srd(72, 42, 256)
gcommon()
g2_setup()
e(f"v_mov_b32 v2, {REL}")
wait_lds(8, 2, "1", sleep=True)
if STAMPS:
    for r in _stG.regs[:4]: e(f"{MT} s[{r}:{r+1}]")
e("s_branch L_G2")

e("L_AUX:")
stC = Stamper([76,78,80,82,84,86,88,90,92,94])
zero_cnt(CNT2)
e("s_sub_u32 s13, s3, 4")
e("s_lshl_b32 s14, s4, 5\ns_add_u32 s14, s14, s5")
e("s_mul_i32 s15, s14, 10240")
e("v_lshrrev_b32 v1, 5, v0\ns_lshl_b32 s6, s13, 1\nv_add_u32 v1, s6, v1\nv_and_b32 v2, 31, v0")
e("v_mul_u32_u24 v3, 1280, v1\nv_lshl_add_u32 v3, v2, 3, v3")
e("s_mul_i32 s7, s5, 3\ns_lshl1_add_u32 s8, s5, 16\ns_cmp_lt_u32 s5, 16\ns_cselect_b32 s8, s7, s8\ns_cselect_b32 s7, 3, 2")
e("s_add_u32 s8, s8, s13\ns_mul_i32 s6, s4, 80\ns_add_u32 s8, s8, s6\ns_cmp_ge_u32 s13, s7\ns_cselect_b32 s8, 640, s8")
e("s_lshl_b32 s10, s8, 8\ns_lshl_b32 s11, s8, 1\nv_lshlrev_b32 v12, 2, v0")
e(f"s_mul_i32 s9, s13, {CHSZ}\ns_add_u32 s9, s9, {CH0}")
e(f"v_mov_b32 v14, 0\nv_mov_b32 v15, {REL}\nds_write_b32 v15, v14")
e("v_lshrrev_b32 v16, 3, v0\nv_mul_u32_u24 v16, 1280, v16\nv_and_b32 v17, 7, v0\nv_lshl_add_u32 v16, v17, 4, v16")
e("s_mul_i32 s7, s5, 3\ns_add_u32 s7, s7, s13\ns_lshl_b32 s6, s7, 6\nv_add_u32 v17, s6, v0")
e("s_waitcnt lgkmcnt(0)")
stC()
srd(52, 16, 2621440)
XS = 20
for i in range(5): e(f"buffer_load_dwordx2 {vr(XS+2*i,2)}, v3, s[52:55], s15 offen offset:{256*i}")
srd(48, 44, WS_SIZE); srd(72, 42, 256)
e("s_cmp_eq_u32 s3, 7\ns_cbranch_scc1 L_A7")
for k, (p, sz) in enumerate(((18, 163840), (20, 163840), (22, 163840), (24, 163840))):
    srd(56, p, sz)
    e(f"buffer_load_dword v{4+k}, v12, s[56:59], s10 offen")
srd(56, 26, 1280); e("buffer_load_ushort v8, v14, s[56:59], s11 offen")
srd(56, 28, 1280); e("buffer_load_ushort v19, v14, s[56:59], s11 offen")
srd(56, 32, 2211840)
e("s_barrier")
e("s_and_b32 s6, s4, 1\ns_mul_i32 s60, s6, 1792\ns_xor_b32 s6, s4, 1\ns_mul_i32 s61, s6, 327680\ns_mov_b32 s62, 38347923\ns_movk_i32 s63, 1664")
NPF = [int(x) for x in OPT.get("npf", "10,6").split(",")]
pf = []
for i in range(12):
    if i % 3 == 0: pf.append(("x", i//3))
    pf.append(("w", i))
def prefetch(n):
    for _ in range(n):
        if not pf: return
        kind, i = pf.pop(0)
        d = 224 + 4*(len(pf) % 8)
        if kind == "w":
            e(f"v_mul_hi_u32 v18, v17, s62\nv_lshlrev_b32 v13, 4, v17\nv_mad_u32_u24 v18, v18, s63, v13\nv_add_u32 v17, {96*64}, v17")
            e(f"buffer_load_dwordx4 {vr(d,4)}, v18, s[56:59], s60 offen")
        else:
            e(f"s_add_u32 s6, s7, {96*i}\ns_and_b32 s0, s6, 31\ns_mul_i32 s0, s0, 10240\ns_lshr_b32 s6, s6, 5\ns_lshl_b32 s6, s6, 7\ns_add_u32 s0, s0, s6\ns_add_u32 s0, s0, s61")
            e(f"buffer_load_dwordx4 {vr(d,4)}, v16, s[52:55], s0 offen")
prefetch(NPF[0])
NP0 = min(NPF[0], 16)
e(f"s_waitcnt vmcnt({NP0})")
e("s_branch L_LN")
e("L_A7:")
srd(56, 36, 2211840)
for i in range(5):
    e(f"v_add_u32 v4, {64*i}, v0\nv_mul_u32_u24 v5, 3277, v4\nv_lshrrev_b32 v5, 16, v5")
    e("v_mul_u32_u24 v6, 20, v5\nv_sub_u32 v6, v4, v6\nv_lshlrev_b32 v6, 4, v6")
    e(f"s_movk_i32 s6, 1280\nv_mad_u32_u24 v{64+i}, v5, s6, v6\ns_movk_i32 s6, 336\nv_mad_u32_u24 v{69+i}, v5, s6, v6\nv_add_u32 v{69+i}, {SB}, v{69+i}")
e(f"s_lshr_b32 s6, s2, 2\ns_mul_i32 s10, s6, 40960\ns_and_b32 s7, s2, 3\ns_mul_i32 s11, s7, 320\ns_add_u32 s10, s10, s11\ns_add_u32 s11, s10, 20480")
for i in range(10): e(f"buffer_load_dwordx4 {vr(128+4*i,4)}, v{64+i%5}, s[56:59], s{10 + i//5} offen")
e("s_cmp_lg_u32 s2, 0\ns_cbranch_scc1 L_A1")
e("v_lshlrev_b32 v4, 4, v0")
for r in range(32, 36): e(f"v_mov_b32 v{r}, 0")
for i in range(9):
    e(f"s_mov_b32 s6, {1024*i}")
    e("buffer_store_dwordx4 v[32:35], v4, s[48:51], s6 offen sc1")
e("s_barrier")
e("s_waitcnt vmcnt(0)")
e("v_mov_b32 v32, 1\ns_mov_b64 exec, 1")
e("buffer_store_dword v32, v14, s[72:75], 0 offen sc1")
e("s_mov_b64 exec, -1")
e("s_branch L_LN")
e("L_A1:")
e("s_barrier")
e("s_waitcnt vmcnt(10)")
e("L_LN:")
if NOAUX == "1": e("s_endpgm")
stC()
e(f"v_mul_u32_u24 v12, 1344, v1\nv_lshl_add_u32 v12, v2, 3, v12\nv_add_u32 v12, {SB}, v12")
e(f"v_lshlrev_b32 v13, 3, v1\nv_add_u32 v13, {SST}, v13")
XF = 32
for k in range(10): e(f"v_lshlrev_b32 v{XF+2*k}, 16, v{XS+k}\nv_and_b32 v{XF+2*k+1}, 0xffff0000, v{XS+k}")
e(f"v_add_f32 v52, v{XF}, v{XF+1}\nv_mul_f32 v54, v{XF}, v{XF}\nv_add_f32 v53, v{XF+2}, v{XF+3}\nv_mul_f32 v55, v{XF+1}, v{XF+1}")
e(f"v_fmac_f32 v54, v{XF+2}, v{XF+2}\nv_fmac_f32 v55, v{XF+3}, v{XF+3}")
for k in range(4, 20): e(f"v_add_f32 v{52+(k&1)}, v{52+(k&1)}, v{XF+k}\nv_fmac_f32 v{54+(k&1)}, v{XF+k}, v{XF+k}")
e("v_add_f32 v52, v52, v53\nv_add_f32 v54, v54, v55")
for m in ("quad_perm:[1,0,3,2]", "quad_perm:[2,3,0,1]", "row_half_mirror", "row_mirror"):
    e(f"v_add_f32_dpp v52, v52, v52 {m} row_mask:0xf bank_mask:0xf")
    e(f"v_add_f32_dpp v54, v54, v54 {m} row_mask:0xf bank_mask:0xf")
e("ds_swizzle_b32 v53, v52 offset:0x401F\nds_swizzle_b32 v55, v54 offset:0x401F\ns_waitcnt lgkmcnt(0)")
e("v_add_f32 v52, v52, v53\nv_add_f32 v54, v54, v55")
e(f"v_mul_f32 v52, {f32(1/640)}, v52\nv_mul_f32 v54, {f32(1/640)}, v54")
e("v_fma_f32 v54, -v52, v52, v54\nv_max_f32 v54, 0, v54")
def std_bf16(dst, var):
    rb(dst, var); e(f"v_add_f32 v{dst}, {f32(1e-5)}, v{dst}"); rb(dst, dst); e(f"v_sqrt_f32 v{dst}, v{dst}"); rb(dst, dst)
rb(56, 52); std_bf16(57, 54)
e("v_rcp_f32 v58, v57")
for k in range(20): e(f"v_sub_f32 v{XF+k}, v{XF+k}, v56")
for k in range(10): e(f"v_cvt_pk_bf16_f32 v{XS+k}, v{XF+2*k}, v{XF+2*k+1}")
for k in range(10): e(f"v_lshlrev_b32 v{XF+2*k}, 16, v{XS+k}\nv_and_b32 v{XF+2*k+1}, 0xffff0000, v{XS+k}")
for k in range(20): e(f"v_mul_f32 v{XF+k}, v{XF+k}, v58")
for k in range(10):
    e(f"v_cvt_pk_bf16_f32 v{XS+k}, v{XF+2*k}, v{XF+2*k+1}")
    if k & 1: e(f"ds_write_b64 v12, {vr(XS+k-1,2)} offset:{128*(k-1)}")
e("v_sub_f32 v59, v52, v56\nv_mul_f32 v59, v59, v58\nv_mul_f32 v60, v54, v58\nv_mul_f32 v60, v60, v58")
rb(59, 59); std_bf16(61, 60)
e("v_mul_f32 v62, v57, v61\nv_rcp_f32 v62, v62\nv_fma_f32 v63, v59, v57, v56\nv_mul_f32 v63, v63, v62")
e("s_mov_b32 s0, 1\ns_mov_b32 s1, 1\ns_mov_b64 exec, s[0:1]")
e("ds_write_b64 v13, v[62:63]")
e("s_mov_b64 exec, -1")
e("v_mov_b32 v11, 1\nds_write_b32 v9, v11")
stC()
e("s_cmp_eq_u32 s3, 7\ns_cbranch_scc1 L_S")
prefetch(NPF[1])
e("s_cmp_ge_u32 s8, 640\ns_cbranch_scc1 L_END")
if "k" in EXP: e("s_endpgm")

e("v_and_b32 v10, 15, v0\nv_lshrrev_b32 v11, 4, v0")
e(f"v_lshlrev_b32 v8, 16, v8\nv_mul_f32 v8, {LOG2E}, v8\nv_exp_f32 v8, v8"); rb(8, 8)
LAM, CC = 20, 24
for n in (0, 1):
    up = (lambda d, s: e(f"v_lshlrev_b32 v{d}, 16, v{s}")) if n == 0 else (lambda d, s: e(f"v_and_b32 v{d}, 0xffff0000, v{s}"))
    up(LAM+2*n, 4); up(LAM+2*n+1, 5); up(CC+2*n, 6); up(CC+2*n+1, 7)
for n in (0, 1): e(f"v_mul_f32 v{LAM+2*n}, {LOG2E}, v{LAM+2*n}")
for n in (0, 1): e(f"v_exp_f32 v{LAM+2*n}, v{LAM+2*n}")
e("v_add_f32 v2, v8, v8")
for n in (0, 1): rb(LAM+2*n, LAM+2*n)
for n in (0, 1):
    e(f"v_mul_f32 v{LAM+2*n}, v{LAM+2*n}, v8\nv_mul_f32 v{LAM+2*n+1}, v{LAM+2*n+1}, v8")
    e(f"v_mul_f32 v{CC+2*n}, v{CC+2*n}, v2\nv_mul_f32 v{CC+2*n+1}, v{CC+2*n+1}, v2")
for n in (0, 1):
    e(f"v_mul_f32 v{LAM+2*n}, {f32(-1.4426950408889634)}, v{LAM+2*n}\nv_mul_f32 v{LAM+2*n+1}, {INV2PI}, v{LAM+2*n+1}")
PS = [2.0, 32.0, 1.0, 2048.0, 8.0, 128.0, 512.0, 516.0]
EV = {p: 32 + 4*i for i, p in enumerate(PS)}
for grp in (PS[:4], PS[4:]):
    it = [(p, n) for p in grp for n in (0, 1)]
    tm = {k: 64 + 2*i for i, k in enumerate(it)}
    for (p, n) in it:
        if p == 1.0: e(f"v_exp_f32 v{tm[p,n]}, v{LAM+2*n}\nv_fract_f32 v{tm[p,n]+1}, v{LAM+2*n+1}")
        else: e(f"v_mul_f32 v{tm[p,n]}, {f32(p)}, v{LAM+2*n}\nv_mul_f32 v{tm[p,n]+1}, {f32(p)}, v{LAM+2*n+1}")
    for (p, n) in it:
        if p != 1.0: e(f"v_exp_f32 v{tm[p,n]}, v{tm[p,n]}\nv_fract_f32 v{tm[p,n]+1}, v{tm[p,n]+1}")
    for (p, n) in it: e(f"v_cos_f32 v{EV[p]+2*n}, v{tm[p,n]+1}\nv_sin_f32 v{EV[p]+2*n+1}, v{tm[p,n]+1}")
    for (p, n) in it:
        neg = "-" if p in (2.0, 8.0) else ""
        e(f"v_mul_f32 v{EV[p]+2*n}, v{EV[p]+2*n}, v{tm[p,n]}")
        e(f"v_mul_f32 v{EV[p]+2*n+1}, {neg}v{EV[p]+2*n+1}, v{tm[p,n]}")
g_ = [(EV[p]+2*n, CC+2*n, 64+2*i+n) for i, p in enumerate((1.0, 2048.0, 512.0, 516.0)) for n in (0, 1)]
for (z, m, t) in g_: e(f"v_mul_f32 v{t}, v{z+1}, v{m+1}")
for (z, m, t) in g_: e(f"v_mul_f32 v{z+1}, v{z+1}, v{m}")
for (z, m, t) in g_: e(f"v_fmac_f32 v{z+1}, v{z}, v{m+1}")
for (z, m, t) in g_: e(f"v_fma_f32 v{z}, v{z}, v{m}, -v{t}")
YC = 80
e(f"v_lshlrev_b32 v12, 3, v0\ns_add_u32 s6, s9, {TAB}\nv_add_u32 v12, s6, v12")
e(f"v_mul_u32_u24 v14, {TPI}, v10\nv_lshl_add_u32 v14, v11, 4, v14\nv_add_u32 v14, s6, v14")
KT = [112, 116, 120]
def chain_loop(ch, n, row0):
    L = e.lab("KL")
    e(f"s_mov_b32 s10, {n}\nv_add_u32 v13, {row0*TPI}, v12")
    e(f"{L}:")
    for i, (z, m, off) in enumerate(ch):
        e(f"v_cvt_pk_bf16_f32 v{64+2*i}, v{z}, v{z+1}\nv_cvt_pk_bf16_f32 v{65+2*i}, v{z+2}, v{z+3}")
    g = [(z+2*k, m+2*k, 70+2*i+k) for i, (z, m, off) in enumerate(ch) for k in (0, 1)]
    for (z, m, t) in g: e(f"v_mul_f32 v{t}, v{z+1}, v{m+1}")
    for i, (z, m, off) in enumerate(ch):
        if "w" not in EXP: e(f"ds_write_b64 v13, {vr(64+2*i,2)} offset:{off*TPI}")
    for (z, m, t) in g: e(f"v_mul_f32 v{z+1}, v{z+1}, v{m}")
    e(f"v_add_u32 v13, {TPI}, v13")
    for (z, m, t) in g: e(f"v_fmac_f32 v{z+1}, v{z}, v{m+1}")
    e("s_sub_u32 s10, s10, 1\ns_cmp_lg_u32 s10, 0")
    for (z, m, t) in g: e(f"v_fma_f32 v{z}, v{z}, v{m}, -v{t}")
    e(f"s_cbranch_scc1 {L}")
def y_init(): e(f"v_mov_b32 v{YC}, 1.0\nv_mov_b32 v{YC+1}, 0\nv_mov_b32 v{YC+2}, 1.0\nv_mov_b32 v{YC+3}, 0")
FY, FA = 128, 160
def frag_reads(dst, row0):
    for s_ in range(8): e(f"ds_read_b128 {vr(dst+4*s_,4)}, v14 offset:{64*s_+row0*TPI}")
def k_mfma(k):
    for s_ in range(8):
        e(f"s_waitcnt lgkmcnt({7-s_})")
        e(f"v_mfma_f32_16x16x32_bf16 {vr(KT[k],4)}, {vr(FA+4*s_,4)}, {vr(FY+4*s_,4)}, {vr(KT[k],4) if s_ else 0}")
y_init()
chain_loop([(YC, EV[2.0], 0), (CC, EV[32.0], 16)], 16, 0)
e("s_waitcnt lgkmcnt(0)")
frag_reads(FY, 0); frag_reads(FA, 16)
e(f"v_cvt_pk_bf16_f32 v68, v{EV[2048.0]}, v{EV[2048.0]+1}\nv_cvt_pk_bf16_f32 v69, v{EV[2048.0]+2}, v{EV[2048.0]+3}")
k_mfma(0)
e(f"ds_write_b64 v12, v[68:69] offset:{24*TPI}")
chain_loop([(EV[1.0], EV[32.0], 0)], 8, 16)
e("s_waitcnt lgkmcnt(0)")
frag_reads(FA, 16)
y_init()
k_mfma(1)
chain_loop([(YC, EV[8.0], 0), (EV[512.0], EV[128.0], 16)], 16, 0)
chain_loop([(EV[516.0], EV[128.0], 0)], 4, 28)
e("s_waitcnt lgkmcnt(0)")
frag_reads(FY, 0); frag_reads(FA, 16)
e(f"s_add_u32 s10, s9, {TBOFF}")
e("v_lshlrev_b32 v20, 2, v10\nv_lshl_add_u32 v20, v11, 8, v20\nv_add_u32 v20, s10, v20")
e("v_lshlrev_b32 v21, 1, v10\nv_lshl_add_u32 v21, v11, 7, v21\nv_add_u32 v21, s10, v21")
e("v_lshlrev_b32 v22, 2, v10\nv_lshrrev_b32 v23, 1, v11\nv_lshl_add_u32 v22, v23, 1, v22\nv_add_u32 v22, s10, v22")
e("v_lshlrev_b32 v28, 2, v10\nv_add_u32 v28, s9, v28\nv_mov_b32 v29, 0")
for r in range(4): e(f"v_cvt_pk_bf16_f32 v{24+r}, v{KT[0]+r}, v{KT[1]+r}")
k_mfma(2)
e("s_mov_b32 exec_hi, 0")
for r in range(4): e(f"ds_write_b32 v20, v{24+r} offset:{64*r}")
e("s_mov_b32 exec_lo, 0\ns_mov_b32 exec_hi, -1")
for r in range(4): e(f"ds_write_b16 v21, v{24+r} offset:{256+32*r}")
e("s_mov_b32 exec_hi, 1")
e(f"ds_write_b16_d16_hi v21, v24 offset:{1280-256}")
e("s_mov_b64 exec, -1")
e(f"ds_write_b32 v28, v29 offset:{TBOFF-64}")
for r in range(4): e(f"v_cvt_pk_bf16_f32 v{32+r}, v{KT[2]+r}, v{KT[2]+r}")
e("s_mov_b32 exec_lo, 0xffff\ns_mov_b32 exec_hi, 0xffff0000")
for r in range(4): e(f"ds_write_b16 v22, v{32+r} offset:{768+64*r}")
e("s_mov_b32 exec_lo, 0xffff0000\ns_mov_b32 exec_hi, 0xffff")
for r in range(4): e(f"ds_write_b16 v21, v{32+r} offset:{896+32*r}")
e("s_mov_b64 exec, -1")
stC()
UR = 128
e(f"v_lshlrev_b32 v16, 8, v11\nv_lshl_add_u32 v16, v10, 2, v16\nv_add_u32 v16, {CNT}, v16")
UL = e

e("v_lshlrev_b32 v24, 1, v0\nv_sub_u32 v22, 2047, v24\nv_sub_u32 v23, 2046, v24")
e("v_add_u32 v20, 32, v22\nv_add_u32 v25, 32, v23\nv_lshl_or_b32 v20, v25, 16, v20")
e("v_cvt_f32_i32 v22, v22\nv_cvt_f32_i32 v23, v23")
e(f"v_lshlrev_b32 v21, 2, v0\ns_add_u32 s6, s9, {KOFF-12}\nv_add_u32 v21, s6, v21")
e(f"s_add_u32 s6, s9, {TBOFF-64}\nv_mov_b32 v26, s6")
e("v_mov_b32 v27, 0x42604260\nv_mov_b32 v28, 0x009f009f\nv_mov_b32 v29, 0xff80ff80")
e(f"v_mov_b32 v30, {f32(-128.0)}")
def exp_rounds(n):
    for k in range(n):
        t = 32 + 4*k
        e(f"v_cvt_pk_bf16_f32 v{t}, v22, v23")
        e("v_add_f32 v22, v22, v30\nv_add_f32 v23, v23, v30")
        e(f"v_pk_sub_i16 v{t}, v{t}, v27")
        e(f"v_pk_max_i16 v{t}, v{t}, v28")
        e(f"v_pk_min_i16 v{t}, v{t}, v20")
        e(f"v_pk_add_u16 v20, v20, v29")
        e(f"v_pk_lshlrev_b16 v{t}, 1, v{t} op_sel_hi:[0,1]")
        e(f"v_add_u32_sdwa v{t+1}, v26, v{t} dst_sel:DWORD dst_unused:UNUSED_PAD src0_sel:DWORD src1_sel:WORD_0")
        e(f"v_add_u32_sdwa v{t+2}, v26, v{t} dst_sel:DWORD dst_unused:UNUSED_PAD src0_sel:DWORD src1_sel:WORD_1")
        e(f"ds_read_u16 v{t+1}, v{t+1}\nds_read_u16 v{t+2}, v{t+2}")
    for k in range(n):
        t = 32 + 4*k
        e(f"s_waitcnt lgkmcnt({min(15, 2*(n-1-k) + 4*k)})")
        e(f"v_lshl_or_b32 v{t}, v{t+2}, 16, v{t+1}")
        for c in range(4): e(f"ds_write_b32 v21, v{t} offset:{c*(KCP+4) + 256*k}")
e("s_mov_b32 s10, 4")
e("L_EXP:")
exp_rounds(4)
e("v_add_u32 v21, 1024, v21")
e("s_sub_u32 s10, s10, 1\ns_cmp_lg_u32 s10, 0\ns_waitcnt lgkmcnt(0)\ns_cbranch_scc1 L_EXP")
e("s_mov_b64 exec, 0x7fff")
exp_rounds(1)
e("s_mov_b64 exec, -1")
stC()
wait_lds(4, 15, "1", sleep=True)
wait_lds(17, 16, "10", sleep=True)
stC()
e("s_mov_b32 s6, 40960\nv_mul_lo_u32 v2, v0, s6")
e(f"s_lshl_b32 s6, s8, 4\ns_add_u32 s6, s6, {XNB}")
for i in range(4):
    e(f"buffer_load_dwordx4 {vr(UR+4*i,4)}, v2, s[48:51], s6 offen sc1")
    if i < 3: e("s_add_u32 s6, s6, 10240")
e(f"v_subrev_u32 v3, {40960-12}, v2\nv_mov_b32 v4, {OOB}\nv_cmp_eq_u32 vcc, 0, v0\nv_cndmask_b32 v3, v3, v4, vcc")
e(f"buffer_load_dword v{UR-1}, v3, s[48:51], s6 offen sc1")
e(f"s_mul_i32 s11, s13, {USZ}\ns_add_u32 s11, s11, {UB0}")
e("v_lshlrev_b32 v2, 6, v0\nv_add_u32 v2, s11, v2")
e("v_lshlrev_b32 v3, 4, v0\nv_add_u32 v3, s11, v3")
for r in range(4, 8): e(f"v_mov_b32 v{r}, 0")
e("v_lshrrev_b32 v12, 1, v10\nv_lshlrev_b32 v12, 6, v12\nv_lshl_add_u32 v12, v11, 4, v12")
e(f"v_and_b32 v13, 1, v10\nv_xor_b32 v13, 1, v13\nv_mul_u32_u24 v13, {U1OFF}, v13\nv_add_u32 v12, v12, v13")
e(f"s_add_u32 s6, s11, 448\nv_add_u32 v12, s6, v12")
e(f"v_and_b32 v13, 3, v10\nv_mul_u32_u24 v13, {KCP}, v13\nv_lshrrev_b32 v14, 2, v10\nv_sub_u32 v14, v11, v14\nv_lshl_add_u32 v13, v14, 4, v13")
e(f"s_add_u32 s6, s9, {KOFF+4080-3584}\nv_add_u32 v13, s6, v13")
CA, BU, BK = 20, [52, 116], [84, 148]
for r in range(CA, CA+32): e(f"v_mov_b32 v{r}, 0")
e(f"v_subrev_u32 v15, {CNT2-CNT}, v9")
e("s_waitcnt vmcnt(0)")
for i in range(16): e(f"v_alignbit_b32 v{144+i}, v{UR+i}, v{UR+i-1}, 16")
wait_lds(17, 16, "11", sleep=True)
for i in range(4):
    e(f"ds_write_b128 v2, {vr(UR+4*i,4)} offset:{448+16*i}")
    e(f"ds_write_b128 v2, {vr(144+4*i,4)} offset:{U1OFF+448+16*i}")
e("s_mov_b64 exec, 0xfffffff")
e(f"ds_write_b128 v3, v[4:7]\nds_write_b128 v3, v[4:7] offset:{U1OFF}")
e("s_mov_b64 exec, -1")
e("s_waitcnt lgkmcnt(0)")
def conv_reads(b):
    l = []
    for t in range(8):
        l.append(f"ds_read_b128 {vr(BU[b]+4*t,4)}, v12 offset:{512*t}")
        l.append(f"ds_read_b128 {vr(BK[b]+4*t,4)}, v13 offset:{512*(7-t)}")
    l.append("v_subrev_u32 v12, 64, v12\nv_subrev_u32 v13, 64, v13")
    return l
for l in conv_reads(0): e(l)
if OPT.get("gate", "1") == "1": wait_lds(17, 15, "12", sleep=True)
stC()
e("s_mov_b32 s10, 4")
e("L_CV:")
for b in (0, 1):
    e("s_waitcnt lgkmcnt(0)")
    rd = conv_reads(1-b)
    n = 0
    for s_ in range(8):
        for t in range(8 - s_):
            a = CA + 4*(s_+t)
            e(f"v_mfma_f32_16x16x32_bf16 {vr(a,4)}, {vr(BU[b]+4*t,4)}, {vr(BK[b]+4*s_,4)}, {vr(a,4)}")
            if n < len(rd): e(rd[n])
            n += 1
e("s_sub_u32 s10, s10, 1\ns_cmp_lg_u32 s10, 0\ns_cbranch_scc1 L_CV")
stC()
e(f"v_lshlrev_b32 v2, 7, v11\nv_lshl_add_u32 v2, v10, 2, v2\ns_add_u32 s6, s9, {KOFF}\nv_add_u32 v2, s6, v2")
e("v_lshlrev_b32 v4, 4, v0\nv_add_u32 v5, s6, v4")
e("s_waitcnt lgkmcnt(0)")
for i in range(4): e(f"ds_read_b128 {vr(84+4*i,4)}, v3 offset:{448+1024*i}")
for t in range(8):
    for hh in (0, 1):
        e(f"v_cvt_pk_bf16_f32 v{52+2*t+hh}, v{CA+4*t+2*hh}, v{CA+4*t+2*hh+1}")
        e(f"ds_write_b32 v2, v{52+2*t+hh} offset:{512*t+64*hh}")
for i in range(4): e(f"ds_read_b128 {vr(68+4*i,4)}, v5 offset:{1024*i}")
e("v_lshlrev_b32 v19, 16, v19")
e(f"s_lshl_b32 s6, s8, 12\ns_add_u32 s6, s6, {ST}")
e("s_waitcnt lgkmcnt(15)")
for k in range(16):
    u = 84+k
    e(f"v_lshlrev_b32 v{20+2*(k%4)}, 16, v{u}\nv_and_b32 v{21+2*(k%4)}, 0xffff0000, v{u}")
    e(f"v_mul_f32 v{20+2*(k%4)}, v{20+2*(k%4)}, v19\nv_mul_f32 v{21+2*(k%4)}, v{21+2*(k%4)}, v19")
    e(f"v_cvt_pk_bf16_f32 v{u}, v{20+2*(k%4)}, v{21+2*(k%4)}")
for i in range(4):
    e(f"s_waitcnt lgkmcnt({3-i})")
    for k in range(4):
        y = 68+4*i+k; u = 84+4*i+k
        e(f"v_lshlrev_b32 v{20+2*k}, 16, v{u}\nv_and_b32 v{21+2*k}, 0xffff0000, v{u}")
        e(f"v_lshlrev_b32 v{28+2*k}, 16, v{y}\nv_and_b32 v{29+2*k}, 0xffff0000, v{y}")
    for k in range(8): e(f"v_add_f32 v{20+k}, v{20+k}, v{28+k}")
    for k in range(4): e(f"v_cvt_pk_bf16_f32 v{100+4*i+k}, v{20+2*k}, v{21+2*k}")
    e(f"buffer_store_dwordx4 {vr(100+4*i,4)}, v4, s[48:51], s6 offen offset:{1024*i} sc1")
stC()
e("s_waitcnt vmcnt(0)")
e(f"s_and_b32 s6, s8, 3\ns_lshl2_add_u32 s6, s4, s6\ns_lshl_b32 s6, s6, 7\ns_add_u32 s6, s6, {FL_C}")
e("v_mov_b32 v2, 0\nv_mov_b32 v3, 1\ns_mov_b64 exec, 1")
e("buffer_atomic_add v3, v2, s[48:51], s6 offen sc1")
stC()
stC.flush(4, 5, (4, 9, 7))
e("s_endpgm")

e("L_S:")
stS = Stamper([82,84,86,88,90,92,94,96])
e(f"v_lshrrev_b32 v1, 4, v0\nv_lshlrev_b32 v16, 8, v1\nv_and_b32 v17, 15, v0\nv_lshl_add_u32 v16, v17, 2, v16\nv_add_u32 v16, {CNT2}, v16")
e(f"v_bfe_u32 v13, v0, 2, 2\nv_mul_u32_u24 v13, 1344, v13\nv_lshl_add_u32 v13, v1, 5, v13")
e(f"v_and_b32 v2, 3, v0\nv_lshl_add_u32 v13, v2, 3, v13\nv_add_u32 v13, {SB}, v13")
e(f"v_lshlrev_b32 v4, 4, v0\nv_lshlrev_b32 v5, 3, v0\nv_add_u32 v6, {SST}, v5")
e("buffer_load_dword v7, v14, s[72:75], 0 offen sc1")
wait_lds(17, 16, "1")
for i in range(10):
    e(f"ds_read_b64_tr_b16 {vr(80+4*i,2)}, v13 offset:{128*i}")
    e(f"ds_read_b64_tr_b16 {vr(82+4*i,2)}, v13 offset:{128*i+4*1344}")
e("s_mov_b64 exec, 0xff\nds_read_b64 v[20:21], v6\ns_mov_b64 exec, -1")
e(f"s_add_u32 s15, s15, {XNB}")
if "h" in EXP: e(f"s_bitcmp1_b32 s5, 0\ns_cselect_b32 s15, {OOB}, s15")
if "H" in EXP: e(f"s_mov_b32 s15, {OOB}")
e("s_waitcnt vmcnt(0)")
for i in range(10):
    if i in (4, 8): e("s_add_u32 s15, s15, 4096")
    e(f"s_waitcnt lgkmcnt({min(15, 2*(9-i)+1)})")
    e(f"buffer_store_dwordx4 {vr(80+4*i,4)}, v4, s[48:51], s15 offen offset:{1024*(i%4)} sc1")
e(f"s_lshl_b32 s6, s14, 6\ns_add_u32 s6, s6, {STATS}")
e("s_waitcnt lgkmcnt(0)\ns_mov_b64 exec, 0xff")
e("buffer_store_dwordx2 v[20:21], v5, s[48:51], s6 offen sc1")
e("s_mov_b64 exec, -1")
stS()
e(f"v_lshrrev_b32 v1, 2, v0\nv_mul_u32_u24 v1, 336, v1\nv_lshl_add_u32 v1, v2, 3, v1\nv_add_u32 v1, {SB}, v1")
e(f"s_lshr_b32 s6, s2, 2\ns_mul_i32 s10, s6, 5120\ns_and_b32 s7, s2, 3\ns_mul_i32 s7, s7, {2*276480}\ns_add_u32 s10, s10, s7\ns_add_u32 s10, s10, {W2F}")
e(f"s_cmp_ge_u32 s2, 216\ns_cselect_b32 s10, {OOB}, s10")
if "h" in EXP: e(f"s_bitcmp1_b32 s5, 0\ns_cselect_b32 s10, {OOB}, s10")
if "H" in EXP: e(f"s_mov_b32 s10, {OOB}")
for i in range(10): e(f"ds_write_b128 v{69+i%5}, {vr(128+4*i,4)} offset:{(i//5)*16*336}")
e("s_waitcnt lgkmcnt(0)")
for dt in range(10):
    e(f"ds_read_b64_tr_b16 {vr(128+4*dt,2)}, v1 offset:{32*dt}")
    e(f"ds_read_b64_tr_b16 {vr(130+4*dt,2)}, v1 offset:{32*dt+16*336}")
for half in (0, 1):
    e(f"s_add_u32 s6, s10, {half*276480}\ns_add_u32 s7, s6, 4096")
    e(f"s_waitcnt lgkmcnt({10 if half == 0 else 0})")
    for d5 in range(5):
        r = 128 + (half*5+d5)*4
        if d5 < 4: e(f"buffer_store_dwordx4 {vr(r,4)}, v4, s[48:51], s6 offen offset:{1024*d5} sc1")
        else: e(f"buffer_store_dwordx4 {vr(r,4)}, v4, s[48:51], s7 offen sc1")
stS()
def spoll(base, offs, target, sl):
    L = e.lab("AG")
    e(f"s_mov_b32 s12, {SPIN_MAX}")
    e(f"{L}:")
    for k, o in enumerate(offs): e(f"s_load_dword s{16+k}, s[{base}:{base+1}], {o} glc")
    e("s_waitcnt lgkmcnt(0)")
    for k in range(1, len(offs)): e(f"s_min_u32 s16, s16, s{16+k}")
    e(f"s_cmp_ge_u32 s16, {target}\ns_cbranch_scc1 {L}_d\ns_sleep {sl}\ns_sub_u32 s12, s12, 1\ns_cbranch_scc0 {L}")
    e(f"{L}_d:")
def relay(val): e(f"v_mov_b32 v8, {val}\nds_write_b32 v15, v8")
SLP = OPT.get("sleep", "1")
def vpoll(load, chk, target, sl, first=True):
    L = e.lab("AG")
    e(f"s_mov_b32 s12, {SPIN_MAX}")
    if not first: e(f"s_branch {L}_c")
    e(f"{L}:")
    e(load); e("s_waitcnt vmcnt(0)")
    e(f"{L}_c:")
    e(f"v_cmp_gt_u32 vcc, {target}, v{chk}\ns_cbranch_vccz {L}_d\ns_sleep {sl}\ns_sub_u32 s12, s12, 1\ns_cbranch_scc0 {L}")
    e(f"{L}_d:")
vpoll("buffer_load_dword v7, v14, s[72:75], 0 offen sc1", 7, 1, 8, first=False)
e("s_waitcnt vmcnt(0)")
stS()
if "A" not in EXP: e("s_lshl_b32 s6, s4, 7\nv_mov_b32 v8, 1\ns_mov_b64 exec, 1\nbuffer_atomic_add v8, v14, s[48:51], s6 offen sc1\ns_mov_b64 exec, -1")
e(f"v_add_u32 v16, {CNT-CNT2}, v16\nv_and_b32 v5, 7, v0\nv_lshlrev_b32 v5, 7, v5")
wait_lds(17, 16, OPT.get("spollat", "9"), sleep=True)
if "A" not in EXP: vpoll("buffer_load_dword v7, v5, s[48:51], 0 offen sc1", 7, 32, OPT.get("ssleep", "6"))
relay(1)
stS()
e("s_and_b32 s14, s5, 7\ns_lshr_b32 s6, s5, 3")
e("s_mul_i32 s15, s14, 7\ns_lshr_b32 s15, s15, 2\ns_mul_i32 s7, s6, 7\ns_lshr_b32 s7, s7, 1\ns_add_u32 s15, s15, s7")
e(f"s_lshl2_add_u32 s13, s4, s6\ns_mul_i32 s10, s14, 276480\ns_add_u32 s10, s10, {W2F}")
e("v_add_u32 v5, 4096, v4")
wait_lds(17, 16, "11", sleep=True)
for k in range(3):
    e(f"s_add_u32 s6, s15, {5+k}\ns_cmp_ge_u32 s6, 14\ns_cselect_b32 s7, 14, 0\ns_sub_u32 s6, s6, s7\ns_cmp_ge_u32 s6, 14\ns_cselect_b32 s7, 14, 0\ns_sub_u32 s6, s6, s7\ns_lshl_b32 s6, s6, 2")
    for w in range(4):
        e(f"s_add_u32 s7, s6, {w}\ns_mul_i32 s0, s7, 5120\ns_add_u32 s0, s0, s10\ns_cmp_ge_u32 s7, 54\ns_cselect_b32 s0, {OOB}, s0\ns_mov_b32 m0, {(w*3+k)*5120}\ns_nop 0")
        for dt in range(4): e(f"buffer_load_dwordx4 v4, s[48:51], s0 offen offset:{1024*dt} sc1 lds")
        e(f"s_mov_b32 m0, {(w*3+k)*5120+4096}\ns_nop 0\nbuffer_load_dwordx4 v5, s[48:51], s0 offen sc1 lds")
stS()
e(f"s_lshl_b32 s6, s13, 7\ns_add_u32 s6, s6, {FL_H}\ns_add_u32 s40, s44, s6\ns_addc_u32 s41, s45, 0")
spoll(40, [0], 28, OPT.get("hsleep", "1")); relay(2)
stS()
e("s_waitcnt vmcnt(0)"); relay(3)
e(f"s_lshl_b32 s6, s14, 9\ns_add_u32 s6, s6, {FL_C}\ns_add_u32 s40, s44, s6\ns_addc_u32 s41, s45, 0")
if "k" not in EXP: spoll(40, [0, 128, 256, 384], 20, OPT.get("csleep", "4"))
relay(4)
stS()
stS.regs = [76,78,80] + stS.regs; stS.n += 3
stS.flush(8, 9)
e("L_END:")
e("s_endpgm")
for l in tail: e(l)
if "P" in EXP:
    for c_ in e.I:
        if c_.mn == "buffer_store_dwordx4" and ("v4, s[48:51]" in c_.text): c_.text = c_.text.replace(" sc1", "")
nn = e.fix()

hdr = open("cdna_kernels/" + NAME + ".s.ref").read().split("; Override")[0]
s = hdr + f"; @launch grid=(256,1,1) block=(512,1,1) lds={LDS_TOTAL}\n"
s += f""".amdgcn_target "amdgcn-amd-amdhsa--gfx950"
.text
.globl {NAME}_kernel
.p2align 8
.type {NAME}_kernel,@function
{NAME}_kernel:
"""
s += e.text()
s += f""".section .rodata,"a"
.p2align 6
.amdhsa_kernel {NAME}_kernel
  .amdhsa_next_free_vgpr 256
  .amdhsa_next_free_sgpr 102
  .amdhsa_accum_offset 256
  .amdhsa_group_segment_fixed_size 0
  .amdhsa_kernarg_size 120
  .amdhsa_user_sgpr_count 2
  .amdhsa_user_sgpr_kernarg_segment_ptr 1
  .amdhsa_system_sgpr_workgroup_id_x 1
.end_amdhsa_kernel
"""
open(OUT, "w").write(s)
print("instrs", sum(1 for c in e.I if c.cls), "nops inserted", nn, "lds", LDS_TOTAL)
```

```python
import sys, struct
from emit import Em, Q
NAME = "recurrent_scan__ssm_conv_s4d__mixer_channel_mlp__prompt"
DBGST = "--dbg" in sys.argv
STAMPS = "--stamps" in sys.argv or DBGST
OPT = dict(a[2:].split("=") for a in sys.argv[1:] if a.startswith("--") and "=" in a)
OUT = [a for a in sys.argv[1:] if not a.startswith("--")]
OUT = OUT[0] if OUT else "k.s"
NOAUX = OPT.get("noaux", "0")
EXP = OPT.get("exp", "")
NT = OPT.get("nt", "")
ntw2 = " nt" if "w" in NT else ""; ntp = " nt" if "p" in NT else ""; ntx = " nt" if "x" in NT else ""; ntg = " nt" if "g" in NT else ""
MT = "s_memtime" if "--cyc" in sys.argv else "s_memrealtime"

FL_A, FL_H, FL_C, FL_T = 0, 1024, 5120, 9216
STATS = 0x4000
XNB = 0x10000
W2F = 0x300000
HF = 0x600000
ST = 0xD00000
STAMP = 0xFC0000
WS_SIZE = 0x1000000
OOB = 0x20000000
KSTEP = 8320
XST = 8 * KSTEP
CH0 = XST + 24576
CHSZ = 18432
SB = CH0 + 3 * CHSZ
CNT = SB + 10752
CS = CNT + 1024
CNT2 = CS + 512
SST = CNT2 + 1024
REL = SST + 64
LDS_TOTAL = REL + 64
assert CS % 512 == 0 and LDS_TOTAL <= 163840
UB0, USZ, U1OFF = 61440, 9152, 4576
assert UB0 + 3*USZ <= CH0
KOFF, KCP = 1792, 4160
TBOFF, TAB, TPI = 64, 1536, 528
SPIN_MAX = 8192
LOG2E = 0x3fb8aa3b
INV2PI = 0x3e22f983

e = Em()
tail = []
def f32(x): return "0x%08x" % struct.unpack("<I", struct.pack("<f", x))[0]
def srd(r, ptr, size):
    e(f"s_mov_b32 s{r}, s{ptr}\ns_mov_b32 s{r+1}, s{ptr+1}\ns_mov_b32 s{r+2}, {size}\ns_mov_b32 s{r+3}, 0x20000")
def vr(a, n): return f"v[{a}:{a+n-1}]"

class Stamper:
    def __init__(self, regs): self.regs = regs; self.n = 0
    def __call__(self):
        if not STAMPS: return
        r = self.regs[self.n]; self.n += 1
        e(f"{MT} s[{r}:{r+1}]")
    def flush(self, v0, v1, dbg=None):
        if not STAMPS: return
        e("s_waitcnt lgkmcnt(0)")
        if DBGST:
            if dbg is None: return
            wave, off, n = dbg
            L = e.lab("NODBG")
            e(f"s_cmp_lg_u32 s2, 100\ns_cbranch_scc1 {L}\ns_cmp_lg_u32 s3, {wave}\ns_cbranch_scc1 {L}")
            e(f"v_mov_b32 v{v1}, 0\ns_mov_b64 exec, 1")
            for i, r in enumerate(self.regs[:n]):
                e(f"s_sub_u32 s{r}, s{r}, s46\nv_mov_b32 v{v0}, s{r}")
                e(f"buffer_store_dword v{v0}, v{v1}, s[72:75], 0 offen offset:{4*(off+i)}")
                e("s_nop 0")
            e("s_waitcnt vmcnt(0)")
            e(f"{L}:")
            return
        e("s_lshl_b32 s6, s2, 3\ns_add_u32 s6, s6, s3\ns_lshl_b32 s6, s6, 6")
        e(f"s_add_u32 s6, s6, {STAMP}")
        e(f"v_mov_b32 v{v1}, 0")
        e("s_mov_b64 exec, 1")
        for i, r in enumerate([46] + self.regs[:self.n]):
            e(f"v_mov_b32 v{v0}, s{r}")
            e(f"buffer_store_dword v{v0}, v{v1}, s[48:51], s6 offen offset:{4*i}")
            e("s_nop 0")
        e("s_waitcnt vmcnt(0)")

def spin_lds(vchk, vaddr, val, sleep=False, after=(), pre_cmp=True, branch="s_cbranch_vccnz"):
    if NOAUX != "0" and not val.startswith("v"): return
    L = e.lab("SPIN"); B = e.lab("BACK")
    if pre_cmp: e(f"v_cmp_gt_u32 vcc, {val}, v{vchk}")
    e(f"{branch} {L}")
    e(f"{B}:")
    D = f"{L}_d" if after else B
    tail.extend([f"{L}:", f"s_mov_b32 s12, {SPIN_MAX*16}", f"{L}_a:"] + (["s_sleep 1"] if sleep else []) +
                [f"ds_read_b32 v{vchk}, v{vaddr}", "s_waitcnt lgkmcnt(0)",
                 f"v_cmp_gt_u32 vcc, {val}, v{vchk}", f"s_cbranch_vccz {D}", "s_sub_u32 s12, s12, 1", f"s_cbranch_scc0 {L}_a"] +
                ([f"{D}:"] + list(after) if after else []) + [f"s_branch {B}"])
def wait_lds(vchk, vaddr, val, sleep=False):
    e(f"ds_read_b32 v{vchk}, v{vaddr}\ns_waitcnt lgkmcnt(0)")
    spin_lds(vchk, vaddr, val, sleep)
def spoll(base, offs, target, sl, r0=16):
    if NOAUX != "0": return
    L = e.lab("AG")
    e(f"s_mov_b32 s12, {SPIN_MAX}")
    e(f"{L}:")
    for k, o in enumerate(offs): e(f"s_load_dword s{r0+k}, s[{base}:{base+1}], {o} glc")
    e("s_waitcnt lgkmcnt(0)")
    for k in range(1, len(offs)): e(f"s_min_u32 s{r0}, s{r0}, s{r0+k}")
    e(f"s_cmp_ge_u32 s{r0}, {target}\ns_cbranch_scc1 {L}_d\ns_sleep {sl}\ns_sub_u32 s12, s12, 1\ns_cbranch_scc0 {L}")
    e(f"{L}_d:")
def rb(dst, src):
    e(f"v_cvt_pk_bf16_f32 v{dst}, v{src}, v{src}\nv_and_b32 v{dst}, 0xffff0000, v{dst}")
def zero_cnt(base):
    e(f"s_and_b32 s6, s3, 3\ns_lshl_b32 s6, s6, 8\ns_add_u32 s6, s6, {base}")
    e("v_lshlrev_b32 v9, 2, v0\nv_add_u32 v9, s6, v9\nv_mov_b32 v11, 0")
    e("ds_write_b32 v9, v11")

e("s_cmp_ge_u32 s2, 256")
e("s_cbranch_scc1 L_END")
if STAMPS: e(f"{MT} s[46:47]")
e("s_load_dwordx16 s[16:31], s[0:1], 0")
e("s_load_dwordx8 s[32:39], s[0:1], 64")
e("s_load_dwordx4 s[40:43], s[0:1], 96")
e("s_load_dwordx2 s[44:45], s[0:1], 112")
e("v_lshrrev_b32 v1, 6, v0")
e("v_and_b32 v0, 63, v0")
e("v_readfirstlane_b32 s3, v1")
e("s_and_b32 s4, s2, 7")
e("s_lshr_b32 s5, s2, 3")
e("s_cmp_ge_u32 s3, 4")
e("s_cbranch_scc1 L_AUX")

_stG = Stamper([30,32,34,36,38,96,98,100])
GSEL = OPT.get("gst", "c0,g1,ep,hp,hs,g2,rd,end").split(",")
class _G:
    def __call__(self, name):
        if name in GSEL:
            _stG.n = GSEL.index(name); _stG()
    def flush(self, *a):
        _stG.n = 8; _stG.flush(*a)
stG = _G()
vm = Q(e, "vmcnt", 63); lg = Q(e, "lgkmcnt", 15)
XR, VXA, WB, ONES = 12, 44, 76, 108
ACC, CSA = 112, 176
VCHK, VGO, VB1, VST, VC, VCS, VT = 184, 185, 186, 202, 206, 208, 216
VFL = 216
sK = [76+i for i in range(14)]
e(f"s_setprio {OPT.get('gprio', '2')}")
zero_cnt(CNT)
e("v_lshrrev_b32 v10, 4, v0")
e("v_and_b32 v8, 15, v0")
def g2_ids():
    e("s_lshr_b32 s6, s5, 2\ns_lshr_b32 s13, s4, 1\ns_lshl3_add_u32 s13, s13, s6\ns_and_b32 s7, s5, 3\ns_and_b32 s14, s4, 1\ns_lshl2_add_u32 s14, s14, s7")
    e("s_mul_i32 s15, s6, 7\ns_lshr_b32 s15, s15, 2\ns_mul_i32 s7, s7, 7\ns_lshr_b32 s7, s7, 1\ns_add_u32 s15, s15, s7")
    e("s_cmp_ge_u32 s15, 14\ns_cselect_b32 s6, 14, 0\ns_sub_u32 s15, s15, s6")
g2_ids()
e("s_cmp_lt_u32 s5, 4")
e("s_cbranch_scc1 L_IDLE")
e("s_sub_u32 s6, s5, 4\ns_mul_i32 s7, s6, 37\ns_lshr_b32 s7, s7, 8\ns_mul_i32 s8, s7, 7\ns_sub_u32 s6, s6, s8")
e("s_lshr_b32 s8, s4, 1\ns_lshl_b32 s8, s8, 2\ns_add_u32 s8, s8, s7")
e("s_and_b32 s9, s4, 1\ns_mul_i32 s9, s9, 7\ns_add_u32 s9, s9, s6")
e("s_lshl_b32 s11, s9, 8")
ROT = OPT.get("rot", "1") != "0"
sW = list(range(16, 26)); sX = [26, 27, 28, 29, 90, 91, 92, 93, 94, 95]
if ROT:
    e("s_mul_i32 s12, s6, 370\ns_lshr_b32 s12, s12, 8\ns_mul_i32 s7, s7, 5\ns_lshr_b32 s7, s7, 1\ns_add_u32 s12, s12, s7")
    e("s_cmp_ge_u32 s12, 10\ns_cselect_b32 s7, 10, 0\ns_sub_u32 s12, s12, s7")
def rot_tab(ps):
    if not ROT: return
    for p in ps:
        if p: e("s_add_u32 s12, s12, 1\ns_cmp_eq_u32 s12, 10\ns_cselect_b32 s12, 0, s12")
        e(f"s_mul_i32 s{sW[p]}, s12, 221184\ns_add_u32 s{sW[p]}, s{sW[p]}, s11\ns_lshl_b32 s{sX[p]}, s12, 7")
e("v_bfe_u32 v1, v0, 2, 2\ns_lshl_b32 s6, s3, 3\nv_add_u32 v1, s6, v1\nv_mul_u32_u24 v1, 3456, v1")
e("v_lshl_add_u32 v1, v10, 6, v1\nv_and_b32 v2, 3, v0\nv_lshl_add_u32 v1, v2, 4, v1")
e(f"v_add_u32 v2, {4*3456-1024}, v1")
e("s_lshl_b32 s6, s8, 7\ns_lshl_b32 s7, s3, 5\ns_add_u32 s6, s6, s7")
e("v_lshrrev_b32 v5, 3, v0\nv_add_u32 v3, s6, v5\nv_mul_u32_u24 v3, 1280, v3\nv_and_b32 v6, 7, v0\nv_lshrrev_b32 v5, 1, v5\nv_xor_b32 v6, v6, v5")
e(f"v_xor_b32 v5, 4, v6\nv_lshl_add_u32 v4, v5, 4, v3\nv_add_u32 v4, {10240-1024}, v4\nv_lshl_add_u32 v3, v6, 4, v3")
e(f"s_mul_i32 s10, s3, 6144\ns_add_u32 s10, s10, {XST}")
e("s_waitcnt lgkmcnt(0)")
e("s_barrier")
e("s_mul_i32 s1, s3, 2080")
srd(56, 32, 2211840); srd(52, 16, 2621440)
rot_tab(range(1))
def w_ops(step):
    if "d" in EXP and step > 5: return [lambda: None, lambda: None]
    def a():
        if ROT: e(f"s_add_u32 m0, s1, {(step % 8)*KSTEP}\ns_add_u32 s0, s{sW[step//2]}, {(step % 2)*110592}")
        else: e(f"s_add_u32 m0, s1, {(step % 8)*KSTEP}\ns_add_u32 s0, s11, {step*110592}")
        e(f"buffer_load_dwordx4 v1, s[56:59], s0 offen{ntg} lds"); vm.issue(("w", step//2))
    def b():
        e(f"buffer_load_dwordx4 v2, s[56:59], s0 offen offset:1024{ntg} lds"); vm.issue(("w", step//2))
    return [a, b]
def x_ops(u):
    if "x" in EXP and u > 3: return [lambda: None, lambda: None]
    def a():
        if ROT: e(f"s_add_u32 m0, s10, {(u % 3)*2048}\ns_add_u32 s0, s{sX[u//2]}, {(u % 2)*20480}")
        else: e(f"s_add_u32 m0, s10, {(u % 3)*2048}\ns_mov_b32 s0, {(u//2)*128 + (u % 2)*20480}")
        e("buffer_load_dwordx4 v3, s[52:55], s0 offen lds"); vm.issue(("x", u))
    def b():
        e("buffer_load_dwordx4 v4, s[52:55], s0 offen offset:1024 lds"); vm.issue(("x", u))
    return [a, b]
def x_reads(u):
    vm.wait(("x", u))
    for k2 in (0, 1):
        e(f"ds_read_b128 {vr(XR+(u%4)*8+4*k2,4)}, v{VXA+k2} offset:{(u%3)*2048}"); lg.issue(("xr", u))
for op in w_ops(0) + x_ops(0) + x_ops(1) + w_ops(1): op()
srd(48, 44, WS_SIZE); srd(60, 34, 3456); srd(64, 38, 1280); srd(68, 40, 2621440); srd(72, 42, 256)
rot_tab(range(1, 10))
e("v_mul_u32_u24 v5, 2080, v10\nv_bfe_u32 v6, v0, 2, 2\nv_lshl_add_u32 v5, v6, 6, v5\nv_and_b32 v6, 3, v0\nv_lshl_add_u32 v184, v6, 3, v5")
e(f"v_lshrrev_b32 v{VXA}, 1, v8\nv_xor_b32 v{VXA}, v{VXA}, v10\nv_lshlrev_b32 v{VXA}, 4, v{VXA}\nv_lshl_add_u32 v{VXA}, v8, 7, v{VXA}")
e(f"v_xor_b32 v{VXA+1}, 64, v{VXA}\nv_add_u32 v{VXA}, s10, v{VXA}\nv_add_u32 v{VXA+1}, s10, v{VXA+1}")
for tp in range(4):
    e(f"s_xor_b32 s6, s3, {tp}\ns_lshl_b32 s6, s6, 8\nv_add_u32 v{5+tp}, s6, v184")
for i in range(4): e(f"v_mov_b32 v{ONES+i}, 0x3f803f80")
e("v_lshlrev_b32 v223, 3, v10\ns_lshl_b32 s6, s3, 6\nv_add_u32 v223, s6, v223")
for op in w_ops(2) + w_ops(3) + x_ops(2): op()
for tp in range(4):
    e(f"v_xor_b32 v{VGO}, {64*tp}, v223")
    for h in (0, 1):
        e(f"buffer_load_dwordx2 {vr(VB1+(2*tp+h)*2,2)}, v{VGO}, s[60:63], s11 offen offset:{32*h}"); vm.issue("b1")
def gcommon():
    e("s_mov_b32 s6, s15")
    for i in range(14):
        if i: e("s_add_u32 s6, s6, 1\ns_cmp_eq_u32 s6, 14\ns_cselect_b32 s6, 0, s6")
        e(f"s_lshl2_add_u32 s7, s6, s3\ns_cmp_ge_u32 s7, 54\ns_cselect_b32 s7, {0x8000000>>10}, s7\ns_lshl_b32 s{sK[i]}, s7, 10")
    e(f"v_and_b32 v209, 15, v0\nv_lshlrev_b32 v10, 8, v10\nv_lshl_add_u32 v10, v209, 2, v10\nv_add_u32 v10, {CNT}, v10")
gcommon()
stG("p")
def signal():
    e("v_add_u32 v11, 1, v11")
    e("ds_write_b32 v9, v11"); lg.issue("sig")
CHKR = [VCHK]
def chk_read():
    e(f"ds_read_b32 v{CHKR[0]}, v10"); lg.issue("chk")
def chk_eval():
    lg.wait("chk")
    spin_lds(CHKR[0], 10, "v11")
def tr_reads(step, t):
    base = (step % 8) * KSTEP + 32 * (t & 1)
    for hf_ in (0, 1):
        r = WB + 4*t + 2*hf_
        e(f"ds_read_b64_tr_b16 {vr(r,2)}, v{5+(t>>1)} offset:{base + 1024*hf_}"); lg.issue(("w", step, t))
vm.wait(("w", 0))
signal(); chk_read()
x_reads(0); x_reads(1)
chk_eval()
stG("c0")
def tr_one(step, t, hf_):
    base = (step % 8) * KSTEP + 32 * (t & 1)
    e(f"ds_read_b64_tr_b16 {vr(WB+4*t+2*hf_,2)}, v{5+(t>>1)} offset:{base + 1024*hf_}"); lg.issue(("w", step, t))
for t in range(8): tr_reads(0, t)
lg.wait(("xr", 0))
for op in x_ops(3): op()
carry = []
NOCS = "c" in EXP
for i in range(20):
    c, k2 = divmod(i, 2)
    stG(f"a{i}")
    mf = []
    for t in range(8):
        mf += [(t, 0), (t, 1)] + ([(t, 2)] if t < 2 and not NOCS else [])
    side = {n: [] for n in range(len(mf))}
    pos = lambda t: mf.index((t, 0))
    side[0] += carry; carry = []
    if i < 19:
        for t in range(8):
            last = max(n for n, m in enumerate(mf) if m[0] == t)
            side[last].append(lambda t=t: tr_one(i+1, t, 0))
            if last + 1 < len(mf): side[last+1].append(lambda t=t: tr_one(i+1, t, 1))
            else: carry.append(lambda t=t, i=i: tr_one(i+1, t, 1))
    WP = [1, 4] if not NOCS else [1, 3]
    if i == 0:
        o = w_ops(4) + w_ops(5)
        for n, op in zip((1, 4, 6, 8), o): side[n].append(op)
    elif i + 5 <= 19:
        for n, op in zip(WP, w_ops(i+5)): side[n].append(op)
    if i + 4 <= 19:
        o = x_ops(i+4)
        side[pos(4)].append(lambda i=i: lg.wait(("xr", i+1))); side[pos(4)].append(o[0]); side[pos(6)].append(o[1])
    if k2 == 0 and c + 1 <= 9:
        def sg(c=c):
            vm.wait(("w", c+1)); signal()
        side[pos(3)].append(sg); side[pos(5)].append(chk_read)
    if i + 2 <= 19: side[pos(7)].append(lambda i=i: x_reads(i+2))
    if i == 15:
        side[pos(5)].append(lambda: (e(f"v_mov_b32 v{VFL}, {REL}\nds_read_b32 v{VFL+1}, v{VFL}"), lg.issue("rel")))
    if i == 16:
        def f():
            lg.wait("rel")
            spin_lds(VFL+1, VFL, "1")
            e(f"v_and_b32 v{VFL+6}, 15, v0\nv_lshlrev_b32 v{VFL+6}, 3, v{VFL+6}")
            e(f"s_lshl_b32 s6, s8, 10\ns_lshl_b32 s7, s3, 8\ns_add_u32 s6, s6, s7\ns_add_u32 s6, s6, {STATS}")
            e(f"buffer_load_dwordx2 {vr(VST,2)}, v{VFL+6}, s[48:51], s6 offen sc1"); vm.issue("st")
            e(f"buffer_load_dwordx2 {vr(VST+2,2)}, v{VFL+6}, s[48:51], s6 offen offset:128 sc1"); vm.issue("st")
        side[1].append(f)
    for n, (t, mt) in enumerate(mf):
        if mt == 0:
            need = [("w", i, t), ("w", i, t+1)] if t % 2 == 0 else []
            if t == 6: need = [("w", i, 6)]
            if t == 7: need = [("w", i, 7)]
            if t == 0 and k2 == 0: need += [("xr", 2*c), ("xr", 2*c+1)]
            if need: lg.wait(need)
        if mt < 2:
            a = ACC + (2*t+mt)*4
            x = XR + ((2*c+mt) % 4)*8 + 4*k2
        else:
            a = CSA + 4*t; x = ONES
        e(f"v_mfma_f32_16x16x32_bf16 {vr(a,4)}, {vr(WB+4*t,4)}, {vr(x,4)}, {vr(a,4) if i else 0}")
        for f in side[n]: f()
    if k2 == 0 and c + 1 <= 9: chk_eval()
stG("g1")
e(f"v_lshrrev_b32 v5, 4, v0\nv_lshlrev_b32 v5, 4, v5\ns_lshl_b32 s6, s3, 7\ns_add_u32 s6, s6, {CS}\nv_add_u32 v5, s6, v5")
e("s_mov_b32 s6, 0x00010001\ns_mov_b32 s7, 0x00010001\ns_mov_b64 exec, s[6:7]")
e(f"ds_write_b128 v5, {vr(CSA,4)}"); lg.issue("csw")
e(f"ds_write_b128 v5, {vr(CSA+4,4)} offset:64"); lg.issue("csw")
e("s_mov_b64 exec, -1")
signal(); chk_read()
def g2_setup():
    e("v_lshlrev_b32 v1, 4, v0")
    e(f"s_mul_i32 s10, s14, 276480\ns_add_u32 s10, s10, {W2F}")
    e(f"s_mul_i32 s11, s13, 221184\ns_add_u32 s11, s11, {HF}")
def w2_ops(i):
    ops = []
    for dt in range(5):
        def f(dt=dt):
            if dt == 0: e(f"s_lshl2_add_u32 s0, s{sK[i]}, s10\ns_add_u32 s0, s0, s{sK[i]}")
            if dt == 4: e("s_add_u32 s0, s0, 4096")
            r = 12 + (i % 5)*20 + dt*4
            e(f"buffer_load_dwordx4 {vr(r,4)}, v1, s[48:51], s0 offen offset:{1024*(dt%4)} sc1"); vm.issue(("w2", i))
        ops.append(f)
    return ops
g2_setup()
e(f"v_mov_b32 v{VC}, {f32(-2*0.7978845608028654*1.4426950408889634)}")
e(f"v_mov_b32 v{VC+1}, {f32(-2*0.7978845608028654*1.4426950408889634*0.044715)}")
e(f"s_lshr_b32 s6, s3, 1\ns_lshl_b32 s7, s8, 1\ns_add_u32 s6, s6, s7\ns_mul_i32 s44, s6, 221184\ns_and_b32 s7, s3, 1\ns_lshl_b32 s7, s7, 11")
e(f"s_add_u32 s44, s44, s7\ns_add_u32 s44, s44, {HF}")
e(f"s_lshl_b32 s45, s6, 7\ns_add_u32 s45, s45, {FL_H}")
pre = []
chk_eval()
def cs_read(tp):
    b = VCS if tp % 2 == 0 else VT + 32
    e(f"v_xor_b32 v6, {128*tp}, v5")
    e(f"ds_read_b128 {vr(b,4)}, v6"); lg.issue(("cs", tp))
    e(f"ds_read_b128 {vr(b+4,4)}, v6 offset:64"); lg.issue(("cs", tp))
cs_read(0)
vm.wait(["b1", "st"])
TB1, TP, TQ, TE, TO = VT, VT+8, VT+16, VT+24, 176
def nxt():
    if pre: pre.pop(0)()
for tp in range(4):
    csb = VCS if tp % 2 == 0 else VT + 32
    if tp < 3: cs_read(tp+1)
    for h in (0, 1):
        for k in (0, 1):
            s = VB1 + (2*tp+h)*2 + k
            e(f"v_lshlrev_b32 v{TB1+4*h+2*k}, 16, v{s}\nv_and_b32 v{TB1+4*h+2*k+1}, 0xffff0000, v{s}")
    e(f"s_xor_b32 s6, s3, {tp}\ns_lshl2_add_u32 s6, s9, s6\ns_cmp_ge_u32 s6, 54\ns_cselect_b32 s7, {OOB}, s44\ns_lshl_b32 s6, s6, 12\ns_add_u32 s6, s6, s7")
    lg.wait(("cs", tp))
    for mt in (0, 1):
        st = VST + 2*mt
        P = range(4)
        acc = lambda q: ACC + (2*(2*tp + (q >> 1)) + mt)*4 + 2*(q & 1)
        for q in P: e(f"v_pk_fma_f32 {vr(TP+2*q,2)}, {vr(st,2)}, {vr(csb+2*q,2)}, {vr(TB1+2*q,2)} op_sel:[1,0,0] op_sel_hi:[1,1,1] neg_lo:[1,0,0] neg_hi:[1,0,0]")
        for q in P: e(f"v_pk_fma_f32 {vr(TP+2*q,2)}, {vr(acc(q),2)}, {vr(st,2)}, {vr(TP+2*q,2)} op_sel_hi:[1,0,1]")
        for q in P: e(f"v_pk_mul_f32 {vr(TQ+2*q,2)}, {vr(TP+2*q,2)}, {vr(TP+2*q,2)}")
        nxt()
        for q in P: e(f"v_pk_fma_f32 {vr(TQ+2*q,2)}, {vr(VC,2)}, {vr(TQ+2*q,2)}, {vr(VC,2)} op_sel:[1,0,0] op_sel_hi:[1,1,0]")
        for q in P: e(f"v_pk_mul_f32 {vr(TQ+2*q,2)}, {vr(TQ+2*q,2)}, {vr(TP+2*q,2)}")
        for q in range(8): e(f"v_exp_f32 v{TE+q}, v{TQ+q}")
        nxt()
        for q in P: e(f"v_pk_add_f32 {vr(TE+2*q,2)}, {vr(TE+2*q,2)}, 1.0 op_sel_hi:[1,0]")
        for q in range(8): e(f"v_rcp_f32 v{TE+q}, v{TE+q}")
        nxt()
        for q in P: e(f"v_pk_mul_f32 {vr(TP+2*q,2)}, {vr(TP+2*q,2)}, {vr(TE+2*q,2)}")
        o = TO + 4*mt
        for q in P: e(f"v_cvt_pk_bf16_f32 v{o+q}, v{TP+2*q}, v{TP+2*q+1}")
        e(f"buffer_store_dwordx4 {vr(o,4)}, v1, s[48:51], s6 offen offset:{1024*mt} sc1"); vm.issue("hst")
assert not pre
stG("ep")
signal()
vm.wait_all()
e("v_mov_b32 v6, 0\nv_mov_b32 v7, 1\ns_mov_b64 exec, 1")
e("buffer_atomic_add v7, v6, s[48:51], s45 offen sc1")
e("s_mov_b64 exec, -1")
stG("hp")
vm.clear()
e("L_G2:")
CHKR[0] = 26
A2, HR = 112, 192
e(f"s_setprio {OPT.get('g2prio', '0')}")
e(f"v_mov_b32 v2, {REL}")
wait_lds(8, 2, "2")
for i in range(5):
    for op in w2_ops(i): op()
for ml in range(4):
    e(f"s_xor_b32 s6, s3, {ml}\ns_lshl_b32 s6, s6, 10\nv_add_u32 v{3+ml}, s6, v1")
e("s_mul_i32 s6, s3, 15360\nv_add_u32 v7, s6, v1")
e(f"s_lshl_b32 s6, s13, 7\ns_add_u32 s6, s6, {FL_H}\ns_add_u32 s40, s48, s6\ns_addc_u32 s41, s49, 0")
spoll(40, [0], 28, OPT.get("hsleep", "2")); lg.clear()
stG("hs")
def h_load(i):
    e(f"s_lshl2_add_u32 s6, s{sK[i]}, s11")
    for ml in range(4):
        r = HR + (i % 4)*16 + ml*4
        e(f"buffer_load_dwordx4 {vr(r,4)}, v{3+ml}, s[48:51], s6 offen sc1"); vm.issue(("h", i))
for i in range(4): h_load(i)
FB2, FXO, FLA, FX, FS, VSO = 92, 102, 105, 32, 12, 25
STL = []
for i in range(3):
    if i == 2: STL.append("s_mov_b32 exec_hi, 0")
    STL.append(f"buffer_load_dwordx4 {vr(FS+4*i,4)}, v{VSO}, s[48:51], s{44 if i == 0 else 6} offen sc1")
    if i < 2: STL.append(f"s_add_u32 s6, s44, {32*4096*(i+1)}")
STL.append("s_mov_b64 exec, -1")
for i in range(14):
    vm.wait([("w2", i), ("h", i)])
    lg.wait(("pf", i))
    if i == 7: signal()
    if i == 12: chk_read()
    stG(f"b{i}")
    side = {n: [] for n in range(20)}
    j = i + 4
    if i >= 1 and j < 8:
        if i == 1: side[0].append(lambda: (wait_lds(8, 2, "3"), lg.clear()))
        for dt in range(5):
            side[1+dt].append(lambda dt=dt, j=j: (e(f"ds_read_b128 {vr(12+(j%5)*20+dt*4,4)}, v7 offset:{(j-5)*5120+dt*1024}"), lg.issue(("pf", j))))
    elif i >= 1 and j < 14:
        for n, op in zip((1, 3, 7, 11, 16), w2_ops(j)): side[n].append(op)
    if i + 4 < 14:
        for ml in range(4):
            def hl(ml=ml, i=i):
                if ml == 0: e(f"s_lshl2_add_u32 s6, s{sK[i+4]}, s11")
                e(f"buffer_load_dwordx4 {vr(HR+(i%4)*16+ml*4,4)}, v{3+ml}, s[48:51], s6 offen sc1"); vm.issue(("h", i+4))
            side[5*ml+4].append(hl)
    for n in range(20):
        ml, dt = divmod(n, 5)
        a = A2 + n*4
        e(f"v_mfma_f32_16x16x32_bf16 {vr(a,4)}, {vr(12+(i%5)*20+dt*4,4)}, {vr(HR+(i%4)*16+ml*4,4)}, {vr(a,4) if i else 0}")
        for f in side[n]: f()
    if i == 9:
        e("v_lshrrev_b32 v4, 4, v0\nv_lshlrev_b32 v4, 3, v4\ns_mul_i32 s8, s14, 160")
        for dt in range(5):
            e(f"buffer_load_dwordx2 {vr(FB2+2*dt,2)}, v4, s[64:67], s8 offen offset:{32*dt}"); vm.issue("fx")
        e(f"s_lshl_b32 s6, s13, 6\ns_lshl_b32 s7, s3, 4\ns_add_u32 s6, s6, s7\ns_mul_i32 s6, s6, 1280\ns_add_u32 s8, s8, s6")
        e(f"s_mul_i32 s9, s3, 2688\ns_add_u32 s9, s9, {SB}")
        for k in range(3):
            e(f"v_add_u32 v3, {64*k}, v0\nv_mul_u32_u24 v4, 6554, v3\nv_lshrrev_b32 v4, 16, v4\nv_mul_u32_u24 v5, 10, v4\nv_sub_u32 v3, v3, v5\nv_lshlrev_b32 v3, 4, v3")
            e(f"s_movk_i32 s6, 1280\nv_mad_u32_u24 v{FXO+k}, v4, s6, v3\ns_movk_i32 s6, 168\nv_mad_u32_u24 v{FLA+k}, v4, s6, v3\nv_add_u32 v{FLA+k}, s9, v{FLA+k}")
    if i == 10:
        e("ds_read_b32 v8, v2")
        e(f"v_lshrrev_b32 v{VSO}, 1, v0\nv_and_b32 v4, 1, v0\nv_lshlrev_b32 v{VSO}, 12, v{VSO}\nv_lshl_add_u32 v{VSO}, v4, 4, v{VSO}")
        e(f"s_mul_i32 s44, s14, 327680\ns_lshl_b32 s7, s13, 7\ns_add_u32 s44, s44, s7\ns_lshl_b32 s7, s3, 5\ns_add_u32 s44, s44, s7\ns_add_u32 s44, s44, {ST}")
        e("s_waitcnt lgkmcnt(0)\nv_cmp_gt_u32 s[42:43], 4, v8"); lg.clear()
        for l in STL:
            e(l)
            if l.startswith("buffer"): vm.issue("sT")
    if i == 11:
        for k in range(3):
            if k == 2: e("s_mov_b32 exec_hi, 0")
            e(f"buffer_load_dwordx4 {vr(FX+4*k,4)}, v{FXO+k}, s[52:55], s8 offen"); vm.issue("fx")
        e("s_mov_b64 exec, -1")
stG("g2")
chk_eval()
for ml in (1, 2, 3):
    e(f"s_xor_b32 s6, s3, {ml}\ns_mul_i32 s6, s6, 15360\ns_add_u32 s6, s6, {(ml-1)*5120}\nv_add_u32 v{3+ml}, s6, v1")
for ml in (1, 2, 3):
    for dt in range(5):
        e(f"ds_write_b128 v{3+ml}, {vr(A2+(ml*5+dt)*4,4)} offset:{1024*dt}"); lg.issue("red")
signal(); chk_read()
e("s_cmp_lg_u64 s[42:43], 0")
spin_lds(8, 2, "4", after=STL, pre_cmp=False, branch="s_cbranch_scc1")
stG("rd")
e("v_add_u32 v3, s9, v1")
vm.wait_all()
for i in range(3):
    if i == 2: e("s_mov_b32 exec_hi, 0")
    e(f"ds_write_b128 v3, {vr(FS+4*i,4)} offset:{1024*i}"); lg.issue("sw")
e("s_mov_b64 exec, -1")
e("v_lshlrev_b32 v3, 3, v0\nv_add_u32 v3, s9, v3")
for dt in range(5):
    e(f"ds_read_b64_tr_b16 {vr(44+2*dt,2)}, v3 offset:{512*dt}"); lg.issue("str")
chk_eval()
e("s_mul_i32 s6, s3, 15360\nv_add_u32 v4, s6, v1")
RD = 192
for dt in range(5):
    for s_ in range(3):
        e(f"ds_read_b128 {vr(RD+(s_*5+dt)*4,4)}, v4 offset:{5120*s_+1024*dt}"); lg.issue(("rd", dt))
e("v_and_b32 v3, 15, v0\nv_mul_u32_u24 v3, 168, v3\nv_lshrrev_b32 v5, 4, v0\nv_lshl_add_u32 v3, v5, 3, v3\nv_add_u32 v3, s9, v3")
T = 56
for dt in range(5):
    a = A2 + dt*4
    for k in (0, 1):
        e(f"v_lshlrev_b32 v{T+2*k}, 16, v{FB2+2*dt+k}\nv_and_b32 v{T+2*k+1}, 0xffff0000, v{FB2+2*dt+k}")
    lg.wait(("rd", dt))
    for k in (0, 1):
        e(f"v_pk_add_f32 {vr(a+2*k,2)}, {vr(a+2*k,2)}, {vr(RD+dt*4+2*k,2)}")
        e(f"v_pk_add_f32 {vr(T+4+2*k,2)}, {vr(RD+(5+dt)*4+2*k,2)}, {vr(RD+(10+dt)*4+2*k,2)}")
    for k in (0, 1): e(f"v_pk_add_f32 {vr(a+2*k,2)}, {vr(a+2*k,2)}, {vr(T+2*k,2)}")
    for k in (0, 1): e(f"v_pk_add_f32 {vr(a+2*k,2)}, {vr(a+2*k,2)}, {vr(T+4+2*k,2)}")
    for k in range(4): e(f"v_mul_f32 v{T+k}, {f32(-1.4426950408889634)}, v{a+k}")
    for k in range(4): e(f"v_exp_f32 v{T+k}, v{T+k}")
    for k in (0, 1):
        e(f"v_lshlrev_b32 v{T+4+2*k}, 16, v{44+2*dt+k}\nv_and_b32 v{T+5+2*k}, 0xffff0000, v{44+2*dt+k}")
    for k in (0, 1): e(f"v_pk_add_f32 {vr(T+2*k,2)}, {vr(T+2*k,2)}, 1.0 op_sel_hi:[1,0]")
    for k in range(4): e(f"v_rcp_f32 v{T+k}, v{T+k}")
    for k in (0, 1): e(f"v_pk_mul_f32 {vr(a+2*k,2)}, {vr(a+2*k,2)}, {vr(T+4+2*k,2)}")
    for k in (0, 1): e(f"v_pk_mul_f32 {vr(a+2*k,2)}, {vr(a+2*k,2)}, {vr(T+2*k,2)}")
    for k in (0, 1): e(f"v_cvt_pk_bf16_f32 v{T+8+2*dt+k}, v{a+2*k}, v{a+2*k+1}")
    e(f"ds_write_b64 v3, {vr(T+8+2*dt,2)} offset:{32*dt}"); lg.issue("pw")
for k in range(3):
    e(f"ds_read_b64 {vr(RD+4*k,2)}, v{FLA+k}\nds_read_b64 {vr(RD+4*k+2,2)}, v{FLA+k} offset:8"); lg.issue(("pr", k)); lg.issue(("pr", k))
for k in range(3):
    for q in range(4):
        e(f"v_lshlrev_b32 v{T+2*q}, 16, v{FX+4*k+q}\nv_and_b32 v{T+2*q+1}, 0xffff0000, v{FX+4*k+q}")
    lg.wait(("pr", k))
    for q in range(4):
        e(f"v_lshlrev_b32 v{T+8+2*q}, 16, v{RD+4*k+q}\nv_and_b32 v{T+9+2*q}, 0xffff0000, v{RD+4*k+q}")
    for q in range(4): e(f"v_pk_add_f32 {vr(T+2*q,2)}, {vr(T+2*q,2)}, {vr(T+8+2*q,2)}")
    for q in range(4): e(f"v_cvt_pk_bf16_f32 v{RD+16+4*k+q}, v{T+2*q}, v{T+2*q+1}")
    if k == 2: e("s_mov_b32 exec_hi, 0")
    e(f"buffer_store_dwordx4 {vr(RD+16+4*k,4)}, v{FXO+k}, s[68:71], s8 offen")
stG("end")
stG.flush(60, 61, (0, 1, 8))
e("s_endpgm")

e("L_IDLE:")
e("s_waitcnt lgkmcnt(0)")
e("s_barrier")
e("v_mov_b32 v11, 12\nds_write_b32 v9, v11")
srd(52, 16, 2621440); srd(48, 44, WS_SIZE); srd(64, 38, 1280); srd(68, 40, 2621440); srd(72, 42, 256)
gcommon()
g2_setup()
e(f"v_mov_b32 v2, {REL}")
wait_lds(8, 2, "2", sleep=True)
if STAMPS:
    for r in _stG.regs[:4]: e(f"{MT} s[{r}:{r+1}]")
e("s_branch L_G2")

e("L_AUX:")
_stC = Stamper([76,78,80,82,84,86,88,90,92,94])
CSEL = OPT.get("cst", "ka,x,ln,kg,ex,u,cs,cd,st,pub").split(",")
class _C:
    def __call__(self, name):
        if name in CSEL:
            _stC.n = CSEL.index(name); _stC()
    def flush(self, *a):
        _stC.n = 10; _stC.flush(*a)
stC = _C()
zero_cnt(CNT2)
e("s_sub_u32 s13, s3, 4")
e("s_lshl_b32 s14, s4, 5\ns_add_u32 s14, s14, s5")
e("s_mul_i32 s15, s14, 10240")
e("v_lshrrev_b32 v1, 5, v0\ns_lshl_b32 s6, s13, 1\nv_add_u32 v1, s6, v1\nv_and_b32 v2, 31, v0")
e("v_mul_u32_u24 v3, 1280, v1\nv_lshl_add_u32 v3, v2, 3, v3")
e("s_mul_i32 s7, s5, 3\ns_lshl1_add_u32 s8, s5, 16\ns_cmp_lt_u32 s5, 16\ns_cselect_b32 s8, s7, s8\ns_cselect_b32 s7, 3, 2")
e("s_add_u32 s8, s8, s13\ns_mul_i32 s6, s4, 80\ns_add_u32 s8, s8, s6\ns_cmp_ge_u32 s13, s7\ns_cselect_b32 s8, 640, s8")
e("s_lshl_b32 s10, s8, 8\ns_lshl_b32 s11, s8, 1\nv_lshlrev_b32 v12, 2, v0")
e(f"s_mul_i32 s9, s13, {CHSZ}\ns_add_u32 s9, s9, {CH0}")
e(f"v_mov_b32 v14, 0\nv_mov_b32 v15, {REL}\nds_write_b32 v15, v14")
e("s_waitcnt lgkmcnt(0)")
stC("ka")
XS = 20
def x_rows():
    srd(52, 16, 2621440)
    for i in range(5): e(f"buffer_load_dwordx2 {vr(XS+2*i,2)}, v3, s[52:55], s15 offen offset:{256*i}{ntx}")
e("s_cmp_eq_u32 s3, 7\ns_cbranch_scc1 L_A7")
x_rows()
for k, (p, sz) in enumerate(((18, 163840), (20, 163840), (22, 163840), (24, 163840))):
    srd(56+4*k, p, sz)
    e(f"buffer_load_dword v{4+k}, v12, s[{56+4*k}:{59+4*k}], s10 offen{ntp}")
srd(56, 26, 1280); e("buffer_load_ushort v8, v14, s[56:59], s11 offen")
srd(60, 28, 1280); e("buffer_load_ushort v19, v14, s[60:63], s11 offen")
e("s_barrier")
srd(48, 44, WS_SIZE); srd(72, 42, 256)
e("s_waitcnt vmcnt(6)")
e("s_branch L_LN")
e("L_A7:")
srd(48, 44, WS_SIZE); srd(72, 42, 256)
e("s_cmp_lg_u32 s2, 0\ns_cbranch_scc1 L_A1")
e("v_lshlrev_b32 v4, 4, v0")
for r in range(32, 36): e(f"v_mov_b32 v{r}, 0")
for i in range(11):
    e(f"s_mov_b32 s6, {1024*i}")
    e("buffer_store_dwordx4 v[32:35], v4, s[48:51], s6 offen sc1")
e("s_waitcnt vmcnt(0)")
e("v_mov_b32 v32, 1\ns_mov_b64 exec, 1")
e("buffer_store_dword v32, v14, s[72:75], 0 offen sc1")
e("s_mov_b64 exec, -1\ns_waitcnt vmcnt(0)")
e("L_A1:")
x_rows()
srd(56, 36, 2211840)
for i in range(5):
    e(f"v_add_u32 v4, {64*i}, v0\nv_mul_u32_u24 v5, 3277, v4\nv_lshrrev_b32 v5, 16, v5")
    e("v_mul_u32_u24 v6, 20, v5\nv_sub_u32 v6, v4, v6\nv_lshlrev_b32 v6, 4, v6")
    e(f"s_movk_i32 s6, 1280\nv_mad_u32_u24 v{64+i}, v5, s6, v6\ns_movk_i32 s6, 336\nv_mad_u32_u24 v{69+i}, v5, s6, v6\nv_add_u32 v{69+i}, {SB}, v{69+i}")
e(f"s_lshr_b32 s6, s2, 2\ns_mul_i32 s10, s6, 40960\ns_and_b32 s7, s2, 3\ns_mul_i32 s11, s7, 320\ns_add_u32 s10, s10, s11\ns_add_u32 s11, s10, 20480")
for i in range(10): e(f"buffer_load_dwordx4 {vr(128+4*i,4)}, v{64+i%5}, s[56:59], s{10 + i//5} offen{ntw2}")
e("s_barrier")
e("s_waitcnt vmcnt(10)")
e("L_LN:")
if NOAUX == "1": e("s_endpgm")
stC("x")
e(f"v_mul_u32_u24 v16, 1344, v1\nv_lshl_add_u32 v16, v2, 3, v16\nv_add_u32 v16, {SB}, v16")
e(f"v_lshlrev_b32 v17, 3, v1\nv_add_u32 v17, {SST}, v17")
XF = 32
for k in range(10): e(f"v_lshlrev_b32 v{XF+2*k}, 16, v{XS+k}\nv_and_b32 v{XF+2*k+1}, 0xffff0000, v{XS+k}")
e(f"v_add_f32 v52, v{XF}, v{XF+1}\nv_mul_f32 v54, v{XF}, v{XF}\nv_add_f32 v53, v{XF+2}, v{XF+3}\nv_mul_f32 v55, v{XF+1}, v{XF+1}")
e(f"v_fmac_f32 v54, v{XF+2}, v{XF+2}\nv_fmac_f32 v55, v{XF+3}, v{XF+3}")
for k in range(4, 20): e(f"v_add_f32 v{52+(k&1)}, v{52+(k&1)}, v{XF+k}\nv_fmac_f32 v{54+(k&1)}, v{XF+k}, v{XF+k}")
e("v_add_f32 v52, v52, v53\nv_add_f32 v54, v54, v55")
for m in ("quad_perm:[1,0,3,2]", "quad_perm:[2,3,0,1]", "row_half_mirror", "row_mirror"):
    e(f"v_add_f32_dpp v52, v52, v52 {m} row_mask:0xf bank_mask:0xf")
    e(f"v_add_f32_dpp v54, v54, v54 {m} row_mask:0xf bank_mask:0xf")
e("ds_swizzle_b32 v53, v52 offset:0x401F\nds_swizzle_b32 v55, v54 offset:0x401F\ns_waitcnt lgkmcnt(0)")
e("v_add_f32 v52, v52, v53\nv_add_f32 v54, v54, v55")
e(f"v_mul_f32 v52, {f32(1/640)}, v52\nv_mul_f32 v54, {f32(1/640)}, v54")
e("v_fma_f32 v54, -v52, v52, v54\nv_max_f32 v54, 0, v54")
def std_bf16(dst, var):
    rb(dst, var); e(f"v_add_f32 v{dst}, {f32(1e-5)}, v{dst}"); rb(dst, dst); e(f"v_sqrt_f32 v{dst}, v{dst}"); rb(dst, dst)
rb(56, 52); std_bf16(57, 54)
e("v_rcp_f32 v58, v57")
for k in range(20): e(f"v_sub_f32 v{XF+k}, v{XF+k}, v56")
for k in range(10): e(f"v_cvt_pk_bf16_f32 v{XS+k}, v{XF+2*k}, v{XF+2*k+1}")
for k in range(10): e(f"v_lshlrev_b32 v{XF+2*k}, 16, v{XS+k}\nv_and_b32 v{XF+2*k+1}, 0xffff0000, v{XS+k}")
for k in range(20): e(f"v_mul_f32 v{XF+k}, v{XF+k}, v58")
for k in range(10):
    e(f"v_cvt_pk_bf16_f32 v{XS+k}, v{XF+2*k}, v{XF+2*k+1}")
    if k & 1: e(f"ds_write_b64 v16, {vr(XS+k-1,2)} offset:{128*(k-1)}")
e("v_sub_f32 v59, v52, v56\nv_mul_f32 v59, v59, v58\nv_mul_f32 v60, v54, v58\nv_mul_f32 v60, v60, v58")
rb(59, 59); std_bf16(61, 60)
e("v_mul_f32 v62, v57, v61\nv_rcp_f32 v62, v62\nv_fma_f32 v63, v59, v57, v56\nv_mul_f32 v63, v63, v62")
e("s_mov_b32 s0, 1\ns_mov_b32 s1, 1\ns_mov_b64 exec, s[0:1]")
e("ds_write_b64 v17, v[62:63]")
e("s_mov_b64 exec, -1")
e("v_mov_b32 v61, 1\nds_write_b32 v9, v61")
stC("ln")
e("s_cmp_eq_u32 s3, 7\ns_cbranch_scc1 L_S")
e("s_cmp_ge_u32 s8, 640\ns_cbranch_scc1 L_END")
if "k" in EXP: e("s_endpgm")

e("s_waitcnt vmcnt(0)")
stC("par")
e(f"v_lshlrev_b32 v8, 16, v8\nv_mul_f32 v8, {LOG2E}, v8\nv_exp_f32 v8, v8"); rb(8, 8)
LAM, CC = 84, 88
for n in (0, 1):
    up = (lambda d, s: e(f"v_lshlrev_b32 v{d}, 16, v{s}")) if n == 0 else (lambda d, s: e(f"v_and_b32 v{d}, 0xffff0000, v{s}"))
    up(LAM+2*n, 4); up(LAM+2*n+1, 5); up(CC+2*n, 6); up(CC+2*n+1, 7)
for n in (0, 1): e(f"v_mul_f32 v{LAM+2*n}, {LOG2E}, v{LAM+2*n}")
for n in (0, 1): e(f"v_exp_f32 v{LAM+2*n}, v{LAM+2*n}")
e("v_add_f32 v18, v8, v8")
for n in (0, 1): rb(LAM+2*n, LAM+2*n)
for n in (0, 1):
    e(f"v_mul_f32 v{LAM+2*n}, v{LAM+2*n}, v8\nv_mul_f32 v{LAM+2*n+1}, v{LAM+2*n+1}, v8")
    e(f"v_mul_f32 v{CC+2*n}, v{CC+2*n}, v18\nv_mul_f32 v{CC+2*n+1}, v{CC+2*n+1}, v18")
for n in (0, 1):
    e(f"v_mul_f32 v{LAM+2*n}, {f32(-1.4426950408889634)}, v{LAM+2*n}\nv_mul_f32 v{LAM+2*n+1}, {INV2PI}, v{LAM+2*n+1}")
PS = [2.0, 32.0, 1.0, 2048.0, 8.0, 128.0, 512.0, 516.0]
EV = {p: 192 + 4*i for i, p in enumerate(PS)}
for grp in (PS[:4], PS[4:]):
    it = [(p, n) for p in grp for n in (0, 1)]
    tm = {k: 64 + 2*i for i, k in enumerate(it)}
    for (p, n) in it:
        if p == 1.0: e(f"v_exp_f32 v{tm[p,n]}, v{LAM+2*n}\nv_fract_f32 v{tm[p,n]+1}, v{LAM+2*n+1}")
        else: e(f"v_mul_f32 v{tm[p,n]}, {f32(p)}, v{LAM+2*n}\nv_mul_f32 v{tm[p,n]+1}, {f32(p)}, v{LAM+2*n+1}")
    for (p, n) in it:
        if p != 1.0: e(f"v_exp_f32 v{tm[p,n]}, v{tm[p,n]}\nv_fract_f32 v{tm[p,n]+1}, v{tm[p,n]+1}")
    for (p, n) in it: e(f"v_cos_f32 v{EV[p]+2*n}, v{tm[p,n]+1}\nv_sin_f32 v{EV[p]+2*n+1}, v{tm[p,n]+1}")
    for (p, n) in it:
        neg = "-" if p in (2.0, 8.0) else ""
        e(f"v_mul_f32 v{EV[p]+2*n}, v{EV[p]+2*n}, v{tm[p,n]}")
        e(f"v_mul_f32 v{EV[p]+2*n+1}, {neg}v{EV[p]+2*n+1}, v{tm[p,n]}")
g_ = [(EV[p]+2*n, CC+2*n, 64+2*i+n) for i, p in enumerate((1.0, 2048.0, 512.0, 516.0)) for n in (0, 1)]
for (z, m, t) in g_: e(f"v_mul_f32 v{t}, v{z+1}, v{m+1}")
for (z, m, t) in g_: e(f"v_mul_f32 v{z+1}, v{z+1}, v{m}")
for (z, m, t) in g_: e(f"v_fmac_f32 v{z+1}, v{z}, v{m+1}")
for (z, m, t) in g_: e(f"v_fma_f32 v{z}, v{z}, v{m}, -v{t}")
e("v_and_b32 v10, 15, v0\nv_lshrrev_b32 v11, 4, v0")
YC = 80
e(f"v_lshlrev_b32 v12, 3, v0\ns_add_u32 s6, s9, {TAB}\nv_add_u32 v12, s6, v12")
e(f"v_mul_u32_u24 v14, {TPI}, v10\nv_lshl_add_u32 v14, v11, 4, v14\nv_add_u32 v14, s6, v14")
KT = [112, 116, 120]
def chain_loop(ch, n, row0):
    L = e.lab("KL")
    UN = min(n, int(OPT.get("kun", "4")))
    e(f"s_mov_b32 s10, {n//UN}\nv_add_u32 v13, {row0*TPI}, v12")
    e(f"{L}:")
    for u in range(UN):
        for i, (z, m, off) in enumerate(ch):
            e(f"v_cvt_pk_bf16_f32 v{64+4*(u&1)+2*i}, v{z}, v{z+1}\nv_cvt_pk_bf16_f32 v{65+4*(u&1)+2*i}, v{z+2}, v{z+3}")
        g = [(z+2*k, m+2*k, 72+2*i+k) for i, (z, m, off) in enumerate(ch) for k in (0, 1)]
        for (z, m, t) in g: e(f"v_mul_f32 v{t}, v{z+1}, v{m+1}")
        for i, (z, m, off) in enumerate(ch): e(f"ds_write_b64 v13, {vr(64+4*(u&1)+2*i,2)} offset:{(off+u)*TPI}")
        for (z, m, t) in g: e(f"v_mul_f32 v{z+1}, v{z+1}, v{m}")
        if u == UN-1 and n > UN: e(f"v_add_u32 v13, {UN*TPI}, v13")
        for (z, m, t) in g: e(f"v_fmac_f32 v{z+1}, v{z}, v{m+1}")
        if u == UN-1 and n > UN: e("s_sub_u32 s10, s10, 1\ns_cmp_lg_u32 s10, 0")
        for (z, m, t) in g: e(f"v_fma_f32 v{z}, v{z}, v{m}, -v{t}")
    if n > UN: e(f"s_cbranch_scc1 {L}")
def y_init(): e(f"v_mov_b32 v{YC}, 1.0\nv_mov_b32 v{YC+1}, 0\nv_mov_b32 v{YC+2}, 1.0\nv_mov_b32 v{YC+3}, 0")
FY, FA = 128, 160
def frag_reads(dst, row0):
    for s_ in range(8): e(f"ds_read_b128 {vr(dst+4*s_,4)}, v14 offset:{64*s_+row0*TPI}")
def k_mfma(k):
    for s_ in range(8):
        e(f"s_waitcnt lgkmcnt({7-s_})")
        e(f"v_mfma_f32_16x16x32_bf16 {vr(KT[k],4)}, {vr(FA+4*s_,4)}, {vr(FY+4*s_,4)}, {vr(KT[k],4) if s_ else 0}")
y_init()
stC("k0")
chain_loop([(YC, EV[2.0], 0), (CC, EV[32.0], 16)], 16, 0)
stC("k1")
e("s_waitcnt lgkmcnt(0)")
frag_reads(FY, 0); frag_reads(FA, 16)
e(f"v_cvt_pk_bf16_f32 v76, v{EV[2048.0]}, v{EV[2048.0]+1}\nv_cvt_pk_bf16_f32 v77, v{EV[2048.0]+2}, v{EV[2048.0]+3}")
k_mfma(0)
e(f"ds_write_b64 v12, v[76:77] offset:{24*TPI}")
stC("k2")
chain_loop([(EV[1.0], EV[32.0], 0)], 8, 16)
stC("k3")
e("s_waitcnt lgkmcnt(0)")
frag_reads(FA, 16)
y_init()
k_mfma(1)
stC("k4")
chain_loop([(YC, EV[8.0], 0), (EV[512.0], EV[128.0], 16)], 16, 0)
stC("k5")
chain_loop([(EV[516.0], EV[128.0], 0)], 4, 28)
e("s_waitcnt lgkmcnt(0)")
frag_reads(FY, 0); frag_reads(FA, 16)
e(f"s_add_u32 s10, s9, {TBOFF}")
e("v_lshlrev_b32 v20, 2, v10\nv_lshl_add_u32 v20, v11, 8, v20\nv_add_u32 v20, s10, v20")
e("v_lshlrev_b32 v21, 1, v10\nv_lshl_add_u32 v21, v11, 7, v21\nv_add_u32 v21, s10, v21")
e("v_lshlrev_b32 v22, 2, v10\nv_lshrrev_b32 v23, 1, v11\nv_lshl_add_u32 v22, v23, 1, v22\nv_add_u32 v22, s10, v22")
for r in range(4): e(f"v_cvt_pk_bf16_f32 v{24+r}, v{KT[0]+r}, v{KT[1]+r}")
k_mfma(2)
e("s_mov_b32 exec_hi, 0")
for r in range(4): e(f"ds_write_b32 v20, v{24+r} offset:{64*r}")
e("s_mov_b32 exec_lo, 0\ns_mov_b32 exec_hi, -1")
for r in range(4): e(f"ds_write_b16 v21, v{24+r} offset:{256+32*r}")
e("s_mov_b32 exec_hi, 1")
e(f"ds_write_b16_d16_hi v21, v24 offset:{1280-256}")
e("s_mov_b64 exec, -1")
for r in range(4): e(f"v_cvt_pk_bf16_f32 v{32+r}, v{KT[2]+r}, v{KT[2]+r}")
e("s_mov_b32 exec_lo, 0xffff\ns_mov_b32 exec_hi, 0xffff0000")
for r in range(4): e(f"ds_write_b16 v22, v{32+r} offset:{768+64*r}")
e("s_mov_b32 exec_lo, 0xffff0000\ns_mov_b32 exec_hi, 0xffff")
for r in range(4): e(f"ds_write_b16 v21, v{32+r} offset:{896+32*r}")
e("s_mov_b64 exec, -1")
stC("kg")
UR = 128
e(f"v_lshlrev_b32 v16, 8, v11\nv_lshl_add_u32 v16, v10, 2, v16\nv_add_u32 v16, {CNT}, v16")
UL = e

e("v_lshlrev_b32 v24, 1, v0\nv_sub_u32 v22, 2047, v24\nv_sub_u32 v23, 2046, v24")
e("v_cvt_f32_i32 v22, v22\nv_cvt_f32_i32 v23, v23")
e(f"v_lshlrev_b32 v21, 2, v0\ns_add_u32 s6, s9, {KOFF-12}\nv_add_u32 v21, s6, v21")
e(f"s_add_u32 s6, s9, {TBOFF}\ns_sub_u32 s7, s6, {2*(0x4300-128)}\nv_mov_b32 v26, s7")
e(f"v_mov_b32 v30, {f32(-128.0)}")
e("v_lshlrev_b32 v27, 1, v24\nv_sub_u32 v27, s6, v27\nv_mov_b32 v28, 0")
def exp_rounds(n, lin=False):
    for k in range(n):
        t = 32 + 4*k
        if lin and k == n-1:
            e(f"ds_read_u16 v{t+1}, v27 offset:254\nds_read_u16 v{t+2}, v27 offset:252")
            continue
        e(f"v_cvt_pk_bf16_f32 v{t}, v22, v23")
        e("v_add_f32 v22, v22, v30\nv_add_f32 v23, v23, v30")
        e(f"v_mad_u32_u16 v{t+1}, v{t}, 2, v26")
        e(f"v_mad_u32_u16 v{t+2}, v{t}, 2, v26 op_sel:[1,0,0,0]")
        e(f"ds_read_u16 v{t+1}, v{t+1}\nds_read_u16 v{t+2}, v{t+2}")
    for k in range(n):
        t = 32 + 4*k
        e(f"s_waitcnt lgkmcnt({min(15, 2*(n-1-k) + 4*k)})")
        e(f"v_lshl_or_b32 v{t}, v{t+2}, 16, v{t+1}")
        for c in range(4): e(f"ds_write_b32 v21, v{t} offset:{c*(KCP+4) + 256*k}")
e("s_mov_b32 s10, 3")
e("L_EXP:")
exp_rounds(4)
e("v_add_u32 v21, 1024, v21")
e("s_sub_u32 s10, s10, 1\ns_cmp_lg_u32 s10, 0\ns_waitcnt lgkmcnt(0)\ns_cbranch_scc1 L_EXP")
exp_rounds(4, lin=True)
e("s_mov_b64 exec, 0x7fff")
for c in range(4): e(f"ds_write_b32 v21, v28 offset:{c*(KCP+4) + 1024}")
e("s_mov_b64 exec, -1")
e("v_mov_b32 v28, 2\nds_write_b32 v9, v28")
stC("ex")
e(f"s_mul_i32 s11, s13, {USZ}\ns_add_u32 s11, s11, {UB0}")
e(f"v_mov_b32 v18, {CNT2+768}")
stC("u")
e("v_lshrrev_b32 v12, 1, v10\nv_lshlrev_b32 v12, 6, v12\nv_lshl_add_u32 v12, v11, 4, v12")
e(f"v_and_b32 v13, 1, v10\nv_xor_b32 v13, 1, v13\nv_mul_u32_u24 v13, {U1OFF}, v13\nv_add_u32 v12, v12, v13")
e(f"s_add_u32 s6, s11, 448\nv_add_u32 v12, s6, v12")
e(f"v_and_b32 v13, 3, v10\nv_mul_u32_u24 v13, {KCP}, v13\nv_lshrrev_b32 v14, 2, v10\nv_sub_u32 v14, v11, v14\nv_lshl_add_u32 v13, v14, 4, v13")
e(f"s_add_u32 s6, s9, {KOFF+4080-3584}\nv_add_u32 v13, s6, v13")
CA, BU, BK = 20, [52, 116], [84, 148]
for r in range(CA, CA+32): e(f"v_mov_b32 v{r}, 0")
e(f"v_subrev_u32 v15, {CNT2-CNT}, v9")
e("v_lshlrev_b32 v3, 4, v0\nv_add_u32 v3, s11, v3")
wait_lds(17, 18, "3", sleep=True)
for i in range(4):
    e(f"ds_read_b32 v{115+5*i}, v3 offset:{444+1024*i}")
    e(f"ds_read_b128 {vr(136+4*i,4)}, v3 offset:{448+1024*i}")
for i in range(4):
    e(f"s_waitcnt lgkmcnt({6-2*i+i})")
    e(f"v_alignbit_b32 v{152+4*i}, v{136+4*i}, v{115+5*i}, 16")
    for k in (1, 2, 3): e(f"v_alignbit_b32 v{152+4*i+k}, v{136+4*i+k}, v{136+4*i+k-1}, 16")
    e(f"ds_write_b128 v3, {vr(152+4*i,4)} offset:{U1OFF+448+1024*i}")
e("s_waitcnt lgkmcnt(0)")
def conv_reads(b):
    l = []
    for t in range(8):
        l.append(f"ds_read_b128 {vr(BU[b]+4*t,4)}, v12 offset:{512*t}")
        l.append(f"ds_read_b128 {vr(BK[b]+4*t,4)}, v13 offset:{512*(7-t)}")
    l.append("v_subrev_u32 v12, 64, v12\nv_subrev_u32 v13, 64, v13")
    return l
for l in conv_reads(0): e(l)
if OPT.get("gate", "1") == "1": wait_lds(17, 15, "12", sleep=True)
e(f"s_setprio {OPT.get('cprio', '3')}")
stC("cs")
e("s_mov_b32 s10, 4")
e("L_CV:")
for b in (0, 1):
    e("s_waitcnt lgkmcnt(0)")
    rd = conv_reads(1-b)
    n = 0
    for s_ in range(8):
        for t in range(8 - s_):
            a = CA + 4*(s_+t)
            e(f"v_mfma_f32_16x16x32_bf16 {vr(a,4)}, {vr(BU[b]+4*t,4)}, {vr(BK[b]+4*s_,4)}, {vr(a,4)}")
            if n < len(rd): e(rd[n])
            n += 1
e("s_sub_u32 s10, s10, 1\ns_cmp_lg_u32 s10, 0\ns_cbranch_scc1 L_CV")
stC("cd")
e(f"v_lshlrev_b32 v2, 7, v11\nv_lshl_add_u32 v2, v10, 2, v2\nv_add_u32 v3, s11, v2\ns_add_u32 s6, s9, {KOFF}\nv_add_u32 v2, s6, v2")
e("v_lshlrev_b32 v4, 4, v0\nv_add_u32 v5, s6, v4\nv_lshlrev_b32 v19, 16, v19")
e("s_waitcnt lgkmcnt(0)")
for k in range(16): e(f"ds_read_b32 v{52+k}, v3 offset:{448+512*(k//2)+64*(k%2)}")
e(f"s_lshl_b32 s6, s8, 12\ns_add_u32 s6, s6, {ST}")
for k in range(16):
    if k % 4 == 0: e(f"s_waitcnt lgkmcnt({min(15, 12-k+k)})")
    e(f"v_lshlrev_b32 v{68+2*(k%2)}, 16, v{52+k}\nv_and_b32 v{69+2*(k%2)}, 0xffff0000, v{52+k}")
    e(f"v_fmac_f32 v{CA+2*k}, v{68+2*(k%2)}, v19\nv_fmac_f32 v{CA+2*k+1}, v{69+2*(k%2)}, v19")
    e(f"v_cvt_pk_bf16_f32 v{52+k}, v{CA+2*k}, v{CA+2*k+1}")
    e(f"ds_write_b32 v2, v{52+k} offset:{512*(k//2)+64*(k%2)}")
for i in range(4): e(f"ds_read_b128 {vr(72+4*i,4)}, v5 offset:{1024*i}")
for i in range(4):
    e(f"s_waitcnt lgkmcnt({3-i})")
    e(f"buffer_store_dwordx4 {vr(72+4*i,4)}, v4, s[48:51], s6 offen offset:{1024*i} sc1")
stC("st")
e("s_waitcnt vmcnt(0)")
e(f"s_and_b32 s6, s8, 3\ns_lshl2_add_u32 s6, s4, s6\ns_lshl_b32 s6, s6, 7\ns_add_u32 s6, s6, {FL_C}")
e("v_mov_b32 v2, 0\nv_mov_b32 v3, 1\ns_mov_b64 exec, 1")
e("buffer_atomic_add v3, v2, s[48:51], s6 offen sc1")
stC("pub")
stC.flush(4, 5, (4, 9, 7))
e("s_endpgm")

e("L_S:")
stS = Stamper([82,84,86,88,90,92,94,96])
e(f"v_lshrrev_b32 v1, 4, v0\nv_lshlrev_b32 v16, 8, v1\nv_and_b32 v17, 15, v0\nv_lshl_add_u32 v16, v17, 2, v16\nv_add_u32 v16, {CNT2}, v16")
e(f"v_bfe_u32 v13, v0, 2, 2\nv_mul_u32_u24 v13, 1344, v13\nv_lshl_add_u32 v13, v1, 5, v13")
e(f"v_and_b32 v2, 3, v0\nv_lshl_add_u32 v13, v2, 3, v13\nv_add_u32 v13, {SB}, v13")
e(f"v_lshlrev_b32 v4, 4, v0\nv_lshlrev_b32 v5, 3, v0\nv_add_u32 v6, {SST}, v5")
e("buffer_load_dword v7, v14, s[72:75], 0 offen sc1")
wait_lds(17, 16, "1")
e("s_mov_b64 exec, 0xff\nds_read_b64 v[20:21], v6\ns_mov_b64 exec, -1")
for i in range(10):
    e(f"ds_read_b64_tr_b16 {vr(80+4*i,2)}, v13 offset:{128*i}")
    e(f"ds_read_b64_tr_b16 {vr(82+4*i,2)}, v13 offset:{128*i+4*1344}")
e(f"s_lshl_b32 s6, s14, 6\ns_add_u32 s6, s6, {STATS}")
e("s_waitcnt vmcnt(0) lgkmcnt(15)\ns_mov_b64 exec, 0xff")
e("buffer_store_dwordx2 v[20:21], v5, s[48:51], s6 offen sc1")
e("s_mov_b64 exec, -1")
stS()
e(f"v_lshrrev_b32 v1, 2, v0\nv_mul_u32_u24 v1, 336, v1\nv_lshl_add_u32 v1, v2, 3, v1\nv_add_u32 v1, {SB}, v1")
e(f"s_lshr_b32 s6, s2, 2\ns_mul_i32 s10, s6, 5120\ns_and_b32 s7, s2, 3\ns_mul_i32 s7, s7, {2*276480}\ns_add_u32 s10, s10, s7\ns_add_u32 s10, s10, {W2F}")
e(f"s_cmp_ge_u32 s2, 216\ns_cselect_b32 s10, {OOB}, s10\ns_add_u32 s15, s15, {XNB}")
e("s_waitcnt lgkmcnt(0)")
for i in range(10): e(f"ds_write_b128 v{69+i%5}, {vr(128+4*i,4)} offset:{(i//5)*16*336}")
e("s_waitcnt lgkmcnt(0)")
for dt in range(10):
    e(f"ds_read_b64_tr_b16 {vr(128+4*dt,2)}, v1 offset:{32*dt}")
    e(f"ds_read_b64_tr_b16 {vr(130+4*dt,2)}, v1 offset:{32*dt+16*336}")
def relay(val): e(f"v_mov_b32 v8, {val}\nds_write_b32 v15, v8")
SLP = OPT.get("sleep", "1")
def vpoll(load, chk, target, sl, first=True):
    L = e.lab("AG")
    e(f"s_mov_b32 s12, {SPIN_MAX}")
    if not first: e(f"s_branch {L}_c")
    e(f"{L}:")
    e(load); e("s_waitcnt vmcnt(0)")
    e(f"{L}_c:")
    e(f"v_cmp_gt_u32 vcc, {target}, v{chk}\ns_cbranch_vccz {L}_d\ns_sleep {sl}\ns_sub_u32 s12, s12, 1\ns_cbranch_scc0 {L}")
    e(f"{L}_d:")
def arrive(so): e(f"v_mov_b32 v8, 1\ns_mov_b64 exec, 1\nbuffer_atomic_add v8, v14, s[48:51], {so} offen sc1\ns_mov_b64 exec, -1")
vpoll("buffer_load_dword v7, v14, s[72:75], 0 offen sc1", 7, 1, 8, first=False)
e("s_waitcnt vmcnt(0)")
e(f"s_lshr_b32 s6, s14, 4\ns_lshl_b32 s6, s6, 7\ns_add_u32 s6, s6, {FL_T}"); arrive("s6")
stS()
e("s_waitcnt lgkmcnt(0)")
for i in range(10):
    if i in (4, 8): e("s_add_u32 s15, s15, 4096")
    e(f"buffer_store_dwordx4 {vr(80+4*i,4)}, v4, s[48:51], s15 offen offset:{1024*(i%4)} sc1")
for half in (0, 1):
    e(f"s_add_u32 s6, s10, {half*276480}\ns_add_u32 s7, s6, 4096")
    for d5 in range(5):
        r = 128 + (half*5+d5)*4
        if d5 < 4: e(f"buffer_store_dwordx4 {vr(r,4)}, v4, s[48:51], s6 offen offset:{1024*d5} sc1")
        else: e(f"buffer_store_dwordx4 {vr(r,4)}, v4, s[48:51], s7 offen sc1")
e(f"v_add_u32 v18, {CNT-CNT2}, v16\nv_and_b32 v5, 7, v0\nv_lshlrev_b32 v5, 7, v5")
e("s_waitcnt vmcnt(0)")
e("s_lshl_b32 s6, s4, 7"); arrive("s6")
stS()
e("s_cmp_lt_u32 s5, 4\ns_cbranch_scc1 L_S2")
e(f"s_sub_u32 s6, s5, 4\ns_mul_i32 s6, s6, 37\ns_lshr_b32 s6, s6, 8\ns_lshr_b32 s7, s4, 1\ns_lshl2_add_u32 s6, s7, s6\ns_lshl_b32 s6, s6, 7\ns_add_u32 s6, s6, {FL_T}")
e("s_add_u32 s40, s44, s6\ns_addc_u32 s41, s45, 0")
wait_lds(17, 18, OPT.get("tpollat", "7"), sleep=True)
spoll(40, [0], 16, 4); relay(1)
wait_lds(17, 18, OPT.get("apollat", "10"), sleep=True)
e("s_branch L_S3")
e("L_S2:")
e(f"v_mov_b32 v16, {CNT2}")
wait_lds(17, 16, "2", sleep=True)
e("L_S3:")
stS()
vpoll("buffer_load_dword v7, v5, s[48:51], 0 offen sc1", 7, 32, OPT.get("ssleep", "4")); relay(2)
stS()
e("s_mul_i32 s7, s5, 3\ns_lshl1_add_u32 s8, s5, 16\ns_cmp_lt_u32 s5, 16\ns_cselect_b32 s8, s7, s8\ns_mul_i32 s6, s4, 80\ns_add_u32 s8, s8, s6")
e(f"v_lshrrev_b32 v2, 2, v0\nv_and_b32 v6, 3, v0\nv_mul_u32_u24 v3, 10240, v2\nv_lshl_add_u32 v3, v6, 4, v3")
e(f"s_lshl_b32 s6, s8, 4\ns_add_u32 s6, s6, {XNB}")
for r in range(16):
    e(f"buffer_load_dwordx4 {vr(128+4*r,4)}, v3, s[48:51], s6 offen sc1")
    if r < 15: e("s_add_u32 s6, s6, 163840")
e(f"v_mul_u32_u24 v6, {USZ}, v6\nv_lshl_add_u32 v2, v2, 4, v6\nv_add_u32 v2, {UB0}, v2")
for r in range(20, 24): e(f"v_mov_b32 v{r}, 0")
e(f"v_add_u32 v3, {UB0}, v4")
wait_lds(17, 18, "11", sleep=True)
e("s_mov_b64 exec, 0xfffffff")
for ch in range(3): e(f"ds_write_b128 v3, v[20:23] offset:{ch*USZ}\nds_write_b128 v3, v[20:23] offset:{ch*USZ+U1OFF}")
e("s_mov_b32 exec_lo, 0x77777777\ns_mov_b32 exec_hi, 0x77777777")
for r in range(16):
    e(f"s_waitcnt vmcnt({15-r})")
    e(f"ds_write_b128 v2, {vr(128+4*r,4)} offset:{448+256*r}")
e("s_mov_b64 exec, -1")
e("v_mov_b32 v8, 3\nds_write_b32 v9, v8")
g2_ids()
e(f"s_mul_i32 s10, s14, 276480\ns_add_u32 s10, s10, {W2F}")
e("v_add_u32 v5, 4096, v4")
for k in range(3):
    e(f"s_add_u32 s6, s15, {5+k}\ns_cmp_ge_u32 s6, 14\ns_cselect_b32 s7, 14, 0\ns_sub_u32 s6, s6, s7\ns_cmp_ge_u32 s6, 14\ns_cselect_b32 s7, 14, 0\ns_sub_u32 s6, s6, s7\ns_lshl_b32 s6, s6, 2")
    for w in range(4):
        e(f"s_add_u32 s7, s6, {w}\ns_mul_i32 s0, s7, 5120\ns_add_u32 s0, s0, s10\ns_cmp_ge_u32 s7, 54\ns_cselect_b32 s0, {OOB}, s0\ns_mov_b32 m0, {(w*3+k)*5120}\ns_nop 0")
        for dt in range(4): e(f"buffer_load_dwordx4 v4, s[48:51], s0 offen offset:{1024*dt} sc1 lds")
        e(f"s_mov_b32 m0, {(w*3+k)*5120+4096}\ns_nop 0\nbuffer_load_dwordx4 v5, s[48:51], s0 offen sc1 lds")
        e(f"s_waitcnt vmcnt({OPT.get('pfd', '30')})")
stS()
e("s_waitcnt vmcnt(0)"); relay(3)
stS()
wait_lds(17, 18, "13", sleep=True)
e(f"s_lshl_b32 s6, s14, 9\ns_add_u32 s6, s6, {FL_C}\ns_add_u32 s40, s44, s6\ns_addc_u32 s41, s45, 0")
if "k" not in EXP: spoll(40, [0, 128, 256, 384], 20, OPT.get("csleep", "4"))
relay(4)
stS()
stS.regs = [76,78,80] + stS.regs; stS.n += 3
stS.flush(8, 9)
e("L_END:")
e("s_endpgm")
for l in tail: e(l)
if "P" in EXP:
    for c_ in e.I:
        if c_.mn == "buffer_store_dwordx4" and ("v4, s[48:51]" in c_.text): c_.text = c_.text.replace(" sc1", "")
nn = e.fix()

hdr = open("cdna_kernels/" + NAME + ".s.ref").read().split("; Override")[0]
s = hdr + f"; @launch grid=(256,1,1) block=(512,1,1) lds={LDS_TOTAL}\n"
s += f""".amdgcn_target "amdgcn-amd-amdhsa--gfx950"
.text
.globl {NAME}_kernel
.p2align 8
.type {NAME}_kernel,@function
{NAME}_kernel:
"""
s += e.text()
s += f""".section .rodata,"a"
.p2align 6
.amdhsa_kernel {NAME}_kernel
  .amdhsa_next_free_vgpr 256
  .amdhsa_next_free_sgpr 102
  .amdhsa_accum_offset 256
  .amdhsa_group_segment_fixed_size 0
  .amdhsa_kernarg_size 120
  .amdhsa_user_sgpr_count 2
  .amdhsa_user_sgpr_kernarg_segment_ptr 1
  .amdhsa_system_sgpr_workgroup_id_x 1
.end_amdhsa_kernel
"""
open(OUT, "w").write(s)
print("instrs", sum(1 for c in e.I if c.cls), "nops inserted", nn, "lds", LDS_TOTAL)
```

```python
import sys, struct
from emit import Em, Q
NAME = "recurrent_scan__ssm_conv_s4d__mixer_channel_mlp__prompt"
DBGST = "--dbg" in sys.argv
STAMPS = "--stamps" in sys.argv or DBGST
OPT = dict(a[2:].split("=") for a in sys.argv[1:] if a.startswith("--") and "=" in a)
OUT = [a for a in sys.argv[1:] if not a.startswith("--")]
OUT = OUT[0] if OUT else "k.s"
NOAUX = OPT.get("noaux", "0")
EXP = OPT.get("exp", "")
NT = OPT.get("nt", "")
ntw2 = " nt" if "w" in NT else ""; ntp = " nt" if "p" in NT else ""; ntx = " nt" if "x" in NT else ""; ntg = " nt" if "g" in NT else ""
MT = "s_memtime" if "--cyc" in sys.argv else "s_memrealtime"

FL_A, FL_H, FL_C, FL_T = 0, 1024, 5120, 9216
STATS = 0x4000
XNB = 0x10000
W2F = 0x300000
HF = 0x600000
ST = 0xD00000
STAMP = 0xFC0000
WS_SIZE = 0x1000000
OOB = 0x20000000
KSTEP = 8320
XST = 8 * KSTEP
CH0 = XST + 24576
CHSZ = 18432
SB = CH0 + 3 * CHSZ
CNT = SB + 10752
CS = CNT + 1024
CNT2 = CS + 512
SST = CNT2 + 1024
REL = SST + 64
LDS_TOTAL = REL + 64
assert CS % 512 == 0 and LDS_TOTAL <= 163840
UB0, USZ, U1OFF = 61440, 9152, 4576
assert UB0 + 3*USZ <= CH0
KOFF, KCP = 1792, 4160
TBOFF, TAB, TPI = 64, 1536, 528
SPIN_MAX = 8192
LOG2E = 0x3fb8aa3b
INV2PI = 0x3e22f983

e = Em()
tail = []
def f32(x): return "0x%08x" % struct.unpack("<I", struct.pack("<f", x))[0]
def srd(r, ptr, size):
    e(f"s_mov_b32 s{r}, s{ptr}\ns_mov_b32 s{r+1}, s{ptr+1}\ns_mov_b32 s{r+2}, {size}\ns_mov_b32 s{r+3}, 0x20000")
def vr(a, n): return f"v[{a}:{a+n-1}]"

class Stamper:
    def __init__(self, regs): self.regs = regs; self.n = 0
    def __call__(self):
        if not STAMPS: return
        r = self.regs[self.n]; self.n += 1
        e(f"{MT} s[{r}:{r+1}]")
    def flush(self, v0, v1, dbg=None):
        if not STAMPS: return
        e("s_waitcnt lgkmcnt(0)")
        if DBGST:
            if dbg is None: return
            wave, off, n = dbg
            L = e.lab("NODBG")
            e(f"s_cmp_lg_u32 s2, 100\ns_cbranch_scc1 {L}\ns_cmp_lg_u32 s3, {wave}\ns_cbranch_scc1 {L}")
            e(f"v_mov_b32 v{v1}, 0\ns_mov_b64 exec, 1")
            for i, r in enumerate(self.regs[:n]):
                e(f"s_sub_u32 s{r}, s{r}, s46\nv_mov_b32 v{v0}, s{r}")
                e(f"buffer_store_dword v{v0}, v{v1}, s[72:75], 0 offen offset:{4*(off+i)}")
                e("s_nop 0")
            e("s_waitcnt vmcnt(0)")
            e(f"{L}:")
            return
        e("s_lshl_b32 s6, s2, 3\ns_add_u32 s6, s6, s3\ns_lshl_b32 s6, s6, 6")
        e(f"s_add_u32 s6, s6, {STAMP}")
        e(f"v_mov_b32 v{v1}, 0")
        e("s_mov_b64 exec, 1")
        for i, r in enumerate([46] + self.regs[:self.n]):
            e(f"v_mov_b32 v{v0}, s{r}")
            e(f"buffer_store_dword v{v0}, v{v1}, s[48:51], s6 offen offset:{4*i}")
            e("s_nop 0")
        e("s_waitcnt vmcnt(0)")

def spin_lds(vchk, vaddr, val, sleep=False, after=(), pre_cmp=True, branch="s_cbranch_vccnz"):
    if NOAUX != "0" and not val.startswith("v"): return
    L = e.lab("SPIN"); B = e.lab("BACK")
    if pre_cmp: e(f"v_cmp_gt_u32 vcc, {val}, v{vchk}")
    e(f"{branch} {L}")
    e(f"{B}:")
    D = f"{L}_d" if after else B
    tail.extend([f"{L}:", f"s_mov_b32 s12, {SPIN_MAX*16}", f"{L}_a:"] + (["s_sleep 1"] if sleep else []) +
                [f"ds_read_b32 v{vchk}, v{vaddr}", "s_waitcnt lgkmcnt(0)",
                 f"v_cmp_gt_u32 vcc, {val}, v{vchk}", f"s_cbranch_vccz {D}", "s_sub_u32 s12, s12, 1", f"s_cbranch_scc0 {L}_a"] +
                ([f"{D}:"] + list(after) if after else []) + [f"s_branch {B}"])
def wait_lds(vchk, vaddr, val, sleep=False):
    e(f"ds_read_b32 v{vchk}, v{vaddr}\ns_waitcnt lgkmcnt(0)")
    spin_lds(vchk, vaddr, val, sleep)
def spoll(base, offs, target, sl, r0=16):
    if NOAUX != "0": return
    L = e.lab("AG")
    e(f"s_mov_b32 s12, {SPIN_MAX}")
    e(f"{L}:")
    for k, o in enumerate(offs): e(f"s_load_dword s{r0+k}, s[{base}:{base+1}], {o} glc")
    e("s_waitcnt lgkmcnt(0)")
    for k in range(1, len(offs)): e(f"s_min_u32 s{r0}, s{r0}, s{r0+k}")
    e(f"s_cmp_ge_u32 s{r0}, {target}\ns_cbranch_scc1 {L}_d\ns_sleep {sl}\ns_sub_u32 s12, s12, 1\ns_cbranch_scc0 {L}")
    e(f"{L}_d:")
def rb(dst, src):
    e(f"v_cvt_pk_bf16_f32 v{dst}, v{src}, v{src}\nv_and_b32 v{dst}, 0xffff0000, v{dst}")
def zero_cnt(base):
    e(f"s_and_b32 s6, s3, 3\ns_lshl_b32 s6, s6, 8\ns_add_u32 s6, s6, {base}")
    e("v_lshlrev_b32 v9, 2, v0\nv_add_u32 v9, s6, v9\nv_mov_b32 v11, 0")
    e("ds_write_b32 v9, v11")

e("s_cmp_ge_u32 s2, 256")
e("s_cbranch_scc1 L_END")
if STAMPS: e(f"{MT} s[46:47]")
e("s_load_dwordx16 s[16:31], s[0:1], 0")
e("s_load_dwordx8 s[32:39], s[0:1], 64")
e("s_load_dwordx4 s[40:43], s[0:1], 96")
e("s_load_dwordx2 s[44:45], s[0:1], 112")
e("v_lshrrev_b32 v1, 6, v0")
e("v_and_b32 v0, 63, v0")
e("v_readfirstlane_b32 s3, v1")
e("s_and_b32 s4, s2, 7")
e("s_lshr_b32 s5, s2, 3")
e("s_cmp_ge_u32 s3, 4")
e("s_cbranch_scc1 L_AUX")

_stG = Stamper([30,32,34,36,38,96,98,100])
GSEL = OPT.get("gst", "c0,g1,ep,hp,hs,g2,rd,end").split(",")
class _G:
    def __call__(self, name):
        if name in GSEL:
            _stG.n = GSEL.index(name); _stG()
    def flush(self, *a):
        _stG.n = 8; _stG.flush(*a)
stG = _G()
vm = Q(e, "vmcnt", 63); lg = Q(e, "lgkmcnt", 15)
XR, VXA, WB, ONES = 12, 44, 76, 108
ACC, CSA = 112, 176
VCHK, VGO, VB1, VST, VC, VCS, VT = 184, 185, 186, 202, 206, 208, 216
VFL = 216
sK = [76+i for i in range(14)]
e(f"s_setprio {OPT.get('gprio', '2')}")
zero_cnt(CNT)
e("v_lshrrev_b32 v10, 4, v0")
e("v_and_b32 v8, 15, v0")
def g2_ids():
    e("s_lshr_b32 s6, s5, 2\ns_lshr_b32 s13, s4, 1\ns_lshl3_add_u32 s13, s13, s6\ns_and_b32 s7, s5, 3\ns_and_b32 s14, s4, 1\ns_lshl2_add_u32 s14, s14, s7")
    e("s_mul_i32 s15, s6, 7\ns_lshr_b32 s15, s15, 2\ns_mul_i32 s7, s7, 7\ns_lshr_b32 s7, s7, 1\ns_add_u32 s15, s15, s7")
    e("s_cmp_ge_u32 s15, 14\ns_cselect_b32 s6, 14, 0\ns_sub_u32 s15, s15, s6")
g2_ids()
e("s_cmp_lt_u32 s5, 4")
e("s_cbranch_scc1 L_IDLE")
e("s_sub_u32 s6, s5, 4\ns_mul_i32 s7, s6, 37\ns_lshr_b32 s7, s7, 8\ns_mul_i32 s8, s7, 7\ns_sub_u32 s6, s6, s8")
e("s_lshr_b32 s8, s4, 1\ns_lshl_b32 s8, s8, 2\ns_add_u32 s8, s8, s7")
e("s_and_b32 s9, s4, 1\ns_mul_i32 s9, s9, 7\ns_add_u32 s9, s9, s6")
e("s_lshl_b32 s11, s9, 8")
ROT = OPT.get("rot", "1") != "0"
sW = list(range(16, 26)); sX = [26, 27, 28, 29, 90, 91, 92, 93, 94, 95]
if ROT:
    e("s_mul_i32 s12, s6, 370\ns_lshr_b32 s12, s12, 8\ns_mul_i32 s7, s7, 5\ns_lshr_b32 s7, s7, 1\ns_add_u32 s12, s12, s7")
    e("s_cmp_ge_u32 s12, 10\ns_cselect_b32 s7, 10, 0\ns_sub_u32 s12, s12, s7")
def rot_tab(ps):
    if not ROT: return
    for p in ps:
        if p: e("s_add_u32 s12, s12, 1\ns_cmp_eq_u32 s12, 10\ns_cselect_b32 s12, 0, s12")
        e(f"s_mul_i32 s{sW[p]}, s12, 221184\ns_add_u32 s{sW[p]}, s{sW[p]}, s11\ns_lshl_b32 s{sX[p]}, s12, 7")
e("v_bfe_u32 v1, v0, 2, 2\ns_lshl_b32 s6, s3, 3\nv_add_u32 v1, s6, v1\nv_mul_u32_u24 v1, 3456, v1")
e("v_lshl_add_u32 v1, v10, 6, v1\nv_and_b32 v2, 3, v0\nv_lshl_add_u32 v1, v2, 4, v1")
e(f"v_add_u32 v2, {4*3456-1024}, v1")
e("s_lshl_b32 s6, s8, 7\ns_lshl_b32 s7, s3, 5\ns_add_u32 s6, s6, s7")
e("v_lshrrev_b32 v5, 3, v0\nv_add_u32 v3, s6, v5\nv_mul_u32_u24 v3, 1280, v3\nv_and_b32 v6, 7, v0\nv_lshrrev_b32 v5, 1, v5\nv_xor_b32 v6, v6, v5")
e(f"v_xor_b32 v5, 4, v6\nv_lshl_add_u32 v4, v5, 4, v3\nv_add_u32 v4, {10240-1024}, v4\nv_lshl_add_u32 v3, v6, 4, v3")
e(f"s_mul_i32 s10, s3, 6144\ns_add_u32 s10, s10, {XST}")
e("s_waitcnt lgkmcnt(0)")
e("s_barrier")
e("s_mul_i32 s1, s3, 2080")
srd(56, 32, 2211840); srd(52, 16, 2621440)
rot_tab(range(1))
def w_ops(step):
    if "d" in EXP and step > 5: return [lambda: None, lambda: None]
    def a():
        if ROT: e(f"s_add_u32 m0, s1, {(step % 8)*KSTEP}\ns_add_u32 s0, s{sW[step//2]}, {(step % 2)*110592}")
        else: e(f"s_add_u32 m0, s1, {(step % 8)*KSTEP}\ns_add_u32 s0, s11, {step*110592}")
        e(f"buffer_load_dwordx4 v1, s[56:59], s0 offen{ntg} lds"); vm.issue(("w", step//2))
    def b():
        e(f"buffer_load_dwordx4 v2, s[56:59], s0 offen offset:1024{ntg} lds"); vm.issue(("w", step//2))
    return [a, b]
def x_ops(u):
    if "x" in EXP and u > 3: return [lambda: None, lambda: None]
    def a():
        if ROT: e(f"s_add_u32 m0, s10, {(u % 3)*2048}\ns_add_u32 s0, s{sX[u//2]}, {(u % 2)*20480}")
        else: e(f"s_add_u32 m0, s10, {(u % 3)*2048}\ns_mov_b32 s0, {(u//2)*128 + (u % 2)*20480}")
        e("buffer_load_dwordx4 v3, s[52:55], s0 offen lds"); vm.issue(("x", u))
    def b():
        e("buffer_load_dwordx4 v4, s[52:55], s0 offen offset:1024 lds"); vm.issue(("x", u))
    return [a, b]
def x_reads(u):
    vm.wait(("x", u))
    for k2 in (0, 1):
        e(f"ds_read_b128 {vr(XR+(u%4)*8+4*k2,4)}, v{VXA+k2} offset:{(u%3)*2048}"); lg.issue(("xr", u))
for op in w_ops(0) + x_ops(0) + x_ops(1) + w_ops(1): op()
srd(48, 44, WS_SIZE); srd(60, 34, 3456); srd(64, 38, 1280); srd(68, 40, 2621440); srd(72, 42, 256)
rot_tab(range(1, 10))
e("v_mul_u32_u24 v5, 2080, v10\nv_bfe_u32 v6, v0, 2, 2\nv_lshl_add_u32 v5, v6, 6, v5\nv_and_b32 v6, 3, v0\nv_lshl_add_u32 v184, v6, 3, v5")
e(f"v_lshrrev_b32 v{VXA}, 1, v8\nv_xor_b32 v{VXA}, v{VXA}, v10\nv_lshlrev_b32 v{VXA}, 4, v{VXA}\nv_lshl_add_u32 v{VXA}, v8, 7, v{VXA}")
e(f"v_xor_b32 v{VXA+1}, 64, v{VXA}\nv_add_u32 v{VXA}, s10, v{VXA}\nv_add_u32 v{VXA+1}, s10, v{VXA+1}")
for tp in range(4):
    e(f"s_xor_b32 s6, s3, {tp}\ns_lshl_b32 s6, s6, 8\nv_add_u32 v{5+tp}, s6, v184")
for i in range(4): e(f"v_mov_b32 v{ONES+i}, 0x3f803f80")
e("v_lshlrev_b32 v223, 3, v10\ns_lshl_b32 s6, s3, 6\nv_add_u32 v223, s6, v223")
for op in w_ops(2) + w_ops(3) + x_ops(2): op()
for tp in range(4):
    e(f"v_xor_b32 v{VGO}, {64*tp}, v223")
    for h in (0, 1):
        e(f"buffer_load_dwordx2 {vr(VB1+(2*tp+h)*2,2)}, v{VGO}, s[60:63], s11 offen offset:{32*h}"); vm.issue("b1")
def gcommon():
    e("s_mov_b32 s6, s15")
    for i in range(14):
        if i: e("s_add_u32 s6, s6, 1\ns_cmp_eq_u32 s6, 14\ns_cselect_b32 s6, 0, s6")
        e(f"s_lshl2_add_u32 s7, s6, s3\ns_cmp_ge_u32 s7, 54\ns_cselect_b32 s7, {0x8000000>>10}, s7\ns_lshl_b32 s{sK[i]}, s7, 10")
    e(f"v_and_b32 v209, 15, v0\nv_lshlrev_b32 v10, 8, v10\nv_lshl_add_u32 v10, v209, 2, v10\nv_add_u32 v10, {CNT}, v10")
gcommon()
stG("p")
def signal():
    e("v_add_u32 v11, 1, v11")
    e("ds_write_b32 v9, v11"); lg.issue("sig")
CHKR = [VCHK]
def chk_read():
    e(f"ds_read_b32 v{CHKR[0]}, v10"); lg.issue("chk")
def chk_eval():
    lg.wait("chk")
    spin_lds(CHKR[0], 10, "v11")
def tr_reads(step, t):
    base = (step % 8) * KSTEP + 32 * (t & 1)
    for hf_ in (0, 1):
        r = WB + 4*t + 2*hf_
        e(f"ds_read_b64_tr_b16 {vr(r,2)}, v{5+(t>>1)} offset:{base + 1024*hf_}"); lg.issue(("w", step, t))
vm.wait(("w", 0))
signal(); chk_read()
x_reads(0); x_reads(1)
chk_eval()
stG("c0")
def tr_one(step, t, hf_):
    base = (step % 8) * KSTEP + 32 * (t & 1)
    e(f"ds_read_b64_tr_b16 {vr(WB+4*t+2*hf_,2)}, v{5+(t>>1)} offset:{base + 1024*hf_}"); lg.issue(("w", step, t))
for t in range(8): tr_reads(0, t)
lg.wait(("xr", 0))
for op in x_ops(3): op()
carry = []
NOCS = "c" in EXP
for i in range(20):
    c, k2 = divmod(i, 2)
    stG(f"a{i}")
    mf = []
    for t in range(8):
        mf += [(t, 0), (t, 1)] + ([(t, 2)] if t < 2 and not NOCS else [])
    side = {n: [] for n in range(len(mf))}
    pos = lambda t: mf.index((t, 0))
    side[0] += carry; carry = []
    if i < 19:
        for t in range(8):
            last = max(n for n, m in enumerate(mf) if m[0] == t)
            side[last].append(lambda t=t: tr_one(i+1, t, 0))
            if last + 1 < len(mf): side[last+1].append(lambda t=t: tr_one(i+1, t, 1))
            else: carry.append(lambda t=t, i=i: tr_one(i+1, t, 1))
    WP = [1, 4] if not NOCS else [1, 3]
    if i == 0:
        o = w_ops(4) + w_ops(5)
        for n, op in zip((1, 4, 6, 8), o): side[n].append(op)
    elif i + 5 <= 19:
        for n, op in zip(WP, w_ops(i+5)): side[n].append(op)
    if i + 4 <= 19:
        o = x_ops(i+4)
        side[pos(4)].append(lambda i=i: lg.wait(("xr", i+1))); side[pos(4)].append(o[0]); side[pos(6)].append(o[1])
    if k2 == 0 and c + 1 <= 9:
        def sg(c=c):
            vm.wait(("w", c+1)); signal()
        side[pos(3)].append(sg); side[pos(5)].append(chk_read)
    if i + 2 <= 19: side[pos(7)].append(lambda i=i: x_reads(i+2))
    if i == 15:
        side[pos(5)].append(lambda: (e(f"v_mov_b32 v{VFL}, {REL}\nds_read_b32 v{VFL+1}, v{VFL}"), lg.issue("rel")))
    if i == 16:
        def f():
            lg.wait("rel")
            spin_lds(VFL+1, VFL, "1")
            e(f"v_and_b32 v{VFL+6}, 15, v0\nv_lshlrev_b32 v{VFL+6}, 3, v{VFL+6}")
            e(f"s_lshl_b32 s6, s8, 10\ns_lshl_b32 s7, s3, 8\ns_add_u32 s6, s6, s7\ns_add_u32 s6, s6, {STATS}")
            e(f"buffer_load_dwordx2 {vr(VST,2)}, v{VFL+6}, s[48:51], s6 offen sc1"); vm.issue("st")
            e(f"buffer_load_dwordx2 {vr(VST+2,2)}, v{VFL+6}, s[48:51], s6 offen offset:128 sc1"); vm.issue("st")
        side[1].append(f)
    for n, (t, mt) in enumerate(mf):
        if mt == 0:
            need = [("w", i, t), ("w", i, t+1)] if t % 2 == 0 else []
            if t == 6: need = [("w", i, 6)]
            if t == 7: need = [("w", i, 7)]
            if t == 0 and k2 == 0: need += [("xr", 2*c), ("xr", 2*c+1)]
            if need: lg.wait(need)
        if mt < 2:
            a = ACC + (2*t+mt)*4
            x = XR + ((2*c+mt) % 4)*8 + 4*k2
        else:
            a = CSA + 4*t; x = ONES
        e(f"v_mfma_f32_16x16x32_bf16 {vr(a,4)}, {vr(WB+4*t,4)}, {vr(x,4)}, {vr(a,4) if i else 0}")
        for f in side[n]: f()
    if k2 == 0 and c + 1 <= 9: chk_eval()
stG("g1")
e(f"v_lshrrev_b32 v5, 4, v0\nv_lshlrev_b32 v5, 4, v5\ns_lshl_b32 s6, s3, 7\ns_add_u32 s6, s6, {CS}\nv_add_u32 v5, s6, v5")
e("s_mov_b32 s6, 0x00010001\ns_mov_b32 s7, 0x00010001\ns_mov_b64 exec, s[6:7]")
e(f"ds_write_b128 v5, {vr(CSA,4)}"); lg.issue("csw")
e(f"ds_write_b128 v5, {vr(CSA+4,4)} offset:64"); lg.issue("csw")
e("s_mov_b64 exec, -1")
signal(); chk_read()
def g2_setup():
    e("v_lshlrev_b32 v1, 4, v0")
    e(f"s_mul_i32 s10, s14, 276480\ns_add_u32 s10, s10, {W2F}")
    e(f"s_mul_i32 s11, s13, 221184\ns_add_u32 s11, s11, {HF}")
def w2_ops(i):
    ops = []
    for dt in range(5):
        def f(dt=dt):
            if dt == 0: e(f"s_lshl2_add_u32 s0, s{sK[i]}, s10\ns_add_u32 s0, s0, s{sK[i]}")
            if dt == 4: e("s_add_u32 s0, s0, 4096")
            r = 12 + (i % 5)*20 + dt*4
            e(f"buffer_load_dwordx4 {vr(r,4)}, v1, s[48:51], s0 offen offset:{1024*(dt%4)} sc1"); vm.issue(("w2", i))
        ops.append(f)
    return ops
g2_setup()
e(f"v_mov_b32 v{VC}, {f32(-2*0.7978845608028654*1.4426950408889634)}")
e(f"v_mov_b32 v{VC+1}, {f32(-2*0.7978845608028654*1.4426950408889634*0.044715)}")
e(f"s_lshr_b32 s6, s3, 1\ns_lshl_b32 s7, s8, 1\ns_add_u32 s6, s6, s7\ns_mul_i32 s44, s6, 221184\ns_and_b32 s7, s3, 1\ns_lshl_b32 s7, s7, 11")
e(f"s_add_u32 s44, s44, s7\ns_add_u32 s44, s44, {HF}")
e(f"s_lshl_b32 s45, s6, 7\ns_add_u32 s45, s45, {FL_H}")
pre = []
chk_eval()
def cs_read(tp):
    b = VCS if tp % 2 == 0 else VT + 32
    e(f"v_xor_b32 v6, {128*tp}, v5")
    e(f"ds_read_b128 {vr(b,4)}, v6"); lg.issue(("cs", tp))
    e(f"ds_read_b128 {vr(b+4,4)}, v6 offset:64"); lg.issue(("cs", tp))
cs_read(0)
vm.wait(["b1", "st"])
TB1, TP, TQ, TE, TO = VT, VT+8, VT+16, VT+24, 176
def nxt():
    if pre: pre.pop(0)()
for tp in range(4):
    csb = VCS if tp % 2 == 0 else VT + 32
    if tp < 3: cs_read(tp+1)
    for h in (0, 1):
        for k in (0, 1):
            s = VB1 + (2*tp+h)*2 + k
            e(f"v_lshlrev_b32 v{TB1+4*h+2*k}, 16, v{s}\nv_and_b32 v{TB1+4*h+2*k+1}, 0xffff0000, v{s}")
    e(f"s_xor_b32 s6, s3, {tp}\ns_lshl2_add_u32 s6, s9, s6\ns_cmp_ge_u32 s6, 54\ns_cselect_b32 s7, {OOB}, s44\ns_lshl_b32 s6, s6, 12\ns_add_u32 s6, s6, s7")
    lg.wait(("cs", tp))
    for mt in (0, 1):
        st = VST + 2*mt
        P = range(4)
        acc = lambda q: ACC + (2*(2*tp + (q >> 1)) + mt)*4 + 2*(q & 1)
        for q in P: e(f"v_pk_fma_f32 {vr(TP+2*q,2)}, {vr(st,2)}, {vr(csb+2*q,2)}, {vr(TB1+2*q,2)} op_sel:[1,0,0] op_sel_hi:[1,1,1] neg_lo:[1,0,0] neg_hi:[1,0,0]")
        for q in P: e(f"v_pk_fma_f32 {vr(TP+2*q,2)}, {vr(acc(q),2)}, {vr(st,2)}, {vr(TP+2*q,2)} op_sel_hi:[1,0,1]")
        for q in P: e(f"v_pk_mul_f32 {vr(TQ+2*q,2)}, {vr(TP+2*q,2)}, {vr(TP+2*q,2)}")
        nxt()
        for q in P: e(f"v_pk_fma_f32 {vr(TQ+2*q,2)}, {vr(VC,2)}, {vr(TQ+2*q,2)}, {vr(VC,2)} op_sel:[1,0,0] op_sel_hi:[1,1,0]")
        for q in P: e(f"v_pk_mul_f32 {vr(TQ+2*q,2)}, {vr(TQ+2*q,2)}, {vr(TP+2*q,2)}")
        for q in range(8): e(f"v_exp_f32 v{TE+q}, v{TQ+q}")
        nxt()
        for q in P: e(f"v_pk_add_f32 {vr(TE+2*q,2)}, {vr(TE+2*q,2)}, 1.0 op_sel_hi:[1,0]")
        for q in range(8): e(f"v_rcp_f32 v{TE+q}, v{TE+q}")
        nxt()
        for q in P: e(f"v_pk_mul_f32 {vr(TP+2*q,2)}, {vr(TP+2*q,2)}, {vr(TE+2*q,2)}")
        o = TO + 4*mt
        for q in P: e(f"v_cvt_pk_bf16_f32 v{o+q}, v{TP+2*q}, v{TP+2*q+1}")
        e(f"buffer_store_dwordx4 {vr(o,4)}, v1, s[48:51], s6 offen offset:{1024*mt} sc1"); vm.issue("hst")
assert not pre
stG("ep")
signal()
vm.wait_all()
e("v_mov_b32 v6, 0\nv_mov_b32 v7, 1\ns_mov_b64 exec, 1")
e("buffer_atomic_add v7, v6, s[48:51], s45 offen sc1")
e("s_mov_b64 exec, -1")
stG("hp")
vm.clear()
e("L_G2:")
CHKR[0] = 26
A2, HR = 112, 192
e(f"s_setprio {OPT.get('g2prio', '0')}")
e(f"v_mov_b32 v2, {REL}")
wait_lds(8, 2, "2")
for i in range(5):
    for op in w2_ops(i): op()
for ml in range(4):
    e(f"s_xor_b32 s6, s3, {ml}\ns_lshl_b32 s6, s6, 10\nv_add_u32 v{3+ml}, s6, v1")
e("s_mul_i32 s6, s3, 15360\nv_add_u32 v7, s6, v1")
e(f"s_lshl_b32 s6, s13, 7\ns_add_u32 s6, s6, {FL_H}\ns_add_u32 s40, s48, s6\ns_addc_u32 s41, s49, 0")
spoll(40, [0], 28, OPT.get("hsleep", "2")); lg.clear()
stG("hs")
def h_load(i):
    e(f"s_lshl2_add_u32 s6, s{sK[i]}, s11")
    for ml in range(4):
        r = HR + (i % 4)*16 + ml*4
        e(f"buffer_load_dwordx4 {vr(r,4)}, v{3+ml}, s[48:51], s6 offen sc1"); vm.issue(("h", i))
for i in range(4): h_load(i)
FB2, FXO, FLA, FX, FS, VSO = 92, 102, 105, 32, 12, 25
STL = []
for i in range(3):
    if i == 2: STL.append("s_mov_b32 exec_hi, 0")
    STL.append(f"buffer_load_dwordx4 {vr(FS+4*i,4)}, v{VSO}, s[48:51], s{44 if i == 0 else 6} offen sc1")
    if i < 2: STL.append(f"s_add_u32 s6, s44, {32*4096*(i+1)}")
STL.append("s_mov_b64 exec, -1")
for i in range(14):
    vm.wait([("w2", i), ("h", i)])
    lg.wait(("pf", i))
    if i == 7: signal()
    if i == 12: chk_read()
    stG(f"b{i}")
    side = {n: [] for n in range(20)}
    j = i + 4
    if i >= 1 and j < 8:
        if i == 1: side[0].append(lambda: (wait_lds(8, 2, "3"), lg.clear()))
        for dt in range(5):
            side[1+dt].append(lambda dt=dt, j=j: (e(f"ds_read_b128 {vr(12+(j%5)*20+dt*4,4)}, v7 offset:{(j-5)*5120+dt*1024}"), lg.issue(("pf", j))))
    elif i >= 1 and j < 14:
        for n, op in zip((1, 3, 7, 11, 16), w2_ops(j)): side[n].append(op)
    if i + 4 < 14:
        for ml in range(4):
            def hl(ml=ml, i=i):
                if ml == 0: e(f"s_lshl2_add_u32 s6, s{sK[i+4]}, s11")
                e(f"buffer_load_dwordx4 {vr(HR+(i%4)*16+ml*4,4)}, v{3+ml}, s[48:51], s6 offen sc1"); vm.issue(("h", i+4))
            side[5*ml+4].append(hl)
    for n in range(20):
        ml, dt = divmod(n, 5)
        a = A2 + n*4
        e(f"v_mfma_f32_16x16x32_bf16 {vr(a,4)}, {vr(12+(i%5)*20+dt*4,4)}, {vr(HR+(i%4)*16+ml*4,4)}, {vr(a,4) if i else 0}")
        for f in side[n]: f()
    if i == 9:
        e("v_lshrrev_b32 v4, 4, v0\nv_lshlrev_b32 v4, 3, v4\ns_mul_i32 s8, s14, 160")
        for dt in range(5):
            e(f"buffer_load_dwordx2 {vr(FB2+2*dt,2)}, v4, s[64:67], s8 offen offset:{32*dt}"); vm.issue("fx")
        e(f"s_lshl_b32 s6, s13, 6\ns_lshl_b32 s7, s3, 4\ns_add_u32 s6, s6, s7\ns_mul_i32 s6, s6, 1280\ns_add_u32 s8, s8, s6")
        e(f"s_mul_i32 s9, s3, 2688\ns_add_u32 s9, s9, {SB}")
        for k in range(3):
            e(f"v_add_u32 v3, {64*k}, v0\nv_mul_u32_u24 v4, 6554, v3\nv_lshrrev_b32 v4, 16, v4\nv_mul_u32_u24 v5, 10, v4\nv_sub_u32 v3, v3, v5\nv_lshlrev_b32 v3, 4, v3")
            e(f"s_movk_i32 s6, 1280\nv_mad_u32_u24 v{FXO+k}, v4, s6, v3\ns_movk_i32 s6, 168\nv_mad_u32_u24 v{FLA+k}, v4, s6, v3\nv_add_u32 v{FLA+k}, s9, v{FLA+k}")
    if i == 10:
        e("ds_read_b32 v8, v2")
        e(f"v_lshrrev_b32 v{VSO}, 1, v0\nv_and_b32 v4, 1, v0\nv_lshlrev_b32 v{VSO}, 12, v{VSO}\nv_lshl_add_u32 v{VSO}, v4, 4, v{VSO}")
        e(f"s_mul_i32 s44, s14, 327680\ns_lshl_b32 s7, s13, 7\ns_add_u32 s44, s44, s7\ns_lshl_b32 s7, s3, 5\ns_add_u32 s44, s44, s7\ns_add_u32 s44, s44, {ST}")
        e("s_waitcnt lgkmcnt(0)\nv_cmp_gt_u32 s[42:43], 4, v8"); lg.clear()
        for l in STL:
            e(l)
            if l.startswith("buffer"): vm.issue("sT")
    if i == 11:
        for k in range(3):
            if k == 2: e("s_mov_b32 exec_hi, 0")
            e(f"buffer_load_dwordx4 {vr(FX+4*k,4)}, v{FXO+k}, s[52:55], s8 offen"); vm.issue("fx")
        e("s_mov_b64 exec, -1")
stG("g2")
chk_eval()
for ml in (1, 2, 3):
    e(f"s_xor_b32 s6, s3, {ml}\ns_mul_i32 s6, s6, 15360\ns_add_u32 s6, s6, {(ml-1)*5120}\nv_add_u32 v{3+ml}, s6, v1")
for ml in (1, 2, 3):
    for dt in range(5):
        e(f"ds_write_b128 v{3+ml}, {vr(A2+(ml*5+dt)*4,4)} offset:{1024*dt}"); lg.issue("red")
signal(); chk_read()
e("s_cmp_lg_u64 s[42:43], 0")
spin_lds(8, 2, "4", after=STL, pre_cmp=False, branch="s_cbranch_scc1")
stG("rd")
e("v_add_u32 v3, s9, v1")
vm.wait_all()
for i in range(3):
    if i == 2: e("s_mov_b32 exec_hi, 0")
    e(f"ds_write_b128 v3, {vr(FS+4*i,4)} offset:{1024*i}"); lg.issue("sw")
e("s_mov_b64 exec, -1")
e("v_lshlrev_b32 v3, 3, v0\nv_add_u32 v3, s9, v3")
for dt in range(5):
    e(f"ds_read_b64_tr_b16 {vr(44+2*dt,2)}, v3 offset:{512*dt}"); lg.issue("str")
chk_eval()
e("s_mul_i32 s6, s3, 15360\nv_add_u32 v4, s6, v1")
RD = 192
for dt in range(5):
    for s_ in range(3):
        e(f"ds_read_b128 {vr(RD+(s_*5+dt)*4,4)}, v4 offset:{5120*s_+1024*dt}"); lg.issue(("rd", dt))
e("v_and_b32 v3, 15, v0\nv_mul_u32_u24 v3, 168, v3\nv_lshrrev_b32 v5, 4, v0\nv_lshl_add_u32 v3, v5, 3, v3\nv_add_u32 v3, s9, v3")
T = 56
for dt in range(5):
    a = A2 + dt*4
    for k in (0, 1):
        e(f"v_lshlrev_b32 v{T+2*k}, 16, v{FB2+2*dt+k}\nv_and_b32 v{T+2*k+1}, 0xffff0000, v{FB2+2*dt+k}")
    lg.wait(("rd", dt))
    for k in (0, 1):
        e(f"v_pk_add_f32 {vr(a+2*k,2)}, {vr(a+2*k,2)}, {vr(RD+dt*4+2*k,2)}")
        e(f"v_pk_add_f32 {vr(T+4+2*k,2)}, {vr(RD+(5+dt)*4+2*k,2)}, {vr(RD+(10+dt)*4+2*k,2)}")
    for k in (0, 1): e(f"v_pk_add_f32 {vr(a+2*k,2)}, {vr(a+2*k,2)}, {vr(T+2*k,2)}")
    for k in (0, 1): e(f"v_pk_add_f32 {vr(a+2*k,2)}, {vr(a+2*k,2)}, {vr(T+4+2*k,2)}")
    for k in range(4): e(f"v_mul_f32 v{T+k}, {f32(-1.4426950408889634)}, v{a+k}")
    for k in range(4): e(f"v_exp_f32 v{T+k}, v{T+k}")
    for k in (0, 1):
        e(f"v_lshlrev_b32 v{T+4+2*k}, 16, v{44+2*dt+k}\nv_and_b32 v{T+5+2*k}, 0xffff0000, v{44+2*dt+k}")
    for k in (0, 1): e(f"v_pk_add_f32 {vr(T+2*k,2)}, {vr(T+2*k,2)}, 1.0 op_sel_hi:[1,0]")
    for k in range(4): e(f"v_rcp_f32 v{T+k}, v{T+k}")
    for k in (0, 1): e(f"v_pk_mul_f32 {vr(a+2*k,2)}, {vr(a+2*k,2)}, {vr(T+4+2*k,2)}")
    for k in (0, 1): e(f"v_pk_mul_f32 {vr(a+2*k,2)}, {vr(a+2*k,2)}, {vr(T+2*k,2)}")
    for k in (0, 1): e(f"v_cvt_pk_bf16_f32 v{T+8+2*dt+k}, v{a+2*k}, v{a+2*k+1}")
    e(f"ds_write_b64 v3, {vr(T+8+2*dt,2)} offset:{32*dt}"); lg.issue("pw")
for k in range(3):
    e(f"ds_read_b64 {vr(RD+4*k,2)}, v{FLA+k}\nds_read_b64 {vr(RD+4*k+2,2)}, v{FLA+k} offset:8"); lg.issue(("pr", k)); lg.issue(("pr", k))
for k in range(3):
    for q in range(4):
        e(f"v_lshlrev_b32 v{T+2*q}, 16, v{FX+4*k+q}\nv_and_b32 v{T+2*q+1}, 0xffff0000, v{FX+4*k+q}")
    lg.wait(("pr", k))
    for q in range(4):
        e(f"v_lshlrev_b32 v{T+8+2*q}, 16, v{RD+4*k+q}\nv_and_b32 v{T+9+2*q}, 0xffff0000, v{RD+4*k+q}")
    for q in range(4): e(f"v_pk_add_f32 {vr(T+2*q,2)}, {vr(T+2*q,2)}, {vr(T+8+2*q,2)}")
    for q in range(4): e(f"v_cvt_pk_bf16_f32 v{RD+16+4*k+q}, v{T+2*q}, v{T+2*q+1}")
    if k == 2: e("s_mov_b32 exec_hi, 0")
    e(f"buffer_store_dwordx4 {vr(RD+16+4*k,4)}, v{FXO+k}, s[68:71], s8 offen")
stG("end")
stG.flush(60, 61, (0, 1, 8))
e("s_endpgm")

e("L_IDLE:")
e("s_waitcnt lgkmcnt(0)")
e("s_barrier")
e("v_mov_b32 v11, 12\nds_write_b32 v9, v11")
srd(52, 16, 2621440); srd(48, 44, WS_SIZE); srd(64, 38, 1280); srd(68, 40, 2621440); srd(72, 42, 256)
gcommon()
g2_setup()
e(f"v_mov_b32 v2, {REL}")
wait_lds(8, 2, "2", sleep=True)
if STAMPS:
    for r in _stG.regs[:4]: e(f"{MT} s[{r}:{r+1}]")
e("s_branch L_G2")

e("L_AUX:")
if OPT.get("cpf", "0") == "1":
    e("s_getpc_b64 s[96:97]")
    e("L_PC:")
    e(f"s_sub_u32 s96, s96, L_PC-{NAME}_kernel\ns_subb_u32 s97, s97, 0")
    e("s_and_b32 s6, s5, 7\ns_lshl_b32 s6, s6, 6\nv_add_u32 v1, s6, v0\nv_lshlrev_b32 v1, 7, v1")
    e(f"v_min_u32 v1, L_LAST-{NAME}_kernel, v1")
    e("s_cmp_lg_u32 s3, 6\ns_cbranch_scc1 L_PC2")
    e("global_load_dword v255, v1, s[96:97]")
    e("L_PC2:")
_stC = Stamper([76,78,80,82,84,86,88,90,92,94])
CSEL = OPT.get("cst", "ka,x,ln,kg,ex,u,cs,cd,st,pub").split(",")
class _C:
    def __call__(self, name):
        if name in CSEL:
            _stC.n = CSEL.index(name); _stC()
    def flush(self, *a):
        _stC.n = 10; _stC.flush(*a)
stC = _C()
zero_cnt(CNT2)
e("s_sub_u32 s13, s3, 4")
e("s_lshl_b32 s14, s4, 5\ns_add_u32 s14, s14, s5")
e("s_mul_i32 s15, s14, 10240")
e("v_lshrrev_b32 v1, 5, v0\ns_lshl_b32 s6, s13, 1\nv_add_u32 v1, s6, v1\nv_and_b32 v2, 31, v0")
e("v_mul_u32_u24 v3, 1280, v1\nv_lshl_add_u32 v3, v2, 3, v3")
e("s_mul_i32 s7, s5, 3\ns_lshl1_add_u32 s8, s5, 16\ns_cmp_lt_u32 s5, 16\ns_cselect_b32 s8, s7, s8\ns_cselect_b32 s7, 3, 2")
e("s_add_u32 s8, s8, s13\ns_mul_i32 s6, s4, 80\ns_add_u32 s8, s8, s6\ns_cmp_ge_u32 s13, s7\ns_cselect_b32 s8, 640, s8")
e("s_lshl_b32 s10, s8, 8\ns_lshl_b32 s11, s8, 1\nv_lshlrev_b32 v12, 2, v0")
e(f"s_mul_i32 s9, s13, {CHSZ}\ns_add_u32 s9, s9, {CH0}")
e(f"v_mov_b32 v14, 0\nv_mov_b32 v15, {REL}\nds_write_b32 v15, v14")
e("s_waitcnt lgkmcnt(0)")
stC("ka")
XS = 20
def x_rows():
    srd(52, 16, 2621440)
    for i in range(5): e(f"buffer_load_dwordx2 {vr(XS+2*i,2)}, v3, s[52:55], s15 offen offset:{256*i}{ntx}")
e("s_cmp_eq_u32 s3, 7\ns_cbranch_scc1 L_A7")
x_rows()
for k, (p, sz) in enumerate(((18, 163840), (20, 163840), (22, 163840), (24, 163840))):
    srd(56+4*k, p, sz)
    e(f"buffer_load_dword v{4+k}, v12, s[{56+4*k}:{59+4*k}], s10 offen{ntp}")
srd(56, 26, 1280); e("buffer_load_ushort v8, v14, s[56:59], s11 offen")
srd(60, 28, 1280); e("buffer_load_ushort v19, v14, s[60:63], s11 offen")
e("s_barrier")
srd(48, 44, WS_SIZE); srd(72, 42, 256)
e("s_waitcnt vmcnt(6)")
e("s_branch L_LN")
e("L_A7:")
srd(48, 44, WS_SIZE); srd(72, 42, 256)
e("s_cmp_lg_u32 s2, 0\ns_cbranch_scc1 L_A1")
e("v_lshlrev_b32 v4, 4, v0")
for r in range(32, 36): e(f"v_mov_b32 v{r}, 0")
for i in range(11):
    e(f"s_mov_b32 s6, {1024*i}")
    e("buffer_store_dwordx4 v[32:35], v4, s[48:51], s6 offen sc1")
e("s_waitcnt vmcnt(0)")
e("v_mov_b32 v32, 1\ns_mov_b64 exec, 1")
e("buffer_store_dword v32, v14, s[72:75], 0 offen sc1")
e("s_mov_b64 exec, -1\ns_waitcnt vmcnt(0)")
e("L_A1:")
x_rows()
srd(56, 36, 2211840)
for i in range(5):
    e(f"v_add_u32 v4, {64*i}, v0\nv_mul_u32_u24 v5, 3277, v4\nv_lshrrev_b32 v5, 16, v5")
    e("v_mul_u32_u24 v6, 20, v5\nv_sub_u32 v6, v4, v6\nv_lshlrev_b32 v6, 4, v6")
    e(f"s_movk_i32 s6, 1280\nv_mad_u32_u24 v{64+i}, v5, s6, v6\ns_movk_i32 s6, 336\nv_mad_u32_u24 v{69+i}, v5, s6, v6\nv_add_u32 v{69+i}, {SB}, v{69+i}")
e(f"s_lshr_b32 s6, s2, 2\ns_mul_i32 s10, s6, 40960\ns_and_b32 s7, s2, 3\ns_mul_i32 s11, s7, 320\ns_add_u32 s10, s10, s11\ns_add_u32 s11, s10, 20480")
for i in range(10): e(f"buffer_load_dwordx4 {vr(128+4*i,4)}, v{64+i%5}, s[56:59], s{10 + i//5} offen{ntw2}")
e("s_barrier")
e("s_waitcnt vmcnt(10)")
e("L_LN:")
if NOAUX == "1": e("s_endpgm")
stC("x")
e(f"v_mul_u32_u24 v16, 1344, v1\nv_lshl_add_u32 v16, v2, 3, v16\nv_add_u32 v16, {SB}, v16")
e(f"v_lshlrev_b32 v17, 3, v1\nv_add_u32 v17, {SST}, v17")
XF = 32
for k in range(10): e(f"v_lshlrev_b32 v{XF+2*k}, 16, v{XS+k}\nv_and_b32 v{XF+2*k+1}, 0xffff0000, v{XS+k}")
e(f"v_add_f32 v52, v{XF}, v{XF+1}\nv_mul_f32 v54, v{XF}, v{XF}\nv_add_f32 v53, v{XF+2}, v{XF+3}\nv_mul_f32 v55, v{XF+1}, v{XF+1}")
e(f"v_fmac_f32 v54, v{XF+2}, v{XF+2}\nv_fmac_f32 v55, v{XF+3}, v{XF+3}")
for k in range(4, 20): e(f"v_add_f32 v{52+(k&1)}, v{52+(k&1)}, v{XF+k}\nv_fmac_f32 v{54+(k&1)}, v{XF+k}, v{XF+k}")
e("v_add_f32 v52, v52, v53\nv_add_f32 v54, v54, v55")
for m in ("quad_perm:[1,0,3,2]", "quad_perm:[2,3,0,1]", "row_half_mirror", "row_mirror"):
    e(f"v_add_f32_dpp v52, v52, v52 {m} row_mask:0xf bank_mask:0xf")
    e(f"v_add_f32_dpp v54, v54, v54 {m} row_mask:0xf bank_mask:0xf")
e("ds_swizzle_b32 v53, v52 offset:0x401F\nds_swizzle_b32 v55, v54 offset:0x401F\ns_waitcnt lgkmcnt(0)")
e("v_add_f32 v52, v52, v53\nv_add_f32 v54, v54, v55")
e(f"v_mul_f32 v52, {f32(1/640)}, v52\nv_mul_f32 v54, {f32(1/640)}, v54")
e("v_fma_f32 v54, -v52, v52, v54\nv_max_f32 v54, 0, v54")
def std_bf16(dst, var):
    rb(dst, var); e(f"v_add_f32 v{dst}, {f32(1e-5)}, v{dst}"); rb(dst, dst); e(f"v_sqrt_f32 v{dst}, v{dst}"); rb(dst, dst)
rb(56, 52); std_bf16(57, 54)
e("v_rcp_f32 v58, v57")
for k in range(20): e(f"v_sub_f32 v{XF+k}, v{XF+k}, v56")
for k in range(10): e(f"v_cvt_pk_bf16_f32 v{XS+k}, v{XF+2*k}, v{XF+2*k+1}")
for k in range(10): e(f"v_lshlrev_b32 v{XF+2*k}, 16, v{XS+k}\nv_and_b32 v{XF+2*k+1}, 0xffff0000, v{XS+k}")
for k in range(20): e(f"v_mul_f32 v{XF+k}, v{XF+k}, v58")
for k in range(10):
    e(f"v_cvt_pk_bf16_f32 v{XS+k}, v{XF+2*k}, v{XF+2*k+1}")
    if k & 1: e(f"ds_write_b64 v16, {vr(XS+k-1,2)} offset:{128*(k-1)}")
e("v_sub_f32 v59, v52, v56\nv_mul_f32 v59, v59, v58\nv_mul_f32 v60, v54, v58\nv_mul_f32 v60, v60, v58")
rb(59, 59); std_bf16(61, 60)
e("v_mul_f32 v62, v57, v61\nv_rcp_f32 v62, v62\nv_fma_f32 v63, v59, v57, v56\nv_mul_f32 v63, v63, v62")
e("s_mov_b32 s0, 1\ns_mov_b32 s1, 1\ns_mov_b64 exec, s[0:1]")
e("ds_write_b64 v17, v[62:63]")
e("s_mov_b64 exec, -1")
e("v_mov_b32 v61, 1\nds_write_b32 v9, v61")
stC("ln")
e("s_cmp_eq_u32 s3, 7\ns_cbranch_scc1 L_S")
e("s_cmp_ge_u32 s8, 640\ns_cbranch_scc1 L_END")
if "k" in EXP: e("s_endpgm")

e("s_waitcnt vmcnt(0)")
stC("par")
e(f"v_lshlrev_b32 v8, 16, v8\nv_mul_f32 v8, {LOG2E}, v8\nv_exp_f32 v8, v8"); rb(8, 8)
LAM, CC = 84, 88
for n in (0, 1):
    up = (lambda d, s: e(f"v_lshlrev_b32 v{d}, 16, v{s}")) if n == 0 else (lambda d, s: e(f"v_and_b32 v{d}, 0xffff0000, v{s}"))
    up(LAM+2*n, 4); up(LAM+2*n+1, 5); up(CC+2*n, 6); up(CC+2*n+1, 7)
for n in (0, 1): e(f"v_mul_f32 v{LAM+2*n}, {LOG2E}, v{LAM+2*n}")
for n in (0, 1): e(f"v_exp_f32 v{LAM+2*n}, v{LAM+2*n}")
e("v_add_f32 v18, v8, v8")
for n in (0, 1): rb(LAM+2*n, LAM+2*n)
for n in (0, 1):
    e(f"v_mul_f32 v{LAM+2*n}, v{LAM+2*n}, v8\nv_mul_f32 v{LAM+2*n+1}, v{LAM+2*n+1}, v8")
    e(f"v_mul_f32 v{CC+2*n}, v{CC+2*n}, v18\nv_mul_f32 v{CC+2*n+1}, v{CC+2*n+1}, v18")
for n in (0, 1):
    e(f"v_mul_f32 v{LAM+2*n}, {f32(-1.4426950408889634)}, v{LAM+2*n}\nv_mul_f32 v{LAM+2*n+1}, {INV2PI}, v{LAM+2*n+1}")
PS = [2.0, 32.0, 1.0, 2048.0, 8.0, 128.0, 512.0, 516.0]
EV = {p: 192 + 4*i for i, p in enumerate(PS)}
for grp in (PS[:4], PS[4:]):
    it = [(p, n) for p in grp for n in (0, 1)]
    tm = {k: 64 + 2*i for i, k in enumerate(it)}
    for (p, n) in it:
        if p == 1.0: e(f"v_exp_f32 v{tm[p,n]}, v{LAM+2*n}\nv_fract_f32 v{tm[p,n]+1}, v{LAM+2*n+1}")
        else: e(f"v_mul_f32 v{tm[p,n]}, {f32(p)}, v{LAM+2*n}\nv_mul_f32 v{tm[p,n]+1}, {f32(p)}, v{LAM+2*n+1}")
    for (p, n) in it:
        if p != 1.0: e(f"v_exp_f32 v{tm[p,n]}, v{tm[p,n]}\nv_fract_f32 v{tm[p,n]+1}, v{tm[p,n]+1}")
    for (p, n) in it: e(f"v_cos_f32 v{EV[p]+2*n}, v{tm[p,n]+1}\nv_sin_f32 v{EV[p]+2*n+1}, v{tm[p,n]+1}")
    for (p, n) in it:
        neg = "-" if p in (2.0, 8.0) else ""
        e(f"v_mul_f32 v{EV[p]+2*n}, v{EV[p]+2*n}, v{tm[p,n]}")
        e(f"v_mul_f32 v{EV[p]+2*n+1}, {neg}v{EV[p]+2*n+1}, v{tm[p,n]}")
g_ = [(EV[p]+2*n, CC+2*n, 64+2*i+n) for i, p in enumerate((1.0, 2048.0, 512.0, 516.0)) for n in (0, 1)]
for (z, m, t) in g_: e(f"v_mul_f32 v{t}, v{z+1}, v{m+1}")
for (z, m, t) in g_: e(f"v_mul_f32 v{z+1}, v{z+1}, v{m}")
for (z, m, t) in g_: e(f"v_fmac_f32 v{z+1}, v{z}, v{m+1}")
for (z, m, t) in g_: e(f"v_fma_f32 v{z}, v{z}, v{m}, -v{t}")
e("v_and_b32 v10, 15, v0\nv_lshrrev_b32 v11, 4, v0")
YC = 80
e(f"v_lshlrev_b32 v12, 3, v0\ns_add_u32 s6, s9, {TAB}\nv_add_u32 v12, s6, v12")
e(f"v_mul_u32_u24 v14, {TPI}, v10\nv_lshl_add_u32 v14, v11, 4, v14\nv_add_u32 v14, s6, v14")
KT = [112, 116, 120]
def chain_loop(ch, n, row0):
    L = e.lab("KL")
    UN = min(n, int(OPT.get("kun", "4")))
    e(f"s_mov_b32 s10, {n//UN}\nv_add_u32 v13, {row0*TPI}, v12")
    e(f"{L}:")
    for u in range(UN):
        for i, (z, m, off) in enumerate(ch):
            e(f"v_cvt_pk_bf16_f32 v{64+4*(u&1)+2*i}, v{z}, v{z+1}\nv_cvt_pk_bf16_f32 v{65+4*(u&1)+2*i}, v{z+2}, v{z+3}")
        g = [(z+2*k, m+2*k, 72+2*i+k) for i, (z, m, off) in enumerate(ch) for k in (0, 1)]
        for (z, m, t) in g: e(f"v_mul_f32 v{t}, v{z+1}, v{m+1}")
        for i, (z, m, off) in enumerate(ch): e(f"ds_write_b64 v13, {vr(64+4*(u&1)+2*i,2)} offset:{(off+u)*TPI}")
        for (z, m, t) in g: e(f"v_mul_f32 v{z+1}, v{z+1}, v{m}")
        if u == UN-1 and n > UN: e(f"v_add_u32 v13, {UN*TPI}, v13")
        for (z, m, t) in g: e(f"v_fmac_f32 v{z+1}, v{z}, v{m+1}")
        if u == UN-1 and n > UN: e("s_sub_u32 s10, s10, 1\ns_cmp_lg_u32 s10, 0")
        for (z, m, t) in g: e(f"v_fma_f32 v{z}, v{z}, v{m}, -v{t}")
    if n > UN: e(f"s_cbranch_scc1 {L}")
def y_init(): e(f"v_mov_b32 v{YC}, 1.0\nv_mov_b32 v{YC+1}, 0\nv_mov_b32 v{YC+2}, 1.0\nv_mov_b32 v{YC+3}, 0")
FY, FA = 128, 160
def frag_reads(dst, row0):
    for s_ in range(8): e(f"ds_read_b128 {vr(dst+4*s_,4)}, v14 offset:{64*s_+row0*TPI}")
def k_mfma(k):
    for s_ in range(8):
        e(f"s_waitcnt lgkmcnt({7-s_})")
        e(f"v_mfma_f32_16x16x32_bf16 {vr(KT[k],4)}, {vr(FA+4*s_,4)}, {vr(FY+4*s_,4)}, {vr(KT[k],4) if s_ else 0}")
y_init()
stC("k0")
chain_loop([(YC, EV[2.0], 0), (CC, EV[32.0], 16)], 16, 0)
stC("k1")
e("s_waitcnt lgkmcnt(0)")
frag_reads(FY, 0); frag_reads(FA, 16)
e(f"v_cvt_pk_bf16_f32 v76, v{EV[2048.0]}, v{EV[2048.0]+1}\nv_cvt_pk_bf16_f32 v77, v{EV[2048.0]+2}, v{EV[2048.0]+3}")
k_mfma(0)
e(f"ds_write_b64 v12, v[76:77] offset:{24*TPI}")
stC("k2")
chain_loop([(EV[1.0], EV[32.0], 0)], 8, 16)
stC("k3")
e("s_waitcnt lgkmcnt(0)")
frag_reads(FA, 16)
y_init()
k_mfma(1)
stC("k4")
chain_loop([(YC, EV[8.0], 0), (EV[512.0], EV[128.0], 16)], 16, 0)
stC("k5")
chain_loop([(EV[516.0], EV[128.0], 0)], 4, 28)
e("s_waitcnt lgkmcnt(0)")
frag_reads(FY, 0); frag_reads(FA, 16)
e(f"s_add_u32 s10, s9, {TBOFF}")
e("v_lshlrev_b32 v20, 2, v10\nv_lshl_add_u32 v20, v11, 8, v20\nv_add_u32 v20, s10, v20")
e("v_lshlrev_b32 v21, 1, v10\nv_lshl_add_u32 v21, v11, 7, v21\nv_add_u32 v21, s10, v21")
e("v_lshlrev_b32 v22, 2, v10\nv_lshrrev_b32 v23, 1, v11\nv_lshl_add_u32 v22, v23, 1, v22\nv_add_u32 v22, s10, v22")
for r in range(4): e(f"v_cvt_pk_bf16_f32 v{24+r}, v{KT[0]+r}, v{KT[1]+r}")
k_mfma(2)
e("s_mov_b32 exec_hi, 0")
for r in range(4): e(f"ds_write_b32 v20, v{24+r} offset:{64*r}")
e("s_mov_b32 exec_lo, 0\ns_mov_b32 exec_hi, -1")
for r in range(4): e(f"ds_write_b16 v21, v{24+r} offset:{256+32*r}")
e("s_mov_b32 exec_hi, 1")
e(f"ds_write_b16_d16_hi v21, v24 offset:{1280-256}")
e("s_mov_b64 exec, -1")
for r in range(4): e(f"v_cvt_pk_bf16_f32 v{32+r}, v{KT[2]+r}, v{KT[2]+r}")
e("s_mov_b32 exec_lo, 0xffff\ns_mov_b32 exec_hi, 0xffff0000")
for r in range(4): e(f"ds_write_b16 v22, v{32+r} offset:{768+64*r}")
e("s_mov_b32 exec_lo, 0xffff0000\ns_mov_b32 exec_hi, 0xffff")
for r in range(4): e(f"ds_write_b16 v21, v{32+r} offset:{896+32*r}")
e("s_mov_b64 exec, -1")
stC("kg")
UR = 128
e(f"v_lshlrev_b32 v16, 8, v11\nv_lshl_add_u32 v16, v10, 2, v16\nv_add_u32 v16, {CNT}, v16")
UL = e

e("v_lshlrev_b32 v24, 1, v0\nv_sub_u32 v22, 2047, v24\nv_sub_u32 v23, 2046, v24")
e("v_cvt_f32_i32 v22, v22\nv_cvt_f32_i32 v23, v23")
e(f"v_lshlrev_b32 v21, 2, v0\ns_add_u32 s6, s9, {KOFF-12}\nv_add_u32 v21, s6, v21")
e(f"s_add_u32 s6, s9, {TBOFF}\ns_sub_u32 s7, s6, {2*(0x4300-128)}\nv_mov_b32 v26, s7")
e(f"v_mov_b32 v30, {f32(-128.0)}")
e("v_lshlrev_b32 v27, 1, v24\nv_sub_u32 v27, s6, v27\nv_mov_b32 v28, 0")
def exp_rounds(n, lin=False):
    for k in range(n):
        t = 32 + 4*k
        if lin and k == n-1:
            e(f"ds_read_u16 v{t+1}, v27 offset:254\nds_read_u16 v{t+2}, v27 offset:252")
            continue
        e(f"v_cvt_pk_bf16_f32 v{t}, v22, v23")
        e("v_add_f32 v22, v22, v30\nv_add_f32 v23, v23, v30")
        e(f"v_mad_u32_u16 v{t+1}, v{t}, 2, v26")
        e(f"v_mad_u32_u16 v{t+2}, v{t}, 2, v26 op_sel:[1,0,0,0]")
        e(f"ds_read_u16 v{t+1}, v{t+1}\nds_read_u16 v{t+2}, v{t+2}")
    for k in range(n):
        t = 32 + 4*k
        e(f"s_waitcnt lgkmcnt({min(15, 2*(n-1-k) + 4*k)})")
        e(f"v_lshl_or_b32 v{t}, v{t+2}, 16, v{t+1}")
        for c in range(4): e(f"ds_write_b32 v21, v{t} offset:{c*(KCP+4) + 256*k}")
e("s_mov_b32 s10, 3")
e("L_EXP:")
exp_rounds(4)
e("v_add_u32 v21, 1024, v21")
e("s_sub_u32 s10, s10, 1\ns_cmp_lg_u32 s10, 0\ns_waitcnt lgkmcnt(0)\ns_cbranch_scc1 L_EXP")
exp_rounds(4, lin=True)
e("s_mov_b64 exec, 0x7fff")
for c in range(4): e(f"ds_write_b32 v21, v28 offset:{c*(KCP+4) + 1024}")
e("s_mov_b64 exec, -1")
e("v_mov_b32 v28, 2\nds_write_b32 v9, v28")
stC("ex")
e(f"s_mul_i32 s11, s13, {USZ}\ns_add_u32 s11, s11, {UB0}")
e(f"v_mov_b32 v18, {CNT2+768}")
stC("u")
e("v_lshrrev_b32 v12, 1, v10\nv_lshlrev_b32 v12, 6, v12\nv_lshl_add_u32 v12, v11, 4, v12")
e(f"v_and_b32 v13, 1, v10\nv_xor_b32 v13, 1, v13\nv_mul_u32_u24 v13, {U1OFF}, v13\nv_add_u32 v12, v12, v13")
e(f"s_add_u32 s6, s11, 448\nv_add_u32 v12, s6, v12")
e(f"v_and_b32 v13, 3, v10\nv_mul_u32_u24 v13, {KCP}, v13\nv_lshrrev_b32 v14, 2, v10\nv_sub_u32 v14, v11, v14\nv_lshl_add_u32 v13, v14, 4, v13")
e(f"s_add_u32 s6, s9, {KOFF+4080-3584}\nv_add_u32 v13, s6, v13")
CA, BU, BK = 20, [52, 116], [84, 148]
for r in range(CA, CA+32): e(f"v_mov_b32 v{r}, 0")
e(f"v_subrev_u32 v15, {CNT2-CNT}, v9")
e("v_lshlrev_b32 v3, 4, v0\nv_add_u32 v3, s11, v3")
wait_lds(17, 18, "3", sleep=True)
for i in range(4):
    e(f"ds_read_b32 v{115+5*i}, v3 offset:{444+1024*i}")
    e(f"ds_read_b128 {vr(136+4*i,4)}, v3 offset:{448+1024*i}")
for i in range(4):
    e(f"s_waitcnt lgkmcnt({6-2*i+i})")
    e(f"v_alignbit_b32 v{152+4*i}, v{136+4*i}, v{115+5*i}, 16")
    for k in (1, 2, 3): e(f"v_alignbit_b32 v{152+4*i+k}, v{136+4*i+k}, v{136+4*i+k-1}, 16")
    e(f"ds_write_b128 v3, {vr(152+4*i,4)} offset:{U1OFF+448+1024*i}")
e("s_waitcnt lgkmcnt(0)")
def conv_reads(b):
    l = []
    for t in range(8):
        l.append(f"ds_read_b128 {vr(BU[b]+4*t,4)}, v12 offset:{512*t}")
        l.append(f"ds_read_b128 {vr(BK[b]+4*t,4)}, v13 offset:{512*(7-t)}")
    l.append("v_subrev_u32 v12, 64, v12\nv_subrev_u32 v13, 64, v13")
    return l
for l in conv_reads(0): e(l)
if OPT.get("gate", "1") == "1": wait_lds(17, 15, "12", sleep=True)
e(f"s_setprio {OPT.get('cprio', '3')}")
stC("cs")
e("s_mov_b32 s10, 4")
e("L_CV:")
for b in (0, 1):
    e("s_waitcnt lgkmcnt(0)")
    rd = conv_reads(1-b)
    n = 0
    for s_ in range(8):
        for t in range(8 - s_):
            a = CA + 4*(s_+t)
            e(f"v_mfma_f32_16x16x32_bf16 {vr(a,4)}, {vr(BU[b]+4*t,4)}, {vr(BK[b]+4*s_,4)}, {vr(a,4)}")
            if n < len(rd): e(rd[n])
            n += 1
e("s_sub_u32 s10, s10, 1\ns_cmp_lg_u32 s10, 0\ns_cbranch_scc1 L_CV")
stC("cd")
e(f"v_lshlrev_b32 v2, 7, v11\nv_lshl_add_u32 v2, v10, 2, v2\nv_add_u32 v3, s11, v2\ns_add_u32 s6, s9, {KOFF}\nv_add_u32 v2, s6, v2")
e("v_lshlrev_b32 v4, 4, v0\nv_add_u32 v5, s6, v4\nv_lshlrev_b32 v19, 16, v19")
e("s_waitcnt lgkmcnt(0)")
for k in range(16): e(f"ds_read_b32 v{52+k}, v3 offset:{448+512*(k//2)+64*(k%2)}")
e(f"s_lshl_b32 s6, s8, 12\ns_add_u32 s6, s6, {ST}")
for k in range(16):
    if k % 4 == 0: e(f"s_waitcnt lgkmcnt({min(15, 12-k+k)})")
    e(f"v_lshlrev_b32 v{68+2*(k%2)}, 16, v{52+k}\nv_and_b32 v{69+2*(k%2)}, 0xffff0000, v{52+k}")
    e(f"v_fmac_f32 v{CA+2*k}, v{68+2*(k%2)}, v19\nv_fmac_f32 v{CA+2*k+1}, v{69+2*(k%2)}, v19")
    e(f"v_cvt_pk_bf16_f32 v{52+k}, v{CA+2*k}, v{CA+2*k+1}")
    e(f"ds_write_b32 v2, v{52+k} offset:{512*(k//2)+64*(k%2)}")
for i in range(4): e(f"ds_read_b128 {vr(72+4*i,4)}, v5 offset:{1024*i}")
for i in range(4):
    e(f"s_waitcnt lgkmcnt({3-i})")
    e(f"buffer_store_dwordx4 {vr(72+4*i,4)}, v4, s[48:51], s6 offen offset:{1024*i} sc1")
stC("st")
e("s_waitcnt vmcnt(0)")
e(f"s_and_b32 s6, s8, 3\ns_lshl2_add_u32 s6, s4, s6\ns_lshl_b32 s6, s6, 7\ns_add_u32 s6, s6, {FL_C}")
e("v_mov_b32 v2, 0\nv_mov_b32 v3, 1\ns_mov_b64 exec, 1")
e("buffer_atomic_add v3, v2, s[48:51], s6 offen sc1")
stC("pub")
stC.flush(4, 5, (4, 9, 7))
e("s_endpgm")

e("L_S:")
stS = Stamper([82,84,86,88,90,92,94,96])
e(f"v_lshrrev_b32 v1, 4, v0\nv_lshlrev_b32 v16, 8, v1\nv_and_b32 v17, 15, v0\nv_lshl_add_u32 v16, v17, 2, v16\nv_add_u32 v16, {CNT2}, v16")
e(f"v_bfe_u32 v13, v0, 2, 2\nv_mul_u32_u24 v13, 1344, v13\nv_lshl_add_u32 v13, v1, 5, v13")
e(f"v_and_b32 v2, 3, v0\nv_lshl_add_u32 v13, v2, 3, v13\nv_add_u32 v13, {SB}, v13")
e(f"v_lshlrev_b32 v4, 4, v0\nv_lshlrev_b32 v5, 3, v0\nv_add_u32 v6, {SST}, v5")
e("buffer_load_dword v7, v14, s[72:75], 0 offen sc1")
wait_lds(17, 16, "1")
e("s_mov_b64 exec, 0xff\nds_read_b64 v[20:21], v6\ns_mov_b64 exec, -1")
for i in range(10):
    e(f"ds_read_b64_tr_b16 {vr(80+4*i,2)}, v13 offset:{128*i}")
    e(f"ds_read_b64_tr_b16 {vr(82+4*i,2)}, v13 offset:{128*i+4*1344}")
e(f"s_lshl_b32 s6, s14, 6\ns_add_u32 s6, s6, {STATS}")
e("s_waitcnt vmcnt(0) lgkmcnt(15)\ns_mov_b64 exec, 0xff")
e("buffer_store_dwordx2 v[20:21], v5, s[48:51], s6 offen sc1")
e("s_mov_b64 exec, -1")
stS()
e(f"v_lshrrev_b32 v1, 2, v0\nv_mul_u32_u24 v1, 336, v1\nv_lshl_add_u32 v1, v2, 3, v1\nv_add_u32 v1, {SB}, v1")
e(f"s_lshr_b32 s6, s2, 2\ns_mul_i32 s10, s6, 5120\ns_and_b32 s7, s2, 3\ns_mul_i32 s7, s7, {2*276480}\ns_add_u32 s10, s10, s7\ns_add_u32 s10, s10, {W2F}")
e(f"s_cmp_ge_u32 s2, 216\ns_cselect_b32 s10, {OOB}, s10\ns_add_u32 s15, s15, {XNB}")
e("s_waitcnt lgkmcnt(0)")
for i in range(10): e(f"ds_write_b128 v{69+i%5}, {vr(128+4*i,4)} offset:{(i//5)*16*336}")
e("s_waitcnt lgkmcnt(0)")
for dt in range(10):
    e(f"ds_read_b64_tr_b16 {vr(128+4*dt,2)}, v1 offset:{32*dt}")
    e(f"ds_read_b64_tr_b16 {vr(130+4*dt,2)}, v1 offset:{32*dt+16*336}")
def relay(val): e(f"v_mov_b32 v8, {val}\nds_write_b32 v15, v8")
SLP = OPT.get("sleep", "1")
def vpoll(load, chk, target, sl, first=True):
    L = e.lab("AG")
    e(f"s_mov_b32 s12, {SPIN_MAX}")
    if not first: e(f"s_branch {L}_c")
    e(f"{L}:")
    e(load); e("s_waitcnt vmcnt(0)")
    e(f"{L}_c:")
    e(f"v_cmp_gt_u32 vcc, {target}, v{chk}\ns_cbranch_vccz {L}_d\ns_sleep {sl}\ns_sub_u32 s12, s12, 1\ns_cbranch_scc0 {L}")
    e(f"{L}_d:")
def arrive(so): e(f"v_mov_b32 v8, 1\ns_mov_b64 exec, 1\nbuffer_atomic_add v8, v14, s[48:51], {so} offen sc1\ns_mov_b64 exec, -1")
vpoll("buffer_load_dword v7, v14, s[72:75], 0 offen sc1", 7, 1, 8, first=False)
e("s_waitcnt vmcnt(0)")
e(f"s_lshr_b32 s6, s14, 4\ns_lshl_b32 s6, s6, 7\ns_add_u32 s6, s6, {FL_T}"); arrive("s6")
stS()
e("s_waitcnt lgkmcnt(0)")
for i in range(10):
    if i in (4, 8): e("s_add_u32 s15, s15, 4096")
    e(f"buffer_store_dwordx4 {vr(80+4*i,4)}, v4, s[48:51], s15 offen offset:{1024*(i%4)} sc1")
for half in (0, 1):
    e(f"s_add_u32 s6, s10, {half*276480}\ns_add_u32 s7, s6, 4096")
    for d5 in range(5):
        r = 128 + (half*5+d5)*4
        if d5 < 4: e(f"buffer_store_dwordx4 {vr(r,4)}, v4, s[48:51], s6 offen offset:{1024*d5} sc1")
        else: e(f"buffer_store_dwordx4 {vr(r,4)}, v4, s[48:51], s7 offen sc1")
e(f"v_add_u32 v18, {CNT-CNT2}, v16\nv_and_b32 v5, 7, v0\nv_lshlrev_b32 v5, 7, v5")
e("s_waitcnt vmcnt(0)")
e("s_lshl_b32 s6, s4, 7"); arrive("s6")
stS()
e("s_cmp_lt_u32 s5, 4\ns_cbranch_scc1 L_S2")
e(f"s_sub_u32 s6, s5, 4\ns_mul_i32 s6, s6, 37\ns_lshr_b32 s6, s6, 8\ns_lshr_b32 s7, s4, 1\ns_lshl2_add_u32 s6, s7, s6\ns_lshl_b32 s6, s6, 7\ns_add_u32 s6, s6, {FL_T}")
e("s_add_u32 s40, s44, s6\ns_addc_u32 s41, s45, 0")
wait_lds(17, 18, OPT.get("tpollat", "7"), sleep=True)
spoll(40, [0], 16, 4); relay(1)
wait_lds(17, 18, OPT.get("apollat", "10"), sleep=True)
e("s_branch L_S3")
e("L_S2:")
e(f"v_mov_b32 v16, {CNT2}")
wait_lds(17, 16, "2", sleep=True)
e("L_S3:")
stS()
vpoll("buffer_load_dword v7, v5, s[48:51], 0 offen sc1", 7, 32, OPT.get("ssleep", "4")); relay(2)
stS()
e("s_mul_i32 s7, s5, 3\ns_lshl1_add_u32 s8, s5, 16\ns_cmp_lt_u32 s5, 16\ns_cselect_b32 s8, s7, s8\ns_mul_i32 s6, s4, 80\ns_add_u32 s8, s8, s6")
e(f"v_lshrrev_b32 v2, 2, v0\nv_and_b32 v6, 3, v0\nv_mul_u32_u24 v3, 10240, v2\nv_lshl_add_u32 v3, v6, 4, v3")
e(f"s_lshl_b32 s6, s8, 4\ns_add_u32 s6, s6, {XNB}")
for r in range(16):
    e(f"buffer_load_dwordx4 {vr(128+4*r,4)}, v3, s[48:51], s6 offen sc1")
    if r < 15: e("s_add_u32 s6, s6, 163840")
e(f"v_mul_u32_u24 v6, {USZ}, v6\nv_lshl_add_u32 v2, v2, 4, v6\nv_add_u32 v2, {UB0}, v2")
for r in range(20, 24): e(f"v_mov_b32 v{r}, 0")
e(f"v_add_u32 v3, {UB0}, v4")
wait_lds(17, 18, "11", sleep=True)
e("s_mov_b64 exec, 0xfffffff")
for ch in range(3): e(f"ds_write_b128 v3, v[20:23] offset:{ch*USZ}\nds_write_b128 v3, v[20:23] offset:{ch*USZ+U1OFF}")
e("s_mov_b32 exec_lo, 0x77777777\ns_mov_b32 exec_hi, 0x77777777")
for r in range(16):
    e(f"s_waitcnt vmcnt({15-r})")
    e(f"ds_write_b128 v2, {vr(128+4*r,4)} offset:{448+256*r}")
e("s_mov_b64 exec, -1")
e("v_mov_b32 v8, 3\nds_write_b32 v9, v8")
g2_ids()
e(f"s_mul_i32 s10, s14, 276480\ns_add_u32 s10, s10, {W2F}")
e("v_add_u32 v5, 4096, v4")
for k in range(3):
    e(f"s_add_u32 s6, s15, {5+k}\ns_cmp_ge_u32 s6, 14\ns_cselect_b32 s7, 14, 0\ns_sub_u32 s6, s6, s7\ns_cmp_ge_u32 s6, 14\ns_cselect_b32 s7, 14, 0\ns_sub_u32 s6, s6, s7\ns_lshl_b32 s6, s6, 2")
    for w in range(4):
        e(f"s_add_u32 s7, s6, {w}\ns_mul_i32 s0, s7, 5120\ns_add_u32 s0, s0, s10\ns_cmp_ge_u32 s7, 54\ns_cselect_b32 s0, {OOB}, s0\ns_mov_b32 m0, {(w*3+k)*5120}\ns_nop 0")
        for dt in range(4): e(f"buffer_load_dwordx4 v4, s[48:51], s0 offen offset:{1024*dt} sc1 lds")
        e(f"s_mov_b32 m0, {(w*3+k)*5120+4096}\ns_nop 0\nbuffer_load_dwordx4 v5, s[48:51], s0 offen sc1 lds")
        e(f"s_waitcnt vmcnt({OPT.get('pfd', '30')})")
stS()
e("s_waitcnt vmcnt(0)"); relay(3)
stS()
wait_lds(17, 18, "13", sleep=True)
e(f"s_lshl_b32 s6, s14, 9\ns_add_u32 s6, s6, {FL_C}\ns_add_u32 s40, s44, s6\ns_addc_u32 s41, s45, 0")
if "k" not in EXP: spoll(40, [0, 128, 256, 384], 20, OPT.get("csleep", "4"))
relay(4)
stS()
stS.regs = [76,78,80] + stS.regs; stS.n += 3
stS.flush(8, 9)
e("L_END:")
e("s_endpgm")
for l in tail[:-1]: e(l)
e("L_LAST:")
e(tail[-1])
if "P" in EXP:
    for c_ in e.I:
        if c_.mn == "buffer_store_dwordx4" and ("v4, s[48:51]" in c_.text): c_.text = c_.text.replace(" sc1", "")
nn = e.fix()

hdr = open("cdna_kernels/" + NAME + ".s.ref").read().split("; Override")[0]
s = hdr + f"; @launch grid=(256,1,1) block=(512,1,1) lds={LDS_TOTAL}\n"
s += f""".amdgcn_target "amdgcn-amd-amdhsa--gfx950"
.text
.globl {NAME}_kernel
.p2align 8
.type {NAME}_kernel,@function
{NAME}_kernel:
"""
s += e.text()
s += f""".section .rodata,"a"
.p2align 6
.amdhsa_kernel {NAME}_kernel
  .amdhsa_next_free_vgpr 256
  .amdhsa_next_free_sgpr 102
  .amdhsa_accum_offset 256
  .amdhsa_group_segment_fixed_size 0
  .amdhsa_kernarg_size 120
  .amdhsa_user_sgpr_count 2
  .amdhsa_user_sgpr_kernarg_segment_ptr 1
  .amdhsa_system_sgpr_workgroup_id_x 1
.end_amdhsa_kernel
"""
open(OUT, "w").write(s)
print("instrs", sum(1 for c in e.I if c.cls), "nops inserted", nn, "lds", LDS_TOTAL)
```

```python
import sys, struct
from emit import Em, Q
NAME = "recurrent_scan__ssm_conv_s4d__mixer_channel_mlp__prompt"
DBGST = "--dbg" in sys.argv
STAMPS = "--stamps" in sys.argv or DBGST
OPT = dict(a[2:].split("=") for a in sys.argv[1:] if a.startswith("--") and "=" in a)
OUT = [a for a in sys.argv[1:] if not a.startswith("--")]
OUT = OUT[0] if OUT else "k.s"
NOAUX = OPT.get("noaux", "0")
EXP = OPT.get("exp", "")
OSP = {"": "", "sc1": " sc1", "nt": " nt", "sc01": " sc0 sc1", "sc1nt": " sc1 nt"}[OPT.get("osp", "")]
NT = OPT.get("nt", "")
ntw2 = " nt" if "w" in NT else ""; ntp = " nt" if "p" in NT else ""; ntx = " nt" if "x" in NT else ""; ntg = " nt" if "g" in NT else ""
MT = "s_memtime" if "--cyc" in sys.argv else "s_memrealtime"

FS_ = int(OPT.get("fs", "128"))
FLB = 0x2C0000 if FS_ > 128 else 0
FL_A, FL_H, FL_C, FL_T, FL_E = [FLB + FS_*k for k in (0, 8, 40, 72, 88)]
STATS = 0x4000
XNB = 0x20000
WE = 0x2B0000
W2F = 0x300000
HF = 0x600000
ST = 0xD00000
STAMP = 0xFC0000
WS_SIZE = 0x1000000
OOB = 0x20000000
KSTEP = 8320
XST = 8 * KSTEP
CH0 = XST + 24576
CHSZ = 18432
SB = CH0 + 3 * CHSZ
CNT = SB + 10752
CNT2 = CNT + 1024
SST = CNT2 + 1024
REL = SST + 256
LDS_TOTAL = REL + 64
assert LDS_TOTAL <= 163840
UB0, USZ, U1OFF = 61440, 9152, 4576
assert UB0 + 3*USZ <= CH0
KOFF, KCP = 1792, 4160
TBOFF, TAB, TPI = 64, 1536, 528
SPIN_MAX = 8192
LOG2E = 0x3fb8aa3b
INV2PI = 0x3e22f983

e = Em()
tail = []
def f32(x): return "0x%08x" % struct.unpack("<I", struct.pack("<f", x))[0]
def srd(r, ptr, size):
    e(f"s_mov_b32 s{r}, s{ptr}\ns_mov_b32 s{r+1}, s{ptr+1}\ns_mov_b32 s{r+2}, {size}\ns_mov_b32 s{r+3}, 0x20000")
def vr(a, n): return f"v[{a}:{a+n-1}]"

class Stamper:
    def __init__(self, regs): self.regs = regs; self.n = 0
    def __call__(self):
        if not STAMPS: return
        r = self.regs[self.n]; self.n += 1
        e(f"{MT} s[{r}:{r+1}]")
    def flush(self, v0, v1, dbg=None):
        if not STAMPS: return
        e("s_waitcnt lgkmcnt(0)")
        if DBGST:
            if dbg is None: return
            wave, off, n = dbg
            L = e.lab("NODBG")
            e(f"s_cmp_lg_u32 s2, 100\ns_cbranch_scc1 {L}\ns_cmp_lg_u32 s3, {wave}\ns_cbranch_scc1 {L}")
            e(f"v_mov_b32 v{v1}, 0\ns_mov_b64 exec, 1")
            for i, r in enumerate(self.regs[:n]):
                e(f"s_sub_u32 s{r}, s{r}, s46\nv_mov_b32 v{v0}, s{r}")
                e(f"buffer_store_dword v{v0}, v{v1}, s[72:75], 0 offen offset:{4*(off+i)}")
                e("s_nop 0")
            e("s_waitcnt vmcnt(0)")
            e(f"{L}:")
            return
        e("s_lshl_b32 s6, s2, 3\ns_add_u32 s6, s6, s3\ns_lshl_b32 s6, s6, 6")
        e(f"s_add_u32 s6, s6, {STAMP}")
        e(f"v_mov_b32 v{v1}, 0")
        e("s_mov_b64 exec, 1")
        for i, r in enumerate([46] + self.regs[:self.n]):
            e(f"v_mov_b32 v{v0}, s{r}")
            e(f"buffer_store_dword v{v0}, v{v1}, s[48:51], s6 offen offset:{4*i}")
            e("s_nop 0")
        e("s_waitcnt vmcnt(0)")

def spin_lds(vchk, vaddr, val, sleep=False, after=(), pre_cmp=True, branch="s_cbranch_vccnz"):
    if NOAUX != "0" and not val.startswith("v"): return
    L = e.lab("SPIN"); B = e.lab("BACK")
    if pre_cmp: e(f"v_cmp_gt_u32 vcc, {val}, v{vchk}")
    e(f"{branch} {L}")
    e(f"{B}:")
    D = f"{L}_d" if after else B
    tail.extend([f"{L}:", f"s_mov_b32 s12, {SPIN_MAX*16}", f"{L}_a:"] + (["s_sleep 1"] if sleep else []) +
                [f"ds_read_b32 v{vchk}, v{vaddr}", "s_waitcnt lgkmcnt(0)",
                 f"v_cmp_gt_u32 vcc, {val}, v{vchk}", f"s_cbranch_vccz {D}", "s_sub_u32 s12, s12, 1", f"s_cbranch_scc0 {L}_a"] +
                ([f"{D}:"] + list(after) if after else []) + [f"s_branch {B}"])
def wait_lds(vchk, vaddr, val, sleep=False):
    e(f"ds_read_b32 v{vchk}, v{vaddr}\ns_waitcnt lgkmcnt(0)")
    spin_lds(vchk, vaddr, val, sleep)
def spoll(base, offs, target, sl, r0=16):
    if NOAUX != "0": return
    L = e.lab("AG")
    e(f"s_mov_b32 s12, {SPIN_MAX}")
    e(f"{L}:")
    for k, o in enumerate(offs): e(f"s_load_dword s{r0+k}, s[{base}:{base+1}], {o} glc")
    e("s_waitcnt lgkmcnt(0)")
    for k in range(1, len(offs)): e(f"s_min_u32 s{r0}, s{r0}, s{r0+k}")
    e(f"s_cmp_ge_u32 s{r0}, {target}\ns_cbranch_scc1 {L}_d\ns_sleep {sl}\ns_sub_u32 s12, s12, 1\ns_cbranch_scc0 {L}")
    e(f"{L}_d:")
def rb(dst, src):
    e(f"v_cvt_pk_bf16_f32 v{dst}, v{src}, v{src}\nv_and_b32 v{dst}, 0xffff0000, v{dst}")
def zero_cnt(base):
    e(f"s_and_b32 s6, s3, 3\ns_lshl_b32 s6, s6, 8\ns_add_u32 s6, s6, {base}")
    e("v_lshlrev_b32 v9, 2, v0\nv_add_u32 v9, s6, v9\nv_mov_b32 v11, 0")
    e("ds_write_b32 v9, v11")

e("s_cmp_ge_u32 s2, 256")
e("s_cbranch_scc1 L_END")
if STAMPS: e(f"{MT} s[46:47]")
e("s_load_dwordx16 s[16:31], s[0:1], 0")
e("s_load_dwordx8 s[32:39], s[0:1], 64")
e("s_load_dwordx4 s[40:43], s[0:1], 96")
e("s_load_dwordx2 s[44:45], s[0:1], 112")
e("v_lshrrev_b32 v1, 6, v0")
e("v_and_b32 v0, 63, v0")
e("v_readfirstlane_b32 s3, v1")
e("s_and_b32 s4, s2, 7")
e("s_lshr_b32 s5, s2, 3")
if OPT.get("idlelast", "1") == "1": e("s_add_u32 s5, s5, 4\ns_and_b32 s5, s5, 31")
e("s_cmp_ge_u32 s3, 4")
e("s_cbranch_scc1 L_AUX")

def chan_id(cw):
    e("s_mul_i32 s7, s5, 3\ns_lshl1_add_u32 s8, s5, 16\ns_cmp_lt_u32 s5, 16\ns_cselect_b32 s8, s7, s8\ns_cselect_b32 s7, 3, 2")
    e(f"s_add_u32 s8, s8, s{cw}\ns_mul_i32 s6, s4, 80\ns_add_u32 s8, s8, s6\ns_cmp_ge_u32 s{cw}, s7\ns_cselect_b32 s8, 640, s8")
def param_loads(P, voff, vz, so, so2, R):
    for k, p in enumerate((18, 20, 22, 24)):
        srd(R[k], p, 163840)
        e(f"buffer_load_dword v{P+k}, v{voff}, s[{R[k]}:{R[k]+3}], s{so} offen{ntp}")
    srd(R[0], 26, 1280); e(f"buffer_load_ushort v{P+4}, v{vz}, s[{R[0]}:{R[0]+3}], s{so2} offen")
def k_setup_pk(P, LAM, CC, EV, PS, conj, starts, TM):
    DT = P + 4
    e(f"v_lshlrev_b32 v{DT}, 16, v{DT}\nv_mul_f32 v{DT}, {LOG2E}, v{DT}\nv_exp_f32 v{DT}, v{DT}")
    for k, d in enumerate((LAM, LAM+2, CC, CC+2)): e(f"v_lshlrev_b32 v{d}, 16, v{P+k}\nv_and_b32 v{d+1}, 0xffff0000, v{P+k}")
    rb(DT, DT)
    for n in (0, 1): e(f"v_mul_f32 v{LAM+n}, {LOG2E}, v{LAM+n}")
    for n in (0, 1): e(f"v_exp_f32 v{LAM+n}, v{LAM+n}")
    e(f"v_add_f32 v{P}, v{DT}, v{DT}")
    e(f"v_cvt_pk_bf16_f32 v{P+1}, v{LAM}, v{LAM+1}\nv_lshlrev_b32 v{LAM}, 16, v{P+1}\nv_and_b32 v{LAM+1}, 0xffff0000, v{P+1}")
    for d in (LAM, LAM+2): e(f"v_pk_mul_f32 {vr(d,2)}, {vr(d,2)}, {vr(DT,2)} op_sel_hi:[1,0]")
    for d in (CC, CC+2): e(f"v_pk_mul_f32 {vr(d,2)}, {vr(d,2)}, {vr(P,2)} op_sel_hi:[1,0]")
    for n in (0, 1): e(f"v_mul_f32 v{LAM+n}, {f32(-1.4426950408889634)}, v{LAM+n}\nv_mul_f32 v{LAM+2+n}, {INV2PI}, v{LAM+2+n}")
    for i, p in enumerate(PS):
        for k in range(4): e(f"v_mul_f32 v{TM+4*i+k}, {f32(p)}, v{LAM+k}")
    for i, p in enumerate(PS):
        for n in (0, 1): e(f"v_exp_f32 v{TM+4*i+n}, v{TM+4*i+n}\nv_fract_f32 v{TM+4*i+2+n}, v{TM+4*i+2+n}")
    for i, p in enumerate(PS):
        for n in (0, 1): e(f"v_cos_f32 v{EV[p]+n}, v{TM+4*i+2+n}\nv_sin_f32 v{EV[p]+2+n}, v{TM+4*i+2+n}")
    for i, p in enumerate(PS):
        e(f"v_pk_mul_f32 {vr(EV[p],2)}, {vr(EV[p],2)}, {vr(TM+4*i,2)}")
        e(f"v_pk_mul_f32 {vr(EV[p]+2,2)}, {vr(EV[p]+2,2)}, {vr(TM+4*i,2)}" + (" neg_lo:[1,0] neg_hi:[1,0]" if p == conj else ""))
    pk_step([(EV[p], CC, TM+2*i) for i, p in enumerate(starts)])
def pk_step(g, mid=()):
    for (z, m, t) in g: e(f"v_pk_mul_f32 {vr(t,2)}, {vr(z+2,2)}, {vr(m+2,2)}")
    for l in mid: e(l)
    for (z, m, t) in g: e(f"v_pk_mul_f32 {vr(z+2,2)}, {vr(z+2,2)}, {vr(m,2)}")
    for (z, m, t) in g: e(f"v_pk_fma_f32 {vr(z+2,2)}, {vr(z,2)}, {vr(m+2,2)}, {vr(z+2,2)}")
    for (z, m, t) in g: e(f"v_pk_fma_f32 {vr(z,2)}, {vr(z,2)}, {vr(m,2)}, {vr(t,2)} neg_lo:[0,0,1] neg_hi:[0,0,1]")
def chain_pk(ch, n, row0, VB, TM):
    for u in range(n):
        for i, (z, m, off) in enumerate(ch):
            e(f"v_cvt_pk_bf16_f32 v{TM+4*(u&1)+2*i}, v{z}, v{z+2}\nv_cvt_pk_bf16_f32 v{TM+1+4*(u&1)+2*i}, v{z+1}, v{z+3}")
        wr = [f"ds_write_b64 v{VB}, {vr(TM+4*(u&1)+2*i,2)} offset:{(row0+off+u)*TPI}" for i, (z, m, off) in enumerate(ch)]
        pk_step([(z, m, TM+8+2*i) for i, (z, m, off) in enumerate(ch)], wr)
def k_setup(P, LAM, CC, EV, PS, conj, starts, TM):
    DT = P + 4
    e(f"v_lshlrev_b32 v{DT}, 16, v{DT}\nv_mul_f32 v{DT}, {LOG2E}, v{DT}\nv_exp_f32 v{DT}, v{DT}")
    for n in (0, 1):
        up = (lambda d, s: e(f"v_lshlrev_b32 v{d}, 16, v{s}")) if n == 0 else (lambda d, s: e(f"v_and_b32 v{d}, 0xffff0000, v{s}"))
        up(LAM+2*n, P); up(LAM+2*n+1, P+1); up(CC+2*n, P+2); up(CC+2*n+1, P+3)
    rb(DT, DT)
    for n in (0, 1): e(f"v_mul_f32 v{LAM+2*n}, {LOG2E}, v{LAM+2*n}")
    for n in (0, 1): e(f"v_exp_f32 v{LAM+2*n}, v{LAM+2*n}")
    e(f"v_add_f32 v{P}, v{DT}, v{DT}")
    for n in (0, 1): rb(LAM+2*n, LAM+2*n)
    for n in (0, 1):
        e(f"v_mul_f32 v{LAM+2*n}, v{LAM+2*n}, v{DT}\nv_mul_f32 v{LAM+2*n+1}, v{LAM+2*n+1}, v{DT}")
        e(f"v_mul_f32 v{CC+2*n}, v{CC+2*n}, v{P}\nv_mul_f32 v{CC+2*n+1}, v{CC+2*n+1}, v{P}")
    for n in (0, 1):
        e(f"v_mul_f32 v{LAM+2*n}, {f32(-1.4426950408889634)}, v{LAM+2*n}\nv_mul_f32 v{LAM+2*n+1}, {INV2PI}, v{LAM+2*n+1}")
    it = [(p, n) for p in PS for n in (0, 1)]
    tm = {k: TM + 2*i for i, k in enumerate(it)}
    for (p, n) in it:
        if p == 1.0: e(f"v_exp_f32 v{tm[p,n]}, v{LAM+2*n}\nv_fract_f32 v{tm[p,n]+1}, v{LAM+2*n+1}")
        else: e(f"v_mul_f32 v{tm[p,n]}, {f32(p)}, v{LAM+2*n}\nv_mul_f32 v{tm[p,n]+1}, {f32(p)}, v{LAM+2*n+1}")
    for (p, n) in it:
        if p != 1.0: e(f"v_exp_f32 v{tm[p,n]}, v{tm[p,n]}\nv_fract_f32 v{tm[p,n]+1}, v{tm[p,n]+1}")
    for (p, n) in it: e(f"v_cos_f32 v{EV[p]+2*n}, v{tm[p,n]+1}\nv_sin_f32 v{EV[p]+2*n+1}, v{tm[p,n]+1}")
    for (p, n) in it:
        neg = "-" if p == conj else ""
        e(f"v_mul_f32 v{EV[p]+2*n}, v{EV[p]+2*n}, v{tm[p,n]}")
        e(f"v_mul_f32 v{EV[p]+2*n+1}, {neg}v{EV[p]+2*n+1}, v{tm[p,n]}")
    g_ = [(EV[p]+2*n, CC+2*n, TM+2*i+n) for i, p in enumerate(starts) for n in (0, 1)]
    for (z, m, t) in g_: e(f"v_mul_f32 v{t}, v{z+1}, v{m+1}")
    for (z, m, t) in g_: e(f"v_mul_f32 v{z+1}, v{z+1}, v{m}")
    for (z, m, t) in g_: e(f"v_fmac_f32 v{z+1}, v{z}, v{m+1}")
    for (z, m, t) in g_: e(f"v_fma_f32 v{z}, v{z}, v{m}, -v{t}")
def chain_loop(ch, n, row0, VB, VA, TM, SC):
    L = e.lab("KL")
    UN = min(n, int(OPT.get("kun", "4")))
    if n > UN: e(f"s_mov_b32 s{SC}, {n//UN}")
    e(f"v_add_u32 v{VA}, {row0*TPI}, v{VB}")
    e(f"{L}:")
    for u in range(UN):
        for i, (z, m, off) in enumerate(ch):
            e(f"v_cvt_pk_bf16_f32 v{TM+4*(u&1)+2*i}, v{z}, v{z+1}\nv_cvt_pk_bf16_f32 v{TM+1+4*(u&1)+2*i}, v{z+2}, v{z+3}")
        g = [(z+2*k, m+2*k, TM+8+2*i+k) for i, (z, m, off) in enumerate(ch) for k in (0, 1)]
        for (z, m, t) in g: e(f"v_mul_f32 v{t}, v{z+1}, v{m+1}")
        for i, (z, m, off) in enumerate(ch): e(f"ds_write_b64 v{VA}, {vr(TM+4*(u&1)+2*i,2)} offset:{(off+u)*TPI}")
        for (z, m, t) in g: e(f"v_mul_f32 v{z+1}, v{z+1}, v{m}")
        if u == UN-1 and n > UN: e(f"v_add_u32 v{VA}, {UN*TPI}, v{VA}")
        for (z, m, t) in g: e(f"v_fmac_f32 v{z+1}, v{z}, v{m+1}")
        if u == UN-1 and n > UN: e(f"s_sub_u32 s{SC}, s{SC}, 1\ns_cmp_lg_u32 s{SC}, 0")
        for (z, m, t) in g: e(f"v_fma_f32 v{z}, v{z}, v{m}, -v{t}")
    if n > UN: e(f"s_cbranch_scc1 {L}")
def y_init(Y): e(f"v_mov_b32 v{Y}, 1.0\nv_mov_b32 v{Y+1}, 0\nv_mov_b32 v{Y+2}, 1.0\nv_mov_b32 v{Y+3}, 0")
def frag_reads(dst, VF, row0):
    for s_ in range(8): e(f"ds_read_b128 {vr(dst+4*s_,4)}, v{VF} offset:{64*s_+row0*TPI}")
def k_mfma(K, FA, FY):
    for s_ in range(8):
        e(f"s_waitcnt lgkmcnt({7-s_})")
        e(f"v_mfma_f32_16x16x32_bf16 {vr(K,4)}, {vr(FA+4*s_,4)}, {vr(FY+4*s_,4)}, {vr(K,4) if s_ else 0}")
def g2_ids():
    e("s_and_b32 s6, s5, 7\ns_lshr_b32 s13, s4, 1\ns_lshl3_add_u32 s13, s13, s6\ns_lshr_b32 s7, s5, 3\ns_and_b32 s14, s4, 1\ns_lshl2_add_u32 s14, s14, s7")
    e("s_mul_i32 s15, s7, 7\ns_lshr_b32 s15, s15, 1")

_stG = Stamper([30,32,34,36,38,96,98,100])
GSEL = OPT.get("gst", "c0,g1,ep,hp,hs,g2,rd,end").split(",")
class _G:
    def __call__(self, name):
        if name in GSEL:
            _stG.n = GSEL.index(name); _stG()
    def flush(self, *a):
        _stG.n = 8; _stG.flush(*a)
stG = _G()
vm = Q(e, "vmcnt", 63); lg = Q(e, "lgkmcnt", 15)
XR, VXA, WB = 48, 248, 80
ACC = 112
VCHK, VREL = 250, 251
WEF, XEF, XEC = 176, 208, 216
sK = [76+i for i in range(14)]
HP = 112
e(f"s_setprio {OPT.get('gprio', '2')}")
zero_cnt(CNT)
e("v_lshrrev_b32 v10, 4, v0")
e("v_and_b32 v8, 15, v0")
g2_ids()
chan_id(3)
e(f"s_lshl_b32 s60, s8, 8\ns_lshl_b32 s61, s8, 1\ns_mov_b32 s62, s8\nv_lshlrev_b32 v117, 2, v0\nv_mov_b32 v118, 0")
e("s_cmp_lt_u32 s5, 4")
e("s_cbranch_scc1 L_IDLE")
e("s_sub_u32 s6, s5, 4\ns_mul_i32 s7, s6, 37\ns_lshr_b32 s7, s7, 8\ns_mul_i32 s8, s7, 7\ns_sub_u32 s6, s6, s8")
e("s_lshr_b32 s8, s4, 1\ns_lshl_b32 s8, s8, 2\ns_add_u32 s8, s8, s7")
e("s_and_b32 s9, s4, 1\ns_mul_i32 s9, s9, 7\ns_add_u32 s9, s9, s6")
e("s_lshl_b32 s11, s9, 8")
ROT = OPT.get("rot", "1") != "0"
sW = list(range(16, 26)); sX = [26, 27, 28, 29, 90, 91, 92, 93, 94, 95]
if ROT:
    e("s_mul_i32 s12, s6, 370\ns_lshr_b32 s12, s12, 8\ns_mul_i32 s7, s7, 5\ns_lshr_b32 s7, s7, 1\ns_add_u32 s12, s12, s7")
    e("s_cmp_ge_u32 s12, 10\ns_cselect_b32 s7, 10, 0\ns_sub_u32 s12, s12, s7")
def rot_tab(ps):
    if not ROT: return
    for p in ps:
        if p: e("s_add_u32 s12, s12, 1\ns_cmp_eq_u32 s12, 10\ns_cselect_b32 s12, 0, s12")
        e(f"s_mul_i32 s{sW[p]}, s12, 221184\ns_add_u32 s{sW[p]}, s{sW[p]}, s11\ns_lshl_b32 s{sX[p]}, s12, 7")
e("v_bfe_u32 v1, v0, 2, 2\ns_lshl_b32 s6, s3, 3\nv_add_u32 v1, s6, v1\nv_mul_u32_u24 v1, 3456, v1")
e("v_lshl_add_u32 v1, v10, 6, v1\nv_and_b32 v2, 3, v0\nv_lshl_add_u32 v1, v2, 4, v1")
e(f"v_add_u32 v2, {4*3456-1024}, v1")
e("s_lshl_b32 s6, s8, 7\ns_lshl_b32 s7, s3, 5\ns_add_u32 s6, s6, s7")
e("v_lshrrev_b32 v5, 3, v0\nv_add_u32 v3, s6, v5\nv_mul_u32_u24 v3, 1280, v3\nv_and_b32 v6, 7, v0\nv_lshrrev_b32 v5, 1, v5\nv_xor_b32 v6, v6, v5")
e(f"v_xor_b32 v5, 4, v6\nv_lshl_add_u32 v4, v5, 4, v3\nv_add_u32 v4, {10240-1024}, v4\nv_lshl_add_u32 v3, v6, 4, v3")
e(f"s_mul_i32 s10, s3, 6144\ns_add_u32 s10, s10, {XST}")
e("s_waitcnt lgkmcnt(0)")
def g_params():
    param_loads(HP, 117, 118, 60, 61, (64, 68, 72, 48))
    for _ in range(5): vm.issue("par")
g_params()
e("s_barrier")
e("s_mul_i32 s1, s3, 2080")
srd(56, 32, 2211840); srd(52, 16, 2621440)
rot_tab(range(1))
def w_ops(step):
    def a():
        if ROT: e(f"s_add_u32 m0, s1, {(step % 8)*KSTEP}\ns_add_u32 s0, s{sW[step//2]}, {(step % 2)*110592}")
        else: e(f"s_add_u32 m0, s1, {(step % 8)*KSTEP}\ns_add_u32 s0, s11, {step*110592}")
        e(f"buffer_load_dwordx4 v1, s[56:59], s0 offen{ntg} lds"); vm.issue(("w", step//2))
    def b():
        e(f"buffer_load_dwordx4 v2, s[56:59], s0 offen offset:1024{ntg} lds"); vm.issue(("w", step//2))
    return [a, b]
def x_ops(u):
    def a():
        if ROT: e(f"s_add_u32 m0, s10, {(u % 3)*2048}\ns_add_u32 s0, s{sX[u//2]}, {(u % 2)*20480}")
        else: e(f"s_add_u32 m0, s10, {(u % 3)*2048}\ns_mov_b32 s0, {(u//2)*128 + (u % 2)*20480}")
        e("buffer_load_dwordx4 v3, s[52:55], s0 offen lds"); vm.issue(("x", u))
    def b():
        e("buffer_load_dwordx4 v4, s[52:55], s0 offen offset:1024 lds"); vm.issue(("x", u))
    return [a, b]
def x_reads(u):
    vm.wait(("x", u))
    for k2 in (0, 1):
        e(f"ds_read_b128 {vr(XR+(u%4)*8+4*k2,4)}, v{VXA+k2} offset:{(u%3)*2048}"); lg.issue(("xr", u))
for op in w_ops(0) + x_ops(0) + x_ops(1) + w_ops(1): op()
def g_srds(): srd(48, 44, WS_SIZE); srd(64, 38, 1280); srd(68, 40, 2621440); srd(72, 42, 256)
g_srds()
rot_tab(range(1, 10))
NP2 = int(OPT.get("np2", "0"))
late = (w_ops(2) + w_ops(3) + x_ops(2))
for op in late[:NP2]: op()
def helper(mid=((), ())):
    LAM, CC, TM, YC, FY, FA, KT = 120, 124, 144, 160, 176, 208, 240
    EV = {8.0: 128, 128.0: 132, 512.0: 136, 516.0: 140}
    e("s_cmp_ge_u32 s62, 640")
    L = e.lab("NOH")
    e(f"s_cbranch_scc1 {L}")
    e(f"s_mul_i32 s6, s3, {16*TPI}\ns_add_u32 s6, s6, {4*KSTEP}\nv_lshlrev_b32 v244, 3, v0\nv_add_u32 v244, s6, v244")
    e(f"v_mul_u32_u24 v245, {TPI}, v8\nv_lshl_add_u32 v245, v10, 4, v245\nv_add_u32 v245, s6, v245")
    e(f"s_mul_i32 s6, s3, {CHSZ}\ns_add_u32 s6, s6, {CH0+TBOFF}")
    e("v_lshlrev_b32 v247, 1, v8\nv_lshl_add_u32 v247, v10, 7, v247\nv_add_u32 v247, s6, v247")
    e("v_lshlrev_b32 v248, 2, v8\nv_lshrrev_b32 v249, 1, v10\nv_lshl_add_u32 v248, v249, 1, v248\nv_add_u32 v248, s6, v248")
    e(f"v_mov_b32 v{YC}, 1.0\nv_mov_b32 v{YC+1}, 1.0\nv_mov_b32 v{YC+2}, 0\nv_mov_b32 v{YC+3}, 0")
    vm.wait("par")
    stG("par")
    k_setup_pk(HP, LAM, CC, EV, [8.0, 128.0, 512.0, 516.0], 8.0, (512.0, 516.0), TM)
    for op in mid[0]: op()
    L2 = e.lab("HY")
    e(f"s_mov_b32 s63, 4\nv_mov_b32 v246, v244\n{L2}:")
    chain_pk([(YC, EV[8.0], 0)], 4, 0, 246, TM)
    e(f"v_add_u32 v246, {4*TPI}, v246\ns_sub_u32 s63, s63, 1\ns_cmp_lg_u32 s63, 0\ns_cbranch_scc1 {L2}")
    e("s_waitcnt lgkmcnt(0)")
    frag_reads(FY, 245, 0)
    for op in mid[1]: op()
    e("s_waitcnt lgkmcnt(0)")
    chain_pk([(EV[512.0], EV[128.0], 0), (EV[516.0], EV[128.0], 12)], 4, 0, 244, TM)
    chain_pk([(EV[512.0], EV[128.0], 0)], 8, 4, 244, TM)
    e("s_waitcnt lgkmcnt(0)")
    frag_reads(FA, 245, 0)
    k_mfma(KT, FA, FY)
    for r in range(4): e(f"v_cvt_pk_bf16_f32 v{TM+r}, v{KT+r}, v{KT+r}")
    e("s_mov_b32 exec_lo, 0xffff\ns_mov_b32 exec_hi, 0xffff0000")
    for r in range(4): e(f"ds_write_b16 v248, v{TM+r} offset:{768+64*r}")
    e("s_mov_b32 exec_lo, 0xffff0000\ns_mov_b32 exec_hi, 0xffff")
    for r in range(4): e(f"ds_write_b16 v247, v{TM+r} offset:{896+32*r}")
    e("s_mov_b64 exec, -1")
    if mid[0] or mid[1]:
        q = list(vm.q)
        e(f"s_branch {L}_j\n{L}:")
        for op in list(mid[0]) + list(mid[1]): op()
        vm.q = q
        e(f"{L}_j:")
    else: e(f"{L}:")
def kappa_tab():
    e("s_mov_b32 s6, s15")
    for i in range(14):
        if i: e("s_add_u32 s6, s6, 1\ns_cmp_eq_u32 s6, 14\ns_cselect_b32 s6, 0, s6")
        e(f"s_lshl2_add_u32 s7, s6, s3\ns_cmp_ge_u32 s7, 54\ns_cselect_b32 s7, {0x8000000>>10}, s7\ns_lshl_b32 s{sK[i]}, s7, 10")
if OPT.get("kapearly", "0") == "1": kappa_tab()
vq = list(vm.q)
if OPT.get("mid", "1") == "1":
    helper((late[NP2:4], late[4:]))
    vm.q = vq + vm.q[len(vm.q)-(6-NP2):]
else:
    helper()
    vm.q = vq
    for op in late[NP2:]: op()
stG("hlp")
e("v_mul_u32_u24 v5, 2080, v10\nv_bfe_u32 v6, v0, 2, 2\nv_lshl_add_u32 v5, v6, 6, v5\nv_and_b32 v6, 3, v0\nv_lshl_add_u32 v5, v6, 3, v5")
e(f"v_lshrrev_b32 v{VXA}, 1, v8\nv_xor_b32 v{VXA}, v{VXA}, v10\nv_lshlrev_b32 v{VXA}, 4, v{VXA}\nv_lshl_add_u32 v{VXA}, v8, 7, v{VXA}")
e(f"v_xor_b32 v{VXA+1}, 64, v{VXA}\nv_add_u32 v{VXA}, s10, v{VXA}\nv_add_u32 v{VXA+1}, s10, v{VXA+1}")
e(f"v_mov_b32 v252, {OOB}\nv_cmp_eq_u32 vcc, 0, v10\nv_lshlrev_b32 v6, 4, v8\nv_lshlrev_b32 v253, 5, v8\nv_cndmask_b32 v6, v252, v6, vcc\nv_cndmask_b32 v7, v252, v253, vcc")
def gcommon():
    e(f"v_lshlrev_b32 v10, 8, v10\nv_lshl_add_u32 v10, v8, 2, v10\nv_add_u32 v10, {CNT}, v10")
def w2_ops(i):
    ops = []
    for dt in range(5):
        def f(dt=dt):
            if dt == 0: e(f"s_lshl2_add_u32 s0, s{sK[i]}, s10\ns_add_u32 s0, s0, s{sK[i]}")
            if dt == 4: e("s_add_u32 s0, s0, 4096")
            r = 12 + (i % 5)*20 + dt*4
            e(f"buffer_load_dwordx4 {vr(r,4)}, v1, s[48:51], s0 offen offset:{1024*(dt%4)} sc1"); vm.issue(("w2", i))
        ops.append(f)
    return ops
def g2_bases():
    e("v_lshlrev_b32 v1, 4, v0")
    e(f"s_mul_i32 s10, s14, 276480\ns_add_u32 s10, s10, {W2F}")
    e(f"s_mul_i32 s11, s13, 221184\ns_add_u32 s11, s11, {HF}")
gcommon()
EW = int(OPT.get("ew", "0"))
if EW: kappa_tab()
stG("p")
def signal():
    e("v_add_u32 v11, 1, v11")
    e("ds_write_b32 v9, v11"); lg.issue("sig")
CHKR = [VCHK]
def chk_read():
    e(f"ds_read_b32 v{CHKR[0]}, v10"); lg.issue("chk")
def chk_eval():
    lg.wait("chk")
    spin_lds(CHKR[0], 10, "v11")
def tr_one(step, t, hf_):
    base = (step % 8) * KSTEP + 256 * (t >> 1) + 32 * (t & 1)
    e(f"ds_read_b64_tr_b16 {vr(WB+4*t+2*hf_,2)}, v5 offset:{base + 1024*hf_}"); lg.issue(("w", step, t))
vm.wait(("w", 0))
signal(); chk_read()
x_reads(0); x_reads(1)
chk_eval()
stG("c0")
for t in range(8): tr_one(0, t, 0); tr_one(0, t, 1)
lg.wait(("xr", 0))
for op in x_ops(3): op()
carry = []
EW = int(OPT.get("ew", "0"))
for i in range(21):
    c, k2 = divmod(i, 2)
    stG(f"a{i}")
    side = {n: [] for n in range(16)}
    side[0] += carry; carry = []
    if i < 19:
        for t in range(8):
            side[2*t+1].append(lambda t=t: tr_one(i+1, t, 0))
            if t < 7: side[2*t+2].append(lambda t=t: tr_one(i+1, t, 1))
            else: carry.append(lambda t=t, i=i: tr_one(i+1, t, 1))
    if i == 0:
        for n, op in zip((0, 2, 4, 6), w_ops(4) + w_ops(5)): side[n].append(op)
    elif i + 5 <= 19:
        for n, op in zip((1, 4), w_ops(i+5)): side[n].append(op)
    if i + 4 <= 19:
        o = x_ops(i+4)
        side[8].append(lambda i=i: lg.wait(("xr", i+1))); side[8].append(o[0]); side[12].append(o[1])
    if k2 == 0 and c + 1 <= 9:
        def sg(c=c):
            vm.wait(("w", c+1)); signal()
        side[6].append(sg); side[10].append(chk_read)
    if i + 2 <= 19: side[14].append(lambda i=i: x_reads(i+2))
    if i == 15:
        side[10].append(lambda: (e(f"v_mov_b32 v252, {REL}\nds_read_b32 v{VREL}, v252"), lg.issue("rel")))
    if i == 16:
        def f():
            lg.wait("rel")
            spin_lds(VREL, 252, "1")
            e(f"s_lshl_b32 s6, s8, 12\ns_lshl_b32 s7, s3, 10\ns_add_u32 s6, s6, s7\ns_add_u32 s6, s6, {STATS}\ns_lshl_b32 s63, s9, 11\ns_add_u32 s63, s63, {WE}")
        side[1].append(f)
        for mt in (0, 1):
            side[2+2*mt].append(lambda mt=mt: (e(f"buffer_load_dwordx4 {vr(XEF+4*mt,4)}, v7, s[48:51], s6 offen offset:{512*mt} sc1"), vm.issue("xe")))
            side[8+4*mt].append(lambda mt=mt: (e(f"buffer_load_dwordx4 {vr(XEC+4*mt,4)}, v253, s[48:51], s6 offen offset:{512*mt+16} sc1"), vm.issue("xe")))
    if i in (17, 18):
        for t in range(4):
            tt = 4*(i-17) + t
            side[4*t].append(lambda tt=tt: (e(f"buffer_load_dwordx4 {vr(WEF+4*tt,4)}, v6, s[48:51], s63 offen offset:{256*tt} sc1"), vm.issue("we")))
    if i == 16:
        side[13].append(g2_bases)
        side[15].append(lambda: (e(f"ds_read_b32 v{VREL}, v252"), lg.issue("rel")))
        w2q = [op for k in range(5) for op in w2_ops(k)]
    if i == 17: side[1].append(lambda: (lg.wait("rel"), spin_lds(VREL, 252, "2")))
    if i in (17, 18, 19) and EW >= 1:
        for n in ((2, 6, 10) if i < 19 else (0, 4, 8)): side[n].append(w2q.pop(0))
    if i == 20 and EW >= 1:
        for n in range(16 if EW == 2 else 1): side[n].append(w2q.pop(0))
    if i == 19:
        side[15].append(signal)
    if i == 20: vm.wait(["xe", "we"])
    for n in range(16):
        t, mt = divmod(n, 2)
        a = ACC + n*4
        if i < 20:
            if mt == 0:
                need = [("w", i, t), ("w", i, t+1)] if t % 2 == 0 else []
                if t == 6: need = [("w", i, 6)]
                if t == 7: need = [("w", i, 7)]
                if t == 0 and k2 == 0: need += [("xr", 2*c), ("xr", 2*c+1)]
                if need: lg.wait(need)
            e(f"v_mfma_f32_16x16x32_bf16 {vr(a,4)}, {vr(WB+4*t,4)}, {vr(XR+((2*c+mt)%4)*8+4*k2,4)}, {vr(a,4) if i else 0}")
        else:
            e(f"v_mfma_f32_16x16x32_bf16 {vr(a,4)}, {vr(WEF+4*t,4)}, {vr(XEF+4*mt,4)}, {vr(a,4)}")
            if n == 0: e("v_mov_b32 v2, 0")
            if n == 2: e(f"s_lshr_b32 s6, s3, 1\ns_lshl_b32 s7, s8, 1\ns_add_u32 s6, s6, s7\ns_mul_i32 s44, s6, 221184")
            if n == 4: e(f"s_and_b32 s7, s3, 1\ns_lshl_b32 s7, s7, 11\ns_add_u32 s44, s44, s7\ns_add_u32 s44, s44, {HF}")
            if n == 6: e(f"s_mul_i32 s45, s6, {FS_}\ns_add_u32 s45, s45, {FL_H}\nv_mov_b32 v7, 1")
            if n == 8: e(f"s_lshl_b32 s6, s9, 14\ns_add_u32 s44, s44, s6\ns_cmp_eq_u32 s9, 13\ns_cselect_b32 s43, {OOB}, s44")
        for f in side[n]: f()
    if k2 == 0 and c + 1 <= 9: chk_eval()
stG("g1")
TQ, TE, TO = 224, 232, 240
def h_flag(k):
    vm.wait(("hst", k))
    e(f"s_mov_b64 exec, 1\nbuffer_atomic_add v7, v2, s[48:51], s45 offen offset:{4*k} sc1\ns_mov_b64 exec, -1")
for tp in range(4):
    e(f"s_add_u32 s6, s{44 if tp < 2 else 43}, {4096*tp}")
    for mt in (0, 1):
        st = XEC + 4*mt
        P = range(4)
        acc = lambda q: ACC + (2*(2*tp + (q >> 1)) + mt)*4 + 2*(q & 1)
        for q in P: e(f"v_pk_mul_f32 {vr(TQ+2*q,2)}, {vr(acc(q),2)}, {vr(acc(q),2)}")
        for q in P: e(f"v_pk_fma_f32 {vr(TQ+2*q,2)}, {vr(st,2)}, {vr(TQ+2*q,2)}, {vr(st,2)} op_sel:[0,0,1] op_sel_hi:[0,1,1]")
        for q in P: e(f"v_pk_mul_f32 {vr(TQ+2*q,2)}, {vr(TQ+2*q,2)}, {vr(acc(q),2)}")
        for q in range(8): e(f"v_exp_f32 v{TE+q}, v{TQ+q}")
        for q in P: e(f"v_pk_fma_f32 {vr(TE+2*q,2)}, {vr(st+2,2)}, {vr(TE+2*q,2)}, {vr(st+2,2)} op_sel_hi:[0,1,0]")
        for q in range(8): e(f"v_rcp_f32 v{TE+q}, v{TE+q}")
        for q in P: e(f"v_pk_mul_f32 {vr(TE+2*q,2)}, {vr(TE+2*q,2)}, {vr(acc(q),2)}")
        o = TO + 4*mt
        for q in P: e(f"v_cvt_pk_bf16_f32 v{o+q}, v{TE+2*q}, v{TE+2*q+1}")
        e(f"buffer_store_dwordx4 {vr(o,4)}, v1, s[48:51], s6 offen offset:{1024*mt} sc1"); vm.issue(("hst", tp))
stG("ep")
signal()
def g2_setup():
    for ml in range(4):
        e(f"s_xor_b32 s6, s3, {ml}\ns_lshl_b32 s6, s6, 10\nv_add_u32 v{3+ml}, s6, v1")
    e(f"s_mul_i32 s6, s13, {FS_}\ns_add_u32 s6, s6, {FL_H}\ns_add_u32 s40, s48, s6\ns_addc_u32 s41, s49, 0")
    e(f"v_mov_b32 v254, {REL}\nv_lshrrev_b32 v8, 4, v0\nv_lshlrev_b32 v8, 3, v8\ns_mul_i32 s8, s14, 160")
HPL = "s_load_dwordx4 s[16:19], s[40:41], 0 glc"
g2_setup()
if not EW: kappa_tab()
vm.wait(("hst", 3))
e(f"s_mov_b64 exec, 1\nbuffer_atomic_add v7, v2, s[48:51], s45 offen sc1\ns_mov_b64 exec, -1")
if OPT.get("self", "1") == "1":
    for tp in range(4):
        e(f"s_add_u32 s6, s{44 if tp < 2 else 43}, {4096*tp}")
        for mt in (0, 1): e(f"buffer_load_dwordx4 {vr(192+8*tp+4*mt,4)}, v1, s[48:51], s6 offen offset:{1024*mt} sc1")
stG("hp")
vm.clear(); lg.clear()
e("L_G2:")
CHKR[0] = 26
A2, HR = 112, 192
e(f"s_setprio {OPT.get('g2prio', '0')}")
e("v_mov_b32 v2, v254")
for dt in range(5):
    e(f"buffer_load_dwordx2 {vr(122+2*dt,2)}, v8, s[64:67], s8 offen offset:{32*dt}"); vm.issue("b2")
for k in range([0, 2, 5][EW], 5):
    for op in w2_ops(k): op()
spoll(40, [0], 28, OPT.get("hsleep", "2")); lg.clear()
stG("hs")
def h_ops(i):
    ops = []
    for ml in range(4):
        def hl(ml=ml):
            if ml == 0: e(f"s_lshl2_add_u32 s6, s{sK[i]}, s11")
            e(f"buffer_load_dwordx4 {vr(HR+(i%4)*16+ml*4,4)}, v{3+ml}, s[48:51], s6 offen sc1"); vm.issue(("h", i))
        ops.append(hl)
    return ops
for op in h_ops(0) + h_ops(1) + h_ops(2) + h_ops(3): op()
FXO, FLA, FX, FS, VSO, VPF = 92, 95, 32, 12, 98, 104
STL = []
for i in range(3):
    if i == 2: STL.append("s_mov_b32 exec_hi, 0")
    STL.append(f"buffer_load_dwordx4 {vr(FS+4*i,4)}, v{VSO}, s[48:51], s{44 if i == 0 else 6} offen sc1")
    if i < 2: STL.append(f"s_add_u32 s6, s44, {32*4096*(i+1)}")
STL.append("s_mov_b64 exec, -1")
RED = 99
for i in range(14):
    vm.wait([("w2", i), ("h", i)])
    lg.wait(("pf", i))
    if i == 7: signal()
    stG(f"b{i}")
    side = {n: [] for n in range(20)}
    def spread(lines, n0, step=1):
        for k, l in enumerate(lines): side[min(19, n0 + k*step)].append(lambda l=l: e(l))
    j = i + 4
    if i >= 1 and j < 8:
        if i == 1: side[0].append(lambda: (e("ds_read_b32 v12, v2\ns_mul_i32 s6, s3, 15360\nv_add_u32 v13, s6, v1\ns_waitcnt lgkmcnt(0)"), spin_lds(12, 2, "3"), e("v_mov_b32 v2, v13"), lg.clear()))
        for dt in range(5):
            side[1+dt].append(lambda dt=dt, j=j: (e(f"ds_read_b128 {vr(12+(j%5)*20+dt*4,4)}, v2 offset:{(j-5)*5120+dt*1024}"), lg.issue(("pf", j))))
    elif i >= 1 and j < 14:
        for n, op in zip((1, 3, 7, 11, 16), w2_ops(j)): side[n].append(op)
    if i + 4 < 14:
        for ml, op in enumerate(h_ops(i+4)): side[5*ml+4].append(op)
    if i == 10:
        L = [f"v_mov_b32 v2, {REL}", "ds_read_b32 v8, v2",
             f"v_lshrrev_b32 v{VSO}, 1, v0", "v_and_b32 v4, 1, v0", f"v_lshlrev_b32 v{VSO}, 12, v{VSO}", f"v_lshl_add_u32 v{VSO}, v4, 4, v{VSO}",
             "s_mul_i32 s44, s14, 327680\ns_lshl_b32 s7, s13, 7", "s_add_u32 s44, s44, s7\ns_lshl_b32 s7, s3, 5", f"s_add_u32 s44, s44, s7\ns_add_u32 s44, s44, {ST}",
             "s_lshl_b32 s6, s13, 6\ns_lshl_b32 s7, s3, 4", "s_add_u32 s6, s6, s7\ns_mul_i32 s6, s6, 1280", f"s_add_u32 s8, s8, s6\ns_mul_i32 s9, s3, 2688", f"s_add_u32 s9, s9, {SB}\ns_movk_i32 s0, 1280\ns_movk_i32 s1, 168"]
        spread(L, 1)
    if i == 11:
        L = []
        for k in range(3):
            L += [f"v_add_u32 v3, {64*k}, v0\nv_mul_u32_u24 v4, 6554, v3", "v_lshrrev_b32 v4, 16, v4\nv_mul_u32_u24 v5, 10, v4", "v_sub_u32 v3, v3, v5\nv_lshlrev_b32 v3, 4, v3",
                  f"v_mad_u32_u24 v{FXO+k}, v4, s0, v3\nv_mad_u32_u24 v{FLA+k}, v4, s1, v3", f"v_add_u32 v{FLA+k}, s9, v{FLA+k}"]
        spread(L, 1)
    if i == 12:
        L = []
        for ml in (1, 2, 3): L += [f"s_xor_b32 s6, s3, {ml}\ns_mul_i32 s6, s6, 15360", f"s_add_u32 s6, s6, {(ml-1)*5120}\nv_add_u32 v{RED+ml-1}, s6, v1"]
        L += [f"s_mul_i32 s6, s3, 15360\nv_add_u32 v{RED+3}, s6, v1", f"v_and_b32 v3, 15, v0\nv_mul_u32_u24 v3, 168, v3", f"v_lshrrev_b32 v5, 4, v0\nv_lshl_add_u32 v3, v5, 3, v3", f"v_add_u32 v{RED+4}, s9, v3",
              "v_add_u32 v3, s9, v1\nv_lshlrev_b32 v4, 3, v0", "v_add_u32 v4, s9, v4"]
        spread(L, 6)
        side[0].append(chk_read)
        for k in range(3):
            def xl(k=k):
                if k == 2: e("s_mov_b32 exec_hi, 0")
                e(f"buffer_load_dwordx4 {vr(FX+4*k,4)}, v{FXO+k}, s[52:55], s8 offen"); vm.issue("fx")
                if k == 2: e("s_mov_b64 exec, -1")
            side[1+2*k].append(xl)
    order = list(range(20)) if 0 < i < 13 else list(range(5, 20)) + list(range(5))
    if i == 0:
        side = {n: [] for n in range(20)}
        for k in range(10): side[k].append(lambda k=k: e(f"v_lshlrev_b32 v{A2+2*k}, 16, v{122+k}\nv_and_b32 v{A2+2*k+1}, 0xffff0000, v{122+k}"))
        o = h_ops(4)
        e(f"s_lshl2_add_u32 s6, s{sK[4]}, s11")
        for k, ml in zip((4, 9, 14, 19), (1, 2, 3, 0)):
            side[k].append(lambda ml=ml: (e(f"buffer_load_dwordx4 {vr(HR+ml*4,4)}, v{3+ml}, s[48:51], s6 offen sc1"), vm.issue(("h", 4))))
    if i == 13:
        for k in range(11):
            n_ = order[k]
            side[k+9].append(lambda n_=n_: (e(f"ds_write_b128 v{RED+n_//5-1}, {vr(A2+n_*4,4)} offset:{1024*(n_%5)}"), lg.issue("red")))
    for k, n in enumerate(order):
        ml, dt = divmod(n, 5)
        a = A2 + n*4
        e(f"v_mfma_f32_16x16x32_bf16 {vr(a,4)}, {vr(12+(i%5)*20+dt*4,4)}, {vr(HR+(i%4)*16+ml*4,4)}, {vr(a,4) if (i or ml == 0) else 0}")
        for f in side[k]: f()
    if i == 10:
        e("s_waitcnt lgkmcnt(0)\nv_cmp_gt_u32 s[42:43], 4, v8"); lg.clear()
        for l in STL:
            e(l)
            if l.startswith("buffer"): vm.issue("sT")
    if i == 12: chk_eval()
stG("g2")
for n_ in range(16, 20):
    e(f"ds_write_b128 v{RED+n_//5-1}, {vr(A2+n_*4,4)} offset:{1024*(n_%5)}"); lg.issue("red")
signal(); chk_read()
e("s_cmp_lg_u64 s[42:43], 0")
spin_lds(8, 2, "4", after=STL, pre_cmp=False, branch="s_cbranch_scc1")
vm.wait_all()
for i in range(3):
    if i == 2: e("s_mov_b32 exec_hi, 0")
    e(f"ds_write_b128 v3, {vr(FS+4*i,4)} offset:{1024*i}"); lg.issue("sw")
e("s_mov_b64 exec, -1")
for dt in range(5):
    e(f"ds_read_b64_tr_b16 {vr(44+2*dt,2)}, v4 offset:{512*dt}"); lg.issue("str")
chk_eval()
stG("rd")
RD = 192
for dt in range(5):
    for s_ in range(3):
        e(f"ds_read_b128 {vr(RD+(s_*5+dt)*4,4)}, v{RED+3} offset:{5120*s_+1024*dt}"); lg.issue(("rd", dt))
SU = 132
e("s_mov_b32 s6, 0xffff0000")
lg.wait("str")
for k in range(10): e(f"v_lshlrev_b32 v{SU+2*k}, 16, v{44+k}\nv_and_b32 v{SU+2*k+1}, s6, v{44+k}")
XU = 152
for k in range(12): e(f"v_lshlrev_b32 v{XU+2*k}, 16, v{FX+k}\nv_and_b32 v{XU+2*k+1}, s6, v{FX+k}")
T = 56
for dt in range(5):
    a = A2 + dt*4
    lg.wait(("rd", dt))
    for k in (0, 1):
        e(f"v_pk_add_f32 {vr(a+2*k,2)}, {vr(a+2*k,2)}, {vr(RD+dt*4+2*k,2)}")
        e(f"v_pk_add_f32 {vr(T+2*k,2)}, {vr(RD+(5+dt)*4+2*k,2)}, {vr(RD+(10+dt)*4+2*k,2)}")
    for k in (0, 1): e(f"v_pk_add_f32 {vr(a+2*k,2)}, {vr(a+2*k,2)}, {vr(T+2*k,2)}")
E_ = 60
for k in range(20): e(f"v_mul_f32 v{E_+k}, {f32(-1.4426950408889634)}, v{A2+k}")
for k in range(20): e(f"v_exp_f32 v{E_+k}, v{E_+k}")
for k in range(10): e(f"v_pk_mul_f32 {vr(A2+2*k,2)}, {vr(A2+2*k,2)}, {vr(SU+2*k,2)}")
for k in range(10): e(f"v_pk_add_f32 {vr(E_+2*k,2)}, {vr(E_+2*k,2)}, 1.0 op_sel_hi:[1,0]")
for k in range(20): e(f"v_rcp_f32 v{E_+k}, v{E_+k}")
for dt in range(5):
    for k in (0, 1): e(f"v_pk_mul_f32 {vr(A2+4*dt+2*k,2)}, {vr(A2+4*dt+2*k,2)}, {vr(E_+4*dt+2*k,2)}")
    for k in (0, 1): e(f"v_cvt_pk_bf16_f32 v{44+2*dt+k}, v{A2+4*dt+2*k}, v{A2+4*dt+2*k+1}")
    e(f"ds_write_b64 v{RED+4}, {vr(44+2*dt,2)} offset:{32*dt}"); lg.issue("pw")
for k in range(3):
    e(f"ds_read_b64 {vr(RD+4*k,2)}, v{FLA+k}\nds_read_b64 {vr(RD+4*k+2,2)}, v{FLA+k} offset:8"); lg.issue(("pr", k)); lg.issue(("pr", k))
for k in range(3):
    lg.wait(("pr", k))
    for q in range(4):
        e(f"v_lshlrev_b32 v{T+2*q}, 16, v{RD+4*k+q}\nv_and_b32 v{T+1+2*q}, s6, v{RD+4*k+q}")
    for q in range(4): e(f"v_pk_add_f32 {vr(T+2*q,2)}, {vr(T+2*q,2)}, {vr(XU+8*k+2*q,2)}")
    for q in range(4): e(f"v_cvt_pk_bf16_f32 v{RD+16+4*k+q}, v{T+2*q}, v{T+2*q+1}")
    if k == 2: e("s_mov_b32 exec_hi, 0")
    e(f"buffer_store_dwordx4 {vr(RD+16+4*k,4)}, v{FXO+k}, s[68:71], s8 offen{OSP}")
stG("end")
stG.flush(60, 61, (0, 1, 8))
e("s_endpgm")

e("L_IDLE:")
e("v_lshrrev_b32 v1, 3, v0\ns_mul_i32 s6, s3, 160\nv_add_u32 v2, s6, v1\nv_mul_u32_u24 v2, 3456, v2\nv_and_b32 v3, 7, v0\nv_lshl_add_u32 v2, v3, 4, v2")
e("v_lshlrev_b32 v4, 8, v1\nv_lshl_add_u32 v4, v3, 5, v4\ns_lshl_b32 s6, s3, 11\nv_add_u32 v4, s6, v4")
e("s_waitcnt lgkmcnt(0)")
e("s_lshl3_add_u32 s47, s5, s4")
e(f"s_lshl_b32 s9, s47, 7\ns_cmp_ge_u32 s47, 27\ns_cselect_b32 s9, {OOB}, s9")
vm.clear()
g_params()
e("s_barrier")
srd(56, 32, 2211840)
e("s_mov_b32 s0, s9")
for i in range(20):
    e(f"buffer_load_dwordx4 {vr(12+4*i,4)}, v2, s[56:59], s0 offen"); vm.issue("cw")
    if i < 19: e(f"s_add_u32 s0, s0, {8*3456}")
srd(56, 34, 3456)
e("v_lshlrev_b32 v5, 1, v0\nbuffer_load_ushort v7, v5, s[56:59], s9 offen"); vm.issue("cw")
srd(52, 16, 2621440); g_srds()
kappa_tab()
helper()
e("s_waitcnt vmcnt(0)\ns_mov_b32 s6, 0xffff0000")
for i in range(20):
    for k in range(4):
        r = 12 + 4*i + k
        if i == 0: e(f"v_lshlrev_b32 v{100+2*k}, 16, v{r}\nv_and_b32 v{101+2*k}, s6, v{r}")
        else: e(f"v_lshlrev_b32 v{92+2*k}, 16, v{r}\nv_and_b32 v{93+2*k}, s6, v{r}")
    if i:
        for k in range(4): e(f"v_pk_add_f32 {vr(100+2*k,2)}, {vr(100+2*k,2)}, {vr(92+2*k,2)}")
e("ds_write_b128 v4, v[100:103]\nds_write_b128 v4, v[104:107] offset:16")
gcommon()
e("s_cmp_eq_u32 s3, 0\ns_cselect_b32 s6, 1, 12\nv_mov_b32 v11, s6\nds_write_b32 v9, v11")
e("s_cbranch_scc0 L_ID2")
wait_lds(8, 10, "1")
e("v_lshlrev_b32 v5, 2, v0")
for k in range(32): e(f"ds_read_b32 v{12+k}, v5 offset:{256*k}")
e("s_waitcnt lgkmcnt(0)")
for st_ in (16, 8, 4, 2, 1):
    for k in range(st_): e(f"v_add_f32 v{12+k}, v{12+k}, v{12+k+st_}")
e("v_mov_b32 v11, 12\nds_write_b32 v9, v11")
e("v_cvt_pk_bf16_f32 v17, v12, v12\nv_lshl_or_b32 v16, v7, 16, v7\nv_and_b32 v13, 0xffff0000, v17\nv_sub_f32 v13, v12, v13\nv_mov_b32 v19, 0\nv_cvt_pk_bf16_f32 v18, v13, v19")
e(f"v_lshlrev_b32 v5, 4, v0\ns_lshl_b32 s6, s47, 10\ns_add_u32 s6, s6, {WE}\ns_cmp_ge_u32 s47, 27\ns_cselect_b32 s6, {OOB}, s6")
e("buffer_store_dwordx4 v[16:19], v5, s[48:51], s6 offen sc1")
e(f"v_mov_b32 v2, {REL}")
wait_lds(8, 2, "1", sleep=True)
e(f"s_lshr_b32 s6, s47, 1\ns_mul_i32 s6, s6, {FS_}\ns_add_u32 s6, s6, {FL_E}\ns_cmp_ge_u32 s47, 27\ns_cselect_b32 s6, {OOB}, s6")
e("s_cmp_eq_u32 s47, 26\ns_cselect_b32 s7, 2, 1\nv_mov_b32 v5, s7\ns_waitcnt vmcnt(0)\ns_mov_b64 exec, 1")
e("buffer_atomic_add v5, v19, s[48:51], s6 offen sc1\ns_mov_b64 exec, -1")
e("L_ID2:")
g2_bases()
g2_setup()
wait_lds(12, 254, "2", sleep=True)
if OPT.get("warm", "0") == "1":
    e(f"s_and_b32 s6, s4, 1\ns_lshl2_add_u32 s6, s6, s5\ns_mul_i32 s6, s6, 276480\ns_mul_i32 s7, s3, 69120\ns_add_u32 s6, s6, s7\ns_add_u32 s6, s6, {W2F}\ns_mov_b32 s63, 17")
    e("L_WARM:")
    for k in range(4): e(f"buffer_load_dwordx4 {vr(192+4*k,4)}, v1, s[48:51], s6 offen offset:{1024*k} sc1")
    e(f"s_add_u32 s6, s6, 4096\ns_sub_u32 s63, s63, 1\ns_cmp_lg_u32 s63, 0\ns_cbranch_scc1 L_WARM")
for k in range([0, 2, 5][EW]):
    for op in w2_ops(k): op()
e("s_waitcnt vmcnt(0)")
if STAMPS:
    for r in _stG.regs[:4]: e(f"{MT} s[{r}:{r+1}]")
e("s_branch L_G2")

e("L_AUX:")
if OPT.get("cpf", "0") == "1":
    e("s_getpc_b64 s[96:97]")
    e("L_PC:")
    e(f"s_sub_u32 s96, s96, L_PC-{NAME}_kernel\ns_subb_u32 s97, s97, 0")
    e("s_and_b32 s6, s5, 7\ns_lshl_b32 s6, s6, 6\nv_add_u32 v1, s6, v0\nv_lshlrev_b32 v1, 7, v1")
    e(f"v_min_u32 v1, L_LAST-{NAME}_kernel, v1")
    e("s_cmp_lg_u32 s3, 6\ns_cbranch_scc1 L_PC2")
    e("global_load_dword v255, v1, s[96:97]")
    e("L_PC2:")
_stC = Stamper([76,78,80,82,84,86,88,90,92,94])
CSEL = OPT.get("cst", "ka,x,ln,kg,ex,u,cs,cd,st,pub").split(",")
class _C:
    def __call__(self, name):
        if name in CSEL:
            _stC.n = CSEL.index(name); _stC()
    def flush(self, *a):
        _stC.n = 10; _stC.flush(*a)
stC = _C()
zero_cnt(CNT2)
e("s_sub_u32 s13, s3, 4")
e("s_lshl_b32 s14, s4, 5\ns_add_u32 s14, s14, s5")
e("s_mul_i32 s15, s14, 10240")
e("v_lshrrev_b32 v1, 5, v0\ns_lshl_b32 s6, s13, 1\nv_add_u32 v1, s6, v1\nv_and_b32 v2, 31, v0")
e("v_mul_u32_u24 v3, 1280, v1\nv_lshl_add_u32 v3, v2, 3, v3")
chan_id(13)
e("s_lshl_b32 s10, s8, 8\ns_lshl_b32 s11, s8, 1\nv_lshlrev_b32 v12, 2, v0")
e(f"s_mul_i32 s9, s13, {CHSZ}\ns_add_u32 s9, s9, {CH0}")
e(f"v_mov_b32 v14, 0\nv_mov_b32 v15, {REL}\nds_write_b32 v15, v14")
for i in range(5):
    e(f"v_add_u32 v4, {64*i}, v0\nv_mul_u32_u24 v5, 3277, v4\nv_lshrrev_b32 v5, 16, v5")
    e("v_mul_u32_u24 v6, 20, v5\nv_sub_u32 v6, v4, v6\nv_lshlrev_b32 v6, 4, v6")
    e(f"s_movk_i32 s6, 1280\nv_mad_u32_u24 v{64+i}, v5, s6, v6\ns_movk_i32 s6, 336\nv_mad_u32_u24 v{69+i}, v5, s6, v6\nv_add_u32 v{69+i}, {SB}, v{69+i}")
e("s_waitcnt lgkmcnt(0)")
stC("ka")
XS = 20
def x_rows():
    srd(52, 16, 2621440)
    for i in range(5): e(f"buffer_load_dwordx2 {vr(XS+2*i,2)}, v3, s[52:55], s15 offen offset:{256*i}{ntx}")
e("s_cmp_eq_u32 s3, 7\ns_cbranch_scc1 L_A7")
x_rows()
param_loads(4, 12, 14, 10, 11, (56, 60, 64, 68))
srd(60, 28, 1280); e("buffer_load_ushort v19, v14, s[60:63], s11 offen")
e("s_barrier")
srd(48, 44, WS_SIZE); srd(72, 42, 256)
e("s_waitcnt vmcnt(6)")
e("s_branch L_LN")
e("L_A7:")
srd(48, 44, WS_SIZE); srd(72, 42, 256)
e("s_cmp_lg_u32 s2, 0\ns_cbranch_scc1 L_A1")
e(f"v_mul_u32_u24 v4, {FS_}, v0")
for r in range(32, 36): e(f"v_mov_b32 v{r}, 0")
for i in range(2):
    e(f"s_mov_b32 s6, {FLB+64*FS_*i}")
    e("buffer_store_dwordx4 v[32:35], v4, s[48:51], s6 offen sc1")
e("s_barrier")
e("s_waitcnt vmcnt(0)")
e("v_mov_b32 v32, 1\ns_mov_b64 exec, 1")
e("buffer_store_dword v32, v14, s[72:75], 0 offen sc1")
e("s_mov_b64 exec, -1")
x_rows()
e("s_branch L_A2")
e("L_A1:")
x_rows()
e("s_barrier")
e("L_A2:")
srd(56, 36, 2211840)
e(f"s_lshr_b32 s6, s2, 2\ns_mul_i32 s10, s6, 40960\ns_and_b32 s7, s2, 3\ns_mul_i32 s11, s7, 320\ns_add_u32 s10, s10, s11\ns_add_u32 s11, s10, 20480")
e("s_waitcnt vmcnt(0)")
e("L_LN:")
if NOAUX == "1": e("s_endpgm")
stC("x")
e(f"v_mul_u32_u24 v16, 1344, v1\nv_lshl_add_u32 v16, v2, 3, v16\nv_add_u32 v16, {SB}, v16")
e(f"v_lshlrev_b32 v17, 5, v1\nv_add_u32 v17, {SST}, v17")
XF = 32
for k in range(10): e(f"v_lshlrev_b32 v{XF+2*k}, 16, v{XS+k}\nv_and_b32 v{XF+2*k+1}, 0xffff0000, v{XS+k}")
e(f"v_add_f32 v52, v{XF}, v{XF+1}\nv_mul_f32 v54, v{XF}, v{XF}\nv_add_f32 v53, v{XF+2}, v{XF+3}\nv_mul_f32 v55, v{XF+1}, v{XF+1}")
e(f"v_fmac_f32 v54, v{XF+2}, v{XF+2}\nv_fmac_f32 v55, v{XF+3}, v{XF+3}")
for k in range(4, 20): e(f"v_add_f32 v{52+(k&1)}, v{52+(k&1)}, v{XF+k}\nv_fmac_f32 v{54+(k&1)}, v{XF+k}, v{XF+k}")
e("v_add_f32 v52, v52, v53\nv_add_f32 v54, v54, v55")
for m in ("quad_perm:[1,0,3,2]", "quad_perm:[2,3,0,1]", "row_half_mirror", "row_mirror"):
    e(f"v_add_f32_dpp v52, v52, v52 {m} row_mask:0xf bank_mask:0xf")
    e(f"v_add_f32_dpp v54, v54, v54 {m} row_mask:0xf bank_mask:0xf")
e("ds_swizzle_b32 v53, v52 offset:0x401F\nds_swizzle_b32 v55, v54 offset:0x401F\ns_waitcnt lgkmcnt(0)")
e("v_add_f32 v52, v52, v53\nv_add_f32 v54, v54, v55")
e(f"v_mul_f32 v52, {f32(1/640)}, v52\nv_mul_f32 v54, {f32(1/640)}, v54")
e("v_fma_f32 v54, -v52, v52, v54\nv_max_f32 v54, 0, v54")
def std_bf16(dst, var):
    rb(dst, var); e(f"v_add_f32 v{dst}, {f32(1e-5)}, v{dst}"); rb(dst, dst); e(f"v_sqrt_f32 v{dst}, v{dst}"); rb(dst, dst)
rb(56, 52); std_bf16(57, 54)
e("v_rcp_f32 v58, v57")
for k in range(20): e(f"v_sub_f32 v{XF+k}, v{XF+k}, v56")
for k in range(10): e(f"v_cvt_pk_bf16_f32 v{XS+k}, v{XF+2*k}, v{XF+2*k+1}")
for k in range(10): e(f"v_lshlrev_b32 v{XF+2*k}, 16, v{XS+k}\nv_and_b32 v{XF+2*k+1}, 0xffff0000, v{XS+k}")
for k in range(20): e(f"v_mul_f32 v{XF+k}, v{XF+k}, v58")
for k in range(10):
    e(f"v_cvt_pk_bf16_f32 v{XS+k}, v{XF+2*k}, v{XF+2*k+1}")
    if k & 1: e(f"ds_write_b64 v16, {vr(XS+k-1,2)} offset:{128*(k-1)}")
e("v_sub_f32 v59, v52, v56\nv_mul_f32 v59, v59, v58\nv_mul_f32 v60, v54, v58\nv_mul_f32 v60, v60, v58")
rb(59, 59); std_bf16(61, 60)
C0 = -2*0.7978845608028654*1.4426950408889634
e("v_mul_f32 v46, v57, v61\nv_fma_f32 v63, -v59, v57, -v56\nv_rcp_f32 v62, v46\nv_mov_b32 v43, 0\nv_mov_b32 v47, 0")
rb(32, 46); rb(33, 63)
e("v_sub_f32 v32, v46, v32\nv_sub_f32 v33, v63, v33\nv_mul_f32 v44, v62, v62")
e("v_cvt_pk_bf16_f32 v40, v46, v32\nv_cvt_pk_bf16_f32 v41, v63, v33\nv_cvt_pk_bf16_f32 v42, v63, v43")
e(f"v_mul_f32 v45, {f32(C0)}, v62\nv_mul_f32 v44, {f32(0.044715)}, v44\nv_mul_f32 v44, v44, v45")
e("s_mov_b32 s0, 1\ns_mov_b32 s1, 1\ns_mov_b64 exec, s[0:1]")
e("ds_write_b128 v17, v[40:43]\nds_write_b128 v17, v[44:47] offset:16")
e("s_mov_b64 exec, -1")
e("v_mov_b32 v61, 1\nds_write_b32 v9, v61")
stC("ln")
e("s_cmp_eq_u32 s3, 7\ns_cbranch_scc1 L_S")
e("s_cmp_ge_u32 s8, 640\ns_cbranch_scc1 L_END")
if "k" in EXP: e("s_endpgm")

e("s_waitcnt vmcnt(0)")
stC("par")
LAM, CC, YC, FY, FA, KT = 84, 88, 80, 128, 160, [112, 116]
EV = {2.0: 192, 32.0: 196, 1.0: 200, 2048.0: 204}
k_setup(4, LAM, CC, EV, [2.0, 32.0, 1.0, 2048.0], 2.0, (1.0, 2048.0), 64)
e("v_and_b32 v10, 15, v0\nv_lshrrev_b32 v11, 4, v0")
e(f"v_lshlrev_b32 v12, 3, v0\ns_add_u32 s6, s9, {TAB}\nv_add_u32 v12, s6, v12")
e(f"v_mul_u32_u24 v14, {TPI}, v10\nv_lshl_add_u32 v14, v11, 4, v14\nv_add_u32 v14, s6, v14")
y_init(YC)
stC("k0")
chain_loop([(YC, EV[2.0], 0), (CC, EV[32.0], 16)], 16, 0, 12, 13, 64, 10)
stC("k1")
e("s_waitcnt lgkmcnt(0)")
frag_reads(FY, 14, 0); frag_reads(FA, 14, 16)
e(f"v_cvt_pk_bf16_f32 v76, v{EV[2048.0]}, v{EV[2048.0]+1}\nv_cvt_pk_bf16_f32 v77, v{EV[2048.0]+2}, v{EV[2048.0]+3}")
k_mfma(KT[0], FA, FY)
e(f"ds_write_b64 v12, v[76:77] offset:{24*TPI}")
chain_loop([(EV[1.0], EV[32.0], 0)], 8, 16, 12, 13, 64, 10)
e("s_waitcnt lgkmcnt(0)")
frag_reads(FA, 14, 16)
e(f"s_add_u32 s10, s9, {TBOFF}")
e("v_lshlrev_b32 v20, 2, v10\nv_lshl_add_u32 v20, v11, 8, v20\nv_add_u32 v20, s10, v20")
e("v_lshlrev_b32 v21, 1, v10\nv_lshl_add_u32 v21, v11, 7, v21\nv_add_u32 v21, s10, v21")
e(f"v_subrev_u32 v15, {CNT2-CNT}, v9")
k_mfma(KT[1], FA, FY)
for r in range(4): e(f"v_cvt_pk_bf16_f32 v{24+r}, v{KT[0]+r}, v{KT[1]+r}")
e("s_mov_b32 exec_hi, 0")
for r in range(4): e(f"ds_write_b32 v20, v{24+r} offset:{64*r}")
e("s_mov_b32 exec_lo, 0\ns_mov_b32 exec_hi, -1")
for r in range(4): e(f"ds_write_b16 v21, v{24+r} offset:{256+32*r}")
e("s_mov_b32 exec_hi, 1")
e(f"ds_write_b16_d16_hi v21, v24 offset:{1280-256}")
e("s_mov_b64 exec, -1")
wait_lds(17, 15, OPT.get("expat", "11"), sleep=True)
stC("kg")
if "e" in EXP: e("s_endpgm")
UR = 128
e(f"v_lshlrev_b32 v16, 8, v11\nv_lshl_add_u32 v16, v10, 2, v16\nv_add_u32 v16, {CNT}, v16")
UL = e

e("v_lshlrev_b32 v24, 1, v0\nv_sub_u32 v22, 2047, v24\nv_sub_u32 v23, 2046, v24")
e("v_cvt_f32_i32 v22, v22\nv_cvt_f32_i32 v23, v23")
e(f"v_lshlrev_b32 v21, 2, v0\ns_add_u32 s6, s9, {KOFF-12}\nv_add_u32 v21, s6, v21")
e(f"s_add_u32 s6, s9, {TBOFF}\ns_sub_u32 s7, s6, {2*(0x4300-128)}\nv_mov_b32 v26, s7")
e(f"v_mov_b32 v30, {f32(-128.0)}")
e("v_lshlrev_b32 v27, 1, v24\nv_sub_u32 v27, s6, v27\nv_mov_b32 v28, 0")
def exp_rounds(n, lin=False):
    for k in range(n):
        t = 32 + 4*k
        if lin and k == n-1:
            e(f"ds_read_u16 v{t+1}, v27 offset:254\nds_read_u16 v{t+2}, v27 offset:252")
            continue
        e(f"v_cvt_pk_bf16_f32 v{t}, v22, v23")
        e("v_add_f32 v22, v22, v30\nv_add_f32 v23, v23, v30")
        e(f"v_mad_u32_u16 v{t+1}, v{t}, 2, v26")
        e(f"v_mad_u32_u16 v{t+2}, v{t}, 2, v26 op_sel:[1,0,0,0]")
        e(f"ds_read_u16 v{t+1}, v{t+1}\nds_read_u16 v{t+2}, v{t+2}")
    for k in range(n):
        t = 32 + 4*k
        e(f"s_waitcnt lgkmcnt({min(15, 2*(n-1-k) + 4*k)})")
        e(f"v_lshl_or_b32 v{t}, v{t+2}, 16, v{t+1}")
        for c in range(4): e(f"ds_write_b32 v21, v{t} offset:{c*(KCP+4) + 256*k}")
e("s_mov_b32 s10, 3")
e("L_EXP:")
exp_rounds(4)
e("v_add_u32 v21, 1024, v21")
e("s_sub_u32 s10, s10, 1\ns_cmp_lg_u32 s10, 0\ns_waitcnt lgkmcnt(0)\ns_cbranch_scc1 L_EXP")
exp_rounds(4, lin=True)
e("s_mov_b64 exec, 0x7fff")
for c in range(4): e(f"ds_write_b32 v21, v28 offset:{c*(KCP+4) + 1024}")
e("s_mov_b64 exec, -1")
e("v_mov_b32 v28, 2\nds_write_b32 v9, v28")
stC("ex")
e(f"s_mul_i32 s11, s13, {USZ}\ns_add_u32 s11, s11, {UB0}")
e(f"v_mov_b32 v18, {CNT2+768}")
stC("u")
e("v_lshrrev_b32 v12, 1, v10\nv_lshlrev_b32 v12, 6, v12\nv_lshl_add_u32 v12, v11, 4, v12")
e(f"v_and_b32 v13, 1, v10\nv_xor_b32 v13, 1, v13\nv_mul_u32_u24 v13, {U1OFF}, v13\nv_add_u32 v12, v12, v13")
e(f"s_add_u32 s6, s11, 448\nv_add_u32 v12, s6, v12")
e(f"v_and_b32 v13, 3, v10\nv_mul_u32_u24 v13, {KCP}, v13\nv_lshrrev_b32 v14, 2, v10\nv_sub_u32 v14, v11, v14\nv_lshl_add_u32 v13, v14, 4, v13")
e(f"s_add_u32 s6, s9, {KOFF+4080-3584}\nv_add_u32 v13, s6, v13")
CA, BU, BK = 20, [52, 116], [84, 148]
for r in range(CA, CA+32): e(f"v_mov_b32 v{r}, 0")
e("v_lshlrev_b32 v3, 4, v0\nv_add_u32 v3, s11, v3")
wait_lds(17, 18, "3", sleep=True)
for i in range(4):
    e(f"ds_read_b32 v{115+5*i}, v3 offset:{444+1024*i}")
    e(f"ds_read_b128 {vr(136+4*i,4)}, v3 offset:{448+1024*i}")
for i in range(4):
    e(f"s_waitcnt lgkmcnt({6-2*i+i})")
    e(f"v_alignbit_b32 v{152+4*i}, v{136+4*i}, v{115+5*i}, 16")
    for k in (1, 2, 3): e(f"v_alignbit_b32 v{152+4*i+k}, v{136+4*i+k}, v{136+4*i+k-1}, 16")
    e(f"ds_write_b128 v3, {vr(152+4*i,4)} offset:{U1OFF+448+1024*i}")
e("s_waitcnt lgkmcnt(0)")
def conv_reads(b):
    l = []
    for t in range(8):
        l.append(f"ds_read_b128 {vr(BU[b]+4*t,4)}, v12 offset:{512*t}")
        l.append(f"ds_read_b128 {vr(BK[b]+4*t,4)}, v13 offset:{512*(7-t)}")
    l.append("v_subrev_u32 v12, 64, v12\nv_subrev_u32 v13, 64, v13")
    return l
for l in conv_reads(0): e(l)
if OPT.get("gate", "1") == "1": wait_lds(17, 15, "12", sleep=True)
e(f"s_setprio {OPT.get('cprio', '3')}")
stC("cs")
e("s_mov_b32 s10, 4")
e("L_CV:")
for b in (0, 1):
    e("s_waitcnt lgkmcnt(0)")
    rd = conv_reads(1-b)
    n = 0
    for s_ in range(8):
        for t in range(8 - s_):
            a = CA + 4*(s_+t)
            e(f"v_mfma_f32_16x16x32_bf16 {vr(a,4)}, {vr(BU[b]+4*t,4)}, {vr(BK[b]+4*s_,4)}, {vr(a,4)}")
            if n < len(rd): e(rd[n])
            n += 1
e("s_sub_u32 s10, s10, 1\ns_cmp_lg_u32 s10, 0\ns_cbranch_scc1 L_CV")
stC("cd")
e(f"v_lshlrev_b32 v2, 7, v11\nv_lshl_add_u32 v2, v10, 2, v2\nv_add_u32 v3, s11, v2\ns_add_u32 s6, s9, {KOFF}\nv_add_u32 v2, s6, v2")
e("v_lshlrev_b32 v4, 4, v0\nv_add_u32 v5, s6, v4\nv_lshlrev_b32 v19, 16, v19")
e("s_waitcnt lgkmcnt(0)")
for k in range(16): e(f"ds_read_b32 v{52+k}, v3 offset:{448+512*(k//2)+64*(k%2)}")
e(f"s_lshl_b32 s6, s8, 12\ns_add_u32 s6, s6, {ST}")
for k in range(16):
    if k % 4 == 0: e(f"s_waitcnt lgkmcnt({min(15, 12-k+k)})")
    e(f"v_lshlrev_b32 v{68+2*(k%2)}, 16, v{52+k}\nv_and_b32 v{69+2*(k%2)}, 0xffff0000, v{52+k}")
    e(f"v_fmac_f32 v{CA+2*k}, v{68+2*(k%2)}, v19\nv_fmac_f32 v{CA+2*k+1}, v{69+2*(k%2)}, v19")
    e(f"v_cvt_pk_bf16_f32 v{52+k}, v{CA+2*k}, v{CA+2*k+1}")
    e(f"ds_write_b32 v2, v{52+k} offset:{512*(k//2)+64*(k%2)}")
for i in range(4): e(f"ds_read_b128 {vr(72+4*i,4)}, v5 offset:{1024*i}")
for i in range(4):
    e(f"s_waitcnt lgkmcnt({3-i})")
    e(f"buffer_store_dwordx4 {vr(72+4*i,4)}, v4, s[48:51], s6 offen offset:{1024*i} sc1")
stC("st")
e("s_waitcnt vmcnt(0)")
e(f"s_and_b32 s6, s8, 3\ns_lshl2_add_u32 s6, s4, s6\ns_mul_i32 s6, s6, {FS_}\ns_add_u32 s6, s6, {FL_C}")
e("v_mov_b32 v2, 0\nv_mov_b32 v3, 1\ns_mov_b64 exec, 1")
e("buffer_atomic_add v3, v2, s[48:51], s6 offen sc1")
stC("pub")
stC.flush(4, 5, (4, 9, 7))
e("s_endpgm")

e("L_S:")
stS = Stamper([82,84,86,88,90,92,94,96])
for i in range(10): e(f"buffer_load_dwordx4 {vr(128+4*i,4)}, v{64+i%5}, s[56:59], s{10 + i//5} offen{ntw2}")
e(f"v_lshrrev_b32 v1, 4, v0\nv_lshlrev_b32 v16, 8, v1\nv_and_b32 v17, 15, v0\nv_lshl_add_u32 v16, v17, 2, v16\nv_add_u32 v16, {CNT2}, v16")
e(f"v_bfe_u32 v13, v0, 2, 2\nv_mul_u32_u24 v13, 1344, v13\nv_lshl_add_u32 v13, v1, 5, v13")
e(f"v_and_b32 v2, 3, v0\nv_lshl_add_u32 v13, v2, 3, v13\nv_add_u32 v13, {SB}, v13")
e(f"v_lshlrev_b32 v4, 4, v0\nv_add_u32 v6, {SST}, v4")
e("buffer_load_dword v7, v14, s[72:75], 0 offen sc1")
wait_lds(17, 16, "1")
e("s_mov_b64 exec, 0xffff\nds_read_b128 v[20:23], v6\ns_mov_b64 exec, -1")
for i in range(10):
    e(f"ds_read_b64_tr_b16 {vr(80+4*i,2)}, v13 offset:{128*i}")
    e(f"ds_read_b64_tr_b16 {vr(82+4*i,2)}, v13 offset:{128*i+4*1344}")
e(f"s_lshl_b32 s6, s14, 8\ns_add_u32 s6, s6, {STATS}")
e("s_waitcnt lgkmcnt(15)\ns_mov_b64 exec, 0xffff")
e("buffer_store_dwordx4 v[20:23], v4, s[48:51], s6 offen sc1")
e("s_mov_b64 exec, -1")
stS()
e(f"v_lshrrev_b32 v1, 2, v0\nv_mul_u32_u24 v1, 336, v1\nv_lshl_add_u32 v1, v2, 3, v1\nv_add_u32 v1, {SB}, v1")
e(f"s_lshr_b32 s6, s2, 2\ns_mul_i32 s10, s6, 5120\ns_and_b32 s7, s2, 3\ns_mul_i32 s7, s7, {2*276480}\ns_add_u32 s10, s10, s7\ns_add_u32 s10, s10, {W2F}")
e(f"s_cmp_ge_u32 s2, 216\ns_cselect_b32 s10, {OOB}, s10\ns_add_u32 s15, s15, {XNB}")
if "H" in EXP: e(f"s_mov_b32 s10, {OOB}\ns_mov_b32 s15, {OOB}")
def relay(val): e(f"v_mov_b32 v8, {val}\nds_write_b32 v15, v8")
SLP = OPT.get("sleep", "1")
def vpoll(load, chk, target, sl, first=True):
    L = e.lab("AG")
    e(f"s_mov_b32 s12, {SPIN_MAX}")
    if not first: e(f"s_branch {L}_c")
    e(f"{L}:")
    e(load); e("s_waitcnt vmcnt(0)")
    e(f"{L}_c:")
    e(f"v_cmp_gt_u32 vcc, {target}, v{chk}\ns_cbranch_vccz {L}_d\ns_sleep {sl}\ns_sub_u32 s12, s12, 1\ns_cbranch_scc0 {L}")
    e(f"{L}_d:")
def arrive(so): e(f"v_mov_b32 v8, 1\ns_mov_b64 exec, 1\nbuffer_atomic_add v8, v14, s[48:51], {so} offen sc1\ns_mov_b64 exec, -1")
e("s_waitcnt vmcnt(0)")
vpoll("buffer_load_dword v7, v14, s[72:75], 0 offen sc1", 7, 1, 8, first=False)
e(f"s_lshr_b32 s6, s14, 4\ns_mul_i32 s6, s6, {FS_}\ns_add_u32 s6, s6, {FL_T}"); arrive("s6")
e("s_cmp_ge_u32 s5, 4\ns_cbranch_scc1 L_S1"); relay(1); e("L_S1:")
stS()
e("s_waitcnt lgkmcnt(0)")
for i in range(10): e(f"ds_write_b128 v{69+i%5}, {vr(128+4*i,4)} offset:{(i//5)*16*336}")
e("s_waitcnt lgkmcnt(0)")
for dt in range(10):
    e(f"ds_read_b64_tr_b16 {vr(128+4*dt,2)}, v1 offset:{32*dt}")
    e(f"ds_read_b64_tr_b16 {vr(130+4*dt,2)}, v1 offset:{32*dt+16*336}")
for i in range(10):
    if i in (4, 8): e("s_add_u32 s15, s15, 4096")
    e(f"buffer_store_dwordx4 {vr(80+4*i,4)}, v4, s[48:51], s15 offen offset:{1024*(i%4)} sc1")
e("s_waitcnt lgkmcnt(0)")
for half in (0, 1):
    e(f"s_add_u32 s6, s10, {half*276480}\ns_add_u32 s7, s6, 4096")
    for d5 in range(5):
        r = 128 + (half*5+d5)*4
        if d5 < 4: e(f"buffer_store_dwordx4 {vr(r,4)}, v4, s[48:51], s6 offen offset:{1024*d5} sc1")
        else: e(f"buffer_store_dwordx4 {vr(r,4)}, v4, s[48:51], s7 offen sc1")
e(f"v_add_u32 v18, {CNT-CNT2}, v16\nv_and_b32 v5, 7, v0\nv_mul_u32_u24 v5, {FS_}, v5\nv_add_u32 v5, {FL_A}, v5")
e("s_waitcnt vmcnt(0)")
e(f"s_mul_i32 s6, s4, {FS_}\ns_add_u32 s6, s6, {FL_A}"); arrive("s6")
stS()
e("s_cmp_lt_u32 s5, 4\ns_cbranch_scc1 L_S2")
e(f"s_sub_u32 s6, s5, 4\ns_mul_i32 s7, s6, 37\ns_lshr_b32 s7, s7, 8\ns_mul_i32 s0, s7, 7\ns_sub_u32 s0, s6, s0\ns_lshr_b32 s6, s4, 1\ns_lshl2_add_u32 s6, s6, s7\ns_mul_i32 s6, s6, {FS_}\ns_add_u32 s6, s6, {FL_T}")
e("s_add_u32 s40, s44, s6\ns_addc_u32 s41, s45, 0")
e(f"s_and_b32 s6, s4, 1\ns_mul_i32 s6, s6, 7\ns_add_u32 s6, s6, s0\ns_mul_i32 s6, s6, {FS_}\ns_add_u32 s6, s6, {FL_E}\ns_add_u32 s38, s44, s6\ns_addc_u32 s39, s45, 0")
wait_lds(17, 18, OPT.get("tpollat", "7"), sleep=True)
spoll(40, [0], 16, 4); spoll(38, [0], 2, 4); relay(1)
wait_lds(17, 18, OPT.get("apollat", "8"), sleep=True)
e("s_branch L_S3")
e("L_S2:")
if OPT.get("warm", "0") == "1": spoll(44, [FL_A+FS_*k for k in range(8)], 32, OPT.get("isleep", "12"))
else:
    e(f"v_mov_b32 v16, {CNT2}")
    if "k" not in EXP and "e" not in EXP: wait_lds(17, 16, "2", sleep=True)
e("L_S3:")
stS()
vpoll("buffer_load_dword v7, v5, s[48:51], 0 offen sc1", 7, 32, OPT.get("ssleep", "4")); relay(2)
stS()
g2_ids()
e(f"s_mul_i32 s10, s14, 276480\ns_add_u32 s10, s10, {W2F}")
wait_lds(17, 18, OPT.get("wat", "10"), sleep=True)
if OPT.get("w8", "0") == "1":
    e("s_and_b32 s6, s5, 7\ns_mul_i32 s6, s6, 34560\ns_add_u32 s6, s6, s10")
    for k in range(34):
        e(f"buffer_load_dwordx4 {vr(192+4*(k%16),4)}, v4, s[48:51], s6 offen offset:{1024*(k%4)} sc1")
        if k % 4 == 3: e("s_add_u32 s6, s6, 4096")
e("s_mul_i32 s7, s5, 3\ns_lshl1_add_u32 s8, s5, 16\ns_cmp_lt_u32 s5, 16\ns_cselect_b32 s8, s7, s8\ns_mul_i32 s6, s4, 80\ns_add_u32 s8, s8, s6")
e(f"v_lshrrev_b32 v2, 2, v0\nv_and_b32 v6, 3, v0\nv_mul_u32_u24 v3, 10240, v2\nv_lshl_add_u32 v3, v6, 4, v3")
e(f"s_lshl_b32 s6, s8, 4\ns_add_u32 s6, s6, {XNB}")
for r in range(16):
    e(f"buffer_load_dwordx4 {vr(128+4*r,4)}, v3, s[48:51], s6 offen sc1")
    if r < 15: e("s_add_u32 s6, s6, 163840")
e(f"v_mul_u32_u24 v6, {USZ}, v6\nv_lshl_add_u32 v2, v2, 4, v6\nv_add_u32 v2, {UB0}, v2")
for r in range(20, 24): e(f"v_mov_b32 v{r}, 0")
e(f"v_add_u32 v3, {UB0}, v4")
wait_lds(17, 18, "11", sleep=True)
e("s_mov_b64 exec, 0xfffffff")
for ch in range(3): e(f"ds_write_b128 v3, v[20:23] offset:{ch*USZ}\nds_write_b128 v3, v[20:23] offset:{ch*USZ+U1OFF}")
e("s_mov_b32 exec_lo, 0x77777777\ns_mov_b32 exec_hi, 0x77777777")
for r in range(16):
    e(f"s_waitcnt vmcnt({15-r})")
    e(f"ds_write_b128 v2, {vr(128+4*r,4)} offset:{448+256*r}")
e("s_mov_b64 exec, -1")
e("v_mov_b32 v8, 3\nds_write_b32 v9, v8")
e("v_add_u32 v5, 4096, v4")
for k in range(3):
    e(f"s_add_u32 s6, s15, {5+k}\ns_cmp_ge_u32 s6, 14\ns_cselect_b32 s7, 14, 0\ns_sub_u32 s6, s6, s7\ns_lshl_b32 s6, s6, 2")
    for w in range(4):
        e(f"s_add_u32 s7, s6, {w}\ns_mul_i32 s0, s7, 5120\ns_add_u32 s0, s0, s10\ns_cmp_ge_u32 s7, 54\ns_cselect_b32 s0, {OOB}, s0\ns_mov_b32 m0, {(w*3+k)*5120}\ns_nop 0")
        for dt in range(4): e(f"buffer_load_dwordx4 v4, s[48:51], s0 offen offset:{1024*dt} sc1 lds")
        e(f"s_mov_b32 m0, {(w*3+k)*5120+4096}\ns_nop 0\nbuffer_load_dwordx4 v5, s[48:51], s0 offen sc1 lds")
        e(f"s_waitcnt vmcnt({OPT.get('pfd', '30')})")
stS()
e("s_waitcnt vmcnt(0)"); relay(3)
stS()
wait_lds(17, 18, "13", sleep=True)
e(f"s_mul_i32 s6, s14, {4*FS_}\ns_add_u32 s6, s6, {FL_C}\ns_add_u32 s40, s44, s6\ns_addc_u32 s41, s45, 0")
if "k" not in EXP and "e" not in EXP: spoll(40, [FS_*k for k in range(4)], 20, OPT.get("csleep", "4"))
relay(4)
stS()
stS.regs = [76,78,80] + stS.regs; stS.n += 3
stS.flush(8, 9)
e("L_END:")
e("s_endpgm")
for l in tail[:-1]: e(l)
e("L_LAST:")
e(tail[-1])
if "P" in EXP:
    for c_ in e.I:
        if c_.mn == "buffer_store_dwordx4" and ("v4, s[48:51]" in c_.text): c_.text = c_.text.replace(" sc1", "")
nn = e.fix()

hdr = open("cdna_kernels/" + NAME + ".s.ref").read().split("; Override")[0]
s = hdr + f"; @launch grid=(256,1,1) block=(512,1,1) lds={LDS_TOTAL}\n"
s += f""".amdgcn_target "amdgcn-amd-amdhsa--gfx950"
.text
.globl {NAME}_kernel
.p2align 8
.type {NAME}_kernel,@function
{NAME}_kernel:
"""
s += e.text()
s += f""".section .rodata,"a"
.p2align 6
.amdhsa_kernel {NAME}_kernel
  .amdhsa_next_free_vgpr 256
  .amdhsa_next_free_sgpr 102
  .amdhsa_accum_offset 256
  .amdhsa_group_segment_fixed_size 0
  .amdhsa_kernarg_size 120
  .amdhsa_user_sgpr_count 2
  .amdhsa_user_sgpr_kernarg_segment_ptr 1
  .amdhsa_system_sgpr_workgroup_id_x 1
.end_amdhsa_kernel
"""
open(OUT, "w").write(s)
print("instrs", sum(1 for c in e.I if c.cls), "nops inserted", nn, "lds", LDS_TOTAL)
```

```python
import re
TRANS = ("v_exp_f32","v_log_f32","v_rcp_f32","v_rsq_f32","v_sqrt_f32","v_sin_f32","v_cos_f32")
def regs_of(op):
    op = op.strip()
    op = re.sub(r"^-|^abs\(|\)$", "", op)
    m = re.fullmatch(r"([vs])\[(\d+):(\d+)\]", op)
    if m: return {(m.group(1), i) for i in range(int(m.group(2)), int(m.group(3))+1)}
    m = re.fullmatch(r"([vs])(\d+)", op)
    if m: return {(m.group(1), int(m.group(2)))}
    if op in ("vcc",): return {("vcc",0)}
    if op in ("exec",): return {("exec",0)}
    if op == "m0": return {("m0",0)}
    return set()
class Ins:
    def __init__(self, text):
        self.text = text
        t = text.split(";")[0].strip()
        self.label = t.endswith(":")
        self.dir = t.startswith(".")
        self.w = set(); self.r = set(); self.cls = None; self.mn = ""
        self.A=set(); self.B=set(); self.C=set(); self.sdata=set()
        if self.label or self.dir or not t: return
        parts = t.split(None, 1)
        mn = parts[0]; self.mn = mn
        rest = parts[1] if len(parts) > 1 else ""
        ops = []; depth = 0; cur = ""
        for ch in rest:
            if ch == "[": depth += 1
            if ch == "]": depth -= 1
            if ch == "," and depth == 0: ops.append(cur.strip()); cur = ""
            else: cur += ch
        if cur.strip(): ops.append(cur.strip())
        mods = ""
        if ops:
            sp = ops[-1].split(None, 1)
            ops[-1] = sp[0]
            mods = sp[1] if len(sp) > 1 else ""
        self.ops = ops; self.mods = mods
        if mn.startswith("v_pk_") and mn.endswith("_f32"):
            assert not re.search(r"op_sel:\[0,1", mods), "unsafe op_sel pattern (HW bug beside MFMA): " + text
        R = [regs_of(o) for o in ops]
        U = lambda l: set().union(*l) if l else set()
        if mn.startswith("v_mfma"):
            self.cls = "mfma"; self.w = R[0]; self.A = R[1]; self.B = R[2]; self.C = R[3]; self.r = R[1]|R[2]|R[3]
        elif mn.startswith("v_"):
            self.cls = "valu"
            self.w = R[0]; self.r = U(R[1:])
            if mn.startswith(("v_fmac","v_dot2c","v_pk_fmac","v_writelane")): self.r |= R[0]
            if mn.startswith(("v_add_co","v_sub_co","v_addc_co")): self.w = R[0]|R[1]; self.r = U(R[2:])
            self.trans = mn.replace("_e32","").replace("_e64","") in TRANS
            self.dpp = "_dpp" in mn
            self.dot = mn.startswith("v_dot")
            if self.dpp and ("bound_ctrl" not in mods): self.r |= R[0]
        elif mn.startswith("ds_"):
            self.cls = "ds"
            if mn.startswith(("ds_read","ds_bpermute","ds_permute","ds_swizzle")): self.w = R[0]; self.r = U(R[1:])
            else: self.r = U(R)
        elif mn.startswith(("buffer_","global_")):
            self.cls = "vmem"
            lds = re.search(r"\blds\b", mods) is not None
            self.lds = lds
            if mn.startswith("buffer_inv") or mn.startswith("buffer_wbl2"): pass
            elif "_load_" in mn:
                if lds: self.r = U(R) | {("m0",0)}
                else: self.w = R[0]; self.r = U(R[1:])
            else:
                self.r = U(R)
                if mn.endswith(("x3","x4")):
                    self.sdata = R[0] if mn.startswith("buffer_") else R[1]
        elif mn.startswith("s_"):
            self.cls = "salu"
            if mn.startswith(("s_cmp","s_cbranch","s_branch","s_waitcnt","s_barrier","s_nop","s_sleep","s_setprio","s_endpgm","s_bitcmp")):
                self.r = U(R)
                if mn.startswith("s_cbranch_vcc"): self.r |= {("vcc",0)}
            else:
                self.w = R[0] if R else set(); self.r = U(R[1:])
                if "saveexec" in mn: self.w |= {("exec",0)}
        else:
            raise ValueError("unknown instr: " + text)
    def states(self):
        if self.label or self.dir or not self.cls: return 0
        if self.mn == "s_nop": return int(self.ops[0]) + 1
        return 1
def V(s): return {x for x in s if x[0] == "v"}
def S(s): return {x for x in s if x[0] in ("s","vcc")}
def need(p, c):
    n = 0
    if p.cls == "valu":
        vw = V(p.w); sw = S(p.w)
        if c.cls == "mfma" and vw & c.r: n = max(n, 2)
        if p.trans and c.cls in ("valu","ds","vmem") and vw & c.r and not (c.cls=="valu" and c.trans): n = max(n, 1)
        if c.cls == "valu":
            if sw & c.r: n = max(n, 4 if c.mn.startswith(("v_readlane","v_writelane")) else 2)
            if c.mn.startswith(("v_readfirstlane","v_readlane")) and vw & c.r: n = max(n, 1)
            if (c.dpp or c.mn.startswith("v_permlane")) and vw & c.r: n = max(n, 2)
            if p.dot and vw & (c.r | c.w):
                same_c = (c.mn == p.mn and not (vw & set().union(*[regs_of(o) for o in c.ops[1:3]])))
                if not same_c: n = max(n, 3)
            if "sdwa" in p.mn and "dst_sel:DWORD" not in p.mods and vw & (c.r|c.w): n = max(n, 1)
        elif p.dot and vw & (c.r | c.w): n = max(n, 3)
        if c.cls == "vmem" and sw & c.r: n = max(n, 5)
        if c.cls == "salu" and sw & c.r: n = max(n, 1)
    if p.cls == "mfma":
        big = "32x32" in p.mn
        if c.cls == "mfma":
            if p.w & (c.A | c.B): n = max(n, 12 if big else 8)
            if p.w & c.C and p.w != c.C: n = max(n, 10 if big else 6)
            if p.w & c.w and not (p.w == c.C): n = max(n, 10 if big else 6)
        elif c.cls in ("valu","ds","vmem"):
            if p.w & (c.r | c.w): n = max(n, 12 if big else 8)
            if c.cls == "valu" and p.C & c.w: n = max(n, 7 if big else 3)
    if p.cls == "salu" and ("m0",0) in p.w and c.cls == "vmem" and ("m0",0) in c.r: n = max(n, 1)
    if p.cls == "vmem" and p.sdata and p.sdata & c.w: n = max(n, 2 if c.cls == "valu" else 1)
    return n
class Em:
    def __init__(self):
        self.I = []; self.nl = 0
    def __call__(self, s):
        for l in s.split("\n"):
            l = l.strip()
            if l: self.I.append(Ins(l))
    def lab(self, p="L"):
        self.nl += 1; return f"{p}_{self.nl}"
    def _req(self, hist, c):
        d = 0; req = 0
        for p in reversed(hist):
            if d >= 20: break
            if p.cls:
                req = max(req, need(p, c) - d)
            d += p.states()
        return req
    def fix(self):
        changed = True; total = 0
        while changed:
            changed = False
            out = []
            for c in self.I:
                if c.cls:
                    h = []
                    for p in reversed(out[-40:]):
                        if p.mn in ("s_branch","s_endpgm","s_setpc_b64"): break
                        h.append(p)
                    h.reverse()
                    r = self._req(h, c)
                    if r > 0:
                        out.append(Ins(f"s_nop {r-1}")); total += 1; changed = True
                out.append(c)
            self.I = out
            labs = {c.text.split(";")[0].strip()[:-1]: i for i, c in enumerate(self.I) if c.label}
            for i, c in enumerate(self.I):
                if c.mn.startswith(("s_cbranch","s_branch")):
                    t = labs[c.ops[0]]
                    h = self.I[max(0,i-40):i+1]
                    r = 0; d = 0; hh = list(h)
                    for k in range(t, min(len(self.I), t+30)):
                        x = self.I[k]
                        if x.cls:
                            r = max(r, self._req(hh, x))
                            if x.mn in ("s_branch","s_endpgm"): break
                        hh.append(x); d += x.states()
                        if d > 20: break
                    if r > 0:
                        self.I.insert(i, Ins(f"s_nop {r-1}")); total += 1; changed = True
                        break
        return total
    def text(self):
        return "\n".join((c.text if (c.label or c.dir) else "    " + c.text) for c in self.I) + "\n"

class Q:
    def __init__(self, em, name, cap):
        self.em = em; self.name = name; self.cap = cap; self.q = []
    def issue(self, tag): self.q.append(tag)
    def count_for(self, tags):
        if not isinstance(tags, (list, set)): tags = [tags]
        idx = [i for i, t in enumerate(self.q) if t in tags]
        if not idx: return None
        return len(self.q) - 1 - max(idx)
    def wait(self, tags):
        n = self.count_for(tags)
        if n is None: return
        n = min(n, self.cap)
        self.em(f"s_waitcnt {self.name}({n})")
        self.q = self.q[len(self.q)-n:] if n else []
    def wait_all(self):
        self.em(f"s_waitcnt {self.name}(0)"); self.q = []
    def clear(self): self.q = []
```

```python
import sys, struct
from emit import Em, Q
NAME = "recurrent_scan__ssm_conv_s4d__mixer_channel_mlp__prompt"
DBGST = "--dbg" in sys.argv
STAMPS = "--stamps" in sys.argv or DBGST
OPT = dict(rot="0", cpf="1", expat="1", tpollat="7", apollat="9", nt="wp")
OPT.update(a[2:].split("=") for a in sys.argv[1:] if a.startswith("--") and "=" in a)
OUT = [a for a in sys.argv[1:] if not a.startswith("--")]
OUT = OUT[0] if OUT else "k.s"
NOAUX = OPT.get("noaux", "0")
EXP = OPT.get("exp", "")
RELAT = int(OPT.get("relat", "16"))
HELP = OPT.get("help", "1") == "1"
OSP = {"": "", "sc1": " sc1", "nt": " nt", "sc01": " sc0 sc1", "sc1nt": " sc1 nt"}[OPT.get("osp", "")]
NT = OPT.get("nt", "")
ntw2 = " nt" if "w" in NT else ""; ntp = " nt" if "p" in NT else ""; ntx = " nt" if "x" in NT else ""; ntg = " nt" if "g" in NT else ""
MT = "s_memtime" if "--cyc" in sys.argv else "s_memrealtime"

FS_ = int(OPT.get("fs", "128"))
FLB = 0x2C0000 if FS_ > 128 else 0
FL_A, FL_H, FL_C, FL_T, FL_E = [FLB + FS_*k for k in (0, 8, 40, 72, 88)]
STATS = 0x4000
XNB = 0x20000
WE = 0x2B0000
W2F = 0x300000
HF = 0x600000
ST = 0xD00000
STAMP = 0xFC0000
WS_SIZE = 0x1000000
OOB = 0x20000000
KSTEP = 8192
XST = 8 * KSTEP
CH0 = XST + 32768
CHSZ = 18176
SB = CH0 + 3 * CHSZ
SBP, SBW, SBF = 1280, 320, 160
CNT = SB + 10240
CNT2 = CNT + 256
SST = CNT2 + 256
REL = CH0 + 1284
LDS_TOTAL = SST + 256
assert LDS_TOTAL <= 163840, LDS_TOTAL
UB0, USZ, U1OFF = 61440, 9152, 4576
assert UB0 + 3*USZ <= CH0
KOFF, KCP = 1312, 4160
TBOFF, TAB, TPI = 0, 1296, 528
SPIN_MAX = 8192
LOG2E = 0x3fb8aa3b
INV2PI = 0x3e22f983

e = Em()
tail = []
def f32(x): return "0x%08x" % struct.unpack("<I", struct.pack("<f", x))[0]
def srd(r, ptr, size):
    e(f"s_mov_b32 s{r}, s{ptr}\ns_mov_b32 s{r+1}, s{ptr+1}\ns_mov_b32 s{r+2}, {size}\ns_mov_b32 s{r+3}, 0x20000")
def vr(a, n): return f"v[{a}:{a+n-1}]"

class Stamper:
    def __init__(self, regs): self.regs = regs; self.n = 0
    def __call__(self):
        if not STAMPS: return
        r = self.regs[self.n]; self.n += 1
        e(f"{MT} s[{r}:{r+1}]")
    def flush(self, v0, v1, dbg=None):
        if not STAMPS: return
        e("s_waitcnt lgkmcnt(0)")
        if DBGST:
            if dbg is None: return
            wave, off, n = dbg
            L = e.lab("NODBG")
            e(f"s_cmp_lg_u32 s2, 100\ns_cbranch_scc1 {L}\ns_cmp_lg_u32 s3, {wave}\ns_cbranch_scc1 {L}")
            e(f"v_mov_b32 v{v1}, 0\ns_mov_b64 exec, 1")
            for i, r in enumerate(self.regs[:n]):
                e(f"s_sub_u32 s{r}, s{r}, s46\nv_mov_b32 v{v0}, s{r}")
                e(f"buffer_store_dword v{v0}, v{v1}, s[72:75], 0 offen offset:{4*(off+i)}")
                e("s_nop 0")
            e("s_waitcnt vmcnt(0)")
            e(f"{L}:")
            return
        e("s_lshl_b32 s6, s2, 3\ns_add_u32 s6, s6, s3\ns_lshl_b32 s6, s6, 6")
        e(f"s_add_u32 s6, s6, {STAMP}")
        e(f"v_mov_b32 v{v1}, 0")
        e("s_mov_b64 exec, 1")
        for i, r in enumerate([46] + self.regs[:self.n]):
            e(f"v_mov_b32 v{v0}, s{r}")
            e(f"buffer_store_dword v{v0}, v{v1}, s[48:51], s6 offen offset:{4*i}")
            e("s_nop 0")
        e("s_waitcnt vmcnt(0)")

def spin_lds(vchk, vaddr, val, sleep=False, after=(), pre_cmp=True, branch="s_cbranch_vccnz"):
    if NOAUX != "0" and not val.startswith("v"): return
    L = e.lab("SPIN"); B = e.lab("BACK")
    if pre_cmp: e(f"v_cmp_gt_u32 vcc, {val}, v{vchk}")
    e(f"{branch} {L}")
    e(f"{B}:")
    D = f"{L}_d" if after else B
    tail.extend([f"{L}:", f"s_mov_b32 s12, {SPIN_MAX*16}", f"{L}_a:"] + (["s_sleep 1"] if sleep else []) +
                [f"ds_read_b32 v{vchk}, v{vaddr}", "s_waitcnt lgkmcnt(0)",
                 f"v_cmp_gt_u32 vcc, {val}, v{vchk}", f"s_cbranch_vccz {D}", "s_sub_u32 s12, s12, 1", f"s_cbranch_scc0 {L}_a"] +
                ([f"{D}:"] + list(after) if after else []) + [f"s_branch {B}"])
def wait_lds(vchk, vaddr, val, sleep=False):
    e(f"ds_read_b32 v{vchk}, v{vaddr}\ns_waitcnt lgkmcnt(0)")
    spin_lds(vchk, vaddr, val, sleep)
def spoll(base, offs, target, sl, r0=16):
    if NOAUX != "0": return
    L = e.lab("AG")
    e(f"s_mov_b32 s12, {SPIN_MAX}")
    e(f"{L}:")
    for k, o in enumerate(offs): e(f"s_load_dword s{r0+k}, s[{base}:{base+1}], {o} glc")
    e("s_waitcnt lgkmcnt(0)")
    for k in range(1, len(offs)): e(f"s_min_u32 s{r0}, s{r0}, s{r0+k}")
    e(f"s_cmp_ge_u32 s{r0}, {target}\ns_cbranch_scc1 {L}_d\ns_sleep {sl}\ns_sub_u32 s12, s12, 1\ns_cbranch_scc0 {L}")
    e(f"{L}_d:")
def rb(dst, src):
    e(f"v_cvt_pk_bf16_f32 v{dst}, v{src}, v{src}\nv_and_b32 v{dst}, 0xffff0000, v{dst}")
def zero_cnt(base):
    e(f"s_and_b32 s6, s3, 3\ns_lshl_b32 s6, s6, 6\ns_add_u32 s6, s6, {base}")
    e("v_and_b32 v9, 15, v0\nv_lshlrev_b32 v9, 2, v9\nv_add_u32 v9, s6, v9\nv_mov_b32 v11, 0")
    e("ds_write_b32 v9, v11")

e("s_cmp_ge_u32 s2, 256")
e("s_cbranch_scc1 L_END")
if STAMPS: e(f"{MT} s[46:47]")
e("s_load_dwordx16 s[16:31], s[0:1], 0")
e("s_load_dwordx8 s[32:39], s[0:1], 64")
e("s_load_dwordx4 s[40:43], s[0:1], 96")
e("s_load_dwordx2 s[44:45], s[0:1], 112")
e("v_lshrrev_b32 v1, 6, v0")
e("v_and_b32 v0, 63, v0")
e("v_readfirstlane_b32 s3, v1")
e("s_and_b32 s4, s2, 7")
e("s_lshr_b32 s5, s2, 3")
if OPT.get("idlelast", "1") == "1": e("s_add_u32 s5, s5, 4\ns_and_b32 s5, s5, 31")
e("s_cmp_ge_u32 s3, 4")
e("s_cbranch_scc1 L_AUX")

def chan_id(cw):
    e("s_mul_i32 s7, s5, 3\ns_lshl1_add_u32 s8, s5, 16\ns_cmp_lt_u32 s5, 16\ns_cselect_b32 s8, s7, s8\ns_cselect_b32 s7, 3, 2")
    e(f"s_add_u32 s8, s8, s{cw}\ns_mul_i32 s6, s4, 80\ns_add_u32 s8, s8, s6\ns_cmp_ge_u32 s{cw}, s7\ns_cselect_b32 s8, 640, s8")
def param_loads(P, voff, vz, so, so2, R):
    for k, p in enumerate((18, 20, 22, 24)):
        srd(R[k], p, 163840)
        e(f"buffer_load_dword v{P+k}, v{voff}, s[{R[k]}:{R[k]+3}], s{so} offen{ntp}")
    srd(R[0], 26, 1280); e(f"buffer_load_ushort v{P+4}, v{vz}, s[{R[0]}:{R[0]+3}], s{so2} offen")
def k_setup_pk(P, LAM, CC, EV, PS, conj, starts, TM):
    DT = P + 4
    e(f"v_lshlrev_b32 v{DT}, 16, v{DT}\nv_mul_f32 v{DT}, {LOG2E}, v{DT}\nv_exp_f32 v{DT}, v{DT}")
    for k, d in enumerate((LAM, LAM+2, CC, CC+2)): e(f"v_lshlrev_b32 v{d}, 16, v{P+k}\nv_and_b32 v{d+1}, 0xffff0000, v{P+k}")
    rb(DT, DT)
    for n in (0, 1): e(f"v_mul_f32 v{LAM+n}, {LOG2E}, v{LAM+n}")
    for n in (0, 1): e(f"v_exp_f32 v{LAM+n}, v{LAM+n}")
    e(f"v_add_f32 v{P}, v{DT}, v{DT}")
    e(f"v_cvt_pk_bf16_f32 v{P+1}, v{LAM}, v{LAM+1}\nv_lshlrev_b32 v{LAM}, 16, v{P+1}\nv_and_b32 v{LAM+1}, 0xffff0000, v{P+1}")
    for d in (LAM, LAM+2): e(f"v_pk_mul_f32 {vr(d,2)}, {vr(d,2)}, {vr(DT,2)} op_sel_hi:[1,0]")
    for d in (CC, CC+2): e(f"v_pk_mul_f32 {vr(d,2)}, {vr(d,2)}, {vr(P,2)} op_sel_hi:[1,0]")
    for n in (0, 1): e(f"v_mul_f32 v{LAM+n}, {f32(-1.4426950408889634)}, v{LAM+n}\nv_mul_f32 v{LAM+2+n}, {INV2PI}, v{LAM+2+n}")
    for i, p in enumerate(PS):
        for k in range(4): e(f"v_mul_f32 v{TM+4*i+k}, {f32(p)}, v{LAM+k}")
    for i, p in enumerate(PS):
        for n in (0, 1): e(f"v_exp_f32 v{TM+4*i+n}, v{TM+4*i+n}\nv_fract_f32 v{TM+4*i+2+n}, v{TM+4*i+2+n}")
    for i, p in enumerate(PS):
        for n in (0, 1): e(f"v_cos_f32 v{EV[p]+n}, v{TM+4*i+2+n}\nv_sin_f32 v{EV[p]+2+n}, v{TM+4*i+2+n}")
    for i, p in enumerate(PS):
        e(f"v_pk_mul_f32 {vr(EV[p],2)}, {vr(EV[p],2)}, {vr(TM+4*i,2)}")
        e(f"v_pk_mul_f32 {vr(EV[p]+2,2)}, {vr(EV[p]+2,2)}, {vr(TM+4*i,2)}" + (" neg_lo:[1,0] neg_hi:[1,0]" if p == conj else ""))
    pk_step([(EV[p], CC, TM+2*i) for i, p in enumerate(starts)])
def pk_step(g, mid=()):
    for (z, m, t) in g: e(f"v_pk_mul_f32 {vr(t,2)}, {vr(z+2,2)}, {vr(m+2,2)}")
    for l in mid: e(l)
    for (z, m, t) in g: e(f"v_pk_mul_f32 {vr(z+2,2)}, {vr(z+2,2)}, {vr(m,2)}")
    for (z, m, t) in g: e(f"v_pk_fma_f32 {vr(z+2,2)}, {vr(z,2)}, {vr(m+2,2)}, {vr(z+2,2)}")
    for (z, m, t) in g: e(f"v_pk_fma_f32 {vr(z,2)}, {vr(z,2)}, {vr(m,2)}, {vr(t,2)} neg_lo:[0,0,1] neg_hi:[0,0,1]")
def chain_pk(ch, n, row0, VB, TM):
    for u in range(n):
        for i, (z, m, off) in enumerate(ch):
            e(f"v_cvt_pk_bf16_f32 v{TM+4*(u&1)+2*i}, v{z}, v{z+2}\nv_cvt_pk_bf16_f32 v{TM+1+4*(u&1)+2*i}, v{z+1}, v{z+3}")
        wr = [f"ds_write_b64 v{VB}, {vr(TM+4*(u&1)+2*i,2)} offset:{(row0+off+u)*TPI}" for i, (z, m, off) in enumerate(ch)]
        pk_step([(z, m, TM+8+2*i) for i, (z, m, off) in enumerate(ch)], wr)
def k_setup(P, LAM, CC, EV, PS, conj, starts, TM):
    DT = P + 4
    e(f"v_lshlrev_b32 v{DT}, 16, v{DT}\nv_mul_f32 v{DT}, {LOG2E}, v{DT}\nv_exp_f32 v{DT}, v{DT}")
    for n in (0, 1):
        up = (lambda d, s: e(f"v_lshlrev_b32 v{d}, 16, v{s}")) if n == 0 else (lambda d, s: e(f"v_and_b32 v{d}, 0xffff0000, v{s}"))
        up(LAM+2*n, P); up(LAM+2*n+1, P+1); up(CC+2*n, P+2); up(CC+2*n+1, P+3)
    rb(DT, DT)
    for n in (0, 1): e(f"v_mul_f32 v{LAM+2*n}, {LOG2E}, v{LAM+2*n}")
    for n in (0, 1): e(f"v_exp_f32 v{LAM+2*n}, v{LAM+2*n}")
    e(f"v_add_f32 v{P}, v{DT}, v{DT}")
    for n in (0, 1): rb(LAM+2*n, LAM+2*n)
    for n in (0, 1):
        e(f"v_mul_f32 v{LAM+2*n}, v{LAM+2*n}, v{DT}\nv_mul_f32 v{LAM+2*n+1}, v{LAM+2*n+1}, v{DT}")
        e(f"v_mul_f32 v{CC+2*n}, v{CC+2*n}, v{P}\nv_mul_f32 v{CC+2*n+1}, v{CC+2*n+1}, v{P}")
    for n in (0, 1):
        e(f"v_mul_f32 v{LAM+2*n}, {f32(-1.4426950408889634)}, v{LAM+2*n}\nv_mul_f32 v{LAM+2*n+1}, {INV2PI}, v{LAM+2*n+1}")
    it = [(p, n) for p in PS for n in (0, 1)]
    tm = {k: TM + 2*i for i, k in enumerate(it)}
    for (p, n) in it:
        if p == 1.0: e(f"v_exp_f32 v{tm[p,n]}, v{LAM+2*n}\nv_fract_f32 v{tm[p,n]+1}, v{LAM+2*n+1}")
        else: e(f"v_mul_f32 v{tm[p,n]}, {f32(p)}, v{LAM+2*n}\nv_mul_f32 v{tm[p,n]+1}, {f32(p)}, v{LAM+2*n+1}")
    for (p, n) in it:
        if p != 1.0: e(f"v_exp_f32 v{tm[p,n]}, v{tm[p,n]}\nv_fract_f32 v{tm[p,n]+1}, v{tm[p,n]+1}")
    for (p, n) in it: e(f"v_cos_f32 v{EV[p]+2*n}, v{tm[p,n]+1}\nv_sin_f32 v{EV[p]+2*n+1}, v{tm[p,n]+1}")
    for (p, n) in it:
        neg = "-" if p in conj else ""
        e(f"v_mul_f32 v{EV[p]+2*n}, v{EV[p]+2*n}, v{tm[p,n]}")
        e(f"v_mul_f32 v{EV[p]+2*n+1}, {neg}v{EV[p]+2*n+1}, v{tm[p,n]}")
    g_ = [(EV[p]+2*n, CC+2*n, TM+2*i+n) for i, p in enumerate(starts) for n in (0, 1)]
    for (z, m, t) in g_: e(f"v_mul_f32 v{t}, v{z+1}, v{m+1}")
    for (z, m, t) in g_: e(f"v_mul_f32 v{z+1}, v{z+1}, v{m}")
    for (z, m, t) in g_: e(f"v_fmac_f32 v{z+1}, v{z}, v{m+1}")
    for (z, m, t) in g_: e(f"v_fma_f32 v{z}, v{z}, v{m}, -v{t}")
def chain_loop(ch, n, row0, VB, VA, TM, SC):
    L = e.lab("KL")
    UN = min(n, int(OPT.get("kun", "4")))
    if n > UN: e(f"s_mov_b32 s{SC}, {n//UN}")
    e(f"v_add_u32 v{VA}, {row0*TPI}, v{VB}")
    e(f"{L}:")
    for u in range(UN):
        for i, (z, m, off) in enumerate(ch):
            e(f"v_cvt_pk_bf16_f32 v{TM+4*(u&1)+2*i}, v{z}, v{z+1}\nv_cvt_pk_bf16_f32 v{TM+1+4*(u&1)+2*i}, v{z+2}, v{z+3}")
        g = [(z+2*k, m+2*k, TM+8+2*i+k) for i, (z, m, off) in enumerate(ch) for k in (0, 1)]
        for (z, m, t) in g: e(f"v_mul_f32 v{t}, v{z+1}, v{m+1}")
        for i, (z, m, off) in enumerate(ch): e(f"ds_write_b64 v{VA}, {vr(TM+4*(u&1)+2*i,2)} offset:{(off+u)*TPI}")
        for (z, m, t) in g: e(f"v_mul_f32 v{z+1}, v{z+1}, v{m}")
        if u == UN-1 and n > UN: e(f"v_add_u32 v{VA}, {UN*TPI}, v{VA}")
        for (z, m, t) in g: e(f"v_fmac_f32 v{z+1}, v{z}, v{m+1}")
        if u == UN-1 and n > UN: e(f"s_sub_u32 s{SC}, s{SC}, 1\ns_cmp_lg_u32 s{SC}, 0")
        for (z, m, t) in g: e(f"v_fma_f32 v{z}, v{z}, v{m}, -v{t}")
    if n > UN: e(f"s_cbranch_scc1 {L}")
def y_init(Y): e(f"v_mov_b32 v{Y}, 1.0\nv_mov_b32 v{Y+1}, 0\nv_mov_b32 v{Y+2}, 1.0\nv_mov_b32 v{Y+3}, 0")
def frag_reads(dst, VF, row0):
    for s_ in range(8): e(f"ds_read_b128 {vr(dst+4*s_,4)}, v{VF} offset:{64*s_+row0*TPI}")
def k_mfma(K, FA, FY):
    for s_ in range(8):
        e(f"s_waitcnt lgkmcnt({7-s_})")
        e(f"v_mfma_f32_16x16x32_bf16 {vr(K,4)}, {vr(FA+4*s_,4)}, {vr(FY+4*s_,4)}, {vr(K,4) if s_ else 0}")
def g2_ids():
    e("s_and_b32 s6, s5, 7\ns_lshr_b32 s13, s4, 1\ns_lshl3_add_u32 s13, s13, s6\ns_lshr_b32 s7, s5, 3\ns_and_b32 s14, s4, 1\ns_lshl2_add_u32 s14, s14, s7")
    e("s_mul_i32 s15, s7, 7\ns_lshr_b32 s15, s15, 1")

_stG = Stamper([30,32,34,36,38,96,98,100])
GSEL = OPT.get("gst", "c0,g1,ep,hp,hs,g2,rd,end").split(",")
class _G:
    def __call__(self, name):
        if name in GSEL:
            _stG.n = GSEL.index(name); _stG()
    def flush(self, *a):
        _stG.n = 8; _stG.flush(*a)
stG = _G()
vm = Q(e, "vmcnt", 63); lg = Q(e, "lgkmcnt", 15)
XR, VXA, WB = 48, 244, 80
ACC = 112
VCHK, VREL = 250, 251
WEF, XEF, XEC = 176, 192, 196
sK = [76+i for i in range(14)]
HP = 112
e(f"s_setprio {OPT.get('gprio', '2')}")
zero_cnt(CNT)
e("v_lshrrev_b32 v10, 4, v0")
e("v_and_b32 v8, 15, v0")
g2_ids()
if HELP: chan_id(3)
if HELP: e(f"s_lshl_b32 s60, s8, 8\ns_lshl_b32 s61, s8, 1\ns_mov_b32 s62, s8\nv_lshlrev_b32 v117, 2, v0\nv_mov_b32 v118, 0")
e("s_cmp_lt_u32 s5, 4")
e("s_cbranch_scc1 L_IDLE")
e("s_sub_u32 s6, s5, 4\ns_mul_i32 s7, s6, 37\ns_lshr_b32 s7, s7, 8\ns_mul_i32 s8, s7, 7\ns_sub_u32 s6, s6, s8")
e("s_lshr_b32 s8, s4, 1\ns_lshl_b32 s8, s8, 2\ns_add_u32 s8, s8, s7")
e("s_and_b32 s9, s4, 1\ns_mul_i32 s9, s9, 7\ns_add_u32 s9, s9, s6")
e("s_lshl_b32 s11, s9, 8")
ROT = OPT.get("rot", "1") != "0"
sW = list(range(16, 26)); sX = [26, 27, 28, 29, 90, 91, 92, 93, 94, 95]
if ROT:
    e("s_mul_i32 s12, s6, 370\ns_lshr_b32 s12, s12, 8\ns_mul_i32 s7, s7, 5\ns_lshr_b32 s7, s7, 1\ns_add_u32 s12, s12, s7")
    e("s_cmp_ge_u32 s12, 10\ns_cselect_b32 s7, 10, 0\ns_sub_u32 s12, s12, s7")
def rot_tab(ps):
    if not ROT: return
    for p in ps:
        if p: e("s_add_u32 s12, s12, 1\ns_cmp_eq_u32 s12, 10\ns_cselect_b32 s12, 0, s12")
        e(f"s_mul_i32 s{sW[p]}, s12, 221184\ns_add_u32 s{sW[p]}, s{sW[p]}, s11\ns_lshl_b32 s{sX[p]}, s12, 7")
e("v_bfe_u32 v1, v0, 2, 2\ns_lshl_b32 s6, s3, 3\nv_add_u32 v1, s6, v1\nv_mul_u32_u24 v1, 3456, v1")
e("v_lshl_add_u32 v1, v10, 6, v1\nv_and_b32 v2, 3, v0\nv_lshl_add_u32 v1, v2, 4, v1")
e(f"v_add_u32 v2, {4*3456-1024}, v1")
e("s_lshl_b32 s6, s8, 7\ns_lshl_b32 s7, s3, 5\ns_add_u32 s6, s6, s7")
e("v_lshrrev_b32 v5, 3, v0\nv_add_u32 v3, s6, v5\nv_mul_u32_u24 v3, 1280, v3\nv_and_b32 v6, 7, v0\nv_lshrrev_b32 v5, 1, v5\nv_xor_b32 v6, v6, v5")
e(f"v_xor_b32 v5, 4, v6\nv_lshl_add_u32 v4, v5, 4, v3\nv_add_u32 v4, {10240-1024}, v4\nv_lshl_add_u32 v3, v6, 4, v3")
e(f"s_lshl_b32 s10, s3, 13\ns_add_u32 s10, s10, {XST}")
e("s_waitcnt lgkmcnt(0)")
def g_params():
    if not HELP: return
    param_loads(HP, 117, 118, 60, 61, (64, 68, 72, 48))
    for _ in range(5): vm.issue("par")
g_params()
e("s_barrier")
e("s_lshl_b32 s1, s3, 11")
srd(56, 32, 2211840); srd(52, 16, 2621440)
rot_tab(range(1))
def w_ops(step):
    def a():
        if ROT: e(f"s_add_u32 m0, s1, {(step % 8)*KSTEP}\ns_add_u32 s0, s{sW[step//2]}, {(step % 2)*110592}")
        else: e(f"s_add_u32 m0, s1, {(step % 8)*KSTEP}\ns_add_u32 s0, s11, {step*110592}")
        e(f"buffer_load_dwordx4 v1, s[56:59], s0 offen{ntg} lds"); vm.issue(("w", step//2))
    def b():
        e(f"buffer_load_dwordx4 v2, s[56:59], s0 offen offset:1024{ntg} lds"); vm.issue(("w", step//2))
    return [a, b]
def x_ops(u):
    def a():
        if ROT: e(f"s_add_u32 m0, s10, {(u % 4)*2048}\ns_add_u32 s0, s{sX[u//2]}, {(u % 2)*20480}")
        else: e(f"s_add_u32 m0, s10, {(u % 4)*2048}\ns_mov_b32 s0, {(u//2)*128 + (u % 2)*20480}")
        e("buffer_load_dwordx4 v3, s[52:55], s0 offen lds"); vm.issue(("x", u))
    def b():
        e("buffer_load_dwordx4 v4, s[52:55], s0 offen offset:1024 lds"); vm.issue(("x", u))
    return [a, b]
def x_read(c, kk):
    if kk == 0: vm.wait(("x", 2*c+1))
    e(f"ds_read_b128 {vr(XR+(c%2)*16+4*kk,4)}, v{VXA+kk} offset:{(c%2)*4096}"); lg.issue(("xr", c, kk))
for op in w_ops(0) + x_ops(0) + x_ops(1) + w_ops(1): op()
def g_srds(): srd(48, 44, WS_SIZE); srd(64, 38, 1280); srd(68, 40, 2621440); srd(72, 42, 256)
g_srds()
rot_tab(range(1, 10))
NP2 = int(OPT.get("np2", "0"))
late = (w_ops(2) + w_ops(3) + x_ops(2) + x_ops(3))
for op in late[:NP2]: op()
def helper(mid=((), ())):
    if not HELP:
        for op in list(mid[0]) + list(mid[1]): op()
        return
    LAM, CC, TM, YC, FY, FA, KT = 120, 124, 144, 160, 176, 208, 240
    EV = {8.0: 128, 128.0: 132, 512.0: 136, 516.0: 140}
    e("s_cmp_ge_u32 s62, 640" if "n" not in EXP else "s_cmp_ge_u32 s62, 0")
    L = e.lab("NOH")
    e(f"s_cbranch_scc1 {L}")
    e(f"s_mul_i32 s6, s3, {16*TPI}\ns_add_u32 s6, s6, {4*KSTEP}\nv_lshlrev_b32 v244, 3, v0\nv_add_u32 v244, s6, v244")
    e(f"v_mul_u32_u24 v245, {TPI}, v8\nv_lshl_add_u32 v245, v10, 4, v245\nv_add_u32 v245, s6, v245")
    e(f"s_mul_i32 s6, s3, {CHSZ}\ns_add_u32 s6, s6, {CH0+TBOFF}")
    e("v_lshlrev_b32 v247, 1, v8\nv_lshl_add_u32 v247, v10, 7, v247\nv_add_u32 v247, s6, v247")
    e("v_lshlrev_b32 v248, 2, v8\nv_lshrrev_b32 v249, 1, v10\nv_lshl_add_u32 v248, v249, 1, v248\nv_add_u32 v248, s6, v248")
    e(f"v_mov_b32 v{YC}, 1.0\nv_mov_b32 v{YC+1}, 1.0\nv_mov_b32 v{YC+2}, 0\nv_mov_b32 v{YC+3}, 0")
    vm.wait("par")
    stG("par")
    k_setup_pk(HP, LAM, CC, EV, [8.0, 128.0, 512.0, 516.0], 8.0, (512.0, 516.0), TM)
    for op in mid[0]: op()
    L2 = e.lab("HY")
    e(f"s_mov_b32 s63, 4\nv_mov_b32 v246, v244\n{L2}:")
    chain_pk([(YC, EV[8.0], 0)], 4, 0, 246, TM)
    e(f"v_add_u32 v246, {4*TPI}, v246\ns_sub_u32 s63, s63, 1\ns_cmp_lg_u32 s63, 0\ns_cbranch_scc1 {L2}")
    e("s_waitcnt lgkmcnt(0)")
    frag_reads(FY, 245, 0)
    for op in mid[1]: op()
    e("s_waitcnt lgkmcnt(0)")
    chain_pk([(EV[512.0], EV[128.0], 0), (EV[516.0], EV[128.0], 12)], 4, 0, 244, TM)
    chain_pk([(EV[512.0], EV[128.0], 0)], 8, 4, 244, TM)
    e("s_waitcnt lgkmcnt(0)")
    frag_reads(FA, 245, 0)
    k_mfma(KT, FA, FY)
    for r in range(4): e(f"v_cvt_pk_bf16_f32 v{TM+r}, v{KT+r}, v{KT+r}")
    e("s_mov_b32 exec_lo, 0xffff\ns_mov_b32 exec_hi, 0xffff0000")
    for r in range(4): e(f"ds_write_b16 v248, v{TM+r} offset:{768+64*r}")
    e("s_mov_b32 exec_lo, 0xffff0000\ns_mov_b32 exec_hi, 0xffff")
    for r in range(4): e(f"ds_write_b16 v247, v{TM+r} offset:{896+32*r}")
    e("s_mov_b64 exec, -1")
    if mid[0] or mid[1]:
        q = list(vm.q)
        e(f"s_branch {L}_j\n{L}:")
        for op in list(mid[0]) + list(mid[1]): op()
        vm.q = q
        e(f"{L}_j:")
    else: e(f"{L}:")
def kappa_tab():
    e("s_mov_b32 s6, s15")
    for i in range(14):
        if i: e("s_add_u32 s6, s6, 1\ns_cmp_eq_u32 s6, 14\ns_cselect_b32 s6, 0, s6")
        e(f"s_lshl2_add_u32 s7, s6, s3\ns_cmp_ge_u32 s7, 54\ns_cselect_b32 s7, {0x8000000>>10}, s7\ns_lshl_b32 s{sK[i]}, s7, 10")
if OPT.get("kapearly", "0") == "1": kappa_tab()
vq = list(vm.q)
if OPT.get("mid", "1") == "1":
    helper((late[NP2:4], late[4:]))
    vm.q = vq + vm.q[len(vm.q)-(8-NP2):]
else:
    helper()
    vm.q = vq
    for op in late[NP2:]: op()
stG("hlp")
e("v_lshrrev_b32 v7, 5, v0\nv_lshlrev_b32 v5, 11, v7\nv_bfe_u32 v6, v0, 2, 2\nv_lshl_add_u32 v5, v6, 6, v5\nv_bfe_u32 v6, v0, 4, 1\nv_lshl_add_u32 v5, v6, 5, v5\nv_and_b32 v6, 3, v0\nv_lshl_add_u32 v5, v6, 3, v5")
e(f"v_bfe_u32 v6, v0, 1, 3\nv_xor_b32 v6, v6, v7\nv_lshlrev_b32 v6, 4, v6\nv_and_b32 v253, 31, v0\nv_lshl_add_u32 v6, v253, 7, v6")
for kk in range(4): e(f"v_xor_b32 v{VXA+kk}, {32*kk}, v6\nv_add_u32 v{VXA+kk}, s10, v{VXA+kk}")
e(f"v_mov_b32 v252, {OOB}\nv_cmp_gt_u32 vcc, 32, v0\nv_lshlrev_b32 v6, 4, v253\nv_lshlrev_b32 v253, 5, v253\nv_cndmask_b32 v6, v252, v6, vcc\nv_cndmask_b32 v7, v252, v253, vcc")
def gcommon():
    e(f"v_lshlrev_b32 v10, 2, v0\nv_add_u32 v10, {CNT}, v10")
def w2_ops(i):
    ops = []
    for dt in range(5):
        def f(dt=dt):
            if dt == 0: e(f"s_lshl2_add_u32 s0, s{sK[i]}, s10\ns_add_u32 s0, s0, s{sK[i]}")
            if dt == 4: e("s_add_u32 s0, s0, 4096")
            r = 12 + (i % 5)*20 + dt*4
            e(f"buffer_load_dwordx4 {vr(r,4)}, v1, s[48:51], s0 offen offset:{1024*(dt%4)} sc1"); vm.issue(("w2", i))
        ops.append(f)
    return ops
def g2_bases():
    e("v_lshlrev_b32 v1, 4, v0")
    e(f"s_mul_i32 s10, s14, 276480\ns_add_u32 s10, s10, {W2F}")
    e(f"s_mul_i32 s11, s13, 221184\ns_add_u32 s11, s11, {HF}")
gcommon()
EW = int(OPT.get("ew", "0"))
if EW: kappa_tab()
stG("p")
def signal():
    e("v_add_u32 v11, 1, v11")
    e("ds_write_b32 v9, v11"); lg.issue("sig")
CHKR = [VCHK]
def chk_read():
    e(f"ds_read_b32 v{CHKR[0]}, v10"); lg.issue("chk")
def chk_eval():
    lg.wait("chk")
    spin_lds(CHKR[0], 10, "v11")
def tr_one(step, n, hf_):
    kh, t = divmod(n, 4)
    e(f"ds_read_b64_tr_b16 {vr(WB+4*n+2*hf_,2)}, v5 offset:{(step % 8)*KSTEP + 4096*kh + 1024*hf_ + 256*t}"); lg.issue(("w", step, n))
vm.wait(("w", 0))
signal(); chk_read()
for kk in range(4): x_read(0, kk)
chk_eval()
stG("c0")
for n in range(8): tr_one(0, n, 0); tr_one(0, n, 1)
EW = 0
for i in range(20):
    c, k2 = divmod(i, 2)
    stG(f"a{i}")
    side = {n: [] for n in range(8)}
    if i < 19:
        for n in range(8): side[n] += [lambda n=n: tr_one(i+1, n, 0), lambda n=n: tr_one(i+1, n, 1)]
    if i == 0:
        for n, op in zip((0, 1, 2, 3), w_ops(4) + w_ops(5)): side[n].append(op)
    elif i + 5 <= 19:
        for n, op in zip((0, 2), w_ops(i+5)): side[n].append(op)
    if i + 4 <= 19:
        if k2 == 0: side[4].append(lambda c=c: lg.wait(("xr", c, 3)))
        for n, op in zip((4, 6), x_ops(i+4)): side[n].append(op)
    if k2 == 0 and c + 1 <= 9:
        def sg(c=c):
            vm.wait(("w", c+1)); signal()
        side[3].append(sg); side[5].append(chk_read)
    if k2 == 1 and c + 1 <= 9:
        for kk in range(4): side[(1, 3, 5, 7)[kk]].append(lambda kk=kk, c=c: x_read(c+1, kk))
    if i == 15:
        side[5].append(lambda: (e(f"v_mov_b32 v252, {REL}\nds_read_b32 v{VREL}, v252"), lg.issue("rel")))
    if i == RELAT:
        def f():
            if RELAT != 16: e(f"ds_read_b32 v{VREL}, v252"); lg.issue("rel")
            lg.wait("rel")
            spin_lds(VREL, 252, "1")
            e(f"s_lshl_b32 s6, s8, 12\ns_lshl_b32 s7, s3, 10\ns_add_u32 s6, s6, s7\ns_add_u32 s6, s6, {STATS}\ns_lshl_b32 s63, s9, 11\ns_add_u32 s63, s63, {WE}")
            e(f"buffer_load_dwordx4 {vr(XEF,4)}, v7, s[48:51], s6 offen sc1"); vm.issue("xe")
        side[0].append(f)
        side[2].append(lambda: (e(f"buffer_load_dwordx4 {vr(XEC,4)}, v253, s[48:51], s6 offen offset:16 sc1"), vm.issue("xe")))
        for t in range(4):
            side[(1, 4, 6, 7)[t]].append(lambda t=t: (e(f"buffer_load_dwordx4 {vr(WEF+4*t,4)}, v6, s[48:51], s63 offen offset:{512*t} sc1"), vm.issue("xe")))
    if i == 18:
        side[1].append(g2_bases)
        side[3].append(lambda: e("v_bfe_u32 v3, v0, 4, 1\nv_lshlrev_b32 v3, 10, v3\nv_lshrrev_b32 v4, 5, v0\nv_lshl_add_u32 v3, v4, 8, v3"))
        side[5].append(lambda: e("v_and_b32 v4, 15, v0\nv_lshl_add_u32 v255, v4, 4, v3\nv_mov_b32 v2, 0"))
    if i == 19:
        side[0].append(lambda: e(f"s_lshr_b32 s6, s3, 1\ns_lshl_b32 s7, s8, 1\ns_add_u32 s6, s6, s7\ns_mul_i32 s44, s6, 221184"))
        side[1].append(lambda: e(f"s_and_b32 s7, s3, 1\ns_lshl_b32 s7, s7, 11\ns_add_u32 s44, s44, s7\ns_add_u32 s44, s44, {HF}"))
        side[2].append(lambda: e(f"s_mul_i32 s45, s6, {FS_}\ns_add_u32 s45, s45, {FL_H}"))
        side[3].append(lambda: e(f"s_lshl_b32 s6, s9, 14\ns_add_u32 s44, s44, s6\ns_cmp_eq_u32 s9, 13\ns_cselect_b32 s43, {OOB}, s44"))
        side[7].append(signal)
    for n in range(8):
        kh, t = divmod(n, 4)
        need = [("w", i, n), ("w", i, n+1)] if n % 2 == 0 else []
        if t == 0: need += [("xr", c, 2*k2+kh)]
        if need: lg.wait(need)
        a_ = ACC + 16*t
        e(f"v_mfma_f32_32x32x16_bf16 {vr(a_,16)}, {vr(WB+4*n,4)}, {vr(XR+(c%2)*16+4*(2*k2+kh),4)}, {vr(a_,16) if (i or kh) else 0}")
        for f in side[n]: f()
    if k2 == 0 and c + 1 <= 9: chk_eval()
vm.wait("xe")
for t in range(4): e(f"v_mfma_f32_32x32x16_bf16 {vr(ACC+16*t,16)}, {vr(WEF+4*t,4)}, {vr(XEF,4)}, {vr(ACC+16*t,16)}")
e("v_mov_b32 v7, 1")
stG("g1")
TQ, TE, TO = 224, 232, 240
def h_flag(k):
    vm.wait(("hst", k))
    e(f"s_mov_b64 exec, 1\nbuffer_atomic_add v7, v2, s[48:51], s45 offen offset:{4*k} sc1\ns_mov_b64 exec, -1")
for tp in range(4):
    e(f"s_add_u32 s6, s{44 if tp < 2 else 43}, {4096*tp}")
    for mt in (0, 1):
        st = XEC
        P = range(4)
        acc = lambda q: ACC + 16*tp + 8*mt + 2*q
        for q in P: e(f"v_pk_mul_f32 {vr(TQ+2*q,2)}, {vr(acc(q),2)}, {vr(acc(q),2)}")
        for q in P: e(f"v_pk_fma_f32 {vr(TQ+2*q,2)}, {vr(st,2)}, {vr(TQ+2*q,2)}, {vr(st,2)} op_sel:[0,0,1] op_sel_hi:[0,1,1]")
        for q in P: e(f"v_pk_mul_f32 {vr(TQ+2*q,2)}, {vr(TQ+2*q,2)}, {vr(acc(q),2)}")
        for q in range(8): e(f"v_exp_f32 v{TE+q}, v{TQ+q}")
        for q in P: e(f"v_pk_fma_f32 {vr(TE+2*q,2)}, {vr(st+2,2)}, {vr(TE+2*q,2)}, {vr(st+2,2)} op_sel_hi:[0,1,0]")
        for q in range(8): e(f"v_rcp_f32 v{TE+q}, v{TE+q}")
        for q in P: e(f"v_pk_mul_f32 {vr(TE+2*q,2)}, {vr(TE+2*q,2)}, {vr(acc(q),2)}")
        o = TO + 4*mt
        for q in P: e(f"v_cvt_pk_bf16_f32 v{o+q}, v{TE+2*q}, v{TE+2*q+1}")
        e(f"buffer_store_dwordx4 {vr(o,4)}, v255, s[48:51], s6 offen offset:{512*mt} sc1"); vm.issue(("hst", tp))
stG("ep")
signal()
def g2_setup():
    for ml in range(4):
        e(f"s_xor_b32 s6, s3, {ml}\ns_lshl_b32 s6, s6, 10\nv_add_u32 v{3+ml}, s6, v1")
    e(f"s_mul_i32 s6, s13, {FS_}\ns_add_u32 s6, s6, {FL_H}\ns_add_u32 s40, s48, s6\ns_addc_u32 s41, s49, 0")
    e(f"v_mov_b32 v254, {REL}\nv_lshrrev_b32 v8, 4, v0\nv_lshlrev_b32 v8, 3, v8\ns_mul_i32 s8, s14, 160")
HPL = "s_load_dwordx4 s[16:19], s[40:41], 0 glc"
g2_setup()
if not EW: kappa_tab()
vm.wait(("hst", 3))
e(f"s_mov_b64 exec, 1\nbuffer_atomic_add v7, v2, s[48:51], s45 offen sc1\ns_mov_b64 exec, -1")
if OPT.get("self", "1") == "1":
    for tp in range(4):
        e(f"s_add_u32 s6, s{44 if tp < 2 else 43}, {4096*tp}")
        for mt in (0, 1): e(f"buffer_load_dwordx4 {vr(192+8*tp+4*mt,4)}, v1, s[48:51], s6 offen offset:{1024*mt} sc1")
stG("hp")
vm.clear(); lg.clear()
e("L_G2:")
CHKR[0] = 26
A2, HR = 112, 192
e(f"s_setprio {OPT.get('g2prio', '0')}")
e("v_mov_b32 v2, v254")
if not EW: wait_lds(7, 2, "2")
for dt in range(5):
    e(f"buffer_load_dwordx2 {vr(122+2*dt,2)}, v8, s[64:67], s8 offen offset:{32*dt}"); vm.issue("b2")
for k in range([0, 2, 5][EW], 5):
    for op in w2_ops(k): op()
spoll(40, [0], 28, OPT.get("hsleep", "2")); lg.clear()
stG("hs")
def h_ops(i):
    ops = []
    for ml in range(4):
        def hl(ml=ml):
            if ml == 0: e(f"s_lshl2_add_u32 s6, s{sK[i]}, s11")
            e(f"buffer_load_dwordx4 {vr(HR+(i%4)*16+ml*4,4)}, v{3+ml}, s[48:51], s6 offen sc1"); vm.issue(("h", i))
        ops.append(hl)
    return ops
for op in h_ops(0) + h_ops(1) + h_ops(2) + h_ops(3): op()
FXO, FLA, FX, FS, VSO, VPF = 92, 95, 32, 12, 98, 104
STL = []
for i in range(3):
    if i == 2: STL.append("s_mov_b32 exec_hi, 0")
    STL.append(f"buffer_load_dwordx4 {vr(FS+4*i,4)}, v{VSO}, s[48:51], s{44 if i == 0 else 6} offen sc1")
    if i < 2: STL.append(f"s_add_u32 s6, s44, {32*4096*(i+1)}")
STL.append("s_mov_b64 exec, -1")
RED = 99
for i in range(14):
    vm.wait([("w2", i), ("h", i)])
    lg.wait(("pf", i))
    if i == 7: signal()
    stG(f"b{i}")
    side = {n: [] for n in range(20)}
    def spread(lines, n0, step=1):
        for k, l in enumerate(lines): side[min(19, n0 + k*step)].append(lambda l=l: e(l))
    j = i + 4
    if i >= 1 and j < 8:
        if i == 1: side[0].append(lambda: (e("ds_read_b32 v12, v2\ns_mul_i32 s6, s3, 15360\nv_add_u32 v13, s6, v1\ns_waitcnt lgkmcnt(0)"), spin_lds(12, 2, "3"), e("v_mov_b32 v2, v13"), lg.clear()))
        for dt in range(5):
            side[1+dt].append(lambda dt=dt, j=j: (e(f"ds_read_b128 {vr(12+(j%5)*20+dt*4,4)}, v2 offset:{(j-5)*5120+dt*1024}"), lg.issue(("pf", j))))
    elif i >= 1 and j < 14:
        for n, op in zip((1, 3, 7, 11, 16), w2_ops(j)): side[n].append(op)
    if i + 4 < 14:
        for ml, op in enumerate(h_ops(i+4)): side[5*ml+4].append(op)
    if i == 10:
        L = [f"v_mov_b32 v2, {REL}", "ds_read_b32 v8, v2",
             f"v_lshrrev_b32 v{VSO}, 1, v0", "v_and_b32 v4, 1, v0", f"v_lshlrev_b32 v{VSO}, 12, v{VSO}", f"v_lshl_add_u32 v{VSO}, v4, 4, v{VSO}",
             "s_mul_i32 s44, s14, 327680\ns_lshl_b32 s7, s13, 7", "s_add_u32 s44, s44, s7\ns_lshl_b32 s7, s3, 5", f"s_add_u32 s44, s44, s7\ns_add_u32 s44, s44, {ST}",
             "s_lshl_b32 s6, s13, 6\ns_lshl_b32 s7, s3, 4", "s_add_u32 s6, s6, s7\ns_mul_i32 s6, s6, 1280", f"s_add_u32 s8, s8, s6\ns_mul_i32 s9, s3, 2560", f"s_add_u32 s9, s9, {SB}\ns_movk_i32 s0, 1280\ns_movk_i32 s1, {SBF}"]
        spread(L, 1)
    if i == 11:
        L = []
        for k in range(3):
            L += [f"v_add_u32 v3, {64*k}, v0\nv_mul_u32_u24 v4, 6554, v3", "v_lshrrev_b32 v4, 16, v4\nv_mul_u32_u24 v5, 10, v4", "v_sub_u32 v3, v3, v5\nv_lshlrev_b32 v3, 4, v3",
                  f"v_mad_u32_u24 v{FXO+k}, v4, s0, v3\nv_mad_u32_u24 v{FLA+k}, v4, s1, v3", f"v_add_u32 v{FLA+k}, s9, v{FLA+k}"]
        spread(L, 1)
    if i == 12:
        L = []
        for ml in (1, 2, 3): L += [f"s_xor_b32 s6, s3, {ml}\ns_mul_i32 s6, s6, 15360", f"s_add_u32 s6, s6, {(ml-1)*5120}\nv_add_u32 v{RED+ml-1}, s6, v1"]
        L += [f"s_mul_i32 s6, s3, 15360\nv_add_u32 v{RED+3}, s6, v1", f"v_and_b32 v3, 15, v0\nv_mul_u32_u24 v3, {SBF}, v3", f"v_lshrrev_b32 v5, 4, v0\nv_lshl_add_u32 v3, v5, 3, v3", f"v_add_u32 v{RED+4}, s9, v3",
              "v_add_u32 v3, s9, v1\nv_lshlrev_b32 v4, 3, v0", "v_add_u32 v4, s9, v4"]
        spread(L, 6)
        side[0].append(chk_read)
        for k in range(3):
            def xl(k=k):
                if k == 2: e("s_mov_b32 exec_hi, 0")
                e(f"buffer_load_dwordx4 {vr(FX+4*k,4)}, v{FXO+k}, s[52:55], s8 offen"); vm.issue("fx")
                if k == 2: e("s_mov_b64 exec, -1")
            side[1+2*k].append(xl)
    order = list(range(20)) if 0 < i < 13 else list(range(5, 20)) + list(range(5))
    if i == 0:
        side = {n: [] for n in range(20)}
        for k in range(10): side[k].append(lambda k=k: e(f"v_lshlrev_b32 v{A2+2*k}, 16, v{122+k}\nv_and_b32 v{A2+2*k+1}, 0xffff0000, v{122+k}"))
        o = h_ops(4)
        e(f"s_lshl2_add_u32 s6, s{sK[4]}, s11")
        for k, ml in zip((4, 9, 14, 19), (1, 2, 3, 0)):
            side[k].append(lambda ml=ml: (e(f"buffer_load_dwordx4 {vr(HR+ml*4,4)}, v{3+ml}, s[48:51], s6 offen sc1"), vm.issue(("h", 4))))
    if i == 13:
        for k in range(11):
            n_ = order[k]
            side[k+9].append(lambda n_=n_: (e(f"ds_write_b128 v{RED+n_//5-1}, {vr(A2+n_*4,4)} offset:{1024*(n_%5)}"), lg.issue("red")))
    for k, n in enumerate(order):
        ml, dt = divmod(n, 5)
        a = A2 + n*4
        e(f"v_mfma_f32_16x16x32_bf16 {vr(a,4)}, {vr(12+(i%5)*20+dt*4,4)}, {vr(HR+(i%4)*16+ml*4,4)}, {vr(a,4) if (i or ml == 0) else 0}")
        for f in side[k]: f()
    if i == 10:
        e("s_waitcnt lgkmcnt(0)\nv_cmp_gt_u32 s[42:43], 4, v8"); lg.clear()
        for l in STL:
            e(l)
            if l.startswith("buffer"): vm.issue("sT")
    if i == 12: chk_eval()
stG("g2")
for n_ in range(16, 20):
    e(f"ds_write_b128 v{RED+n_//5-1}, {vr(A2+n_*4,4)} offset:{1024*(n_%5)}"); lg.issue("red")
signal(); chk_read()
e("s_cmp_lg_u64 s[42:43], 0")
spin_lds(8, 2, "4", after=STL, pre_cmp=False, branch="s_cbranch_scc1")
vm.wait_all()
for i in range(3):
    if i == 2: e("s_mov_b32 exec_hi, 0")
    e(f"ds_write_b128 v3, {vr(FS+4*i,4)} offset:{1024*i}"); lg.issue("sw")
e("s_mov_b64 exec, -1")
for dt in range(5):
    e(f"ds_read_b64_tr_b16 {vr(44+2*dt,2)}, v4 offset:{512*dt}"); lg.issue("str")
chk_eval()
stG("rd")
RD = 192
for dt in range(5):
    for s_ in range(3):
        e(f"ds_read_b128 {vr(RD+(s_*5+dt)*4,4)}, v{RED+3} offset:{5120*s_+1024*dt}"); lg.issue(("rd", dt))
SU = 132
e("s_mov_b32 s6, 0xffff0000")
lg.wait("str")
for k in range(10): e(f"v_lshlrev_b32 v{SU+2*k}, 16, v{44+k}\nv_and_b32 v{SU+2*k+1}, s6, v{44+k}")
XU = 152
for k in range(12): e(f"v_lshlrev_b32 v{XU+2*k}, 16, v{FX+k}\nv_and_b32 v{XU+2*k+1}, s6, v{FX+k}")
T = 56
for dt in range(5):
    a = A2 + dt*4
    lg.wait(("rd", dt))
    for k in (0, 1):
        e(f"v_pk_add_f32 {vr(a+2*k,2)}, {vr(a+2*k,2)}, {vr(RD+dt*4+2*k,2)}")
        e(f"v_pk_add_f32 {vr(T+2*k,2)}, {vr(RD+(5+dt)*4+2*k,2)}, {vr(RD+(10+dt)*4+2*k,2)}")
    for k in (0, 1): e(f"v_pk_add_f32 {vr(a+2*k,2)}, {vr(a+2*k,2)}, {vr(T+2*k,2)}")
E_ = 60
for k in range(20): e(f"v_mul_f32 v{E_+k}, {f32(-1.4426950408889634)}, v{A2+k}")
for k in range(20): e(f"v_exp_f32 v{E_+k}, v{E_+k}")
for k in range(10): e(f"v_pk_mul_f32 {vr(A2+2*k,2)}, {vr(A2+2*k,2)}, {vr(SU+2*k,2)}")
for k in range(10): e(f"v_pk_add_f32 {vr(E_+2*k,2)}, {vr(E_+2*k,2)}, 1.0 op_sel_hi:[1,0]")
for k in range(20): e(f"v_rcp_f32 v{E_+k}, v{E_+k}")
for dt in range(5):
    for k in (0, 1): e(f"v_pk_mul_f32 {vr(A2+4*dt+2*k,2)}, {vr(A2+4*dt+2*k,2)}, {vr(E_+4*dt+2*k,2)}")
    for k in (0, 1): e(f"v_cvt_pk_bf16_f32 v{44+2*dt+k}, v{A2+4*dt+2*k}, v{A2+4*dt+2*k+1}")
    e(f"ds_write_b64 v{RED+4}, {vr(44+2*dt,2)} offset:{32*dt}"); lg.issue("pw")
for k in range(3):
    e(f"ds_read_b64 {vr(RD+4*k,2)}, v{FLA+k}\nds_read_b64 {vr(RD+4*k+2,2)}, v{FLA+k} offset:8"); lg.issue(("pr", k)); lg.issue(("pr", k))
for k in range(3):
    lg.wait(("pr", k))
    for q in range(4):
        e(f"v_lshlrev_b32 v{T+2*q}, 16, v{RD+4*k+q}\nv_and_b32 v{T+1+2*q}, s6, v{RD+4*k+q}")
    for q in range(4): e(f"v_pk_add_f32 {vr(T+2*q,2)}, {vr(T+2*q,2)}, {vr(XU+8*k+2*q,2)}")
    for q in range(4): e(f"v_cvt_pk_bf16_f32 v{RD+16+4*k+q}, v{T+2*q}, v{T+2*q+1}")
    if k == 2: e("s_mov_b32 exec_hi, 0")
    e(f"buffer_store_dwordx4 {vr(RD+16+4*k,4)}, v{FXO+k}, s[68:71], s8 offen{OSP}")
stG("end")
stG.flush(60, 61, (0, 1, 8))
e("s_endpgm")

e("L_IDLE:")
e("v_lshrrev_b32 v1, 3, v0\ns_mul_i32 s6, s3, 160\nv_add_u32 v2, s6, v1\nv_mul_u32_u24 v2, 3456, v2\nv_and_b32 v3, 7, v0\nv_lshl_add_u32 v2, v3, 4, v2")
e("v_lshlrev_b32 v4, 8, v1\nv_lshl_add_u32 v4, v3, 5, v4\ns_lshl_b32 s6, s3, 11\nv_add_u32 v4, s6, v4")
e("s_waitcnt lgkmcnt(0)")
e("s_lshl3_add_u32 s47, s5, s4")
e(f"s_lshl_b32 s9, s47, 7\ns_cmp_ge_u32 s47, 27\ns_cselect_b32 s9, {OOB}, s9")
vm.clear()
g_params()
e("s_barrier")
srd(56, 32, 2211840)
e("s_mov_b32 s0, s9")
for i in range(20):
    e(f"buffer_load_dwordx4 {vr(12+4*i,4)}, v2, s[56:59], s0 offen"); vm.issue("cw")
    if i < 19: e(f"s_add_u32 s0, s0, {8*3456}")
srd(56, 34, 3456)
e("v_lshlrev_b32 v5, 1, v0\nbuffer_load_ushort v7, v5, s[56:59], s9 offen"); vm.issue("cw")
srd(52, 16, 2621440); g_srds()
kappa_tab()
helper()
e("s_waitcnt vmcnt(0)\ns_mov_b32 s6, 0xffff0000")
for i in range(20):
    for k in range(4):
        r = 12 + 4*i + k
        if i == 0: e(f"v_lshlrev_b32 v{100+2*k}, 16, v{r}\nv_and_b32 v{101+2*k}, s6, v{r}")
        else: e(f"v_lshlrev_b32 v{92+2*k}, 16, v{r}\nv_and_b32 v{93+2*k}, s6, v{r}")
    if i:
        for k in range(4): e(f"v_pk_add_f32 {vr(100+2*k,2)}, {vr(100+2*k,2)}, {vr(92+2*k,2)}")
e("ds_write_b128 v4, v[100:103]\nds_write_b128 v4, v[104:107] offset:16")
gcommon()
e("s_cmp_eq_u32 s3, 0\ns_cselect_b32 s6, 1, 12\nv_mov_b32 v11, s6\nds_write_b32 v9, v11")
e("s_cbranch_scc0 L_ID2")
wait_lds(8, 10, "1")
e("v_lshlrev_b32 v5, 2, v0")
for k in range(32): e(f"ds_read_b32 v{12+k}, v5 offset:{256*k}")
e("s_waitcnt lgkmcnt(0)")
for st_ in (16, 8, 4, 2, 1):
    for k in range(st_): e(f"v_add_f32 v{12+k}, v{12+k}, v{12+k+st_}")
e("v_mov_b32 v11, 12\nds_write_b32 v9, v11")
e("v_cvt_pk_bf16_f32 v17, v12, v12\nv_lshl_or_b32 v16, v7, 16, v7\nv_and_b32 v13, 0xffff0000, v17\nv_sub_f32 v13, v12, v13\nv_mov_b32 v19, 0\nv_cvt_pk_bf16_f32 v18, v13, v19")
e(f"v_lshlrev_b32 v5, 4, v0\ns_lshl_b32 s6, s47, 10\ns_add_u32 s6, s6, {WE}\ns_cmp_ge_u32 s47, 27\ns_cselect_b32 s6, {OOB}, s6")
e("buffer_store_dwordx4 v[16:19], v5, s[48:51], s6 offen sc1")
e(f"v_mov_b32 v2, {REL}")
wait_lds(8, 2, "1", sleep=True)
e(f"s_lshr_b32 s6, s47, 1\ns_mul_i32 s6, s6, {FS_}\ns_add_u32 s6, s6, {FL_E}\ns_cmp_ge_u32 s47, 27\ns_cselect_b32 s6, {OOB}, s6")
e("s_cmp_eq_u32 s47, 26\ns_cselect_b32 s7, 2, 1\nv_mov_b32 v5, s7\ns_waitcnt vmcnt(0)\ns_mov_b64 exec, 1")
e("buffer_atomic_add v5, v19, s[48:51], s6 offen sc1\ns_mov_b64 exec, -1")
e("L_ID2:")
g2_bases()
g2_setup()
wait_lds(12, 254, "2", sleep=True)
if OPT.get("warm", "0") == "1":
    e(f"s_and_b32 s6, s4, 1\ns_lshl2_add_u32 s6, s6, s5\ns_mul_i32 s6, s6, 276480\ns_mul_i32 s7, s3, 69120\ns_add_u32 s6, s6, s7\ns_add_u32 s6, s6, {W2F}\ns_mov_b32 s63, 17")
    e("L_WARM:")
    for k in range(4): e(f"buffer_load_dwordx4 {vr(192+4*k,4)}, v1, s[48:51], s6 offen offset:{1024*k} sc1")
    e(f"s_add_u32 s6, s6, 4096\ns_sub_u32 s63, s63, 1\ns_cmp_lg_u32 s63, 0\ns_cbranch_scc1 L_WARM")
for k in range([0, 2, 5][EW]):
    for op in w2_ops(k): op()
e("s_waitcnt vmcnt(0)")
if STAMPS:
    for r in _stG.regs[:4]: e(f"{MT} s[{r}:{r+1}]")
e("s_branch L_G2")

e("L_AUX:")
if OPT.get("cpf", "0") == "1":
    e("s_getpc_b64 s[96:97]")
    e("L_PC:")
    e(f"s_sub_u32 s96, s96, L_PC-{NAME}_kernel\ns_subb_u32 s97, s97, 0")
    e("s_and_b32 s6, s5, 7\ns_lshl_b32 s6, s6, 6\nv_add_u32 v1, s6, v0\nv_lshlrev_b32 v1, 7, v1")
    e(f"v_min_u32 v1, L_LAST-{NAME}_kernel, v1")
    e("s_cmp_lg_u32 s3, 6\ns_cbranch_scc1 L_PC2")
    e("global_load_dword v255, v1, s[96:97]")
    e("L_PC2:")
_stC = Stamper([76,78,80,82,84,86,88,90,92,94])
CSEL = OPT.get("cst", "ka,x,ln,kg,ex,u,cs,cd,st,pub").split(",")
class _C:
    def __call__(self, name):
        if name in CSEL:
            _stC.n = CSEL.index(name); _stC()
    def flush(self, *a):
        _stC.n = 10; _stC.flush(*a)
stC = _C()
zero_cnt(CNT2)
e("s_sub_u32 s13, s3, 4")
e("s_lshl_b32 s14, s4, 5\ns_add_u32 s14, s14, s5")
e("s_mul_i32 s15, s14, 10240")
e("v_lshrrev_b32 v1, 5, v0\ns_lshl_b32 s6, s13, 1\nv_add_u32 v1, s6, v1\nv_and_b32 v2, 31, v0")
e("v_mul_u32_u24 v3, 1280, v1\nv_lshl_add_u32 v3, v2, 3, v3")
chan_id(13)
e("s_lshl_b32 s10, s8, 8\ns_lshl_b32 s11, s8, 1\nv_lshlrev_b32 v12, 2, v0")
e(f"s_mul_i32 s9, s13, {CHSZ}\ns_add_u32 s9, s9, {CH0}")
e(f"v_mov_b32 v14, 0\nv_mov_b32 v15, {REL}\nds_write_b32 v15, v14")
for i in range(5):
    e(f"v_add_u32 v4, {64*i}, v0\nv_mul_u32_u24 v5, 3277, v4\nv_lshrrev_b32 v5, 16, v5")
    e("v_mul_u32_u24 v6, 20, v5\nv_sub_u32 v6, v4, v6\nv_lshlrev_b32 v6, 4, v6")
    e(f"s_movk_i32 s6, 1280\nv_mad_u32_u24 v{64+i}, v5, s6, v6\ns_movk_i32 s6, {SBW}\nv_mad_u32_u24 v{69+i}, v5, s6, v6\nv_add_u32 v{69+i}, {SB}, v{69+i}")
e("s_waitcnt lgkmcnt(0)")
stC("ka")
XS = 20
def x_rows():
    srd(52, 16, 2621440)
    for i in range(5): e(f"buffer_load_dwordx2 {vr(XS+2*i,2)}, v3, s[52:55], s15 offen offset:{256*i}{ntx}")
KFIRST = OPT.get("kfirst", "0") == "1"
def near_half():
    LAM, CC, YC, FY, FA, KT, TM = 84, 88, 80, 128, 160, [112, 116], 64
    EV = {2.0: 192, 32.0: 196, 1.0: 200, 2048.0: 204}
    e("v_and_b32 v10, 15, v0\nv_lshrrev_b32 v11, 4, v0")
    e(f"v_lshlrev_b32 v12, 3, v0\ns_add_u32 s6, s9, {TAB}\nv_add_u32 v12, s6, v12")
    e(f"v_mul_u32_u24 v14, {TPI}, v10\nv_lshl_add_u32 v14, v11, 4, v14\nv_add_u32 v14, s6, v14")
    e(f"v_mov_b32 v{YC}, 1.0\nv_mov_b32 v{YC+1}, 1.0\nv_mov_b32 v{YC+2}, 0\nv_mov_b32 v{YC+3}, 0")
    e(f"s_add_u32 s10, s9, {TBOFF}")
    e("v_lshlrev_b32 v92, 2, v10\nv_lshl_add_u32 v92, v11, 8, v92\nv_add_u32 v92, s10, v92")
    e("v_lshlrev_b32 v93, 1, v10\nv_lshl_add_u32 v93, v11, 7, v93\nv_add_u32 v93, s10, v93")
    e(f"v_subrev_u32 v15, {CNT2-CNT}, v9")
    e("s_waitcnt vmcnt(5)")
    stC("par")
    k_setup_pk(4, LAM, CC, EV, [2.0, 32.0, 1.0, 2048.0], 2.0, (1.0, 2048.0), TM)
    stC("k0")
    L2 = e.lab("NY")
    e(f"s_mov_b32 s10, 4\nv_mov_b32 v13, v12\n{L2}:")
    chain_pk([(YC, EV[2.0], 0), (CC, EV[32.0], 16)], 4, 0, 13, TM)
    e(f"v_add_u32 v13, {4*TPI}, v13\ns_sub_u32 s10, s10, 1\ns_cmp_lg_u32 s10, 0\ns_cbranch_scc1 {L2}")
    stC("k1")
    e("s_waitcnt lgkmcnt(0)")
    frag_reads(FY, 14, 0); frag_reads(FA, 14, 16)
    e(f"v_cvt_pk_bf16_f32 v76, v{EV[2048.0]}, v{EV[2048.0]+2}\nv_cvt_pk_bf16_f32 v77, v{EV[2048.0]+1}, v{EV[2048.0]+3}")
    k_mfma(KT[0], FA, FY)
    e(f"ds_write_b64 v12, v[76:77] offset:{24*TPI}")
    chain_pk([(EV[1.0], EV[32.0], 0)], 8, 16, 12, TM)
    e("s_waitcnt lgkmcnt(0)")
    frag_reads(FA, 14, 16)
    k_mfma(KT[1], FA, FY)
    for r in range(4): e(f"v_cvt_pk_bf16_f32 v{TM+r}, v{KT[0]+r}, v{KT[1]+r}")
    e("s_mov_b32 exec_hi, 0")
    for r in range(4): e(f"ds_write_b32 v92, v{TM+r} offset:{64*r}")
    e("s_mov_b32 exec_lo, 0\ns_mov_b32 exec_hi, -1")
    for r in range(4): e(f"ds_write_b16 v93, v{TM+r} offset:{256+32*r}")
    e("s_mov_b32 exec_hi, 1")
    e(f"ds_write_b16_d16_hi v93, v{TM} offset:{1280-256}")
    e("s_mov_b64 exec, -1")
e("s_cmp_eq_u32 s3, 7\ns_cbranch_scc1 L_A7")
if not KFIRST: x_rows()
param_loads(4, 12, 14, 10, 11, (56, 60, 64, 68))
srd(60, 28, 1280); e("buffer_load_ushort v19, v14, s[60:63], s11 offen")
if KFIRST: x_rows()
e("s_barrier")
srd(48, 44, WS_SIZE); srd(72, 42, 256)
if KFIRST:
    e("s_cmp_ge_u32 s8, 640\ns_cbranch_scc1 L_A0")
    near_half()
    e("L_A0:")
    e("s_waitcnt vmcnt(0)")
else: e("s_waitcnt vmcnt(6)")
e("s_branch L_LN")
e("L_A7:")
srd(48, 44, WS_SIZE); srd(72, 42, 256)
e("s_cmp_lg_u32 s2, 0\ns_cbranch_scc1 L_A1")
e(f"v_mul_u32_u24 v4, {FS_}, v0")
for r in range(32, 36): e(f"v_mov_b32 v{r}, 0")
for i in range(2):
    e(f"s_mov_b32 s6, {FLB+64*FS_*i}")
    e("buffer_store_dwordx4 v[32:35], v4, s[48:51], s6 offen sc1")
e("s_barrier")
e("s_waitcnt vmcnt(0)")
e("v_mov_b32 v32, 1\ns_mov_b64 exec, 1")
e("buffer_store_dword v32, v14, s[72:75], 0 offen sc1")
e("s_mov_b64 exec, -1")
x_rows()
e("s_branch L_A2")
e("L_A1:")
x_rows()
e("s_barrier")
e("L_A2:")
srd(56, 36, 2211840)
e(f"s_lshr_b32 s6, s2, 2\ns_mul_i32 s10, s6, 40960\ns_and_b32 s7, s2, 3\ns_mul_i32 s11, s7, 320\ns_add_u32 s10, s10, s11\ns_add_u32 s11, s10, 20480")
e("s_waitcnt vmcnt(0)")
e("L_LN:")
if NOAUX == "1": e("s_endpgm")
stC("x")
e(f"v_mul_u32_u24 v16, {SBP}, v1\nv_lshl_add_u32 v16, v2, 3, v16\nv_add_u32 v16, {SB}, v16")
e(f"v_lshlrev_b32 v17, 5, v1\nv_add_u32 v17, {SST}, v17")
XF = 32
for k in range(10): e(f"v_lshlrev_b32 v{XF+2*k}, 16, v{XS+k}\nv_and_b32 v{XF+2*k+1}, 0xffff0000, v{XS+k}")
e(f"v_add_f32 v52, v{XF}, v{XF+1}\nv_mul_f32 v54, v{XF}, v{XF}\nv_add_f32 v53, v{XF+2}, v{XF+3}\nv_mul_f32 v55, v{XF+1}, v{XF+1}")
e(f"v_fmac_f32 v54, v{XF+2}, v{XF+2}\nv_fmac_f32 v55, v{XF+3}, v{XF+3}")
for k in range(4, 20): e(f"v_add_f32 v{52+(k&1)}, v{52+(k&1)}, v{XF+k}\nv_fmac_f32 v{54+(k&1)}, v{XF+k}, v{XF+k}")
e("v_add_f32 v52, v52, v53\nv_add_f32 v54, v54, v55")
for m in ("quad_perm:[1,0,3,2]", "quad_perm:[2,3,0,1]", "row_half_mirror", "row_mirror"):
    e(f"v_add_f32_dpp v52, v52, v52 {m} row_mask:0xf bank_mask:0xf")
    e(f"v_add_f32_dpp v54, v54, v54 {m} row_mask:0xf bank_mask:0xf")
e("ds_swizzle_b32 v53, v52 offset:0x401F\nds_swizzle_b32 v55, v54 offset:0x401F\ns_waitcnt lgkmcnt(0)")
e("v_add_f32 v52, v52, v53\nv_add_f32 v54, v54, v55")
e(f"v_mul_f32 v52, {f32(1/640)}, v52\nv_mul_f32 v54, {f32(1/640)}, v54")
e("v_fma_f32 v54, -v52, v52, v54\nv_max_f32 v54, 0, v54")
def std_bf16(dst, var):
    rb(dst, var); e(f"v_add_f32 v{dst}, {f32(1e-5)}, v{dst}"); rb(dst, dst); e(f"v_sqrt_f32 v{dst}, v{dst}"); rb(dst, dst)
rb(56, 52); std_bf16(57, 54)
e("v_rcp_f32 v58, v57")
for k in range(20): e(f"v_sub_f32 v{XF+k}, v{XF+k}, v56")
for k in range(10): e(f"v_cvt_pk_bf16_f32 v{XS+k}, v{XF+2*k}, v{XF+2*k+1}")
for k in range(10): e(f"v_lshlrev_b32 v{XF+2*k}, 16, v{XS+k}\nv_and_b32 v{XF+2*k+1}, 0xffff0000, v{XS+k}")
for k in range(20): e(f"v_mul_f32 v{XF+k}, v{XF+k}, v58")
for k in range(10):
    e(f"v_cvt_pk_bf16_f32 v{XS+k}, v{XF+2*k}, v{XF+2*k+1}")
    if k & 1: e(f"ds_write_b64 v16, {vr(XS+k-1,2)} offset:{128*(k-1)}")
e("v_sub_f32 v59, v52, v56\nv_mul_f32 v59, v59, v58\nv_mul_f32 v60, v54, v58\nv_mul_f32 v60, v60, v58")
rb(59, 59); std_bf16(61, 60)
C0 = -2*0.7978845608028654*1.4426950408889634
e("v_mul_f32 v46, v57, v61\nv_fma_f32 v63, -v59, v57, -v56\nv_rcp_f32 v62, v46\nv_mov_b32 v43, 0\nv_mov_b32 v47, 0")
rb(32, 46); rb(33, 63)
e("v_sub_f32 v32, v46, v32\nv_sub_f32 v33, v63, v33\nv_mul_f32 v44, v62, v62")
e("v_cvt_pk_bf16_f32 v40, v46, v32\nv_cvt_pk_bf16_f32 v41, v63, v33\nv_cvt_pk_bf16_f32 v42, v63, v43")
e(f"v_mul_f32 v45, {f32(C0)}, v62\nv_mul_f32 v44, {f32(0.044715)}, v44\nv_mul_f32 v44, v44, v45")
e("s_mov_b32 s0, 1\ns_mov_b32 s1, 1\ns_mov_b64 exec, s[0:1]")
e("ds_write_b128 v17, v[40:43]\nds_write_b128 v17, v[44:47] offset:16")
e("s_mov_b64 exec, -1")
e("v_mov_b32 v61, 1\nds_write_b32 v9, v61")
stC("ln")
e("s_cmp_eq_u32 s3, 7\ns_cbranch_scc1 L_S")
e("s_cmp_ge_u32 s8, 640\ns_cbranch_scc1 L_END")
if "k" in EXP: e("s_endpgm")

if not KFIRST:
    e("s_waitcnt vmcnt(0)")
    stC("par")
    LAM, CC, YC, FY, FA, KT = 84, 88, 80, 128, 160, [112, 116]
    EV = {2.0: 192, 32.0: 196, 1.0: 200, 2048.0: 204, 8.0: 208, 128.0: 212, 512.0: 216, 516.0: 220}
    if HELP: k_setup(4, LAM, CC, EV, [2.0, 32.0, 1.0, 2048.0], (2.0,), (1.0, 2048.0), 64)
    else: k_setup(4, LAM, CC, EV, list(EV), (2.0, 8.0), (1.0, 2048.0, 512.0, 516.0), 20)
    e("v_and_b32 v10, 15, v0\nv_lshrrev_b32 v11, 4, v0")
    e(f"v_lshlrev_b32 v12, 3, v0\ns_add_u32 s6, s9, {TAB}\nv_add_u32 v12, s6, v12")
    e(f"v_mul_u32_u24 v14, {TPI}, v10\nv_lshl_add_u32 v14, v11, 4, v14\nv_add_u32 v14, s6, v14")
    y_init(YC)
    stC("k0")
    chain_loop([(YC, EV[2.0], 0), (CC, EV[32.0], 16)], 16, 0, 12, 13, 64, 10)
    stC("k1")
    e("s_waitcnt lgkmcnt(0)")
    frag_reads(FY, 14, 0); frag_reads(FA, 14, 16)
    e(f"v_cvt_pk_bf16_f32 v76, v{EV[2048.0]}, v{EV[2048.0]+1}\nv_cvt_pk_bf16_f32 v77, v{EV[2048.0]+2}, v{EV[2048.0]+3}")
    k_mfma(KT[0], FA, FY)
    e(f"ds_write_b64 v12, v[76:77] offset:{24*TPI}")
    chain_loop([(EV[1.0], EV[32.0], 0)], 8, 16, 12, 13, 64, 10)
    e("s_waitcnt lgkmcnt(0)")
    frag_reads(FA, 14, 16)
    e(f"s_add_u32 s10, s9, {TBOFF}")
    e("v_lshlrev_b32 v20, 2, v10\nv_lshl_add_u32 v20, v11, 8, v20\nv_add_u32 v20, s10, v20")
    e("v_lshlrev_b32 v21, 1, v10\nv_lshl_add_u32 v21, v11, 7, v21\nv_add_u32 v21, s10, v21")
    e(f"v_subrev_u32 v15, {CNT2-CNT}, v9")
    if not HELP: y_init(YC)
    k_mfma(KT[1], FA, FY)
    if not HELP:
        chain_loop([(YC, EV[8.0], 0), (EV[512.0], EV[128.0], 16), (EV[516.0], EV[128.0], 28)][:2], 12, 0, 12, 13, 64, 10)
        chain_loop([(YC, EV[8.0], 0), (EV[516.0], EV[128.0], 16)], 4, 12, 12, 13, 64, 10)
        e("s_waitcnt lgkmcnt(0)")
        frag_reads(FY, 14, 0); frag_reads(FA, 14, 16)
        e(f"s_add_u32 s10, s9, {TBOFF}")
        e("v_lshlrev_b32 v22, 2, v10\nv_lshrrev_b32 v23, 1, v11\nv_lshl_add_u32 v22, v23, 1, v22\nv_add_u32 v22, s10, v22")
        k_mfma(120, FA, FY)
        for r in range(4): e(f"v_cvt_pk_bf16_f32 v{32+r}, v{120+r}, v{120+r}")
        e("s_mov_b32 exec_lo, 0xffff\ns_mov_b32 exec_hi, 0xffff0000")
        for r in range(4): e(f"ds_write_b16 v22, v{32+r} offset:{768+64*r}")
        e("s_mov_b32 exec_lo, 0xffff0000\ns_mov_b32 exec_hi, 0xffff")
        for r in range(4): e(f"ds_write_b16 v21, v{32+r} offset:{896+32*r}")
        e("s_mov_b64 exec, -1")
    for r in range(4): e(f"v_cvt_pk_bf16_f32 v{24+r}, v{KT[0]+r}, v{KT[1]+r}")
    e("s_mov_b32 exec_hi, 0")
    for r in range(4): e(f"ds_write_b32 v20, v{24+r} offset:{64*r}")
    e("s_mov_b32 exec_lo, 0\ns_mov_b32 exec_hi, -1")
    for r in range(4): e(f"ds_write_b16 v21, v{24+r} offset:{256+32*r}")
    e("s_mov_b32 exec_hi, 1")
    e(f"ds_write_b16_d16_hi v21, v24 offset:{1280-256}")
    e("s_mov_b64 exec, -1")
wait_lds(17, 15, OPT.get("expat", "11"), sleep=True)
stC("kg")
if "e" in EXP: e("s_endpgm")
UR = 128
UL = e

e("v_lshlrev_b32 v24, 1, v0\nv_sub_u32 v22, 2047, v24\nv_sub_u32 v23, 2046, v24")
e("v_cvt_f32_i32 v22, v22\nv_cvt_f32_i32 v23, v23")
e(f"v_lshlrev_b32 v21, 2, v0\ns_add_u32 s6, s9, {KOFF-12}\nv_add_u32 v21, s6, v21")
e(f"s_add_u32 s6, s9, {TBOFF}\ns_sub_u32 s7, s6, {2*(0x4300-128)}\nv_mov_b32 v26, s7")
e(f"v_mov_b32 v30, {f32(-128.0)}")
e("v_lshlrev_b32 v27, 1, v24\nv_sub_u32 v27, s6, v27\nv_mov_b32 v28, 0")
def exp_rounds(n, lin=False):
    for k in range(n):
        t = 32 + 4*k
        if lin and k == n-1:
            e(f"ds_read_u16 v{t+1}, v27 offset:254\nds_read_u16 v{t+2}, v27 offset:252")
            continue
        e(f"v_cvt_pk_bf16_f32 v{t}, v22, v23")
        e("v_add_f32 v22, v22, v30\nv_add_f32 v23, v23, v30")
        e(f"v_mad_u32_u16 v{t+1}, v{t}, 2, v26")
        e(f"v_mad_u32_u16 v{t+2}, v{t}, 2, v26 op_sel:[1,0,0,0]")
        e(f"ds_read_u16 v{t+1}, v{t+1}\nds_read_u16 v{t+2}, v{t+2}")
    for k in range(n):
        t = 32 + 4*k
        e(f"s_waitcnt lgkmcnt({min(15, 2*(n-1-k) + 4*k)})")
        e(f"v_lshl_or_b32 v{t}, v{t+2}, 16, v{t+1}")
        for c in range(4): e(f"ds_write_b32 v21, v{t} offset:{c*(KCP+4) + 256*k}")
e("s_mov_b32 s10, 3")
e("L_EXP:")
exp_rounds(4)
e("v_add_u32 v21, 1024, v21")
e("s_sub_u32 s10, s10, 1\ns_cmp_lg_u32 s10, 0\ns_waitcnt lgkmcnt(0)\ns_cbranch_scc1 L_EXP")
exp_rounds(4, lin=True)
e("s_mov_b64 exec, 0x7fff")
for c in range(4): e(f"ds_write_b32 v21, v28 offset:{c*(KCP+4) + 1024}")
e("s_mov_b64 exec, -1")
e("v_mov_b32 v28, 2\nds_write_b32 v9, v28")
stC("ex")
e(f"s_mul_i32 s11, s13, {USZ}\ns_add_u32 s11, s11, {UB0}")
e(f"v_mov_b32 v18, {CNT2+192}")
stC("u")
e("v_lshrrev_b32 v12, 1, v10\nv_lshlrev_b32 v12, 6, v12\nv_lshl_add_u32 v12, v11, 4, v12")
e(f"v_and_b32 v13, 1, v10\nv_xor_b32 v13, 1, v13\nv_mul_u32_u24 v13, {U1OFF}, v13\nv_add_u32 v12, v12, v13")
e(f"s_add_u32 s6, s11, 448\nv_add_u32 v12, s6, v12")
e(f"v_and_b32 v13, 3, v10\nv_mul_u32_u24 v13, {KCP}, v13\nv_lshrrev_b32 v14, 2, v10\nv_sub_u32 v14, v11, v14\nv_lshl_add_u32 v13, v14, 4, v13")
e(f"s_add_u32 s6, s9, {KOFF+4080-3584}\nv_add_u32 v13, s6, v13")
CA, BU, BK = 20, [52, 116], [84, 148]
for r in range(CA, CA+32): e(f"v_mov_b32 v{r}, 0")
e("v_lshlrev_b32 v3, 4, v0\nv_add_u32 v3, s11, v3")
wait_lds(17, 18, "3", sleep=True)
for i in range(4):
    e(f"ds_read_b32 v{115+5*i}, v3 offset:{444+1024*i}")
    e(f"ds_read_b128 {vr(136+4*i,4)}, v3 offset:{448+1024*i}")
for i in range(4):
    e(f"s_waitcnt lgkmcnt({6-2*i+i})")
    e(f"v_alignbit_b32 v{152+4*i}, v{136+4*i}, v{115+5*i}, 16")
    for k in (1, 2, 3): e(f"v_alignbit_b32 v{152+4*i+k}, v{136+4*i+k}, v{136+4*i+k-1}, 16")
    e(f"ds_write_b128 v3, {vr(152+4*i,4)} offset:{U1OFF+448+1024*i}")
e("s_waitcnt lgkmcnt(0)")
def conv_reads(b):
    l = []
    for t in range(8):
        l.append(f"ds_read_b128 {vr(BU[b]+4*t,4)}, v12 offset:{512*t}")
        l.append(f"ds_read_b128 {vr(BK[b]+4*t,4)}, v13 offset:{512*(7-t)}")
    l.append("v_subrev_u32 v12, 64, v12\nv_subrev_u32 v13, 64, v13")
    return l
for l in conv_reads(0): e(l)
if OPT.get("gate", "1") == "1": wait_lds(17, 15, "12", sleep=True)
e(f"s_setprio {OPT.get('cprio', '3')}")
stC("cs")
e("s_mov_b32 s10, 4")
e("L_CV:")
for b in (0, 1):
    e("s_waitcnt lgkmcnt(0)")
    rd = conv_reads(1-b)
    n = 0
    for s_ in range(8):
        for t in range(8 - s_):
            a = CA + 4*(s_+t)
            e(f"v_mfma_f32_16x16x32_bf16 {vr(a,4)}, {vr(BU[b]+4*t,4)}, {vr(BK[b]+4*s_,4)}, {vr(a,4)}")
            if n < len(rd): e(rd[n])
            n += 1
e("s_sub_u32 s10, s10, 1\ns_cmp_lg_u32 s10, 0\ns_cbranch_scc1 L_CV")
stC("cd")
e(f"v_lshlrev_b32 v2, 7, v11\nv_lshl_add_u32 v2, v10, 2, v2\nv_add_u32 v3, s11, v2\ns_add_u32 s6, s9, {KOFF}\nv_add_u32 v2, s6, v2")
e("v_lshlrev_b32 v4, 4, v0\nv_add_u32 v5, s6, v4\nv_lshlrev_b32 v19, 16, v19")
e("s_waitcnt lgkmcnt(0)")
for k in range(16): e(f"ds_read_b32 v{52+k}, v3 offset:{448+512*(k//2)+64*(k%2)}")
e(f"s_lshl_b32 s6, s8, 12\ns_add_u32 s6, s6, {ST}")
for k in range(16):
    if k % 4 == 0: e(f"s_waitcnt lgkmcnt({min(15, 12-k+k)})")
    e(f"v_lshlrev_b32 v{68+2*(k%2)}, 16, v{52+k}\nv_and_b32 v{69+2*(k%2)}, 0xffff0000, v{52+k}")
    e(f"v_fmac_f32 v{CA+2*k}, v{68+2*(k%2)}, v19\nv_fmac_f32 v{CA+2*k+1}, v{69+2*(k%2)}, v19")
    e(f"v_cvt_pk_bf16_f32 v{52+k}, v{CA+2*k}, v{CA+2*k+1}")
    e(f"ds_write_b32 v2, v{52+k} offset:{512*(k//2)+64*(k%2)}")
for i in range(4): e(f"ds_read_b128 {vr(72+4*i,4)}, v5 offset:{1024*i}")
for i in range(4):
    e(f"s_waitcnt lgkmcnt({3-i})")
    e(f"buffer_store_dwordx4 {vr(72+4*i,4)}, v4, s[48:51], s6 offen offset:{1024*i} sc1")
stC("st")
e("s_waitcnt vmcnt(0)")
e(f"s_and_b32 s6, s8, 3\ns_lshl2_add_u32 s6, s4, s6\ns_mul_i32 s6, s6, {FS_}\ns_add_u32 s6, s6, {FL_C}")
e("v_mov_b32 v2, 0\nv_mov_b32 v3, 1\ns_mov_b64 exec, 1")
e("buffer_atomic_add v3, v2, s[48:51], s6 offen sc1")
stC("pub")
stC.flush(4, 5, (4, 9, 7))
e("s_endpgm")

e("L_S:")
stS = Stamper([82,84,86,88,90,92,94,96])
for i in range(10): e(f"buffer_load_dwordx4 {vr(128+4*i,4)}, v{64+i%5}, s[56:59], s{10 + i//5} offen{ntw2}")
e(f"v_lshrrev_b32 v1, 4, v0\nv_lshlrev_b32 v16, 2, v0\nv_add_u32 v16, {CNT2}, v16")
e(f"v_bfe_u32 v13, v0, 2, 2\nv_mul_u32_u24 v13, {SBP}, v13\nv_lshl_add_u32 v13, v1, 5, v13")
e(f"v_and_b32 v2, 3, v0\nv_lshl_add_u32 v13, v2, 3, v13\nv_add_u32 v13, {SB}, v13")
e(f"v_lshlrev_b32 v4, 4, v0\nv_add_u32 v6, {SST}, v4")
e("buffer_load_dword v7, v14, s[72:75], 0 offen sc1")
wait_lds(17, 16, "1")
e("s_mov_b64 exec, 0xffff\nds_read_b128 v[20:23], v6\ns_mov_b64 exec, -1")
for i in range(10):
    e(f"ds_read_b64_tr_b16 {vr(80+4*i,2)}, v13 offset:{128*i}")
    e(f"ds_read_b64_tr_b16 {vr(82+4*i,2)}, v13 offset:{128*i+4*SBP}")
e(f"s_lshl_b32 s6, s14, 8\ns_add_u32 s6, s6, {STATS}")
e("s_waitcnt lgkmcnt(15)\ns_mov_b64 exec, 0xffff")
e("buffer_store_dwordx4 v[20:23], v4, s[48:51], s6 offen sc1")
e("s_mov_b64 exec, -1")
stS()
e(f"v_bfe_u32 v1, v0, 2, 3\nv_lshrrev_b32 v3, 5, v0\nv_lshl_add_u32 v1, v3, 4, v1\nv_mul_u32_u24 v1, {SBW}, v1\nv_lshl_add_u32 v1, v2, 3, v1\nv_add_u32 v1, {SB}, v1")
e(f"s_lshr_b32 s6, s2, 2\ns_mul_i32 s10, s6, 5120\ns_and_b32 s7, s2, 3\ns_mul_i32 s7, s7, {2*276480}\ns_add_u32 s10, s10, s7\ns_add_u32 s10, s10, {W2F}")
e(f"s_cmp_ge_u32 s2, 216\ns_cselect_b32 s10, {OOB}, s10\ns_add_u32 s15, s15, {XNB}")
if "H" in EXP: e(f"s_mov_b32 s10, {OOB}\ns_mov_b32 s15, {OOB}")
def relay(val): e(f"v_mov_b32 v8, {val}\nds_write_b32 v15, v8")
SLP = OPT.get("sleep", "1")
def vpoll(load, chk, target, sl, first=True):
    L = e.lab("AG")
    e(f"s_mov_b32 s12, {SPIN_MAX}")
    if not first: e(f"s_branch {L}_c")
    e(f"{L}:")
    e(load); e("s_waitcnt vmcnt(0)")
    e(f"{L}_c:")
    e(f"v_cmp_gt_u32 vcc, {target}, v{chk}\ns_cbranch_vccz {L}_d\ns_sleep {sl}\ns_sub_u32 s12, s12, 1\ns_cbranch_scc0 {L}")
    e(f"{L}_d:")
def arrive(so): e(f"v_mov_b32 v8, 1\ns_mov_b64 exec, 1\nbuffer_atomic_add v8, v14, s[48:51], {so} offen sc1\ns_mov_b64 exec, -1")
e("s_waitcnt vmcnt(0)")
vpoll("buffer_load_dword v7, v14, s[72:75], 0 offen sc1", 7, 1, 8, first=False)
e(f"s_lshr_b32 s6, s14, 4\ns_mul_i32 s6, s6, {FS_}\ns_add_u32 s6, s6, {FL_T}"); arrive("s6")
e("s_cmp_ge_u32 s5, 4\ns_cbranch_scc1 L_S1"); relay(1); e("L_S1:")
stS()
e("s_waitcnt lgkmcnt(0)")
for i in range(10): e(f"ds_write_b128 v{69+i%5}, {vr(128+4*i,4)} offset:{(i//5)*16*SBW}")
e("s_waitcnt lgkmcnt(0)")
for dt in range(10):
    e(f"ds_read_b64_tr_b16 {vr(128+4*dt,2)}, v1 offset:{32*dt}")
    e(f"ds_read_b64_tr_b16 {vr(130+4*dt,2)}, v1 offset:{32*dt+8*SBW}")
for i in range(10):
    if i in (4, 8): e("s_add_u32 s15, s15, 4096")
    e(f"buffer_store_dwordx4 {vr(80+4*i,4)}, v4, s[48:51], s15 offen offset:{1024*(i%4)} sc1")
e("s_waitcnt lgkmcnt(0)")
for half in (0, 1):
    e(f"s_add_u32 s6, s10, {half*276480}\ns_add_u32 s7, s6, 4096")
    for d5 in range(5):
        r = 128 + (half*5+d5)*4
        if d5 < 4: e(f"buffer_store_dwordx4 {vr(r,4)}, v4, s[48:51], s6 offen offset:{1024*d5} sc1")
        else: e(f"buffer_store_dwordx4 {vr(r,4)}, v4, s[48:51], s7 offen sc1")
e(f"v_add_u32 v18, {CNT-CNT2}, v16\nv_and_b32 v5, 7, v0\nv_mul_u32_u24 v5, {FS_}, v5\nv_add_u32 v5, {FL_A}, v5")
e("s_waitcnt vmcnt(0)")
e(f"s_mul_i32 s6, s4, {FS_}\ns_add_u32 s6, s6, {FL_A}"); arrive("s6")
stS()
e("s_cmp_lt_u32 s5, 4\ns_cbranch_scc1 L_S2")
e(f"s_sub_u32 s6, s5, 4\ns_mul_i32 s7, s6, 37\ns_lshr_b32 s7, s7, 8\ns_mul_i32 s0, s7, 7\ns_sub_u32 s0, s6, s0\ns_lshr_b32 s6, s4, 1\ns_lshl2_add_u32 s6, s6, s7\ns_mul_i32 s6, s6, {FS_}\ns_add_u32 s6, s6, {FL_T}")
e("s_add_u32 s40, s44, s6\ns_addc_u32 s41, s45, 0")
e(f"s_and_b32 s6, s4, 1\ns_mul_i32 s6, s6, 7\ns_add_u32 s6, s6, s0\ns_mul_i32 s6, s6, {FS_}\ns_add_u32 s6, s6, {FL_E}\ns_add_u32 s38, s44, s6\ns_addc_u32 s39, s45, 0")
wait_lds(17, 18, OPT.get("tpollat", "7"), sleep=True)
spoll(40, [0], 16, 4); spoll(38, [0], 2, 4); relay(1)
wait_lds(17, 18, OPT.get("apollat", "8"), sleep=True)
e("s_branch L_S3")
e("L_S2:")
if OPT.get("warm", "0") == "1": spoll(44, [FL_A+FS_*k for k in range(8)], 32, OPT.get("isleep", "12"))
else:
    e(f"v_mov_b32 v16, {CNT2}")
    if "k" not in EXP and "e" not in EXP: wait_lds(17, 16, "2", sleep=True)
e("L_S3:")
stS()
vpoll("buffer_load_dword v7, v5, s[48:51], 0 offen sc1", 7, 32, OPT.get("ssleep", "4")); relay(2)
stS()
g2_ids()
e(f"s_mul_i32 s10, s14, 276480\ns_add_u32 s10, s10, {W2F}")
wait_lds(17, 18, OPT.get("wat", "10"), sleep=True)
if OPT.get("w8", "0") == "1":
    e("s_and_b32 s6, s5, 7\ns_mul_i32 s6, s6, 34560\ns_add_u32 s6, s6, s10")
    for k in range(34):
        e(f"buffer_load_dwordx4 {vr(192+4*(k%16),4)}, v4, s[48:51], s6 offen offset:{1024*(k%4)} sc1")
        if k % 4 == 3: e("s_add_u32 s6, s6, 4096")
e("s_mul_i32 s7, s5, 3\ns_lshl1_add_u32 s8, s5, 16\ns_cmp_lt_u32 s5, 16\ns_cselect_b32 s8, s7, s8\ns_mul_i32 s6, s4, 80\ns_add_u32 s8, s8, s6")
e(f"v_lshrrev_b32 v2, 2, v0\nv_and_b32 v6, 3, v0\nv_mul_u32_u24 v3, 10240, v2\nv_lshl_add_u32 v3, v6, 4, v3")
e(f"s_lshl_b32 s6, s8, 4\ns_add_u32 s6, s6, {XNB}")
for r in range(16):
    e(f"buffer_load_dwordx4 {vr(128+4*r,4)}, v3, s[48:51], s6 offen sc1")
    if r < 15: e("s_add_u32 s6, s6, 163840")
e(f"v_mul_u32_u24 v6, {USZ}, v6\nv_lshl_add_u32 v2, v2, 4, v6\nv_add_u32 v2, {UB0}, v2")
for r in range(20, 24): e(f"v_mov_b32 v{r}, 0")
e(f"v_add_u32 v3, {UB0}, v4")
wait_lds(17, 18, "11", sleep=True)
e("s_mov_b64 exec, 0xfffffff")
for ch in range(3): e(f"ds_write_b128 v3, v[20:23] offset:{ch*USZ}\nds_write_b128 v3, v[20:23] offset:{ch*USZ+U1OFF}")
e("s_mov_b32 exec_lo, 0x77777777\ns_mov_b32 exec_hi, 0x77777777")
for r in range(16):
    e(f"s_waitcnt vmcnt({15-r})")
    e(f"ds_write_b128 v2, {vr(128+4*r,4)} offset:{448+256*r}")
e("s_mov_b64 exec, -1")
e("v_mov_b32 v8, 3\nds_write_b32 v9, v8")
e("v_add_u32 v5, 4096, v4")
for k in range(3):
    e(f"s_add_u32 s6, s15, {5+k}\ns_cmp_ge_u32 s6, 14\ns_cselect_b32 s7, 14, 0\ns_sub_u32 s6, s6, s7\ns_lshl_b32 s6, s6, 2")
    for w in range(4):
        e(f"s_add_u32 s7, s6, {w}\ns_mul_i32 s0, s7, 5120\ns_add_u32 s0, s0, s10\ns_cmp_ge_u32 s7, 54\ns_cselect_b32 s0, {OOB}, s0\ns_mov_b32 m0, {(w*3+k)*5120}\ns_nop 0")
        for dt in range(4): e(f"buffer_load_dwordx4 v4, s[48:51], s0 offen offset:{1024*dt} sc1 lds")
        e(f"s_mov_b32 m0, {(w*3+k)*5120+4096}\ns_nop 0\nbuffer_load_dwordx4 v5, s[48:51], s0 offen sc1 lds")
        e(f"s_waitcnt vmcnt({OPT.get('pfd', '30')})")
stS()
e("s_waitcnt vmcnt(0)"); relay(3)
stS()
wait_lds(17, 18, "13", sleep=True)
e(f"s_mul_i32 s6, s14, {4*FS_}\ns_add_u32 s6, s6, {FL_C}\ns_add_u32 s40, s44, s6\ns_addc_u32 s41, s45, 0")
if "k" not in EXP and "e" not in EXP: spoll(40, [FS_*k for k in range(4)], 20, OPT.get("csleep", "4"))
relay(4)
stS()
stS.regs = [76,78,80] + stS.regs; stS.n += 3
stS.flush(8, 9)
e("L_END:")
e("s_endpgm")
for l in tail[:-1]: e(l)
e("L_LAST:")
e(tail[-1])
if "P" in EXP:
    for c_ in e.I:
        if c_.mn == "buffer_store_dwordx4" and ("v4, s[48:51]" in c_.text): c_.text = c_.text.replace(" sc1", "")
nn = e.fix()

hdr = open("cdna_kernels/" + NAME + ".s.ref").read().split("; Override")[0]
s = hdr + f"; @launch grid=(256,1,1) block=(512,1,1) lds={LDS_TOTAL}\n"
s += f""".amdgcn_target "amdgcn-amd-amdhsa--gfx950"
.text
.globl {NAME}_kernel
.p2align 8
.type {NAME}_kernel,@function
{NAME}_kernel:
"""
s += e.text()
s += f""".section .rodata,"a"
.p2align 6
.amdhsa_kernel {NAME}_kernel
  .amdhsa_next_free_vgpr 256
  .amdhsa_next_free_sgpr 102
  .amdhsa_accum_offset 256
  .amdhsa_group_segment_fixed_size 0
  .amdhsa_kernarg_size 120
  .amdhsa_user_sgpr_count 2
  .amdhsa_user_sgpr_kernarg_segment_ptr 1
  .amdhsa_system_sgpr_workgroup_id_x 1
.end_amdhsa_kernel
"""
open(OUT, "w").write(s)
print("instrs", sum(1 for c in e.I if c.cls), "nops inserted", nn, "lds", LDS_TOTAL)
```

```python
import sys, struct
from emit import Em, Q
NAME = "recurrent_scan__ssm_conv_s4d__mixer_channel_mlp__prompt"
DBGST = "--dbg" in sys.argv
AMP = [a[6:] for a in sys.argv if a.startswith("--amp=")]
STAMPS = "--stamps" in sys.argv or DBGST or bool(AMP)
OPT = dict(rot="0", cpf="1", expat="1", tpollat="7", apollat="9", nt="wp")
OPT.update(a[2:].split("=") for a in sys.argv[1:] if a.startswith("--") and "=" in a)
OUT = [a for a in sys.argv[1:] if not a.startswith("--")]
OUT = OUT[0] if OUT else "k.s"
NOAUX = OPT.get("noaux", "0")
EXP = OPT.get("exp", "")
RELAT = int(OPT.get("relat", "16"))
HELP = OPT.get("help", "1") == "1"
OSP = {"": "", "sc1": " sc1", "nt": " nt", "sc01": " sc0 sc1", "sc1nt": " sc1 nt"}[OPT.get("osp", "")]
NT = OPT.get("nt", "")
ntw2 = " nt" if "w" in NT else ""; ntp = " nt" if "p" in NT else ""; ntx = " nt" if "x" in NT else ""; ntg = " nt" if "g" in NT else ""
MT = "s_memtime" if "--cyc" in sys.argv else "s_memrealtime"

FS_ = int(OPT.get("fs", "128"))
FLB = 0x2C0000 if FS_ > 128 else 0
FL_A, FL_H, FL_C, FL_T, FL_E = [FLB + FS_*k for k in (0, 8, 40, 72, 88)]
STATS = 0x4000
XNB = 0x20000
WE = 0x2B0000
W2F = 0x300000
HF = 0x600000
ST = 0xD00000
STAMP = 0xFC0000
WS_SIZE = 0x1000000
OOB = 0x20000000
KSTEP = 8192
XST = 8 * KSTEP
CH0 = XST + 32768
CHSZ = 18176
SB = CH0 + 3 * CHSZ
SBP, SBW, SBF = 1280, 320, 160
CNT = SB + 10240
CNT2 = CNT + 256
SST = CNT2 + 256
REL = CH0 + 1284
LDS_TOTAL = SST + 256
assert LDS_TOTAL <= 163840, LDS_TOTAL
UB0, USZ, U1OFF = 61440, 9152, 4576
assert UB0 + 3*USZ <= CH0
KOFF, KCP = 1312, 4160
TBOFF, TAB, TPI = 0, 1296, 528
SPIN_MAX = 8192
LOG2E = 0x3fb8aa3b
INV2PI = 0x3e22f983

e = Em()
tail = []
def f32(x): return "0x%08x" % struct.unpack("<I", struct.pack("<f", x))[0]
def srd(r, ptr, size):
    e(f"s_mov_b32 s{r}, s{ptr}\ns_mov_b32 s{r+1}, s{ptr+1}\ns_mov_b32 s{r+2}, {size}\ns_mov_b32 s{r+3}, 0x20000")
def vr(a, n): return f"v[{a}:{a+n-1}]"

class Stamper:
    def __init__(self, regs): self.regs = regs; self.n = 0
    def __call__(self):
        if not STAMPS: return
        r = self.regs[self.n]; self.n += 1
        e(f"{MT} s[{r}:{r+1}]")
    def flush(self, v0, v1, dbg=None):
        if not STAMPS: return
        e("s_waitcnt lgkmcnt(0)")
        if AMP:
            if dbg is None or dbg[0] != 0: return
            r = self.regs[int(AMP[0])]
            L = e.lab("AMP")
            e(f"s_cmp_lg_u32 s2, 100\ns_cbranch_scc1 {L}_e\ns_cmp_lg_u32 s3, 0\ns_cbranch_scc1 {L}_e")
            e(f"s_sub_u32 s6, s{r}, s46\ns_lshl_b32 s6, s6, 2\ns_min_u32 s6, s6, 20000\ns_memrealtime s[8:9]\ns_waitcnt lgkmcnt(0)")
            e(f"{L}:\ns_sleep 1\ns_memrealtime s[10:11]\ns_waitcnt lgkmcnt(0)\ns_sub_u32 s10, s10, s8\ns_cmp_lt_u32 s10, s6\ns_cbranch_scc1 {L}\n{L}_e:")
            return
        if DBGST:
            if dbg is None: return
            wave, off, n = dbg
            L = e.lab("NODBG")
            e(f"s_cmp_lg_u32 s2, 100\ns_cbranch_scc1 {L}\ns_cmp_lg_u32 s3, {wave}\ns_cbranch_scc1 {L}")
            e(f"v_mov_b32 v{v1}, 0\ns_mov_b64 exec, 1")
            for i, r in enumerate(self.regs[:n]):
                e(f"s_sub_u32 s{r}, s{r}, s46\nv_mov_b32 v{v0}, s{r}")
                e(f"buffer_store_dword v{v0}, v{v1}, s[72:75], 0 offen offset:{4*(off+i)}")
                e("s_nop 0")
            e("s_waitcnt vmcnt(0)")
            e(f"{L}:")
            return
        e("s_lshl_b32 s6, s2, 3\ns_add_u32 s6, s6, s3\ns_lshl_b32 s6, s6, 6")
        e(f"s_add_u32 s6, s6, {STAMP}")
        e(f"v_mov_b32 v{v1}, 0")
        e("s_mov_b64 exec, 1")
        for i, r in enumerate([46] + self.regs[:self.n]):
            e(f"v_mov_b32 v{v0}, s{r}")
            e(f"buffer_store_dword v{v0}, v{v1}, s[48:51], s6 offen offset:{4*i}")
            e("s_nop 0")
        e("s_waitcnt vmcnt(0)")

def spin_lds(vchk, vaddr, val, sleep=False, after=(), pre_cmp=True, branch="s_cbranch_vccnz"):
    if NOAUX != "0" and not val.startswith("v"): return
    L = e.lab("SPIN"); B = e.lab("BACK")
    if pre_cmp: e(f"v_cmp_gt_u32 vcc, {val}, v{vchk}")
    e(f"{branch} {L}")
    e(f"{B}:")
    D = f"{L}_d" if after else B
    tail.extend([f"{L}:", f"s_mov_b32 s12, {SPIN_MAX*16}", f"{L}_a:"] + (["s_sleep 1"] if sleep else []) +
                [f"ds_read_b32 v{vchk}, v{vaddr}", "s_waitcnt lgkmcnt(0)",
                 f"v_cmp_gt_u32 vcc, {val}, v{vchk}", f"s_cbranch_vccz {D}", "s_sub_u32 s12, s12, 1", f"s_cbranch_scc0 {L}_a"] +
                ([f"{D}:"] + list(after) if after else []) + [f"s_branch {B}"])
def wait_lds(vchk, vaddr, val, sleep=False):
    e(f"ds_read_b32 v{vchk}, v{vaddr}\ns_waitcnt lgkmcnt(0)")
    spin_lds(vchk, vaddr, val, sleep)
def spoll(base, offs, target, sl, r0=16):
    if NOAUX != "0": return
    L = e.lab("AG")
    e(f"s_mov_b32 s12, {SPIN_MAX}")
    e(f"{L}:")
    for k, o in enumerate(offs): e(f"s_load_dword s{r0+k}, s[{base}:{base+1}], {o} glc")
    e("s_waitcnt lgkmcnt(0)")
    for k in range(1, len(offs)): e(f"s_min_u32 s{r0}, s{r0}, s{r0+k}")
    e(f"s_cmp_ge_u32 s{r0}, {target}\ns_cbranch_scc1 {L}_d\ns_sleep {sl}\ns_sub_u32 s12, s12, 1\ns_cbranch_scc0 {L}")
    e(f"{L}_d:")
def rb(dst, src):
    e(f"v_cvt_pk_bf16_f32 v{dst}, v{src}, v{src}\nv_and_b32 v{dst}, 0xffff0000, v{dst}")
def zero_cnt(base):
    e(f"s_and_b32 s6, s3, 3\ns_lshl_b32 s6, s6, 6\ns_add_u32 s6, s6, {base}")
    e("v_and_b32 v9, 15, v0\nv_lshlrev_b32 v9, 2, v9\nv_add_u32 v9, s6, v9\nv_mov_b32 v11, 0")
    e("ds_write_b32 v9, v11")

e("s_cmp_ge_u32 s2, 256")
e("s_cbranch_scc1 L_END")
if STAMPS: e(f"{MT} s[46:47]")
e("s_load_dwordx16 s[16:31], s[0:1], 0")
e("s_load_dwordx8 s[32:39], s[0:1], 64")
e("s_load_dwordx4 s[40:43], s[0:1], 96")
e("s_load_dwordx2 s[44:45], s[0:1], 112")
e("v_lshrrev_b32 v1, 6, v0")
e("v_and_b32 v0, 63, v0")
e("v_readfirstlane_b32 s3, v1")
e("s_and_b32 s4, s2, 7")
e("s_lshr_b32 s5, s2, 3")
if OPT.get("idlelast", "1") == "1": e("s_add_u32 s5, s5, 4\ns_and_b32 s5, s5, 31")
e("s_cmp_ge_u32 s3, 4")
e("s_cbranch_scc1 L_AUX")

def chan_id(cw):
    e("s_mul_i32 s7, s5, 3\ns_lshl1_add_u32 s8, s5, 16\ns_cmp_lt_u32 s5, 16\ns_cselect_b32 s8, s7, s8\ns_cselect_b32 s7, 3, 2")
    e(f"s_add_u32 s8, s8, s{cw}\ns_mul_i32 s6, s4, 80\ns_add_u32 s8, s8, s6\ns_cmp_ge_u32 s{cw}, s7\ns_cselect_b32 s8, 640, s8")
def param_loads(P, voff, vz, so, so2, R):
    for k, p in enumerate((18, 20, 22, 24)):
        srd(R[k], p, 163840)
        e(f"buffer_load_dword v{P+k}, v{voff}, s[{R[k]}:{R[k]+3}], s{so} offen{ntp}")
    srd(R[0], 26, 1280); e(f"buffer_load_ushort v{P+4}, v{vz}, s[{R[0]}:{R[0]+3}], s{so2} offen")
def k_setup_pk(P, LAM, CC, EV, PS, conj, starts, TM):
    DT = P + 4
    e(f"v_lshlrev_b32 v{DT}, 16, v{DT}\nv_mul_f32 v{DT}, {LOG2E}, v{DT}\nv_exp_f32 v{DT}, v{DT}")
    for k, d in enumerate((LAM, LAM+2, CC, CC+2)): e(f"v_lshlrev_b32 v{d}, 16, v{P+k}\nv_and_b32 v{d+1}, 0xffff0000, v{P+k}")
    rb(DT, DT)
    for n in (0, 1): e(f"v_mul_f32 v{LAM+n}, {LOG2E}, v{LAM+n}")
    for n in (0, 1): e(f"v_exp_f32 v{LAM+n}, v{LAM+n}")
    e(f"v_add_f32 v{P}, v{DT}, v{DT}")
    e(f"v_cvt_pk_bf16_f32 v{P+1}, v{LAM}, v{LAM+1}\nv_lshlrev_b32 v{LAM}, 16, v{P+1}\nv_and_b32 v{LAM+1}, 0xffff0000, v{P+1}")
    for d in (LAM, LAM+2): e(f"v_pk_mul_f32 {vr(d,2)}, {vr(d,2)}, {vr(DT,2)} op_sel_hi:[1,0]")
    for d in (CC, CC+2): e(f"v_pk_mul_f32 {vr(d,2)}, {vr(d,2)}, {vr(P,2)} op_sel_hi:[1,0]")
    for n in (0, 1): e(f"v_mul_f32 v{LAM+n}, {f32(-1.4426950408889634)}, v{LAM+n}\nv_mul_f32 v{LAM+2+n}, {INV2PI}, v{LAM+2+n}")
    for i, p in enumerate(PS):
        for k in range(4): e(f"v_mul_f32 v{TM+4*i+k}, {f32(p)}, v{LAM+k}")
    for i, p in enumerate(PS):
        for n in (0, 1): e(f"v_exp_f32 v{TM+4*i+n}, v{TM+4*i+n}\nv_fract_f32 v{TM+4*i+2+n}, v{TM+4*i+2+n}")
    for i, p in enumerate(PS):
        for n in (0, 1): e(f"v_cos_f32 v{EV[p]+n}, v{TM+4*i+2+n}\nv_sin_f32 v{EV[p]+2+n}, v{TM+4*i+2+n}")
    for i, p in enumerate(PS):
        e(f"v_pk_mul_f32 {vr(EV[p],2)}, {vr(EV[p],2)}, {vr(TM+4*i,2)}")
        e(f"v_pk_mul_f32 {vr(EV[p]+2,2)}, {vr(EV[p]+2,2)}, {vr(TM+4*i,2)}" + (" neg_lo:[1,0] neg_hi:[1,0]" if p == conj else ""))
    pk_step([(EV[p], CC, TM+2*i) for i, p in enumerate(starts)])
def pk_step(g, mid=()):
    for (z, m, t) in g: e(f"v_pk_mul_f32 {vr(t,2)}, {vr(z+2,2)}, {vr(m+2,2)}")
    for l in mid: e(l)
    for (z, m, t) in g: e(f"v_pk_mul_f32 {vr(z+2,2)}, {vr(z+2,2)}, {vr(m,2)}")
    for (z, m, t) in g: e(f"v_pk_fma_f32 {vr(z+2,2)}, {vr(z,2)}, {vr(m+2,2)}, {vr(z+2,2)}")
    for (z, m, t) in g: e(f"v_pk_fma_f32 {vr(z,2)}, {vr(z,2)}, {vr(m,2)}, {vr(t,2)} neg_lo:[0,0,1] neg_hi:[0,0,1]")
def chain_pk(ch, n, row0, VB, TM):
    for u in range(n):
        for i, (z, m, off) in enumerate(ch):
            e(f"v_cvt_pk_bf16_f32 v{TM+4*(u&1)+2*i}, v{z}, v{z+2}\nv_cvt_pk_bf16_f32 v{TM+1+4*(u&1)+2*i}, v{z+1}, v{z+3}")
        wr = [f"ds_write_b64 v{VB}, {vr(TM+4*(u&1)+2*i,2)} offset:{(row0+off+u)*TPI}" for i, (z, m, off) in enumerate(ch)]
        pk_step([(z, m, TM+8+2*i) for i, (z, m, off) in enumerate(ch)], wr)
def k_setup(P, LAM, CC, EV, PS, conj, starts, TM):
    DT = P + 4
    e(f"v_lshlrev_b32 v{DT}, 16, v{DT}\nv_mul_f32 v{DT}, {LOG2E}, v{DT}\nv_exp_f32 v{DT}, v{DT}")
    for n in (0, 1):
        up = (lambda d, s: e(f"v_lshlrev_b32 v{d}, 16, v{s}")) if n == 0 else (lambda d, s: e(f"v_and_b32 v{d}, 0xffff0000, v{s}"))
        up(LAM+2*n, P); up(LAM+2*n+1, P+1); up(CC+2*n, P+2); up(CC+2*n+1, P+3)
    rb(DT, DT)
    for n in (0, 1): e(f"v_mul_f32 v{LAM+2*n}, {LOG2E}, v{LAM+2*n}")
    for n in (0, 1): e(f"v_exp_f32 v{LAM+2*n}, v{LAM+2*n}")
    e(f"v_add_f32 v{P}, v{DT}, v{DT}")
    for n in (0, 1): rb(LAM+2*n, LAM+2*n)
    for n in (0, 1):
        e(f"v_mul_f32 v{LAM+2*n}, v{LAM+2*n}, v{DT}\nv_mul_f32 v{LAM+2*n+1}, v{LAM+2*n+1}, v{DT}")
        e(f"v_mul_f32 v{CC+2*n}, v{CC+2*n}, v{P}\nv_mul_f32 v{CC+2*n+1}, v{CC+2*n+1}, v{P}")
    for n in (0, 1):
        e(f"v_mul_f32 v{LAM+2*n}, {f32(-1.4426950408889634)}, v{LAM+2*n}\nv_mul_f32 v{LAM+2*n+1}, {INV2PI}, v{LAM+2*n+1}")
    it = [(p, n) for p in PS for n in (0, 1)]
    tm = {k: TM + 2*i for i, k in enumerate(it)}
    for (p, n) in it:
        if p == 1.0: e(f"v_exp_f32 v{tm[p,n]}, v{LAM+2*n}\nv_fract_f32 v{tm[p,n]+1}, v{LAM+2*n+1}")
        else: e(f"v_mul_f32 v{tm[p,n]}, {f32(p)}, v{LAM+2*n}\nv_mul_f32 v{tm[p,n]+1}, {f32(p)}, v{LAM+2*n+1}")
    for (p, n) in it:
        if p != 1.0: e(f"v_exp_f32 v{tm[p,n]}, v{tm[p,n]}\nv_fract_f32 v{tm[p,n]+1}, v{tm[p,n]+1}")
    for (p, n) in it: e(f"v_cos_f32 v{EV[p]+2*n}, v{tm[p,n]+1}\nv_sin_f32 v{EV[p]+2*n+1}, v{tm[p,n]+1}")
    for (p, n) in it:
        neg = "-" if p in conj else ""
        e(f"v_mul_f32 v{EV[p]+2*n}, v{EV[p]+2*n}, v{tm[p,n]}")
        e(f"v_mul_f32 v{EV[p]+2*n+1}, {neg}v{EV[p]+2*n+1}, v{tm[p,n]}")
    g_ = [(EV[p]+2*n, CC+2*n, TM+2*i+n) for i, p in enumerate(starts) for n in (0, 1)]
    for (z, m, t) in g_: e(f"v_mul_f32 v{t}, v{z+1}, v{m+1}")
    for (z, m, t) in g_: e(f"v_mul_f32 v{z+1}, v{z+1}, v{m}")
    for (z, m, t) in g_: e(f"v_fmac_f32 v{z+1}, v{z}, v{m+1}")
    for (z, m, t) in g_: e(f"v_fma_f32 v{z}, v{z}, v{m}, -v{t}")
def chain_loop(ch, n, row0, VB, VA, TM, SC):
    L = e.lab("KL")
    UN = min(n, int(OPT.get("kun", "4")))
    if n > UN: e(f"s_mov_b32 s{SC}, {n//UN}")
    e(f"v_add_u32 v{VA}, {row0*TPI}, v{VB}")
    e(f"{L}:")
    for u in range(UN):
        for i, (z, m, off) in enumerate(ch):
            e(f"v_cvt_pk_bf16_f32 v{TM+4*(u&1)+2*i}, v{z}, v{z+1}\nv_cvt_pk_bf16_f32 v{TM+1+4*(u&1)+2*i}, v{z+2}, v{z+3}")
        g = [(z+2*k, m+2*k, TM+8+2*i+k) for i, (z, m, off) in enumerate(ch) for k in (0, 1)]
        for (z, m, t) in g: e(f"v_mul_f32 v{t}, v{z+1}, v{m+1}")
        for i, (z, m, off) in enumerate(ch): e(f"ds_write_b64 v{VA}, {vr(TM+4*(u&1)+2*i,2)} offset:{(off+u)*TPI}")
        for (z, m, t) in g: e(f"v_mul_f32 v{z+1}, v{z+1}, v{m}")
        if u == UN-1 and n > UN: e(f"v_add_u32 v{VA}, {UN*TPI}, v{VA}")
        for (z, m, t) in g: e(f"v_fmac_f32 v{z+1}, v{z}, v{m+1}")
        if u == UN-1 and n > UN: e(f"s_sub_u32 s{SC}, s{SC}, 1\ns_cmp_lg_u32 s{SC}, 0")
        for (z, m, t) in g: e(f"v_fma_f32 v{z}, v{z}, v{m}, -v{t}")
    if n > UN: e(f"s_cbranch_scc1 {L}")
def y_init(Y): e(f"v_mov_b32 v{Y}, 1.0\nv_mov_b32 v{Y+1}, 0\nv_mov_b32 v{Y+2}, 1.0\nv_mov_b32 v{Y+3}, 0")
def frag_reads(dst, VF, row0):
    for s_ in range(8): e(f"ds_read_b128 {vr(dst+4*s_,4)}, v{VF} offset:{64*s_+row0*TPI}")
def k_mfma(K, FA, FY):
    for s_ in range(8):
        e(f"s_waitcnt lgkmcnt({7-s_})")
        e(f"v_mfma_f32_16x16x32_bf16 {vr(K,4)}, {vr(FA+4*s_,4)}, {vr(FY+4*s_,4)}, {vr(K,4) if s_ else 0}")
def g2_ids():
    e("s_and_b32 s6, s5, 7\ns_lshr_b32 s13, s4, 1\ns_lshl3_add_u32 s13, s13, s6\ns_lshr_b32 s7, s5, 3\ns_and_b32 s14, s4, 1\ns_lshl2_add_u32 s14, s14, s7")
    e("s_mul_i32 s15, s7, 7\ns_lshr_b32 s15, s15, 1")

_stG = Stamper([30,32,34,36,38,96,98,100])
GSEL = OPT.get("gst", "c0,g1,ep,hp,hs,g2,rd,end").split(",")
class _G:
    def __call__(self, name):
        if name in GSEL:
            _stG.n = GSEL.index(name); _stG()
    def flush(self, *a):
        _stG.n = 8; _stG.flush(*a)
stG = _G()
vm = Q(e, "vmcnt", 63); lg = Q(e, "lgkmcnt", 15)
XR, VXA, WB = 48, 244, 80
ACC = 112
VCHK, VREL = 250, 251
WEF, XEF, XEC = 176, 192, 196
sK = [76+i for i in range(14)]
HP = 112
e(f"s_setprio {OPT.get('gprio', '2')}")
zero_cnt(CNT)
e("v_lshrrev_b32 v10, 4, v0")
e("v_and_b32 v8, 15, v0")
g2_ids()
if HELP: chan_id(3)
if HELP: e(f"s_lshl_b32 s60, s8, 8\ns_lshl_b32 s61, s8, 1\ns_mov_b32 s62, s8\nv_lshlrev_b32 v117, 2, v0\nv_mov_b32 v118, 0")
e("s_cmp_lt_u32 s5, 4")
e("s_cbranch_scc1 L_IDLE")
e("s_sub_u32 s6, s5, 4\ns_mul_i32 s7, s6, 37\ns_lshr_b32 s7, s7, 8\ns_mul_i32 s8, s7, 7\ns_sub_u32 s6, s6, s8")
e("s_lshr_b32 s8, s4, 1\ns_lshl_b32 s8, s8, 2\ns_add_u32 s8, s8, s7")
e("s_and_b32 s9, s4, 1\ns_mul_i32 s9, s9, 7\ns_add_u32 s9, s9, s6")
e("s_lshl_b32 s11, s9, 8")
ROT = OPT.get("rot", "1") != "0"
sW = list(range(16, 26)); sX = [26, 27, 28, 29, 90, 91, 92, 93, 94, 95]
if ROT:
    e("s_mul_i32 s12, s6, 370\ns_lshr_b32 s12, s12, 8\ns_mul_i32 s7, s7, 5\ns_lshr_b32 s7, s7, 1\ns_add_u32 s12, s12, s7")
    e("s_cmp_ge_u32 s12, 10\ns_cselect_b32 s7, 10, 0\ns_sub_u32 s12, s12, s7")
def rot_tab(ps):
    if not ROT: return
    for p in ps:
        if p: e("s_add_u32 s12, s12, 1\ns_cmp_eq_u32 s12, 10\ns_cselect_b32 s12, 0, s12")
        e(f"s_mul_i32 s{sW[p]}, s12, 221184\ns_add_u32 s{sW[p]}, s{sW[p]}, s11\ns_lshl_b32 s{sX[p]}, s12, 7")
e("v_bfe_u32 v1, v0, 2, 2\ns_lshl_b32 s6, s3, 3\nv_add_u32 v1, s6, v1\nv_mul_u32_u24 v1, 3456, v1")
e("v_lshl_add_u32 v1, v10, 6, v1\nv_and_b32 v2, 3, v0\nv_lshl_add_u32 v1, v2, 4, v1")
e(f"v_add_u32 v2, {4*3456-1024}, v1")
e("s_lshl_b32 s6, s8, 7\ns_lshl_b32 s7, s3, 5\ns_add_u32 s6, s6, s7")
e("v_lshrrev_b32 v5, 3, v0\nv_add_u32 v3, s6, v5\nv_mul_u32_u24 v3, 1280, v3\nv_and_b32 v6, 7, v0\nv_lshrrev_b32 v5, 1, v5\nv_xor_b32 v6, v6, v5")
e(f"v_xor_b32 v5, 4, v6\nv_lshl_add_u32 v4, v5, 4, v3\nv_add_u32 v4, {10240-1024}, v4\nv_lshl_add_u32 v3, v6, 4, v3")
e(f"s_lshl_b32 s10, s3, 13\ns_add_u32 s10, s10, {XST}")
e("s_waitcnt lgkmcnt(0)")
def g_params():
    if not HELP: return
    param_loads(HP, 117, 118, 60, 61, (64, 68, 72, 48))
    for _ in range(5): vm.issue("par")
g_params()
e("s_barrier")
e("s_lshl_b32 s1, s3, 11")
srd(56, 32, 2211840); srd(52, 16, 2621440)
rot_tab(range(1))
def w_ops(step):
    def a():
        if ROT: e(f"s_add_u32 m0, s1, {(step % 8)*KSTEP}\ns_add_u32 s0, s{sW[step//2]}, {(step % 2)*110592}")
        else: e(f"s_add_u32 m0, s1, {(step % 8)*KSTEP}\ns_add_u32 s0, s11, {step*110592}")
        e(f"buffer_load_dwordx4 v1, s[56:59], s0 offen{ntg} lds"); vm.issue(("w", step//2))
    def b():
        e(f"buffer_load_dwordx4 v2, s[56:59], s0 offen offset:1024{ntg} lds"); vm.issue(("w", step//2))
    return [a, b]
def x_ops(u):
    def a():
        if ROT: e(f"s_add_u32 m0, s10, {(u % 4)*2048}\ns_add_u32 s0, s{sX[u//2]}, {(u % 2)*20480}")
        else: e(f"s_add_u32 m0, s10, {(u % 4)*2048}\ns_mov_b32 s0, {(u//2)*128 + (u % 2)*20480}")
        e("buffer_load_dwordx4 v3, s[52:55], s0 offen lds"); vm.issue(("x", u))
    def b():
        e("buffer_load_dwordx4 v4, s[52:55], s0 offen offset:1024 lds"); vm.issue(("x", u))
    return [a, b]
def x_read(c, kk):
    if kk == 0: vm.wait(("x", 2*c+1))
    e(f"ds_read_b128 {vr(XR+(c%2)*16+4*kk,4)}, v{VXA+kk} offset:{(c%2)*4096}"); lg.issue(("xr", c, kk))
for op in w_ops(0) + x_ops(0) + x_ops(1) + w_ops(1): op()
def g_srds(): srd(48, 44, WS_SIZE); srd(64, 38, 1280); srd(68, 40, 2621440); srd(72, 42, 256)
g_srds()
rot_tab(range(1, 10))
NP2 = int(OPT.get("np2", "0"))
late = (w_ops(2) + w_ops(3) + x_ops(2) + x_ops(3))
for op in late[:NP2]: op()
def helper(mid=((), ())):
    if not HELP:
        for op in list(mid[0]) + list(mid[1]): op()
        return
    LAM, CC, TM, YC, FY, FA, KT = 120, 124, 144, 160, 176, 208, 240
    EV = {8.0: 128, 128.0: 132, 512.0: 136, 516.0: 140}
    e("s_cmp_ge_u32 s62, 640" if "n" not in EXP else "s_cmp_ge_u32 s62, 0")
    L = e.lab("NOH")
    e(f"s_cbranch_scc1 {L}")
    e(f"s_mul_i32 s6, s3, {16*TPI}\ns_add_u32 s6, s6, {4*KSTEP}\nv_lshlrev_b32 v244, 3, v0\nv_add_u32 v244, s6, v244")
    e(f"v_mul_u32_u24 v245, {TPI}, v8\nv_lshl_add_u32 v245, v10, 4, v245\nv_add_u32 v245, s6, v245")
    e(f"s_mul_i32 s6, s3, {CHSZ}\ns_add_u32 s6, s6, {CH0+TBOFF}")
    e("v_lshlrev_b32 v247, 1, v8\nv_lshl_add_u32 v247, v10, 7, v247\nv_add_u32 v247, s6, v247")
    e("v_lshlrev_b32 v248, 2, v8\nv_lshrrev_b32 v249, 1, v10\nv_lshl_add_u32 v248, v249, 1, v248\nv_add_u32 v248, s6, v248")
    e(f"v_mov_b32 v{YC}, 1.0\nv_mov_b32 v{YC+1}, 1.0\nv_mov_b32 v{YC+2}, 0\nv_mov_b32 v{YC+3}, 0")
    vm.wait("par")
    stG("par")
    k_setup_pk(HP, LAM, CC, EV, [8.0, 128.0, 512.0, 516.0], 8.0, (512.0, 516.0), TM)
    for op in mid[0]: op()
    L2 = e.lab("HY")
    e(f"s_mov_b32 s63, 4\nv_mov_b32 v246, v244\n{L2}:")
    chain_pk([(YC, EV[8.0], 0)], 4, 0, 246, TM)
    e(f"v_add_u32 v246, {4*TPI}, v246\ns_sub_u32 s63, s63, 1\ns_cmp_lg_u32 s63, 0\ns_cbranch_scc1 {L2}")
    e("s_waitcnt lgkmcnt(0)")
    frag_reads(FY, 245, 0)
    for op in mid[1]: op()
    e("s_waitcnt lgkmcnt(0)")
    chain_pk([(EV[512.0], EV[128.0], 0), (EV[516.0], EV[128.0], 12)], 4, 0, 244, TM)
    chain_pk([(EV[512.0], EV[128.0], 0)], 8, 4, 244, TM)
    e("s_waitcnt lgkmcnt(0)")
    frag_reads(FA, 245, 0)
    k_mfma(KT, FA, FY)
    for r in range(4): e(f"v_cvt_pk_bf16_f32 v{TM+r}, v{KT+r}, v{KT+r}")
    e("s_mov_b32 exec_lo, 0xffff\ns_mov_b32 exec_hi, 0xffff0000")
    for r in range(4): e(f"ds_write_b16 v248, v{TM+r} offset:{768+64*r}")
    e("s_mov_b32 exec_lo, 0xffff0000\ns_mov_b32 exec_hi, 0xffff")
    for r in range(4): e(f"ds_write_b16 v247, v{TM+r} offset:{896+32*r}")
    e("s_mov_b64 exec, -1")
    if mid[0] or mid[1]:
        q = list(vm.q)
        e(f"s_branch {L}_j\n{L}:")
        for op in list(mid[0]) + list(mid[1]): op()
        vm.q = q
        e(f"{L}_j:")
    else: e(f"{L}:")
def kappa_tab():
    e("s_mov_b32 s6, s15")
    for i in range(14):
        if i: e("s_add_u32 s6, s6, 1\ns_cmp_eq_u32 s6, 14\ns_cselect_b32 s6, 0, s6")
        e(f"s_lshl2_add_u32 s7, s6, s3\ns_cmp_ge_u32 s7, 54\ns_cselect_b32 s7, {0x8000000>>10}, s7\ns_lshl_b32 s{sK[i]}, s7, 10")
if OPT.get("kapearly", "0") == "1": kappa_tab()
vq = list(vm.q)
if OPT.get("mid", "1") == "1":
    helper((late[NP2:4], late[4:]))
    vm.q = vq + vm.q[len(vm.q)-(8-NP2):]
else:
    helper()
    vm.q = vq
    for op in late[NP2:]: op()
stG("hlp")
e("v_lshrrev_b32 v7, 5, v0\nv_lshlrev_b32 v5, 11, v7\nv_bfe_u32 v6, v0, 2, 2\nv_lshl_add_u32 v5, v6, 6, v5\nv_bfe_u32 v6, v0, 4, 1\nv_lshl_add_u32 v5, v6, 5, v5\nv_and_b32 v6, 3, v0\nv_lshl_add_u32 v5, v6, 3, v5")
e(f"v_bfe_u32 v6, v0, 1, 3\nv_xor_b32 v6, v6, v7\nv_lshlrev_b32 v6, 4, v6\nv_and_b32 v253, 31, v0\nv_lshl_add_u32 v6, v253, 7, v6")
for kk in range(4): e(f"v_xor_b32 v{VXA+kk}, {32*kk}, v6\nv_add_u32 v{VXA+kk}, s10, v{VXA+kk}")
e(f"v_mov_b32 v252, {OOB}\nv_cmp_gt_u32 vcc, 32, v0\nv_lshlrev_b32 v6, 4, v253\nv_lshlrev_b32 v253, 5, v253\nv_cndmask_b32 v6, v252, v6, vcc\nv_cndmask_b32 v7, v252, v253, vcc")
def gcommon():
    e(f"v_lshlrev_b32 v10, 2, v0\nv_add_u32 v10, {CNT}, v10")
def w2_ops(i):
    ops = []
    for dt in range(5):
        def f(dt=dt):
            if dt == 0: e(f"s_lshl2_add_u32 s0, s{sK[i]}, s10\ns_add_u32 s0, s0, s{sK[i]}")
            if dt == 4: e("s_add_u32 s0, s0, 4096")
            r = 12 + (i % 5)*20 + dt*4
            e(f"buffer_load_dwordx4 {vr(r,4)}, v1, s[48:51], s0 offen offset:{1024*(dt%4)} sc1"); vm.issue(("w2", i))
        ops.append(f)
    return ops
def g2_bases():
    e("v_lshlrev_b32 v1, 4, v0")
    e(f"s_mul_i32 s10, s14, 276480\ns_add_u32 s10, s10, {W2F}")
    e(f"s_mul_i32 s11, s13, 221184\ns_add_u32 s11, s11, {HF}")
gcommon()
EW = int(OPT.get("ew", "0"))
if EW: kappa_tab()
stG("p")
def signal():
    e("v_add_u32 v11, 1, v11")
    e("ds_write_b32 v9, v11"); lg.issue("sig")
CHKR = [VCHK]
def chk_read():
    e(f"ds_read_b32 v{CHKR[0]}, v10"); lg.issue("chk")
def chk_eval():
    lg.wait("chk")
    spin_lds(CHKR[0], 10, "v11")
def tr_one(step, n, hf_):
    kh, t = divmod(n, 4)
    e(f"ds_read_b64_tr_b16 {vr(WB+4*n+2*hf_,2)}, v5 offset:{(step % 8)*KSTEP + 4096*kh + 1024*hf_ + 256*t}"); lg.issue(("w", step, n))
vm.wait(("w", 0))
signal(); chk_read()
for kk in range(4): x_read(0, kk)
chk_eval()
stG("c0")
for n in range(8): tr_one(0, n, 0); tr_one(0, n, 1)
EW = 0
for i in range(20):
    c, k2 = divmod(i, 2)
    stG(f"a{i}")
    side = {n: [] for n in range(8)}
    if i < 19:
        for n in range(8): side[n] += [lambda n=n: tr_one(i+1, n, 0), lambda n=n: tr_one(i+1, n, 1)]
    if i == 0:
        for n, op in zip((0, 1, 2, 3), w_ops(4) + w_ops(5)): side[n].append(op)
    elif i + 5 <= 19:
        for n, op in zip((0, 2), w_ops(i+5)): side[n].append(op)
    if i + 4 <= 19:
        if k2 == 0: side[4].append(lambda c=c: lg.wait(("xr", c, 3)))
        for n, op in zip((4, 6), x_ops(i+4)): side[n].append(op)
    if k2 == 0 and c + 1 <= 9:
        def sg(c=c):
            vm.wait(("w", c+1)); signal()
        side[3].append(sg); side[5].append(chk_read)
    if k2 == 1 and c + 1 <= 9:
        for kk in range(4): side[(1, 3, 5, 7)[kk]].append(lambda kk=kk, c=c: x_read(c+1, kk))
    if i == 15:
        side[5].append(lambda: (e(f"v_mov_b32 v252, {REL}\nds_read_b32 v{VREL}, v252"), lg.issue("rel")))
    if i == RELAT:
        def f():
            if RELAT != 16: e(f"ds_read_b32 v{VREL}, v252"); lg.issue("rel")
            lg.wait("rel")
            spin_lds(VREL, 252, "1")
            e(f"s_lshl_b32 s6, s8, 12\ns_lshl_b32 s7, s3, 10\ns_add_u32 s6, s6, s7\ns_add_u32 s6, s6, {STATS}\ns_lshl_b32 s63, s9, 11\ns_add_u32 s63, s63, {WE}")
            e(f"buffer_load_dwordx4 {vr(XEF,4)}, v7, s[48:51], s6 offen sc1"); vm.issue("xe")
        side[0].append(f)
        side[2].append(lambda: (e(f"buffer_load_dwordx4 {vr(XEC,4)}, v253, s[48:51], s6 offen offset:16 sc1"), vm.issue("xe")))
        for t in range(4):
            side[(1, 4, 6, 7)[t]].append(lambda t=t: (e(f"buffer_load_dwordx4 {vr(WEF+4*t,4)}, v6, s[48:51], s63 offen offset:{512*t} sc1"), vm.issue("xe")))
    if i == 18:
        side[1].append(g2_bases)
        side[3].append(lambda: e("v_bfe_u32 v3, v0, 4, 1\nv_lshlrev_b32 v3, 10, v3\nv_lshrrev_b32 v4, 5, v0\nv_lshl_add_u32 v3, v4, 8, v3"))
        side[5].append(lambda: e("v_and_b32 v4, 15, v0\nv_lshl_add_u32 v255, v4, 4, v3\nv_mov_b32 v2, 0"))
    if i == 19:
        side[0].append(lambda: e(f"s_lshr_b32 s6, s3, 1\ns_lshl_b32 s7, s8, 1\ns_add_u32 s6, s6, s7\ns_mul_i32 s44, s6, 221184"))
        side[1].append(lambda: e(f"s_and_b32 s7, s3, 1\ns_lshl_b32 s7, s7, 11\ns_add_u32 s44, s44, s7\ns_add_u32 s44, s44, {HF}"))
        side[2].append(lambda: e(f"s_mul_i32 s45, s6, {FS_}\ns_add_u32 s45, s45, {FL_H}"))
        side[3].append(lambda: e(f"s_lshl_b32 s6, s9, 14\ns_add_u32 s44, s44, s6\ns_cmp_eq_u32 s9, 13\ns_cselect_b32 s43, {OOB}, s44"))
        side[7].append(signal)
    for n in range(8):
        kh, t = divmod(n, 4)
        need = [("w", i, n), ("w", i, n+1)] if n % 2 == 0 else []
        if t == 0: need += [("xr", c, 2*k2+kh)]
        if need: lg.wait(need)
        a_ = ACC + 16*t
        e(f"v_mfma_f32_32x32x16_bf16 {vr(a_,16)}, {vr(WB+4*n,4)}, {vr(XR+(c%2)*16+4*(2*k2+kh),4)}, {vr(a_,16) if (i or kh) else 0}")
        for f in side[n]: f()
    if k2 == 0 and c + 1 <= 9: chk_eval()
vm.wait("xe")
for t in range(4): e(f"v_mfma_f32_32x32x16_bf16 {vr(ACC+16*t,16)}, {vr(WEF+4*t,4)}, {vr(XEF,4)}, {vr(ACC+16*t,16)}")
e("v_mov_b32 v7, 1")
stG("g1")
TQ, TE, TO = 224, 232, 240
def h_flag(k):
    vm.wait(("hst", k))
    e(f"s_mov_b64 exec, 1\nbuffer_atomic_add v7, v2, s[48:51], s45 offen offset:{4*k} sc1\ns_mov_b64 exec, -1")
for tp in range(4):
    e(f"s_add_u32 s6, s{44 if tp < 2 else 43}, {4096*tp}")
    for mt in (0, 1):
        st = XEC
        P = range(4)
        acc = lambda q: ACC + 16*tp + 8*mt + 2*q
        for q in P: e(f"v_pk_mul_f32 {vr(TQ+2*q,2)}, {vr(acc(q),2)}, {vr(acc(q),2)}")
        for q in P: e(f"v_pk_fma_f32 {vr(TQ+2*q,2)}, {vr(st,2)}, {vr(TQ+2*q,2)}, {vr(st,2)} op_sel:[0,0,1] op_sel_hi:[0,1,1]")
        for q in P: e(f"v_pk_mul_f32 {vr(TQ+2*q,2)}, {vr(TQ+2*q,2)}, {vr(acc(q),2)}")
        for q in range(8): e(f"v_exp_f32 v{TE+q}, v{TQ+q}")
        for q in P: e(f"v_pk_fma_f32 {vr(TE+2*q,2)}, {vr(st+2,2)}, {vr(TE+2*q,2)}, {vr(st+2,2)} op_sel_hi:[0,1,0]")
        for q in range(8): e(f"v_rcp_f32 v{TE+q}, v{TE+q}")
        for q in P: e(f"v_pk_mul_f32 {vr(TE+2*q,2)}, {vr(TE+2*q,2)}, {vr(acc(q),2)}")
        o = TO + 4*mt
        for q in P: e(f"v_cvt_pk_bf16_f32 v{o+q}, v{TE+2*q}, v{TE+2*q+1}")
        e(f"buffer_store_dwordx4 {vr(o,4)}, v255, s[48:51], s6 offen offset:{512*mt} sc1"); vm.issue(("hst", tp))
stG("ep")
signal()
def g2_setup():
    for ml in range(4):
        e(f"s_xor_b32 s6, s3, {ml}\ns_lshl_b32 s6, s6, 10\nv_add_u32 v{3+ml}, s6, v1")
    e(f"s_mul_i32 s6, s13, {FS_}\ns_add_u32 s6, s6, {FL_H}\ns_add_u32 s40, s48, s6\ns_addc_u32 s41, s49, 0")
    e(f"v_mov_b32 v254, {REL}\nv_lshrrev_b32 v8, 4, v0\nv_lshlrev_b32 v8, 3, v8\ns_mul_i32 s8, s14, 160")
HPL = "s_load_dwordx4 s[16:19], s[40:41], 0 glc"
g2_setup()
if not EW: kappa_tab()
vm.wait(("hst", 3))
e(f"s_mov_b64 exec, 1\nbuffer_atomic_add v7, v2, s[48:51], s45 offen sc1\ns_mov_b64 exec, -1")
stG("at")
if OPT.get("self", "1") == "1":
    for tp in range(4):
        e(f"s_add_u32 s6, s{44 if tp < 2 else 43}, {4096*tp}")
        for mt in (0, 1): e(f"buffer_load_dwordx4 {vr(192+8*tp+4*mt,4)}, v1, s[48:51], s6 offen offset:{1024*mt} sc1")
stG("hp")
vm.clear(); lg.clear()
e("L_G2:")
CHKR[0] = 26
A2, HR = 112, 192
e(f"s_setprio {OPT.get('g2prio', '0')}")
e("v_mov_b32 v2, v254")
if not EW: wait_lds(7, 2, "2")
for dt in range(5):
    e(f"buffer_load_dwordx2 {vr(122+2*dt,2)}, v8, s[64:67], s8 offen offset:{32*dt}"); vm.issue("b2")
for k in range([0, 2, 5][EW], 5):
    for op in w2_ops(k): op()
stG("pp")
spoll(40, [0], 28, OPT.get("hsleep", "2")); lg.clear()
stG("hs")
def h_ops(i):
    ops = []
    for ml in range(4):
        def hl(ml=ml):
            if ml == 0: e(f"s_lshl2_add_u32 s6, s{sK[i]}, s11")
            e(f"buffer_load_dwordx4 {vr(HR+(i%4)*16+ml*4,4)}, v{3+ml}, s[48:51], s6 offen sc1"); vm.issue(("h", i))
        ops.append(hl)
    return ops
for op in h_ops(0) + h_ops(1) + h_ops(2) + h_ops(3): op()
FXO, FLA, FX, FS, VSO, VPF = 92, 95, 32, 12, 98, 104
STL = []
for i in range(3):
    if i == 2: STL.append("s_mov_b32 exec_hi, 0")
    STL.append(f"buffer_load_dwordx4 {vr(FS+4*i,4)}, v{VSO}, s[48:51], s{44 if i == 0 else 6} offen sc1")
    if i < 2: STL.append(f"s_add_u32 s6, s44, {32*4096*(i+1)}")
STL.append("s_mov_b64 exec, -1")
RED = 99
for i in range(14):
    vm.wait([("w2", i), ("h", i)])
    lg.wait(("pf", i))
    if i == 7: signal()
    stG(f"b{i}")
    side = {n: [] for n in range(20)}
    def spread(lines, n0, step=1):
        for k, l in enumerate(lines): side[min(19, n0 + k*step)].append(lambda l=l: e(l))
    j = i + 4
    if i >= 1 and j < 8:
        if i == 1: side[0].append(lambda: (e("ds_read_b32 v12, v2\ns_mul_i32 s6, s3, 15360\nv_add_u32 v13, s6, v1\ns_waitcnt lgkmcnt(0)"), spin_lds(12, 2, "3"), e("v_mov_b32 v2, v13"), lg.clear()))
        for dt in range(5):
            side[1+dt].append(lambda dt=dt, j=j: (e(f"ds_read_b128 {vr(12+(j%5)*20+dt*4,4)}, v2 offset:{(j-5)*5120+dt*1024}"), lg.issue(("pf", j))))
    elif i >= 1 and j < 14:
        for n, op in zip((1, 3, 7, 11, 16), w2_ops(j)): side[n].append(op)
    if i + 4 < 14:
        for ml, op in enumerate(h_ops(i+4)): side[5*ml+4].append(op)
    if i == 10:
        L = [f"v_mov_b32 v2, {REL}", "ds_read_b32 v8, v2",
             f"v_lshrrev_b32 v{VSO}, 1, v0", "v_and_b32 v4, 1, v0", f"v_lshlrev_b32 v{VSO}, 12, v{VSO}", f"v_lshl_add_u32 v{VSO}, v4, 4, v{VSO}",
             "s_mul_i32 s44, s14, 327680\ns_lshl_b32 s7, s13, 7", "s_add_u32 s44, s44, s7\ns_lshl_b32 s7, s3, 5", f"s_add_u32 s44, s44, s7\ns_add_u32 s44, s44, {ST}",
             "s_lshl_b32 s6, s13, 6\ns_lshl_b32 s7, s3, 4", "s_add_u32 s6, s6, s7\ns_mul_i32 s6, s6, 1280", f"s_add_u32 s8, s8, s6\ns_mul_i32 s9, s3, 2560", f"s_add_u32 s9, s9, {SB}\ns_movk_i32 s0, 1280\ns_movk_i32 s1, {SBF}"]
        spread(L, 1)
    if i == 11:
        L = []
        for k in range(3):
            L += [f"v_add_u32 v3, {64*k}, v0\nv_mul_u32_u24 v4, 6554, v3", "v_lshrrev_b32 v4, 16, v4\nv_mul_u32_u24 v5, 10, v4", "v_sub_u32 v3, v3, v5\nv_lshlrev_b32 v3, 4, v3",
                  f"v_mad_u32_u24 v{FXO+k}, v4, s0, v3\nv_mad_u32_u24 v{FLA+k}, v4, s1, v3", f"v_add_u32 v{FLA+k}, s9, v{FLA+k}"]
        spread(L, 1)
    if i == 12:
        L = []
        for ml in (1, 2, 3): L += [f"s_xor_b32 s6, s3, {ml}\ns_mul_i32 s6, s6, 15360", f"s_add_u32 s6, s6, {(ml-1)*5120}\nv_add_u32 v{RED+ml-1}, s6, v1"]
        L += [f"s_mul_i32 s6, s3, 15360\nv_add_u32 v{RED+3}, s6, v1", f"v_and_b32 v3, 15, v0\nv_mul_u32_u24 v3, {SBF}, v3", f"v_lshrrev_b32 v5, 4, v0\nv_lshl_add_u32 v3, v5, 3, v3", f"v_add_u32 v{RED+4}, s9, v3",
              "v_add_u32 v3, s9, v1\nv_lshlrev_b32 v4, 3, v0", "v_add_u32 v4, s9, v4"]
        spread(L, 6)
        side[0].append(chk_read)
        for k in range(3):
            def xl(k=k):
                if k == 2: e("s_mov_b32 exec_hi, 0")
                e(f"buffer_load_dwordx4 {vr(FX+4*k,4)}, v{FXO+k}, s[52:55], s8 offen"); vm.issue("fx")
                if k == 2: e("s_mov_b64 exec, -1")
            side[1+2*k].append(xl)
    order = list(range(20)) if 0 < i < 13 else list(range(5, 20)) + list(range(5))
    if i == 0:
        side = {n: [] for n in range(20)}
        for k in range(10): side[k].append(lambda k=k: e(f"v_lshlrev_b32 v{A2+2*k}, 16, v{122+k}\nv_and_b32 v{A2+2*k+1}, 0xffff0000, v{122+k}"))
        o = h_ops(4)
        e(f"s_lshl2_add_u32 s6, s{sK[4]}, s11")
        for k, ml in zip((4, 9, 14, 19), (1, 2, 3, 0)):
            side[k].append(lambda ml=ml: (e(f"buffer_load_dwordx4 {vr(HR+ml*4,4)}, v{3+ml}, s[48:51], s6 offen sc1"), vm.issue(("h", 4))))
    if i == 13:
        for k in range(11):
            n_ = order[k]
            side[k+9].append(lambda n_=n_: (e(f"ds_write_b128 v{RED+n_//5-1}, {vr(A2+n_*4,4)} offset:{1024*(n_%5)}"), lg.issue("red")))
    for k, n in enumerate(order):
        ml, dt = divmod(n, 5)
        a = A2 + n*4
        e(f"v_mfma_f32_16x16x32_bf16 {vr(a,4)}, {vr(12+(i%5)*20+dt*4,4)}, {vr(HR+(i%4)*16+ml*4,4)}, {vr(a,4) if (i or ml == 0) else 0}")
        for f in side[k]: f()
    if i == 10:
        e("s_waitcnt lgkmcnt(0)\nv_cmp_gt_u32 s[42:43], 4, v8"); lg.clear()
        for l in STL:
            e(l)
            if l.startswith("buffer"): vm.issue("sT")
    if i == 12: chk_eval()
stG("g2")
for n_ in range(16, 20):
    e(f"ds_write_b128 v{RED+n_//5-1}, {vr(A2+n_*4,4)} offset:{1024*(n_%5)}"); lg.issue("red")
signal(); chk_read()
e("s_cmp_lg_u64 s[42:43], 0")
spin_lds(8, 2, "4", after=STL, pre_cmp=False, branch="s_cbranch_scc1")
vm.wait_all()
for i in range(3):
    if i == 2: e("s_mov_b32 exec_hi, 0")
    e(f"ds_write_b128 v3, {vr(FS+4*i,4)} offset:{1024*i}"); lg.issue("sw")
e("s_mov_b64 exec, -1")
for dt in range(5):
    e(f"ds_read_b64_tr_b16 {vr(44+2*dt,2)}, v4 offset:{512*dt}"); lg.issue("str")
chk_eval()
stG("rd")
RD = 192
for dt in range(5):
    for s_ in range(3):
        e(f"ds_read_b128 {vr(RD+(s_*5+dt)*4,4)}, v{RED+3} offset:{5120*s_+1024*dt}"); lg.issue(("rd", dt))
SU = 132
e("s_mov_b32 s6, 0xffff0000")
lg.wait("str")
for k in range(10): e(f"v_lshlrev_b32 v{SU+2*k}, 16, v{44+k}\nv_and_b32 v{SU+2*k+1}, s6, v{44+k}")
XU = 152
for k in range(12): e(f"v_lshlrev_b32 v{XU+2*k}, 16, v{FX+k}\nv_and_b32 v{XU+2*k+1}, s6, v{FX+k}")
T = 56
for dt in range(5):
    a = A2 + dt*4
    lg.wait(("rd", dt))
    for k in (0, 1):
        e(f"v_pk_add_f32 {vr(a+2*k,2)}, {vr(a+2*k,2)}, {vr(RD+dt*4+2*k,2)}")
        e(f"v_pk_add_f32 {vr(T+2*k,2)}, {vr(RD+(5+dt)*4+2*k,2)}, {vr(RD+(10+dt)*4+2*k,2)}")
    for k in (0, 1): e(f"v_pk_add_f32 {vr(a+2*k,2)}, {vr(a+2*k,2)}, {vr(T+2*k,2)}")
E_ = 60
for k in range(20): e(f"v_mul_f32 v{E_+k}, {f32(-1.4426950408889634)}, v{A2+k}")
for k in range(20): e(f"v_exp_f32 v{E_+k}, v{E_+k}")
for k in range(10): e(f"v_pk_mul_f32 {vr(A2+2*k,2)}, {vr(A2+2*k,2)}, {vr(SU+2*k,2)}")
for k in range(10): e(f"v_pk_add_f32 {vr(E_+2*k,2)}, {vr(E_+2*k,2)}, 1.0 op_sel_hi:[1,0]")
for k in range(20): e(f"v_rcp_f32 v{E_+k}, v{E_+k}")
for dt in range(5):
    for k in (0, 1): e(f"v_pk_mul_f32 {vr(A2+4*dt+2*k,2)}, {vr(A2+4*dt+2*k,2)}, {vr(E_+4*dt+2*k,2)}")
    for k in (0, 1): e(f"v_cvt_pk_bf16_f32 v{44+2*dt+k}, v{A2+4*dt+2*k}, v{A2+4*dt+2*k+1}")
    e(f"ds_write_b64 v{RED+4}, {vr(44+2*dt,2)} offset:{32*dt}"); lg.issue("pw")
for k in range(3):
    e(f"ds_read_b64 {vr(RD+4*k,2)}, v{FLA+k}\nds_read_b64 {vr(RD+4*k+2,2)}, v{FLA+k} offset:8"); lg.issue(("pr", k)); lg.issue(("pr", k))
for k in range(3):
    lg.wait(("pr", k))
    for q in range(4):
        e(f"v_lshlrev_b32 v{T+2*q}, 16, v{RD+4*k+q}\nv_and_b32 v{T+1+2*q}, s6, v{RD+4*k+q}")
    for q in range(4): e(f"v_pk_add_f32 {vr(T+2*q,2)}, {vr(T+2*q,2)}, {vr(XU+8*k+2*q,2)}")
    for q in range(4): e(f"v_cvt_pk_bf16_f32 v{RD+16+4*k+q}, v{T+2*q}, v{T+2*q+1}")
    if k == 2: e("s_mov_b32 exec_hi, 0")
    e(f"buffer_store_dwordx4 {vr(RD+16+4*k,4)}, v{FXO+k}, s[68:71], s8 offen{OSP}")
stG("end")
stG.flush(60, 61, (0, 1, 8))
e("s_endpgm")

e("L_IDLE:")
e("v_lshrrev_b32 v1, 3, v0\ns_mul_i32 s6, s3, 160\nv_add_u32 v2, s6, v1\nv_mul_u32_u24 v2, 3456, v2\nv_and_b32 v3, 7, v0\nv_lshl_add_u32 v2, v3, 4, v2")
e("v_lshlrev_b32 v4, 8, v1\nv_lshl_add_u32 v4, v3, 5, v4\ns_lshl_b32 s6, s3, 11\nv_add_u32 v4, s6, v4")
e("s_waitcnt lgkmcnt(0)")
e("s_lshl3_add_u32 s47, s5, s4")
e(f"s_lshl_b32 s9, s47, 7\ns_cmp_ge_u32 s47, 27\ns_cselect_b32 s9, {OOB}, s9")
vm.clear()
g_params()
e("s_barrier")
srd(56, 32, 2211840)
e("s_mov_b32 s0, s9")
for i in range(20):
    e(f"buffer_load_dwordx4 {vr(12+4*i,4)}, v2, s[56:59], s0 offen"); vm.issue("cw")
    if i < 19: e(f"s_add_u32 s0, s0, {8*3456}")
srd(56, 34, 3456)
e("v_lshlrev_b32 v5, 1, v0\nbuffer_load_ushort v7, v5, s[56:59], s9 offen"); vm.issue("cw")
srd(52, 16, 2621440); g_srds()
kappa_tab()
helper()
e("s_waitcnt vmcnt(0)\ns_mov_b32 s6, 0xffff0000")
for i in range(20):
    for k in range(4):
        r = 12 + 4*i + k
        if i == 0: e(f"v_lshlrev_b32 v{100+2*k}, 16, v{r}\nv_and_b32 v{101+2*k}, s6, v{r}")
        else: e(f"v_lshlrev_b32 v{92+2*k}, 16, v{r}\nv_and_b32 v{93+2*k}, s6, v{r}")
    if i:
        for k in range(4): e(f"v_pk_add_f32 {vr(100+2*k,2)}, {vr(100+2*k,2)}, {vr(92+2*k,2)}")
e("ds_write_b128 v4, v[100:103]\nds_write_b128 v4, v[104:107] offset:16")
gcommon()
e("s_cmp_eq_u32 s3, 0\ns_cselect_b32 s6, 1, 12\nv_mov_b32 v11, s6\nds_write_b32 v9, v11")
e("s_cbranch_scc0 L_ID2")
wait_lds(8, 10, "1")
e("v_lshlrev_b32 v5, 2, v0")
for k in range(32): e(f"ds_read_b32 v{12+k}, v5 offset:{256*k}")
e("s_waitcnt lgkmcnt(0)")
for st_ in (16, 8, 4, 2, 1):
    for k in range(st_): e(f"v_add_f32 v{12+k}, v{12+k}, v{12+k+st_}")
e("v_mov_b32 v11, 12\nds_write_b32 v9, v11")
e("v_cvt_pk_bf16_f32 v17, v12, v12\nv_lshl_or_b32 v16, v7, 16, v7\nv_and_b32 v13, 0xffff0000, v17\nv_sub_f32 v13, v12, v13\nv_mov_b32 v19, 0\nv_cvt_pk_bf16_f32 v18, v13, v19")
e(f"v_lshlrev_b32 v5, 4, v0\ns_lshl_b32 s6, s47, 10\ns_add_u32 s6, s6, {WE}\ns_cmp_ge_u32 s47, 27\ns_cselect_b32 s6, {OOB}, s6")
e("buffer_store_dwordx4 v[16:19], v5, s[48:51], s6 offen sc1")
e(f"v_mov_b32 v2, {REL}")
wait_lds(8, 2, "1", sleep=True)
e(f"s_lshr_b32 s6, s47, 1\ns_mul_i32 s6, s6, {FS_}\ns_add_u32 s6, s6, {FL_E}\ns_cmp_ge_u32 s47, 27\ns_cselect_b32 s6, {OOB}, s6")
e("s_cmp_eq_u32 s47, 26\ns_cselect_b32 s7, 2, 1\nv_mov_b32 v5, s7\ns_waitcnt vmcnt(0)\ns_mov_b64 exec, 1")
e("buffer_atomic_add v5, v19, s[48:51], s6 offen sc1\ns_mov_b64 exec, -1")
e("L_ID2:")
g2_bases()
g2_setup()
wait_lds(12, 254, "2", sleep=True)
if OPT.get("warm", "0") == "1":
    e(f"s_and_b32 s6, s4, 1\ns_lshl2_add_u32 s6, s6, s5\ns_mul_i32 s6, s6, 276480\ns_mul_i32 s7, s3, 69120\ns_add_u32 s6, s6, s7\ns_add_u32 s6, s6, {W2F}\ns_mov_b32 s63, 17")
    e("L_WARM:")
    for k in range(4): e(f"buffer_load_dwordx4 {vr(192+4*k,4)}, v1, s[48:51], s6 offen offset:{1024*k} sc1")
    e(f"s_add_u32 s6, s6, 4096\ns_sub_u32 s63, s63, 1\ns_cmp_lg_u32 s63, 0\ns_cbranch_scc1 L_WARM")
for k in range([0, 2, 5][EW]):
    for op in w2_ops(k): op()
e("s_waitcnt vmcnt(0)")
if STAMPS:
    for r in _stG.regs[:4]: e(f"{MT} s[{r}:{r+1}]")
e("s_branch L_G2")

e("L_AUX:")
if OPT.get("cpf", "0") == "1":
    e("s_getpc_b64 s[96:97]")
    e("L_PC:")
    e(f"s_sub_u32 s96, s96, L_PC-{NAME}_kernel\ns_subb_u32 s97, s97, 0")
    e("s_and_b32 s6, s5, 7\ns_lshl_b32 s6, s6, 6\nv_add_u32 v1, s6, v0\nv_lshlrev_b32 v1, 7, v1")
    e(f"v_min_u32 v1, L_LAST-{NAME}_kernel, v1")
    e("s_cmp_lg_u32 s3, 6\ns_cbranch_scc1 L_PC2")
    e("global_load_dword v255, v1, s[96:97]")
    e("L_PC2:")
_stC = Stamper([76,78,80,82,84,86,88,90,92,94])
CSEL = OPT.get("cst", "ka,x,ln,kg,ex,u,cs,cd,st,pub").split(",")
class _C:
    def __call__(self, name):
        if name in CSEL:
            _stC.n = CSEL.index(name); _stC()
    def flush(self, *a):
        _stC.n = 10; _stC.flush(*a)
stC = _C()
zero_cnt(CNT2)
e("s_sub_u32 s13, s3, 4")
e("s_lshl_b32 s14, s4, 5\ns_add_u32 s14, s14, s5")
e("s_mul_i32 s15, s14, 10240")
e("v_lshrrev_b32 v1, 5, v0\ns_lshl_b32 s6, s13, 1\nv_add_u32 v1, s6, v1\nv_and_b32 v2, 31, v0")
e("v_mul_u32_u24 v3, 1280, v1\nv_lshl_add_u32 v3, v2, 3, v3")
chan_id(13)
e("s_lshl_b32 s10, s8, 8\ns_lshl_b32 s11, s8, 1\nv_lshlrev_b32 v12, 2, v0")
e(f"s_mul_i32 s9, s13, {CHSZ}\ns_add_u32 s9, s9, {CH0}")
e(f"v_mov_b32 v14, 0\nv_mov_b32 v15, {REL}\nds_write_b32 v15, v14")
for i in range(5):
    e(f"v_add_u32 v4, {64*i}, v0\nv_mul_u32_u24 v5, 3277, v4\nv_lshrrev_b32 v5, 16, v5")
    e("v_mul_u32_u24 v6, 20, v5\nv_sub_u32 v6, v4, v6\nv_lshlrev_b32 v6, 4, v6")
    e(f"s_movk_i32 s6, 1280\nv_mad_u32_u24 v{64+i}, v5, s6, v6\ns_movk_i32 s6, {SBW}\nv_mad_u32_u24 v{69+i}, v5, s6, v6\nv_add_u32 v{69+i}, {SB}, v{69+i}")
e("s_waitcnt lgkmcnt(0)")
stC("ka")
XS = 20
def x_rows():
    srd(52, 16, 2621440)
    for i in range(5): e(f"buffer_load_dwordx2 {vr(XS+2*i,2)}, v3, s[52:55], s15 offen offset:{256*i}{ntx}")
KFIRST = OPT.get("kfirst", "0") == "1"
def near_half():
    LAM, CC, YC, FY, FA, KT, TM = 84, 88, 80, 128, 160, [112, 116], 64
    EV = {2.0: 192, 32.0: 196, 1.0: 200, 2048.0: 204}
    e("v_and_b32 v10, 15, v0\nv_lshrrev_b32 v11, 4, v0")
    e(f"v_lshlrev_b32 v12, 3, v0\ns_add_u32 s6, s9, {TAB}\nv_add_u32 v12, s6, v12")
    e(f"v_mul_u32_u24 v14, {TPI}, v10\nv_lshl_add_u32 v14, v11, 4, v14\nv_add_u32 v14, s6, v14")
    e(f"v_mov_b32 v{YC}, 1.0\nv_mov_b32 v{YC+1}, 1.0\nv_mov_b32 v{YC+2}, 0\nv_mov_b32 v{YC+3}, 0")
    e(f"s_add_u32 s10, s9, {TBOFF}")
    e("v_lshlrev_b32 v92, 2, v10\nv_lshl_add_u32 v92, v11, 8, v92\nv_add_u32 v92, s10, v92")
    e("v_lshlrev_b32 v93, 1, v10\nv_lshl_add_u32 v93, v11, 7, v93\nv_add_u32 v93, s10, v93")
    e(f"v_subrev_u32 v15, {CNT2-CNT}, v9")
    e("s_waitcnt vmcnt(5)")
    stC("par")
    k_setup_pk(4, LAM, CC, EV, [2.0, 32.0, 1.0, 2048.0], 2.0, (1.0, 2048.0), TM)
    stC("k0")
    L2 = e.lab("NY")
    e(f"s_mov_b32 s10, 4\nv_mov_b32 v13, v12\n{L2}:")
    chain_pk([(YC, EV[2.0], 0), (CC, EV[32.0], 16)], 4, 0, 13, TM)
    e(f"v_add_u32 v13, {4*TPI}, v13\ns_sub_u32 s10, s10, 1\ns_cmp_lg_u32 s10, 0\ns_cbranch_scc1 {L2}")
    stC("k1")
    e("s_waitcnt lgkmcnt(0)")
    frag_reads(FY, 14, 0); frag_reads(FA, 14, 16)
    e(f"v_cvt_pk_bf16_f32 v76, v{EV[2048.0]}, v{EV[2048.0]+2}\nv_cvt_pk_bf16_f32 v77, v{EV[2048.0]+1}, v{EV[2048.0]+3}")
    k_mfma(KT[0], FA, FY)
    e(f"ds_write_b64 v12, v[76:77] offset:{24*TPI}")
    chain_pk([(EV[1.0], EV[32.0], 0)], 8, 16, 12, TM)
    e("s_waitcnt lgkmcnt(0)")
    frag_reads(FA, 14, 16)
    k_mfma(KT[1], FA, FY)
    for r in range(4): e(f"v_cvt_pk_bf16_f32 v{TM+r}, v{KT[0]+r}, v{KT[1]+r}")
    e("s_mov_b32 exec_hi, 0")
    for r in range(4): e(f"ds_write_b32 v92, v{TM+r} offset:{64*r}")
    e("s_mov_b32 exec_lo, 0\ns_mov_b32 exec_hi, -1")
    for r in range(4): e(f"ds_write_b16 v93, v{TM+r} offset:{256+32*r}")
    e("s_mov_b32 exec_hi, 1")
    e(f"ds_write_b16_d16_hi v93, v{TM} offset:{1280-256}")
    e("s_mov_b64 exec, -1")
e("s_cmp_eq_u32 s3, 7\ns_cbranch_scc1 L_A7")
if not KFIRST: x_rows()
param_loads(4, 12, 14, 10, 11, (56, 60, 64, 68))
srd(60, 28, 1280); e("buffer_load_ushort v19, v14, s[60:63], s11 offen")
if KFIRST: x_rows()
e("s_barrier")
srd(48, 44, WS_SIZE); srd(72, 42, 256)
if KFIRST:
    e("s_cmp_ge_u32 s8, 640\ns_cbranch_scc1 L_A0")
    near_half()
    e("L_A0:")
    e("s_waitcnt vmcnt(0)")
else: e("s_waitcnt vmcnt(6)")
e("s_branch L_LN")
e("L_A7:")
srd(48, 44, WS_SIZE); srd(72, 42, 256)
e("s_cmp_lg_u32 s2, 0\ns_cbranch_scc1 L_A1")
e(f"v_mul_u32_u24 v4, {FS_}, v0")
for r in range(32, 36): e(f"v_mov_b32 v{r}, 0")
for i in range(2):
    e(f"s_mov_b32 s6, {FLB+64*FS_*i}")
    e("buffer_store_dwordx4 v[32:35], v4, s[48:51], s6 offen sc1")
e("s_barrier")
e("s_waitcnt vmcnt(0)")
e("v_mov_b32 v32, 1\ns_mov_b64 exec, 1")
e("buffer_store_dword v32, v14, s[72:75], 0 offen sc1")
e("s_mov_b64 exec, -1")
x_rows()
e("s_branch L_A2")
e("L_A1:")
x_rows()
e("s_barrier")
e("L_A2:")
srd(56, 36, 2211840)
e(f"s_lshr_b32 s6, s2, 2\ns_mul_i32 s10, s6, 40960\ns_and_b32 s7, s2, 3\ns_mul_i32 s11, s7, 320\ns_add_u32 s10, s10, s11\ns_add_u32 s11, s10, 20480")
e("s_waitcnt vmcnt(0)")
e("L_LN:")
if NOAUX == "1": e("s_endpgm")
stC("x")
e(f"v_mul_u32_u24 v16, {SBP}, v1\nv_lshl_add_u32 v16, v2, 3, v16\nv_add_u32 v16, {SB}, v16")
e(f"v_lshlrev_b32 v17, 5, v1\nv_add_u32 v17, {SST}, v17")
XF = 32
for k in range(10): e(f"v_lshlrev_b32 v{XF+2*k}, 16, v{XS+k}\nv_and_b32 v{XF+2*k+1}, 0xffff0000, v{XS+k}")
e(f"v_add_f32 v52, v{XF}, v{XF+1}\nv_mul_f32 v54, v{XF}, v{XF}\nv_add_f32 v53, v{XF+2}, v{XF+3}\nv_mul_f32 v55, v{XF+1}, v{XF+1}")
e(f"v_fmac_f32 v54, v{XF+2}, v{XF+2}\nv_fmac_f32 v55, v{XF+3}, v{XF+3}")
for k in range(4, 20): e(f"v_add_f32 v{52+(k&1)}, v{52+(k&1)}, v{XF+k}\nv_fmac_f32 v{54+(k&1)}, v{XF+k}, v{XF+k}")
e("v_add_f32 v52, v52, v53\nv_add_f32 v54, v54, v55")
for m in ("quad_perm:[1,0,3,2]", "quad_perm:[2,3,0,1]", "row_half_mirror", "row_mirror"):
    e(f"v_add_f32_dpp v52, v52, v52 {m} row_mask:0xf bank_mask:0xf")
    e(f"v_add_f32_dpp v54, v54, v54 {m} row_mask:0xf bank_mask:0xf")
e("ds_swizzle_b32 v53, v52 offset:0x401F\nds_swizzle_b32 v55, v54 offset:0x401F\ns_waitcnt lgkmcnt(0)")
e("v_add_f32 v52, v52, v53\nv_add_f32 v54, v54, v55")
e(f"v_mul_f32 v52, {f32(1/640)}, v52\nv_mul_f32 v54, {f32(1/640)}, v54")
e("v_fma_f32 v54, -v52, v52, v54\nv_max_f32 v54, 0, v54")
def std_bf16(dst, var):
    rb(dst, var); e(f"v_add_f32 v{dst}, {f32(1e-5)}, v{dst}"); rb(dst, dst); e(f"v_sqrt_f32 v{dst}, v{dst}"); rb(dst, dst)
rb(56, 52); std_bf16(57, 54)
e("v_rcp_f32 v58, v57")
for k in range(20): e(f"v_sub_f32 v{XF+k}, v{XF+k}, v56")
for k in range(10): e(f"v_cvt_pk_bf16_f32 v{XS+k}, v{XF+2*k}, v{XF+2*k+1}")
for k in range(10): e(f"v_lshlrev_b32 v{XF+2*k}, 16, v{XS+k}\nv_and_b32 v{XF+2*k+1}, 0xffff0000, v{XS+k}")
for k in range(20): e(f"v_mul_f32 v{XF+k}, v{XF+k}, v58")
for k in range(10):
    e(f"v_cvt_pk_bf16_f32 v{XS+k}, v{XF+2*k}, v{XF+2*k+1}")
    if k & 1: e(f"ds_write_b64 v16, {vr(XS+k-1,2)} offset:{128*(k-1)}")
e("v_sub_f32 v59, v52, v56\nv_mul_f32 v59, v59, v58\nv_mul_f32 v60, v54, v58\nv_mul_f32 v60, v60, v58")
rb(59, 59); std_bf16(61, 60)
C0 = -2*0.7978845608028654*1.4426950408889634
e("v_mul_f32 v46, v57, v61\nv_fma_f32 v63, -v59, v57, -v56\nv_rcp_f32 v62, v46\nv_mov_b32 v43, 0\nv_mov_b32 v47, 0")
rb(32, 46); rb(33, 63)
e("v_sub_f32 v32, v46, v32\nv_sub_f32 v33, v63, v33\nv_mul_f32 v44, v62, v62")
e("v_cvt_pk_bf16_f32 v40, v46, v32\nv_cvt_pk_bf16_f32 v41, v63, v33\nv_cvt_pk_bf16_f32 v42, v63, v43")
e(f"v_mul_f32 v45, {f32(C0)}, v62\nv_mul_f32 v44, {f32(0.044715)}, v44\nv_mul_f32 v44, v44, v45")
e("s_mov_b32 s0, 1\ns_mov_b32 s1, 1\ns_mov_b64 exec, s[0:1]")
e("ds_write_b128 v17, v[40:43]\nds_write_b128 v17, v[44:47] offset:16")
e("s_mov_b64 exec, -1")
e("v_mov_b32 v61, 1\nds_write_b32 v9, v61")
stC("ln")
e("s_cmp_eq_u32 s3, 7\ns_cbranch_scc1 L_S")
e("s_cmp_ge_u32 s8, 640\ns_cbranch_scc1 L_END")
if "k" in EXP: e("s_endpgm")

if not KFIRST:
    e("s_waitcnt vmcnt(0)")
    stC("par")
    LAM, CC, YC, FY, FA, KT = 84, 88, 80, 128, 160, [112, 116]
    EV = {2.0: 192, 32.0: 196, 1.0: 200, 2048.0: 204, 8.0: 208, 128.0: 212, 512.0: 216, 516.0: 220}
    if HELP: k_setup(4, LAM, CC, EV, [2.0, 32.0, 1.0, 2048.0], (2.0,), (1.0, 2048.0), 64)
    else: k_setup(4, LAM, CC, EV, list(EV), (2.0, 8.0), (1.0, 2048.0, 512.0, 516.0), 20)
    e("v_and_b32 v10, 15, v0\nv_lshrrev_b32 v11, 4, v0")
    e(f"v_lshlrev_b32 v12, 3, v0\ns_add_u32 s6, s9, {TAB}\nv_add_u32 v12, s6, v12")
    e(f"v_mul_u32_u24 v14, {TPI}, v10\nv_lshl_add_u32 v14, v11, 4, v14\nv_add_u32 v14, s6, v14")
    y_init(YC)
    stC("k0")
    chain_loop([(YC, EV[2.0], 0), (CC, EV[32.0], 16)], 16, 0, 12, 13, 64, 10)
    stC("k1")
    e("s_waitcnt lgkmcnt(0)")
    frag_reads(FY, 14, 0); frag_reads(FA, 14, 16)
    e(f"v_cvt_pk_bf16_f32 v76, v{EV[2048.0]}, v{EV[2048.0]+1}\nv_cvt_pk_bf16_f32 v77, v{EV[2048.0]+2}, v{EV[2048.0]+3}")
    k_mfma(KT[0], FA, FY)
    e(f"ds_write_b64 v12, v[76:77] offset:{24*TPI}")
    chain_loop([(EV[1.0], EV[32.0], 0)], 8, 16, 12, 13, 64, 10)
    e("s_waitcnt lgkmcnt(0)")
    frag_reads(FA, 14, 16)
    e(f"s_add_u32 s10, s9, {TBOFF}")
    e("v_lshlrev_b32 v20, 2, v10\nv_lshl_add_u32 v20, v11, 8, v20\nv_add_u32 v20, s10, v20")
    e("v_lshlrev_b32 v21, 1, v10\nv_lshl_add_u32 v21, v11, 7, v21\nv_add_u32 v21, s10, v21")
    e(f"v_subrev_u32 v15, {CNT2-CNT}, v9")
    if not HELP: y_init(YC)
    k_mfma(KT[1], FA, FY)
    if not HELP:
        chain_loop([(YC, EV[8.0], 0), (EV[512.0], EV[128.0], 16), (EV[516.0], EV[128.0], 28)][:2], 12, 0, 12, 13, 64, 10)
        chain_loop([(YC, EV[8.0], 0), (EV[516.0], EV[128.0], 16)], 4, 12, 12, 13, 64, 10)
        e("s_waitcnt lgkmcnt(0)")
        frag_reads(FY, 14, 0); frag_reads(FA, 14, 16)
        e(f"s_add_u32 s10, s9, {TBOFF}")
        e("v_lshlrev_b32 v22, 2, v10\nv_lshrrev_b32 v23, 1, v11\nv_lshl_add_u32 v22, v23, 1, v22\nv_add_u32 v22, s10, v22")
        k_mfma(120, FA, FY)
        for r in range(4): e(f"v_cvt_pk_bf16_f32 v{32+r}, v{120+r}, v{120+r}")
        e("s_mov_b32 exec_lo, 0xffff\ns_mov_b32 exec_hi, 0xffff0000")
        for r in range(4): e(f"ds_write_b16 v22, v{32+r} offset:{768+64*r}")
        e("s_mov_b32 exec_lo, 0xffff0000\ns_mov_b32 exec_hi, 0xffff")
        for r in range(4): e(f"ds_write_b16 v21, v{32+r} offset:{896+32*r}")
        e("s_mov_b64 exec, -1")
    for r in range(4): e(f"v_cvt_pk_bf16_f32 v{24+r}, v{KT[0]+r}, v{KT[1]+r}")
    e("s_mov_b32 exec_hi, 0")
    for r in range(4): e(f"ds_write_b32 v20, v{24+r} offset:{64*r}")
    e("s_mov_b32 exec_lo, 0\ns_mov_b32 exec_hi, -1")
    for r in range(4): e(f"ds_write_b16 v21, v{24+r} offset:{256+32*r}")
    e("s_mov_b32 exec_hi, 1")
    e(f"ds_write_b16_d16_hi v21, v24 offset:{1280-256}")
    e("s_mov_b64 exec, -1")
wait_lds(17, 15, OPT.get("expat", "11"), sleep=True)
stC("kg")
if "e" in EXP: e("s_endpgm")
UR = 128
UL = e

e("v_lshlrev_b32 v24, 1, v0\nv_sub_u32 v22, 2047, v24\nv_sub_u32 v23, 2046, v24")
e("v_cvt_f32_i32 v22, v22\nv_cvt_f32_i32 v23, v23")
e(f"v_lshlrev_b32 v21, 2, v0\ns_add_u32 s6, s9, {KOFF-12}\nv_add_u32 v21, s6, v21")
e(f"s_add_u32 s6, s9, {TBOFF}\ns_sub_u32 s7, s6, {2*(0x4300-128)}\nv_mov_b32 v26, s7")
e(f"v_mov_b32 v30, {f32(-128.0)}")
e("v_lshlrev_b32 v27, 1, v24\nv_sub_u32 v27, s6, v27\nv_mov_b32 v28, 0")
def exp_rounds(n, lin=False):
    for k in range(n):
        t = 32 + 4*k
        if lin and k == n-1:
            e(f"ds_read_u16 v{t+1}, v27 offset:254\nds_read_u16 v{t+2}, v27 offset:252")
            continue
        e(f"v_cvt_pk_bf16_f32 v{t}, v22, v23")
        e("v_add_f32 v22, v22, v30\nv_add_f32 v23, v23, v30")
        e(f"v_mad_u32_u16 v{t+1}, v{t}, 2, v26")
        e(f"v_mad_u32_u16 v{t+2}, v{t}, 2, v26 op_sel:[1,0,0,0]")
        e(f"ds_read_u16 v{t+1}, v{t+1}\nds_read_u16 v{t+2}, v{t+2}")
    for k in range(n):
        t = 32 + 4*k
        e(f"s_waitcnt lgkmcnt({min(15, 2*(n-1-k) + 4*k)})")
        e(f"v_lshl_or_b32 v{t}, v{t+2}, 16, v{t+1}")
        for c in range(4): e(f"ds_write_b32 v21, v{t} offset:{c*(KCP+4) + 256*k}")
e("s_mov_b32 s10, 3")
e("L_EXP:")
exp_rounds(4)
e("v_add_u32 v21, 1024, v21")
e("s_sub_u32 s10, s10, 1\ns_cmp_lg_u32 s10, 0\ns_waitcnt lgkmcnt(0)\ns_cbranch_scc1 L_EXP")
exp_rounds(4, lin=True)
e("s_mov_b64 exec, 0x7fff")
for c in range(4): e(f"ds_write_b32 v21, v28 offset:{c*(KCP+4) + 1024}")
e("s_mov_b64 exec, -1")
e("v_mov_b32 v28, 2\nds_write_b32 v9, v28")
stC("ex")
e(f"s_mul_i32 s11, s13, {USZ}\ns_add_u32 s11, s11, {UB0}")
e(f"v_mov_b32 v18, {CNT2+192}")
stC("u")
e("v_lshrrev_b32 v12, 1, v10\nv_lshlrev_b32 v12, 6, v12\nv_lshl_add_u32 v12, v11, 4, v12")
e(f"v_and_b32 v13, 1, v10\nv_xor_b32 v13, 1, v13\nv_mul_u32_u24 v13, {U1OFF}, v13\nv_add_u32 v12, v12, v13")
e(f"s_add_u32 s6, s11, 448\nv_add_u32 v12, s6, v12")
e(f"v_and_b32 v13, 3, v10\nv_mul_u32_u24 v13, {KCP}, v13\nv_lshrrev_b32 v14, 2, v10\nv_sub_u32 v14, v11, v14\nv_lshl_add_u32 v13, v14, 4, v13")
e(f"s_add_u32 s6, s9, {KOFF+4080-3584}\nv_add_u32 v13, s6, v13")
CA, BU, BK = 20, [52, 116], [84, 148]
for r in range(CA, CA+32): e(f"v_mov_b32 v{r}, 0")
e("v_lshlrev_b32 v3, 4, v0\nv_add_u32 v3, s11, v3")
wait_lds(17, 18, "3", sleep=True)
for i in range(4):
    e(f"ds_read_b32 v{115+5*i}, v3 offset:{444+1024*i}")
    e(f"ds_read_b128 {vr(136+4*i,4)}, v3 offset:{448+1024*i}")
for i in range(4):
    e(f"s_waitcnt lgkmcnt({6-2*i+i})")
    e(f"v_alignbit_b32 v{152+4*i}, v{136+4*i}, v{115+5*i}, 16")
    for k in (1, 2, 3): e(f"v_alignbit_b32 v{152+4*i+k}, v{136+4*i+k}, v{136+4*i+k-1}, 16")
    e(f"ds_write_b128 v3, {vr(152+4*i,4)} offset:{U1OFF+448+1024*i}")
e("s_waitcnt lgkmcnt(0)")
def conv_reads(b):
    l = []
    for t in range(8):
        l.append(f"ds_read_b128 {vr(BU[b]+4*t,4)}, v12 offset:{512*t}")
        l.append(f"ds_read_b128 {vr(BK[b]+4*t,4)}, v13 offset:{512*(7-t)}")
    l.append("v_subrev_u32 v12, 64, v12\nv_subrev_u32 v13, 64, v13")
    return l
for l in conv_reads(0): e(l)
if OPT.get("gate", "1") == "1": wait_lds(17, 15, "12", sleep=True)
e(f"s_setprio {OPT.get('cprio', '3')}")
stC("cs")
e("s_mov_b32 s10, 4")
e("L_CV:")
for b in (0, 1):
    e("s_waitcnt lgkmcnt(0)")
    rd = conv_reads(1-b)
    n = 0
    for s_ in range(8):
        for t in range(8 - s_):
            a = CA + 4*(s_+t)
            e(f"v_mfma_f32_16x16x32_bf16 {vr(a,4)}, {vr(BU[b]+4*t,4)}, {vr(BK[b]+4*s_,4)}, {vr(a,4)}")
            if n < len(rd): e(rd[n])
            n += 1
e("s_sub_u32 s10, s10, 1\ns_cmp_lg_u32 s10, 0\ns_cbranch_scc1 L_CV")
stC("cd")
e(f"v_lshlrev_b32 v2, 7, v11\nv_lshl_add_u32 v2, v10, 2, v2\nv_add_u32 v3, s11, v2\ns_add_u32 s6, s9, {KOFF}\nv_add_u32 v2, s6, v2")
e("v_lshlrev_b32 v4, 4, v0\nv_add_u32 v5, s6, v4\nv_lshlrev_b32 v19, 16, v19")
e("s_waitcnt lgkmcnt(0)")
for k in range(16): e(f"ds_read_b32 v{52+k}, v3 offset:{448+512*(k//2)+64*(k%2)}")
e(f"s_lshl_b32 s6, s8, 12\ns_add_u32 s6, s6, {ST}")
for k in range(16):
    if k % 4 == 0: e(f"s_waitcnt lgkmcnt({min(15, 12-k+k)})")
    e(f"v_lshlrev_b32 v{68+2*(k%2)}, 16, v{52+k}\nv_and_b32 v{69+2*(k%2)}, 0xffff0000, v{52+k}")
    e(f"v_fmac_f32 v{CA+2*k}, v{68+2*(k%2)}, v19\nv_fmac_f32 v{CA+2*k+1}, v{69+2*(k%2)}, v19")
    e(f"v_cvt_pk_bf16_f32 v{52+k}, v{CA+2*k}, v{CA+2*k+1}")
    e(f"ds_write_b32 v2, v{52+k} offset:{512*(k//2)+64*(k%2)}")
for i in range(4): e(f"ds_read_b128 {vr(72+4*i,4)}, v5 offset:{1024*i}")
for i in range(4):
    e(f"s_waitcnt lgkmcnt({3-i})")
    e(f"buffer_store_dwordx4 {vr(72+4*i,4)}, v4, s[48:51], s6 offen offset:{1024*i} sc1")
stC("st")
e("s_waitcnt vmcnt(0)")
e(f"s_and_b32 s6, s8, 3\ns_lshl2_add_u32 s6, s4, s6\ns_mul_i32 s6, s6, {FS_}\ns_add_u32 s6, s6, {FL_C}")
e("v_mov_b32 v2, 0\nv_mov_b32 v3, 1\ns_mov_b64 exec, 1")
e("buffer_atomic_add v3, v2, s[48:51], s6 offen sc1")
stC("pub")
stC.flush(4, 5, (4, 9, 7))
e("s_endpgm")

e("L_S:")
stS = Stamper([82,84,86,88,90,92,94,96])
for i in range(10): e(f"buffer_load_dwordx4 {vr(128+4*i,4)}, v{64+i%5}, s[56:59], s{10 + i//5} offen{ntw2}")
e(f"v_lshrrev_b32 v1, 4, v0\nv_lshlrev_b32 v16, 2, v0\nv_add_u32 v16, {CNT2}, v16")
e(f"v_bfe_u32 v13, v0, 2, 2\nv_mul_u32_u24 v13, {SBP}, v13\nv_lshl_add_u32 v13, v1, 5, v13")
e(f"v_and_b32 v2, 3, v0\nv_lshl_add_u32 v13, v2, 3, v13\nv_add_u32 v13, {SB}, v13")
e(f"v_lshlrev_b32 v4, 4, v0\nv_add_u32 v6, {SST}, v4")
e("buffer_load_dword v7, v14, s[72:75], 0 offen sc1")
wait_lds(17, 16, "1")
e("s_mov_b64 exec, 0xffff\nds_read_b128 v[20:23], v6\ns_mov_b64 exec, -1")
for i in range(10):
    e(f"ds_read_b64_tr_b16 {vr(80+4*i,2)}, v13 offset:{128*i}")
    e(f"ds_read_b64_tr_b16 {vr(82+4*i,2)}, v13 offset:{128*i+4*SBP}")
e(f"s_lshl_b32 s6, s14, 8\ns_add_u32 s6, s6, {STATS}")
e("s_waitcnt lgkmcnt(15)\ns_mov_b64 exec, 0xffff")
e("buffer_store_dwordx4 v[20:23], v4, s[48:51], s6 offen sc1")
e("s_mov_b64 exec, -1")
stS()
e(f"v_bfe_u32 v1, v0, 2, 3\nv_lshrrev_b32 v3, 5, v0\nv_lshl_add_u32 v1, v3, 4, v1\nv_mul_u32_u24 v1, {SBW}, v1\nv_lshl_add_u32 v1, v2, 3, v1\nv_add_u32 v1, {SB}, v1")
e(f"s_lshr_b32 s6, s2, 2\ns_mul_i32 s10, s6, 5120\ns_and_b32 s7, s2, 3\ns_mul_i32 s7, s7, {2*276480}\ns_add_u32 s10, s10, s7\ns_add_u32 s10, s10, {W2F}")
e(f"s_cmp_ge_u32 s2, 216\ns_cselect_b32 s10, {OOB}, s10\ns_add_u32 s15, s15, {XNB}")
if "H" in EXP: e(f"s_mov_b32 s10, {OOB}\ns_mov_b32 s15, {OOB}")
def relay(val): e(f"v_mov_b32 v8, {val}\nds_write_b32 v15, v8")
SLP = OPT.get("sleep", "1")
def vpoll(load, chk, target, sl, first=True):
    L = e.lab("AG")
    e(f"s_mov_b32 s12, {SPIN_MAX}")
    if not first: e(f"s_branch {L}_c")
    e(f"{L}:")
    e(load); e("s_waitcnt vmcnt(0)")
    e(f"{L}_c:")
    e(f"v_cmp_gt_u32 vcc, {target}, v{chk}\ns_cbranch_vccz {L}_d\ns_sleep {sl}\ns_sub_u32 s12, s12, 1\ns_cbranch_scc0 {L}")
    e(f"{L}_d:")
def arrive(so): e(f"v_mov_b32 v8, 1\ns_mov_b64 exec, 1\nbuffer_atomic_add v8, v14, s[48:51], {so} offen sc1\ns_mov_b64 exec, -1")
e("s_waitcnt vmcnt(0)")
vpoll("buffer_load_dword v7, v14, s[72:75], 0 offen sc1", 7, 1, 8, first=False)
e(f"s_lshr_b32 s6, s14, 4\ns_mul_i32 s6, s6, {FS_}\ns_add_u32 s6, s6, {FL_T}"); arrive("s6")
e("s_cmp_ge_u32 s5, 4\ns_cbranch_scc1 L_S1"); relay(1); e("L_S1:")
stS()
e("s_waitcnt lgkmcnt(0)")
for i in range(10): e(f"ds_write_b128 v{69+i%5}, {vr(128+4*i,4)} offset:{(i//5)*16*SBW}")
e("s_waitcnt lgkmcnt(0)")
for dt in range(10):
    e(f"ds_read_b64_tr_b16 {vr(128+4*dt,2)}, v1 offset:{32*dt}")
    e(f"ds_read_b64_tr_b16 {vr(130+4*dt,2)}, v1 offset:{32*dt+8*SBW}")
for i in range(10):
    if i in (4, 8): e("s_add_u32 s15, s15, 4096")
    e(f"buffer_store_dwordx4 {vr(80+4*i,4)}, v4, s[48:51], s15 offen offset:{1024*(i%4)} sc1")
e("s_waitcnt lgkmcnt(0)")
for half in (0, 1):
    e(f"s_add_u32 s6, s10, {half*276480}\ns_add_u32 s7, s6, 4096")
    for d5 in range(5):
        r = 128 + (half*5+d5)*4
        if d5 < 4: e(f"buffer_store_dwordx4 {vr(r,4)}, v4, s[48:51], s6 offen offset:{1024*d5} sc1")
        else: e(f"buffer_store_dwordx4 {vr(r,4)}, v4, s[48:51], s7 offen sc1")
e(f"v_add_u32 v18, {CNT-CNT2}, v16\nv_and_b32 v5, 7, v0\nv_mul_u32_u24 v5, {FS_}, v5\nv_add_u32 v5, {FL_A}, v5")
e("s_waitcnt vmcnt(0)")
e(f"s_mul_i32 s6, s4, {FS_}\ns_add_u32 s6, s6, {FL_A}"); arrive("s6")
stS()
e("s_cmp_lt_u32 s5, 4\ns_cbranch_scc1 L_S2")
e(f"s_sub_u32 s6, s5, 4\ns_mul_i32 s7, s6, 37\ns_lshr_b32 s7, s7, 8\ns_mul_i32 s0, s7, 7\ns_sub_u32 s0, s6, s0\ns_lshr_b32 s6, s4, 1\ns_lshl2_add_u32 s6, s6, s7\ns_mul_i32 s6, s6, {FS_}\ns_add_u32 s6, s6, {FL_T}")
e("s_add_u32 s40, s44, s6\ns_addc_u32 s41, s45, 0")
e(f"s_and_b32 s6, s4, 1\ns_mul_i32 s6, s6, 7\ns_add_u32 s6, s6, s0\ns_mul_i32 s6, s6, {FS_}\ns_add_u32 s6, s6, {FL_E}\ns_add_u32 s38, s44, s6\ns_addc_u32 s39, s45, 0")
wait_lds(17, 18, OPT.get("tpollat", "7"), sleep=True)
spoll(40, [0], 16, 4); spoll(38, [0], 2, 4); relay(1)
wait_lds(17, 18, OPT.get("apollat", "8"), sleep=True)
e("s_branch L_S3")
e("L_S2:")
if OPT.get("warm", "0") == "1": spoll(44, [FL_A+FS_*k for k in range(8)], 32, OPT.get("isleep", "12"))
else:
    e(f"v_mov_b32 v16, {CNT2}")
    if "k" not in EXP and "e" not in EXP: wait_lds(17, 16, "2", sleep=True)
e("L_S3:")
stS()
vpoll("buffer_load_dword v7, v5, s[48:51], 0 offen sc1", 7, 32, OPT.get("ssleep", "4")); relay(2)
stS()
g2_ids()
e(f"s_mul_i32 s10, s14, 276480\ns_add_u32 s10, s10, {W2F}")
wait_lds(17, 18, OPT.get("wat", "10"), sleep=True)
if OPT.get("w8", "0") == "1":
    e("s_and_b32 s6, s5, 7\ns_mul_i32 s6, s6, 34560\ns_add_u32 s6, s6, s10")
    for k in range(34):
        e(f"buffer_load_dwordx4 {vr(192+4*(k%16),4)}, v4, s[48:51], s6 offen offset:{1024*(k%4)} sc1")
        if k % 4 == 3: e("s_add_u32 s6, s6, 4096")
e("s_mul_i32 s7, s5, 3\ns_lshl1_add_u32 s8, s5, 16\ns_cmp_lt_u32 s5, 16\ns_cselect_b32 s8, s7, s8\ns_mul_i32 s6, s4, 80\ns_add_u32 s8, s8, s6")
e(f"v_lshrrev_b32 v2, 2, v0\nv_and_b32 v6, 3, v0\nv_mul_u32_u24 v3, 10240, v2\nv_lshl_add_u32 v3, v6, 4, v3")
e(f"s_lshl_b32 s6, s8, 4\ns_add_u32 s6, s6, {XNB}")
for r in range(16):
    e(f"buffer_load_dwordx4 {vr(128+4*r,4)}, v3, s[48:51], s6 offen sc1")
    if r < 15: e("s_add_u32 s6, s6, 163840")
e(f"v_mul_u32_u24 v6, {USZ}, v6\nv_lshl_add_u32 v2, v2, 4, v6\nv_add_u32 v2, {UB0}, v2")
for r in range(20, 24): e(f"v_mov_b32 v{r}, 0")
e(f"v_add_u32 v3, {UB0}, v4")
wait_lds(17, 18, "11", sleep=True)
e("s_mov_b64 exec, 0xfffffff")
for ch in range(3): e(f"ds_write_b128 v3, v[20:23] offset:{ch*USZ}\nds_write_b128 v3, v[20:23] offset:{ch*USZ+U1OFF}")
e("s_mov_b32 exec_lo, 0x77777777\ns_mov_b32 exec_hi, 0x77777777")
for r in range(16):
    e(f"s_waitcnt vmcnt({15-r})")
    e(f"ds_write_b128 v2, {vr(128+4*r,4)} offset:{448+256*r}")
e("s_mov_b64 exec, -1")
e("v_mov_b32 v8, 3\nds_write_b32 v9, v8")
e("v_add_u32 v5, 4096, v4")
for k in range(3):
    e(f"s_add_u32 s6, s15, {5+k}\ns_cmp_ge_u32 s6, 14\ns_cselect_b32 s7, 14, 0\ns_sub_u32 s6, s6, s7\ns_lshl_b32 s6, s6, 2")
    for w in range(4):
        e(f"s_add_u32 s7, s6, {w}\ns_mul_i32 s0, s7, 5120\ns_add_u32 s0, s0, s10\ns_cmp_ge_u32 s7, 54\ns_cselect_b32 s0, {OOB}, s0\ns_mov_b32 m0, {(w*3+k)*5120}\ns_nop 0")
        for dt in range(4): e(f"buffer_load_dwordx4 v4, s[48:51], s0 offen offset:{1024*dt} sc1 lds")
        e(f"s_mov_b32 m0, {(w*3+k)*5120+4096}\ns_nop 0\nbuffer_load_dwordx4 v5, s[48:51], s0 offen sc1 lds")
        e(f"s_waitcnt vmcnt({OPT.get('pfd', '30')})")
stS()
e("s_waitcnt vmcnt(0)"); relay(3)
stS()
wait_lds(17, 18, "13", sleep=True)
e(f"s_mul_i32 s6, s14, {4*FS_}\ns_add_u32 s6, s6, {FL_C}\ns_add_u32 s40, s44, s6\ns_addc_u32 s41, s45, 0")
if "k" not in EXP and "e" not in EXP: spoll(40, [FS_*k for k in range(4)], 20, OPT.get("csleep", "4"))
relay(4)
stS()
stS.regs = [76,78,80] + stS.regs; stS.n += 3
stS.flush(8, 9)
e("L_END:")
e("s_endpgm")
for l in tail[:-1]: e(l)
e("L_LAST:")
e(tail[-1])
if "P" in EXP:
    for c_ in e.I:
        if c_.mn == "buffer_store_dwordx4" and ("v4, s[48:51]" in c_.text): c_.text = c_.text.replace(" sc1", "")
nn = e.fix()

hdr = open("cdna_kernels/" + NAME + ".s.ref").read().split("; Override")[0]
s = hdr + f"; @launch grid=(256,1,1) block=(512,1,1) lds={LDS_TOTAL}\n"
s += f""".amdgcn_target "amdgcn-amd-amdhsa--gfx950"
.text
.globl {NAME}_kernel
.p2align 8
.type {NAME}_kernel,@function
{NAME}_kernel:
"""
s += e.text()
s += f""".section .rodata,"a"
.p2align 6
.amdhsa_kernel {NAME}_kernel
  .amdhsa_next_free_vgpr 256
  .amdhsa_next_free_sgpr 102
  .amdhsa_accum_offset 256
  .amdhsa_group_segment_fixed_size 0
  .amdhsa_kernarg_size 120
  .amdhsa_user_sgpr_count 2
  .amdhsa_user_sgpr_kernarg_segment_ptr 1
  .amdhsa_system_sgpr_workgroup_id_x 1
.end_amdhsa_kernel
"""
open(OUT, "w").write(s)
print("instrs", sum(1 for c in e.I if c.cls), "nops inserted", nn, "lds", LDS_TOTAL)
```

```python
import sys, struct
from emit import Em, Q
NAME = "recurrent_scan__ssm_conv_s4d__mixer_channel_mlp__prompt"
DBGST = "--dbg" in sys.argv
AMP = [a[6:] for a in sys.argv if a.startswith("--amp=")]
STAMPS = "--stamps" in sys.argv or DBGST or bool(AMP)
OPT = dict(rot="0", cpf="1", expat="1", tpollat="7", apollat="9", nt="wp", gprio="0", cprio="1")
OPT.update(a[2:].split("=") for a in sys.argv[1:] if a.startswith("--") and "=" in a)
OUT = [a for a in sys.argv[1:] if not a.startswith("--")]
OUT = OUT[0] if OUT else "k.s"
NOAUX = OPT.get("noaux", "0")
EXP = OPT.get("exp", "")
RELAT = int(OPT.get("relat", "16"))
HELP = OPT.get("help", "1") == "1"
OSP = {"": "", "sc1": " sc1", "nt": " nt", "sc01": " sc0 sc1", "sc1nt": " sc1 nt"}[OPT.get("osp", "")]
NT = OPT.get("nt", "")
ntw2 = " nt" if "w" in NT else ""; ntp = " nt" if "p" in NT else ""; ntx = " nt" if "x" in NT else ""; ntg = " nt" if "g" in NT else ""
MT = "s_memtime" if "--cyc" in sys.argv else "s_memrealtime"

FS_ = int(OPT.get("fs", "128"))
FLB = 0x2C0000 if FS_ > 128 else 0
FL_A, FL_H, FL_C, FL_T, FL_E = [FLB + FS_*k for k in (0, 8, 40, 72, 88)]
STATS = 0x4000
XNB = 0x20000
WE = 0x2B0000
W2F = 0x300000
HF = 0x600000
ST = 0xD00000
STAMP = 0xFC0000
WS_SIZE = 0x1000000
OOB = 0x20000000
KSTEP = 8192
XST = 8 * KSTEP
CH0 = XST + 32768
CHSZ = 18176
SB = CH0 + 3 * CHSZ
SBP, SBW, SBF = 1280, 320, 160
CNT = SB + 10240
CNT2 = CNT + 256
SST = CNT2 + 256
REL = CH0 + 1284
LDS_TOTAL = SST + 256
assert LDS_TOTAL <= 163840, LDS_TOTAL
UB0, USZ, U1OFF = 61440, 9152, 4576
assert UB0 + 3*USZ <= CH0
KOFF, KCP = 1312, 4160
TBOFF, TAB, TPI = 0, 1296, 528
SPIN_MAX = 8192
LOG2E = 0x3fb8aa3b
INV2PI = 0x3e22f983

e = Em()
tail = []
def f32(x): return "0x%08x" % struct.unpack("<I", struct.pack("<f", x))[0]
def srd(r, ptr, size):
    e(f"s_mov_b32 s{r}, s{ptr}\ns_mov_b32 s{r+1}, s{ptr+1}\ns_mov_b32 s{r+2}, {size}\ns_mov_b32 s{r+3}, 0x20000")
def vr(a, n): return f"v[{a}:{a+n-1}]"

class Stamper:
    def __init__(self, regs): self.regs = regs; self.n = 0
    def __call__(self):
        if not STAMPS: return
        r = self.regs[self.n]; self.n += 1
        e(f"{MT} s[{r}:{r+1}]")
    def flush(self, v0, v1, dbg=None):
        if not STAMPS: return
        e("s_waitcnt lgkmcnt(0)")
        if AMP:
            aw, ai = (AMP[0].split(":") + [None])[:2] if ":" in AMP[0] else ("0", AMP[0])
            if dbg is None or dbg[0] != int(aw): return
            r = self.regs[int(ai)]
            L = e.lab("AMP")
            e(f"s_cmp_lg_u32 s2, {OPT.get('ampwg', '100')}\ns_cbranch_scc1 {L}_e\ns_cmp_lg_u32 s3, {aw}\ns_cbranch_scc1 {L}_e")
            e(f"s_sub_u32 s6, s{r}, s46\ns_lshl_b32 s6, s6, 2\ns_min_u32 s6, s6, 20000\ns_memrealtime s[8:9]\ns_waitcnt lgkmcnt(0)")
            e(f"{L}:\ns_sleep 1\ns_memrealtime s[10:11]\ns_waitcnt lgkmcnt(0)\ns_sub_u32 s10, s10, s8\ns_cmp_lt_u32 s10, s6\ns_cbranch_scc1 {L}\n{L}_e:")
            return
        if DBGST:
            if dbg is None: return
            wave, off, n = dbg
            L = e.lab("NODBG")
            e(f"s_cmp_lg_u32 s2, 100\ns_cbranch_scc1 {L}\ns_cmp_lg_u32 s3, {wave}\ns_cbranch_scc1 {L}")
            e(f"v_mov_b32 v{v1}, 0\ns_mov_b64 exec, 1")
            for i, r in enumerate(self.regs[:n]):
                e(f"s_sub_u32 s{r}, s{r}, s46\nv_mov_b32 v{v0}, s{r}")
                e(f"buffer_store_dword v{v0}, v{v1}, s[72:75], 0 offen offset:{4*(off+i)}")
                e("s_nop 0")
            e("s_waitcnt vmcnt(0)")
            e(f"{L}:")
            return
        e("s_lshl_b32 s6, s2, 3\ns_add_u32 s6, s6, s3\ns_lshl_b32 s6, s6, 6")
        e(f"s_add_u32 s6, s6, {STAMP}")
        e(f"v_mov_b32 v{v1}, 0")
        e("s_mov_b64 exec, 1")
        for i, r in enumerate([46] + self.regs[:self.n]):
            e(f"v_mov_b32 v{v0}, s{r}")
            e(f"buffer_store_dword v{v0}, v{v1}, s[48:51], s6 offen offset:{4*i}")
            e("s_nop 0")
        e("s_waitcnt vmcnt(0)")

def spin_lds(vchk, vaddr, val, sleep=False, after=(), pre_cmp=True, branch="s_cbranch_vccnz"):
    if NOAUX != "0" and not val.startswith("v"): return
    L = e.lab("SPIN"); B = e.lab("BACK")
    if pre_cmp: e(f"v_cmp_gt_u32 vcc, {val}, v{vchk}")
    e(f"{branch} {L}")
    e(f"{B}:")
    D = f"{L}_d" if after else B
    tail.extend([f"{L}:", f"s_mov_b32 s12, {SPIN_MAX*16}", f"{L}_a:"] + (["s_sleep 1"] if sleep else []) +
                [f"ds_read_b32 v{vchk}, v{vaddr}", "s_waitcnt lgkmcnt(0)",
                 f"v_cmp_gt_u32 vcc, {val}, v{vchk}", f"s_cbranch_vccz {D}", "s_sub_u32 s12, s12, 1", f"s_cbranch_scc0 {L}_a"] +
                ([f"{D}:"] + list(after) if after else []) + [f"s_branch {B}"])
def wait_lds(vchk, vaddr, val, sleep=False):
    e(f"ds_read_b32 v{vchk}, v{vaddr}\ns_waitcnt lgkmcnt(0)")
    spin_lds(vchk, vaddr, val, sleep)
def spoll(base, offs, target, sl, r0=16):
    if NOAUX != "0": return
    L = e.lab("AG")
    e(f"s_mov_b32 s12, {SPIN_MAX}")
    e(f"{L}:")
    for k, o in enumerate(offs): e(f"s_load_dword s{r0+k}, s[{base}:{base+1}], {o} glc")
    e("s_waitcnt lgkmcnt(0)")
    for k in range(1, len(offs)): e(f"s_min_u32 s{r0}, s{r0}, s{r0+k}")
    e(f"s_cmp_ge_u32 s{r0}, {target}\ns_cbranch_scc1 {L}_d\ns_sleep {sl}\ns_sub_u32 s12, s12, 1\ns_cbranch_scc0 {L}")
    e(f"{L}_d:")
def rb(dst, src):
    e(f"v_cvt_pk_bf16_f32 v{dst}, v{src}, v{src}\nv_and_b32 v{dst}, 0xffff0000, v{dst}")
def zero_cnt(base):
    e(f"s_and_b32 s6, s3, 3\ns_lshl_b32 s6, s6, 6\ns_add_u32 s6, s6, {base}")
    e("v_and_b32 v9, 15, v0\nv_lshlrev_b32 v9, 2, v9\nv_add_u32 v9, s6, v9\nv_mov_b32 v11, 0")
    e("ds_write_b32 v9, v11")

e("s_cmp_ge_u32 s2, 256")
e("s_cbranch_scc1 L_END")
if STAMPS: e(f"{MT} s[46:47]")
e("s_load_dwordx16 s[16:31], s[0:1], 0")
e("s_load_dwordx8 s[32:39], s[0:1], 64")
e("s_load_dwordx4 s[40:43], s[0:1], 96")
e("s_load_dwordx2 s[44:45], s[0:1], 112")
e("v_lshrrev_b32 v1, 6, v0")
e("v_and_b32 v0, 63, v0")
e("v_readfirstlane_b32 s3, v1")
e("s_and_b32 s4, s2, 7")
e("s_lshr_b32 s5, s2, 3")
if OPT.get("idlelast", "1") == "1": e("s_add_u32 s5, s5, 4\ns_and_b32 s5, s5, 31")
e("s_cmp_ge_u32 s3, 4")
e("s_cbranch_scc1 L_AUX")

def chan_id(cw):
    e("s_mul_i32 s7, s5, 3\ns_lshl1_add_u32 s8, s5, 16\ns_cmp_lt_u32 s5, 16\ns_cselect_b32 s8, s7, s8\ns_cselect_b32 s7, 3, 2")
    e(f"s_add_u32 s8, s8, s{cw}\ns_mul_i32 s6, s4, 80\ns_add_u32 s8, s8, s6\ns_cmp_ge_u32 s{cw}, s7\ns_cselect_b32 s8, 640, s8")
def param_loads(P, voff, vz, so, so2, R):
    for k, p in enumerate((18, 20, 22, 24)):
        srd(R[k], p, 163840)
        e(f"buffer_load_dword v{P+k}, v{voff}, s[{R[k]}:{R[k]+3}], s{so} offen{ntp}")
    srd(R[0], 26, 1280); e(f"buffer_load_ushort v{P+4}, v{vz}, s[{R[0]}:{R[0]+3}], s{so2} offen")
def k_setup_pk(P, LAM, CC, EV, PS, conj, starts, TM):
    DT = P + 4
    e(f"v_lshlrev_b32 v{DT}, 16, v{DT}\nv_mul_f32 v{DT}, {LOG2E}, v{DT}\nv_exp_f32 v{DT}, v{DT}")
    for k, d in enumerate((LAM, LAM+2, CC, CC+2)): e(f"v_lshlrev_b32 v{d}, 16, v{P+k}\nv_and_b32 v{d+1}, 0xffff0000, v{P+k}")
    rb(DT, DT)
    for n in (0, 1): e(f"v_mul_f32 v{LAM+n}, {LOG2E}, v{LAM+n}")
    for n in (0, 1): e(f"v_exp_f32 v{LAM+n}, v{LAM+n}")
    e(f"v_add_f32 v{P}, v{DT}, v{DT}")
    e(f"v_cvt_pk_bf16_f32 v{P+1}, v{LAM}, v{LAM+1}\nv_lshlrev_b32 v{LAM}, 16, v{P+1}\nv_and_b32 v{LAM+1}, 0xffff0000, v{P+1}")
    for d in (LAM, LAM+2): e(f"v_pk_mul_f32 {vr(d,2)}, {vr(d,2)}, {vr(DT,2)} op_sel_hi:[1,0]")
    for d in (CC, CC+2): e(f"v_pk_mul_f32 {vr(d,2)}, {vr(d,2)}, {vr(P,2)} op_sel_hi:[1,0]")
    for n in (0, 1): e(f"v_mul_f32 v{LAM+n}, {f32(-1.4426950408889634)}, v{LAM+n}\nv_mul_f32 v{LAM+2+n}, {INV2PI}, v{LAM+2+n}")
    for i, p in enumerate(PS):
        for k in range(4): e(f"v_mul_f32 v{TM+4*i+k}, {f32(p)}, v{LAM+k}")
    for i, p in enumerate(PS):
        for n in (0, 1): e(f"v_exp_f32 v{TM+4*i+n}, v{TM+4*i+n}\nv_fract_f32 v{TM+4*i+2+n}, v{TM+4*i+2+n}")
    for i, p in enumerate(PS):
        for n in (0, 1): e(f"v_cos_f32 v{EV[p]+n}, v{TM+4*i+2+n}\nv_sin_f32 v{EV[p]+2+n}, v{TM+4*i+2+n}")
    for i, p in enumerate(PS):
        e(f"v_pk_mul_f32 {vr(EV[p],2)}, {vr(EV[p],2)}, {vr(TM+4*i,2)}")
        e(f"v_pk_mul_f32 {vr(EV[p]+2,2)}, {vr(EV[p]+2,2)}, {vr(TM+4*i,2)}" + (" neg_lo:[1,0] neg_hi:[1,0]" if p == conj else ""))
    pk_step([(EV[p], CC, TM+2*i) for i, p in enumerate(starts)])
def pk_step(g, mid=()):
    for (z, m, t) in g: e(f"v_pk_mul_f32 {vr(t,2)}, {vr(z+2,2)}, {vr(m+2,2)}")
    for l in mid: e(l)
    for (z, m, t) in g: e(f"v_pk_mul_f32 {vr(z+2,2)}, {vr(z+2,2)}, {vr(m,2)}")
    for (z, m, t) in g: e(f"v_pk_fma_f32 {vr(z+2,2)}, {vr(z,2)}, {vr(m+2,2)}, {vr(z+2,2)}")
    for (z, m, t) in g: e(f"v_pk_fma_f32 {vr(z,2)}, {vr(z,2)}, {vr(m,2)}, {vr(t,2)} neg_lo:[0,0,1] neg_hi:[0,0,1]")
def chain_pk(ch, n, row0, VB, TM):
    for u in range(n):
        for i, (z, m, off) in enumerate(ch):
            e(f"v_cvt_pk_bf16_f32 v{TM+4*(u&1)+2*i}, v{z}, v{z+2}\nv_cvt_pk_bf16_f32 v{TM+1+4*(u&1)+2*i}, v{z+1}, v{z+3}")
        wr = [f"ds_write_b64 v{VB}, {vr(TM+4*(u&1)+2*i,2)} offset:{(row0+off+u)*TPI}" for i, (z, m, off) in enumerate(ch)]
        pk_step([(z, m, TM+8+2*i) for i, (z, m, off) in enumerate(ch)], wr)
def k_setup(P, LAM, CC, EV, PS, conj, starts, TM):
    DT = P + 4
    e(f"v_lshlrev_b32 v{DT}, 16, v{DT}\nv_mul_f32 v{DT}, {LOG2E}, v{DT}\nv_exp_f32 v{DT}, v{DT}")
    for n in (0, 1):
        up = (lambda d, s: e(f"v_lshlrev_b32 v{d}, 16, v{s}")) if n == 0 else (lambda d, s: e(f"v_and_b32 v{d}, 0xffff0000, v{s}"))
        up(LAM+2*n, P); up(LAM+2*n+1, P+1); up(CC+2*n, P+2); up(CC+2*n+1, P+3)
    rb(DT, DT)
    for n in (0, 1): e(f"v_mul_f32 v{LAM+2*n}, {LOG2E}, v{LAM+2*n}")
    for n in (0, 1): e(f"v_exp_f32 v{LAM+2*n}, v{LAM+2*n}")
    e(f"v_add_f32 v{P}, v{DT}, v{DT}")
    for n in (0, 1): rb(LAM+2*n, LAM+2*n)
    for n in (0, 1):
        e(f"v_mul_f32 v{LAM+2*n}, v{LAM+2*n}, v{DT}\nv_mul_f32 v{LAM+2*n+1}, v{LAM+2*n+1}, v{DT}")
        e(f"v_mul_f32 v{CC+2*n}, v{CC+2*n}, v{P}\nv_mul_f32 v{CC+2*n+1}, v{CC+2*n+1}, v{P}")
    for n in (0, 1):
        e(f"v_mul_f32 v{LAM+2*n}, {f32(-1.4426950408889634)}, v{LAM+2*n}\nv_mul_f32 v{LAM+2*n+1}, {INV2PI}, v{LAM+2*n+1}")
    it = [(p, n) for p in PS for n in (0, 1)]
    tm = {k: TM + 2*i for i, k in enumerate(it)}
    for (p, n) in it:
        if p == 1.0: e(f"v_exp_f32 v{tm[p,n]}, v{LAM+2*n}\nv_fract_f32 v{tm[p,n]+1}, v{LAM+2*n+1}")
        else: e(f"v_mul_f32 v{tm[p,n]}, {f32(p)}, v{LAM+2*n}\nv_mul_f32 v{tm[p,n]+1}, {f32(p)}, v{LAM+2*n+1}")
    for (p, n) in it:
        if p != 1.0: e(f"v_exp_f32 v{tm[p,n]}, v{tm[p,n]}\nv_fract_f32 v{tm[p,n]+1}, v{tm[p,n]+1}")
    for (p, n) in it: e(f"v_cos_f32 v{EV[p]+2*n}, v{tm[p,n]+1}\nv_sin_f32 v{EV[p]+2*n+1}, v{tm[p,n]+1}")
    for (p, n) in it:
        neg = "-" if p in conj else ""
        e(f"v_mul_f32 v{EV[p]+2*n}, v{EV[p]+2*n}, v{tm[p,n]}")
        e(f"v_mul_f32 v{EV[p]+2*n+1}, {neg}v{EV[p]+2*n+1}, v{tm[p,n]}")
    g_ = [(EV[p]+2*n, CC+2*n, TM+2*i+n) for i, p in enumerate(starts) for n in (0, 1)]
    for (z, m, t) in g_: e(f"v_mul_f32 v{t}, v{z+1}, v{m+1}")
    for (z, m, t) in g_: e(f"v_mul_f32 v{z+1}, v{z+1}, v{m}")
    for (z, m, t) in g_: e(f"v_fmac_f32 v{z+1}, v{z}, v{m+1}")
    for (z, m, t) in g_: e(f"v_fma_f32 v{z}, v{z}, v{m}, -v{t}")
def chain_loop(ch, n, row0, VB, VA, TM, SC):
    L = e.lab("KL")
    UN = min(n, int(OPT.get("kun", "4")))
    if n > UN: e(f"s_mov_b32 s{SC}, {n//UN}")
    e(f"v_add_u32 v{VA}, {row0*TPI}, v{VB}")
    e(f"{L}:")
    for u in range(UN):
        for i, (z, m, off) in enumerate(ch):
            e(f"v_cvt_pk_bf16_f32 v{TM+4*(u&1)+2*i}, v{z}, v{z+1}\nv_cvt_pk_bf16_f32 v{TM+1+4*(u&1)+2*i}, v{z+2}, v{z+3}")
        g = [(z+2*k, m+2*k, TM+8+2*i+k) for i, (z, m, off) in enumerate(ch) for k in (0, 1)]
        for (z, m, t) in g: e(f"v_mul_f32 v{t}, v{z+1}, v{m+1}")
        for i, (z, m, off) in enumerate(ch): e(f"ds_write_b64 v{VA}, {vr(TM+4*(u&1)+2*i,2)} offset:{(off+u)*TPI}")
        for (z, m, t) in g: e(f"v_mul_f32 v{z+1}, v{z+1}, v{m}")
        if u == UN-1 and n > UN: e(f"v_add_u32 v{VA}, {UN*TPI}, v{VA}")
        for (z, m, t) in g: e(f"v_fmac_f32 v{z+1}, v{z}, v{m+1}")
        if u == UN-1 and n > UN: e(f"s_sub_u32 s{SC}, s{SC}, 1\ns_cmp_lg_u32 s{SC}, 0")
        for (z, m, t) in g: e(f"v_fma_f32 v{z}, v{z}, v{m}, -v{t}")
    if n > UN: e(f"s_cbranch_scc1 {L}")
def y_init(Y): e(f"v_mov_b32 v{Y}, 1.0\nv_mov_b32 v{Y+1}, 0\nv_mov_b32 v{Y+2}, 1.0\nv_mov_b32 v{Y+3}, 0")
def frag_reads(dst, VF, row0):
    for s_ in range(8): e(f"ds_read_b128 {vr(dst+4*s_,4)}, v{VF} offset:{64*s_+row0*TPI}")
def k_mfma(K, FA, FY):
    for s_ in range(8):
        e(f"s_waitcnt lgkmcnt({7-s_})")
        e(f"v_mfma_f32_16x16x32_bf16 {vr(K,4)}, {vr(FA+4*s_,4)}, {vr(FY+4*s_,4)}, {vr(K,4) if s_ else 0}")
def g2_ids():
    e("s_and_b32 s6, s5, 7\ns_lshr_b32 s13, s4, 1\ns_lshl3_add_u32 s13, s13, s6\ns_lshr_b32 s7, s5, 3\ns_and_b32 s14, s4, 1\ns_lshl2_add_u32 s14, s14, s7")
    e("s_mul_i32 s15, s7, 7\ns_lshr_b32 s15, s15, 1")

_stG = Stamper([30,32,34,36,38,96,98,100])
GSEL = OPT.get("gst", "c0,g1,ep,hp,hs,g2,rd,end").split(",")
class _G:
    def __call__(self, name):
        if name in GSEL:
            _stG.n = GSEL.index(name); _stG()
    def flush(self, *a):
        _stG.n = 8; _stG.flush(*a)
stG = _G()
vm = Q(e, "vmcnt", 63); lg = Q(e, "lgkmcnt", 15)
XR, VXA, WB = 48, 244, 80
ACC = 112
VCHK, VREL = 250, 251
WEF, XEF, XEC = 176, 192, 196
sK = [76+i for i in range(14)]
HP = 112
e(f"s_setprio {OPT.get('gprio', '2')}")
zero_cnt(CNT)
e("v_lshrrev_b32 v10, 4, v0")
e("v_and_b32 v8, 15, v0")
g2_ids()
if HELP: chan_id(3)
if HELP: e(f"s_lshl_b32 s60, s8, 8\ns_lshl_b32 s61, s8, 1\ns_mov_b32 s62, s8\nv_lshlrev_b32 v117, 2, v0\nv_mov_b32 v118, 0")
e("s_cmp_lt_u32 s5, 4")
e("s_cbranch_scc1 L_IDLE")
e("s_sub_u32 s6, s5, 4\ns_mul_i32 s7, s6, 37\ns_lshr_b32 s7, s7, 8\ns_mul_i32 s8, s7, 7\ns_sub_u32 s6, s6, s8")
e("s_lshr_b32 s8, s4, 1\ns_lshl_b32 s8, s8, 2\ns_add_u32 s8, s8, s7")
e("s_and_b32 s9, s4, 1\ns_mul_i32 s9, s9, 7\ns_add_u32 s9, s9, s6")
e("s_lshl_b32 s11, s9, 8")
ROT = OPT.get("rot", "1") != "0"
sW = list(range(16, 26)); sX = [26, 27, 28, 29, 90, 91, 92, 93, 94, 95]
if ROT:
    e("s_mul_i32 s12, s6, 370\ns_lshr_b32 s12, s12, 8\ns_mul_i32 s7, s7, 5\ns_lshr_b32 s7, s7, 1\ns_add_u32 s12, s12, s7")
    e("s_cmp_ge_u32 s12, 10\ns_cselect_b32 s7, 10, 0\ns_sub_u32 s12, s12, s7")
def rot_tab(ps):
    if not ROT: return
    for p in ps:
        if p: e("s_add_u32 s12, s12, 1\ns_cmp_eq_u32 s12, 10\ns_cselect_b32 s12, 0, s12")
        e(f"s_mul_i32 s{sW[p]}, s12, 221184\ns_add_u32 s{sW[p]}, s{sW[p]}, s11\ns_lshl_b32 s{sX[p]}, s12, 7")
e("v_bfe_u32 v1, v0, 2, 2\ns_lshl_b32 s6, s3, 3\nv_add_u32 v1, s6, v1\nv_mul_u32_u24 v1, 3456, v1")
e("v_lshl_add_u32 v1, v10, 6, v1\nv_and_b32 v2, 3, v0\nv_lshl_add_u32 v1, v2, 4, v1")
e(f"v_add_u32 v2, {4*3456-1024}, v1")
e("s_lshl_b32 s6, s8, 7\ns_lshl_b32 s7, s3, 5\ns_add_u32 s6, s6, s7")
e("v_lshrrev_b32 v5, 3, v0\nv_add_u32 v3, s6, v5\nv_mul_u32_u24 v3, 1280, v3\nv_and_b32 v6, 7, v0\nv_lshrrev_b32 v5, 1, v5\nv_xor_b32 v6, v6, v5")
e(f"v_xor_b32 v5, 4, v6\nv_lshl_add_u32 v4, v5, 4, v3\nv_add_u32 v4, {10240-1024}, v4\nv_lshl_add_u32 v3, v6, 4, v3")
e(f"s_lshl_b32 s10, s3, 13\ns_add_u32 s10, s10, {XST}")
e("s_waitcnt lgkmcnt(0)")
def g_params():
    if not HELP: return
    param_loads(HP, 117, 118, 60, 61, (64, 68, 72, 48))
    for _ in range(5): vm.issue("par")
g_params()
e("s_barrier")
e("s_lshl_b32 s1, s3, 11")
srd(56, 32, 2211840); srd(52, 16, 2621440)
rot_tab(range(1))
def w_ops(step):
    def a():
        if ROT: e(f"s_add_u32 m0, s1, {(step % 8)*KSTEP}\ns_add_u32 s0, s{sW[step//2]}, {(step % 2)*110592}")
        else: e(f"s_add_u32 m0, s1, {(step % 8)*KSTEP}\ns_add_u32 s0, s11, {step*110592}")
        e(f"buffer_load_dwordx4 v1, s[56:59], s0 offen{ntg} lds"); vm.issue(("w", step//2))
    def b():
        e(f"buffer_load_dwordx4 v2, s[56:59], s0 offen offset:1024{ntg} lds"); vm.issue(("w", step//2))
    return [a, b]
def x_ops(u):
    def a():
        if ROT: e(f"s_add_u32 m0, s10, {(u % 4)*2048}\ns_add_u32 s0, s{sX[u//2]}, {(u % 2)*20480}")
        else: e(f"s_add_u32 m0, s10, {(u % 4)*2048}\ns_mov_b32 s0, {(u//2)*128 + (u % 2)*20480}")
        e("buffer_load_dwordx4 v3, s[52:55], s0 offen lds"); vm.issue(("x", u))
    def b():
        e("buffer_load_dwordx4 v4, s[52:55], s0 offen offset:1024 lds"); vm.issue(("x", u))
    return [a, b]
def x_read(c, kk):
    if kk == 0: vm.wait(("x", 2*c+1))
    e(f"ds_read_b128 {vr(XR+(c%2)*16+4*kk,4)}, v{VXA+kk} offset:{(c%2)*4096}"); lg.issue(("xr", c, kk))
for op in w_ops(0) + x_ops(0) + x_ops(1) + w_ops(1): op()
def g_srds(): srd(48, 44, WS_SIZE); srd(64, 38, 1280); srd(68, 40, 2621440); srd(72, 42, 256)
g_srds()
rot_tab(range(1, 10))
NP2 = int(OPT.get("np2", "0"))
late = (w_ops(2) + w_ops(3) + x_ops(2) + x_ops(3))
for op in late[:NP2]: op()
def helper(mid=((), ())):
    if not HELP:
        for op in list(mid[0]) + list(mid[1]): op()
        return
    LAM, CC, TM, YC, FY, FA, KT = 120, 124, 144, 160, 176, 208, 240
    EV = {8.0: 128, 128.0: 132, 512.0: 136, 516.0: 140}
    e("s_cmp_ge_u32 s62, 640" if "n" not in EXP else "s_cmp_ge_u32 s62, 0")
    L = e.lab("NOH")
    e(f"s_cbranch_scc1 {L}")
    e(f"s_mul_i32 s6, s3, {16*TPI}\ns_add_u32 s6, s6, {4*KSTEP}\nv_lshlrev_b32 v244, 3, v0\nv_add_u32 v244, s6, v244")
    e(f"v_mul_u32_u24 v245, {TPI}, v8\nv_lshl_add_u32 v245, v10, 4, v245\nv_add_u32 v245, s6, v245")
    e(f"s_mul_i32 s6, s3, {CHSZ}\ns_add_u32 s6, s6, {CH0+TBOFF}")
    e("v_lshlrev_b32 v247, 1, v8\nv_lshl_add_u32 v247, v10, 7, v247\nv_add_u32 v247, s6, v247")
    e("v_lshlrev_b32 v248, 2, v8\nv_lshrrev_b32 v249, 1, v10\nv_lshl_add_u32 v248, v249, 1, v248\nv_add_u32 v248, s6, v248")
    e(f"v_mov_b32 v{YC}, 1.0\nv_mov_b32 v{YC+1}, 1.0\nv_mov_b32 v{YC+2}, 0\nv_mov_b32 v{YC+3}, 0")
    vm.wait("par")
    stG("par")
    k_setup_pk(HP, LAM, CC, EV, [8.0, 128.0, 512.0, 516.0], 8.0, (512.0, 516.0), TM)
    for op in mid[0]: op()
    L2 = e.lab("HY")
    e(f"s_mov_b32 s63, 4\nv_mov_b32 v246, v244\n{L2}:")
    chain_pk([(YC, EV[8.0], 0)], 4, 0, 246, TM)
    e(f"v_add_u32 v246, {4*TPI}, v246\ns_sub_u32 s63, s63, 1\ns_cmp_lg_u32 s63, 0\ns_cbranch_scc1 {L2}")
    e("s_waitcnt lgkmcnt(0)")
    frag_reads(FY, 245, 0)
    for op in mid[1]: op()
    e("s_waitcnt lgkmcnt(0)")
    chain_pk([(EV[512.0], EV[128.0], 0), (EV[516.0], EV[128.0], 12)], 4, 0, 244, TM)
    chain_pk([(EV[512.0], EV[128.0], 0)], 8, 4, 244, TM)
    e("s_waitcnt lgkmcnt(0)")
    frag_reads(FA, 245, 0)
    k_mfma(KT, FA, FY)
    for r in range(4): e(f"v_cvt_pk_bf16_f32 v{TM+r}, v{KT+r}, v{KT+r}")
    e("s_mov_b32 exec_lo, 0xffff\ns_mov_b32 exec_hi, 0xffff0000")
    for r in range(4): e(f"ds_write_b16 v248, v{TM+r} offset:{768+64*r}")
    e("s_mov_b32 exec_lo, 0xffff0000\ns_mov_b32 exec_hi, 0xffff")
    for r in range(4): e(f"ds_write_b16 v247, v{TM+r} offset:{896+32*r}")
    e("s_mov_b64 exec, -1")
    if mid[0] or mid[1]:
        q = list(vm.q)
        e(f"s_branch {L}_j\n{L}:")
        for op in list(mid[0]) + list(mid[1]): op()
        vm.q = q
        e(f"{L}_j:")
    else: e(f"{L}:")
def kappa_tab():
    e("s_mov_b32 s6, s15")
    for i in range(14):
        if i: e("s_add_u32 s6, s6, 1\ns_cmp_eq_u32 s6, 14\ns_cselect_b32 s6, 0, s6")
        e(f"s_lshl2_add_u32 s7, s6, s3\ns_cmp_ge_u32 s7, 54\ns_cselect_b32 s7, {0x8000000>>10}, s7\ns_lshl_b32 s{sK[i]}, s7, 10")
if OPT.get("kapearly", "0") == "1": kappa_tab()
vq = list(vm.q)
if OPT.get("mid", "1") == "1":
    helper((late[NP2:4], late[4:]))
    vm.q = vq + vm.q[len(vm.q)-(8-NP2):]
else:
    helper()
    vm.q = vq
    for op in late[NP2:]: op()
stG("hlp")
e("v_lshrrev_b32 v7, 5, v0\nv_lshlrev_b32 v5, 11, v7\nv_bfe_u32 v6, v0, 2, 2\nv_lshl_add_u32 v5, v6, 6, v5\nv_bfe_u32 v6, v0, 4, 1\nv_lshl_add_u32 v5, v6, 5, v5\nv_and_b32 v6, 3, v0\nv_lshl_add_u32 v5, v6, 3, v5")
e(f"v_bfe_u32 v6, v0, 1, 3\nv_xor_b32 v6, v6, v7\nv_lshlrev_b32 v6, 4, v6\nv_and_b32 v253, 31, v0\nv_lshl_add_u32 v6, v253, 7, v6")
for kk in range(4): e(f"v_xor_b32 v{VXA+kk}, {32*kk}, v6\nv_add_u32 v{VXA+kk}, s10, v{VXA+kk}")
e(f"v_mov_b32 v252, {OOB}\nv_cmp_gt_u32 vcc, 32, v0\nv_lshlrev_b32 v6, 4, v253\nv_lshlrev_b32 v253, 5, v253\nv_cndmask_b32 v6, v252, v6, vcc\nv_cndmask_b32 v7, v252, v253, vcc")
def gcommon():
    e(f"v_lshlrev_b32 v10, 2, v0\nv_add_u32 v10, {CNT}, v10")
def w2_ops(i):
    ops = []
    for dt in range(5):
        def f(dt=dt):
            if dt == 0: e(f"s_lshl2_add_u32 s0, s{sK[i]}, s10\ns_add_u32 s0, s0, s{sK[i]}")
            if dt == 4: e("s_add_u32 s0, s0, 4096")
            r = 12 + (i % 5)*20 + dt*4
            e(f"buffer_load_dwordx4 {vr(r,4)}, v1, s[48:51], s0 offen offset:{1024*(dt%4)} sc1"); vm.issue(("w2", i))
        ops.append(f)
    return ops
def g2_bases():
    e("v_lshlrev_b32 v1, 4, v0")
    e(f"s_mul_i32 s10, s14, 276480\ns_add_u32 s10, s10, {W2F}")
    e(f"s_mul_i32 s11, s13, 221184\ns_add_u32 s11, s11, {HF}")
gcommon()
EW = int(OPT.get("ew", "0"))
if EW: kappa_tab()
stG("p")
def signal():
    e("v_add_u32 v11, 1, v11")
    e("ds_write_b32 v9, v11"); lg.issue("sig")
CHKR = [VCHK]
def chk_read():
    e(f"ds_read_b32 v{CHKR[0]}, v10"); lg.issue("chk")
def chk_eval():
    lg.wait("chk")
    spin_lds(CHKR[0], 10, "v11")
def tr_one(step, n, hf_):
    kh, t = divmod(n, 4)
    e(f"ds_read_b64_tr_b16 {vr(WB+4*n+2*hf_,2)}, v5 offset:{(step % 8)*KSTEP + 4096*kh + 1024*hf_ + 256*t}"); lg.issue(("w", step, n))
vm.wait(("w", 0))
signal(); chk_read()
for kk in range(4): x_read(0, kk)
chk_eval()
stG("c0")
for n in range(8): tr_one(0, n, 0); tr_one(0, n, 1)
EW = 0
for i in range(20):
    c, k2 = divmod(i, 2)
    stG(f"a{i}")
    side = {n: [] for n in range(8)}
    if i < 19:
        for n in range(8): side[n] += [lambda n=n: tr_one(i+1, n, 0), lambda n=n: tr_one(i+1, n, 1)]
    if i == 0:
        for n, op in zip((0, 1, 2, 3), w_ops(4) + w_ops(5)): side[n].append(op)
    elif i + 5 <= 19:
        for n, op in zip((0, 2), w_ops(i+5)): side[n].append(op)
    if i + 4 <= 19:
        if k2 == 0: side[4].append(lambda c=c: lg.wait(("xr", c, 3)))
        for n, op in zip((4, 6), x_ops(i+4)): side[n].append(op)
    if k2 == 0 and c + 1 <= 9:
        def sg(c=c):
            vm.wait(("w", c+1)); signal()
        side[3].append(sg); side[5].append(chk_read)
    if k2 == 1 and c + 1 <= 9:
        for kk in range(4): side[(1, 3, 5, 7)[kk]].append(lambda kk=kk, c=c: x_read(c+1, kk))
    if i == 15:
        side[5].append(lambda: (e(f"v_mov_b32 v252, {REL}\nds_read_b32 v{VREL}, v252"), lg.issue("rel")))
    if i == RELAT:
        def f():
            if RELAT != 16: e(f"ds_read_b32 v{VREL}, v252"); lg.issue("rel")
            lg.wait("rel")
            spin_lds(VREL, 252, "1")
            e(f"s_lshl_b32 s6, s8, 12\ns_lshl_b32 s7, s3, 10\ns_add_u32 s6, s6, s7\ns_add_u32 s6, s6, {STATS}\ns_lshl_b32 s63, s9, 11\ns_add_u32 s63, s63, {WE}")
            e(f"buffer_load_dwordx4 {vr(XEF,4)}, v7, s[48:51], s6 offen sc1"); vm.issue("xe")
        side[0].append(f)
        side[2].append(lambda: (e(f"buffer_load_dwordx4 {vr(XEC,4)}, v253, s[48:51], s6 offen offset:16 sc1"), vm.issue("xe")))
        for t in range(4):
            side[(1, 4, 6, 7)[t]].append(lambda t=t: (e(f"buffer_load_dwordx4 {vr(WEF+4*t,4)}, v6, s[48:51], s63 offen offset:{512*t} sc1"), vm.issue("xe")))
    if i == 18:
        side[1].append(g2_bases)
        side[3].append(lambda: e("v_bfe_u32 v3, v0, 4, 1\nv_lshlrev_b32 v3, 10, v3\nv_lshrrev_b32 v4, 5, v0\nv_lshl_add_u32 v3, v4, 8, v3"))
        side[5].append(lambda: e("v_and_b32 v4, 15, v0\nv_lshl_add_u32 v255, v4, 4, v3\nv_mov_b32 v2, 0"))
    if i == 19:
        side[0].append(lambda: e(f"s_lshr_b32 s6, s3, 1\ns_lshl_b32 s7, s8, 1\ns_add_u32 s6, s6, s7\ns_mul_i32 s44, s6, 221184"))
        side[1].append(lambda: e(f"s_and_b32 s7, s3, 1\ns_lshl_b32 s7, s7, 11\ns_add_u32 s44, s44, s7\ns_add_u32 s44, s44, {HF}"))
        side[2].append(lambda: e(f"s_mul_i32 s45, s6, {FS_}\ns_add_u32 s45, s45, {FL_H}"))
        side[3].append(lambda: e(f"s_lshl_b32 s6, s9, 14\ns_add_u32 s44, s44, s6\ns_cmp_eq_u32 s9, 13\ns_cselect_b32 s43, {OOB}, s44"))
        side[7].append(signal)
    for n in range(8):
        kh, t = divmod(n, 4)
        need = [("w", i, n), ("w", i, n+1)] if n % 2 == 0 else []
        if t == 0: need += [("xr", c, 2*k2+kh)]
        if need: lg.wait(need)
        a_ = ACC + 16*t
        e(f"v_mfma_f32_32x32x16_bf16 {vr(a_,16)}, {vr(WB+4*n,4)}, {vr(XR+(c%2)*16+4*(2*k2+kh),4)}, {vr(a_,16) if (i or kh) else 0}")
        for f in side[n]: f()
    if k2 == 0 and c + 1 <= 9: chk_eval()
vm.wait("xe")
for t in range(4): e(f"v_mfma_f32_32x32x16_bf16 {vr(ACC+16*t,16)}, {vr(WEF+4*t,4)}, {vr(XEF,4)}, {vr(ACC+16*t,16)}")
e("v_mov_b32 v7, 1")
stG("g1")
TQ, TE, TO = 224, 232, 240
def h_flag(k):
    vm.wait(("hst", k))
    e(f"s_mov_b64 exec, 1\nbuffer_atomic_add v7, v2, s[48:51], s45 offen offset:{4*k} sc1\ns_mov_b64 exec, -1")
for tp in range(4):
    e(f"s_add_u32 s6, s{44 if tp < 2 else 43}, {4096*tp}")
    for mt in (0, 1):
        st = XEC
        P = range(4)
        acc = lambda q: ACC + 16*tp + 8*mt + 2*q
        for q in P: e(f"v_pk_mul_f32 {vr(TQ+2*q,2)}, {vr(acc(q),2)}, {vr(acc(q),2)}")
        for q in P: e(f"v_pk_fma_f32 {vr(TQ+2*q,2)}, {vr(st,2)}, {vr(TQ+2*q,2)}, {vr(st,2)} op_sel:[0,0,1] op_sel_hi:[0,1,1]")
        for q in P: e(f"v_pk_mul_f32 {vr(TQ+2*q,2)}, {vr(TQ+2*q,2)}, {vr(acc(q),2)}")
        for q in range(8): e(f"v_exp_f32 v{TE+q}, v{TQ+q}")
        for q in P: e(f"v_pk_fma_f32 {vr(TE+2*q,2)}, {vr(st+2,2)}, {vr(TE+2*q,2)}, {vr(st+2,2)} op_sel_hi:[0,1,0]")
        for q in range(8): e(f"v_rcp_f32 v{TE+q}, v{TE+q}")
        for q in P: e(f"v_pk_mul_f32 {vr(TE+2*q,2)}, {vr(TE+2*q,2)}, {vr(acc(q),2)}")
        o = TO + 4*mt
        for q in P: e(f"v_cvt_pk_bf16_f32 v{o+q}, v{TE+2*q}, v{TE+2*q+1}")
        e(f"buffer_store_dwordx4 {vr(o,4)}, v255, s[48:51], s6 offen offset:{512*mt} sc1"); vm.issue(("hst", tp))
stG("ep")
signal()
def g2_setup():
    for ml in range(4):
        e(f"s_xor_b32 s6, s3, {ml}\ns_lshl_b32 s6, s6, 10\nv_add_u32 v{3+ml}, s6, v1")
    e(f"s_mul_i32 s6, s13, {FS_}\ns_add_u32 s6, s6, {FL_H}\ns_add_u32 s40, s48, s6\ns_addc_u32 s41, s49, 0")
    e(f"v_mov_b32 v254, {REL}\nv_lshrrev_b32 v8, 4, v0\nv_lshlrev_b32 v8, 3, v8\ns_mul_i32 s8, s14, 160")
HPL = "s_load_dwordx4 s[16:19], s[40:41], 0 glc"
g2_setup()
if not EW: kappa_tab()
vm.wait(("hst", 3))
e(f"s_mov_b64 exec, 1\nbuffer_atomic_add v7, v2, s[48:51], s45 offen sc1\ns_mov_b64 exec, -1")
stG("at")
if OPT.get("self", "1") == "1":
    for tp in range(4):
        e(f"s_add_u32 s6, s{44 if tp < 2 else 43}, {4096*tp}")
        for mt in (0, 1): e(f"buffer_load_dwordx4 {vr(192+8*tp+4*mt,4)}, v1, s[48:51], s6 offen offset:{1024*mt} sc1")
stG("hp")
vm.clear(); lg.clear()
e("L_G2:")
CHKR[0] = 26
A2, HR = 112, 192
e(f"s_setprio {OPT.get('g2prio', '0')}")
e("v_mov_b32 v2, v254")
if not EW: wait_lds(7, 2, "2")
for dt in range(5):
    e(f"buffer_load_dwordx2 {vr(122+2*dt,2)}, v8, s[64:67], s8 offen offset:{32*dt}"); vm.issue("b2")
for k in range([0, 2, 5][EW], 5):
    for op in w2_ops(k): op()
stG("pp")
spoll(40, [0], 28, OPT.get("hsleep", "2")); lg.clear()
stG("hs")
def h_ops(i):
    ops = []
    for ml in range(4):
        def hl(ml=ml):
            if ml == 0: e(f"s_lshl2_add_u32 s6, s{sK[i]}, s11")
            e(f"buffer_load_dwordx4 {vr(HR+(i%4)*16+ml*4,4)}, v{3+ml}, s[48:51], s6 offen sc1"); vm.issue(("h", i))
        ops.append(hl)
    return ops
for op in h_ops(0) + h_ops(1) + h_ops(2) + h_ops(3): op()
FXO, FLA, FX, FS, VSO, VPF = 92, 95, 32, 12, 98, 104
STL = []
for i in range(3):
    if i == 2: STL.append("s_mov_b32 exec_hi, 0")
    STL.append(f"buffer_load_dwordx4 {vr(FS+4*i,4)}, v{VSO}, s[48:51], s{44 if i == 0 else 6} offen sc1")
    if i < 2: STL.append(f"s_add_u32 s6, s44, {32*4096*(i+1)}")
STL.append("s_mov_b64 exec, -1")
RED = 99
for i in range(14):
    vm.wait([("w2", i), ("h", i)])
    lg.wait(("pf", i))
    if i == 7: signal()
    stG(f"b{i}")
    side = {n: [] for n in range(20)}
    def spread(lines, n0, step=1):
        for k, l in enumerate(lines): side[min(19, n0 + k*step)].append(lambda l=l: e(l))
    j = i + 4
    if i >= 1 and j < 8:
        if i == 1: side[0].append(lambda: (e("ds_read_b32 v12, v2\ns_mul_i32 s6, s3, 15360\nv_add_u32 v13, s6, v1\ns_waitcnt lgkmcnt(0)"), spin_lds(12, 2, "3"), e("v_mov_b32 v2, v13"), lg.clear()))
        for dt in range(5):
            side[1+dt].append(lambda dt=dt, j=j: (e(f"ds_read_b128 {vr(12+(j%5)*20+dt*4,4)}, v2 offset:{(j-5)*5120+dt*1024}"), lg.issue(("pf", j))))
    elif i >= 1 and j < 14:
        for n, op in zip((1, 3, 7, 11, 16), w2_ops(j)): side[n].append(op)
    if i + 4 < 14:
        for ml, op in enumerate(h_ops(i+4)): side[5*ml+4].append(op)
    if i == 10:
        L = [f"v_mov_b32 v2, {REL}", "ds_read_b32 v8, v2",
             f"v_lshrrev_b32 v{VSO}, 1, v0", "v_and_b32 v4, 1, v0", f"v_lshlrev_b32 v{VSO}, 12, v{VSO}", f"v_lshl_add_u32 v{VSO}, v4, 4, v{VSO}",
             "s_mul_i32 s44, s14, 327680\ns_lshl_b32 s7, s13, 7", "s_add_u32 s44, s44, s7\ns_lshl_b32 s7, s3, 5", f"s_add_u32 s44, s44, s7\ns_add_u32 s44, s44, {ST}",
             "s_lshl_b32 s6, s13, 6\ns_lshl_b32 s7, s3, 4", "s_add_u32 s6, s6, s7\ns_mul_i32 s6, s6, 1280", f"s_add_u32 s8, s8, s6\ns_mul_i32 s9, s3, 2560", f"s_add_u32 s9, s9, {SB}\ns_movk_i32 s0, 1280\ns_movk_i32 s1, {SBF}"]
        spread(L, 1)
    if i == 11:
        L = []
        for k in range(3):
            L += [f"v_add_u32 v3, {64*k}, v0\nv_mul_u32_u24 v4, 6554, v3", "v_lshrrev_b32 v4, 16, v4\nv_mul_u32_u24 v5, 10, v4", "v_sub_u32 v3, v3, v5\nv_lshlrev_b32 v3, 4, v3",
                  f"v_mad_u32_u24 v{FXO+k}, v4, s0, v3\nv_mad_u32_u24 v{FLA+k}, v4, s1, v3", f"v_add_u32 v{FLA+k}, s9, v{FLA+k}"]
        spread(L, 1)
    if i == 12:
        L = []
        for ml in (1, 2, 3): L += [f"s_xor_b32 s6, s3, {ml}\ns_mul_i32 s6, s6, 15360", f"s_add_u32 s6, s6, {(ml-1)*5120}\nv_add_u32 v{RED+ml-1}, s6, v1"]
        L += [f"s_mul_i32 s6, s3, 15360\nv_add_u32 v{RED+3}, s6, v1", f"v_and_b32 v3, 15, v0\nv_mul_u32_u24 v3, {SBF}, v3", f"v_lshrrev_b32 v5, 4, v0\nv_lshl_add_u32 v3, v5, 3, v3", f"v_add_u32 v{RED+4}, s9, v3",
              "v_add_u32 v3, s9, v1\nv_lshlrev_b32 v4, 3, v0", "v_add_u32 v4, s9, v4"]
        spread(L, 6)
        side[0].append(chk_read)
        for k in range(3):
            def xl(k=k):
                if k == 2: e("s_mov_b32 exec_hi, 0")
                e(f"buffer_load_dwordx4 {vr(FX+4*k,4)}, v{FXO+k}, s[52:55], s8 offen"); vm.issue("fx")
                if k == 2: e("s_mov_b64 exec, -1")
            side[1+2*k].append(xl)
    order = list(range(20)) if 0 < i < 13 else list(range(5, 20)) + list(range(5))
    if i == 0:
        side = {n: [] for n in range(20)}
        for k in range(10): side[k].append(lambda k=k: e(f"v_lshlrev_b32 v{A2+2*k}, 16, v{122+k}\nv_and_b32 v{A2+2*k+1}, 0xffff0000, v{122+k}"))
        o = h_ops(4)
        e(f"s_lshl2_add_u32 s6, s{sK[4]}, s11")
        for k, ml in zip((4, 9, 14, 19), (1, 2, 3, 0)):
            side[k].append(lambda ml=ml: (e(f"buffer_load_dwordx4 {vr(HR+ml*4,4)}, v{3+ml}, s[48:51], s6 offen sc1"), vm.issue(("h", 4))))
    if i == 13:
        for k in range(11):
            n_ = order[k]
            side[k+9].append(lambda n_=n_: (e(f"ds_write_b128 v{RED+n_//5-1}, {vr(A2+n_*4,4)} offset:{1024*(n_%5)}"), lg.issue("red")))
    for k, n in enumerate(order):
        ml, dt = divmod(n, 5)
        a = A2 + n*4
        e(f"v_mfma_f32_16x16x32_bf16 {vr(a,4)}, {vr(12+(i%5)*20+dt*4,4)}, {vr(HR+(i%4)*16+ml*4,4)}, {vr(a,4) if (i or ml == 0) else 0}")
        for f in side[k]: f()
    if i == 10:
        e("s_waitcnt lgkmcnt(0)\nv_cmp_gt_u32 s[42:43], 4, v8"); lg.clear()
        for l in STL:
            e(l)
            if l.startswith("buffer"): vm.issue("sT")
    if i == 12: chk_eval()
stG("g2")
for n_ in range(16, 20):
    e(f"ds_write_b128 v{RED+n_//5-1}, {vr(A2+n_*4,4)} offset:{1024*(n_%5)}"); lg.issue("red")
signal(); chk_read()
e("s_cmp_lg_u64 s[42:43], 0")
spin_lds(8, 2, "4", after=STL, pre_cmp=False, branch="s_cbranch_scc1")
vm.wait_all()
for i in range(3):
    if i == 2: e("s_mov_b32 exec_hi, 0")
    e(f"ds_write_b128 v3, {vr(FS+4*i,4)} offset:{1024*i}"); lg.issue("sw")
e("s_mov_b64 exec, -1")
for dt in range(5):
    e(f"ds_read_b64_tr_b16 {vr(44+2*dt,2)}, v4 offset:{512*dt}"); lg.issue("str")
chk_eval()
stG("rd")
RD = 192
for dt in range(5):
    for s_ in range(3):
        e(f"ds_read_b128 {vr(RD+(s_*5+dt)*4,4)}, v{RED+3} offset:{5120*s_+1024*dt}"); lg.issue(("rd", dt))
SU = 132
e("s_mov_b32 s6, 0xffff0000")
lg.wait("str")
for k in range(10): e(f"v_lshlrev_b32 v{SU+2*k}, 16, v{44+k}\nv_and_b32 v{SU+2*k+1}, s6, v{44+k}")
XU = 152
for k in range(12): e(f"v_lshlrev_b32 v{XU+2*k}, 16, v{FX+k}\nv_and_b32 v{XU+2*k+1}, s6, v{FX+k}")
T = 56
for dt in range(5):
    a = A2 + dt*4
    lg.wait(("rd", dt))
    for k in (0, 1):
        e(f"v_pk_add_f32 {vr(a+2*k,2)}, {vr(a+2*k,2)}, {vr(RD+dt*4+2*k,2)}")
        e(f"v_pk_add_f32 {vr(T+2*k,2)}, {vr(RD+(5+dt)*4+2*k,2)}, {vr(RD+(10+dt)*4+2*k,2)}")
    for k in (0, 1): e(f"v_pk_add_f32 {vr(a+2*k,2)}, {vr(a+2*k,2)}, {vr(T+2*k,2)}")
E_ = 60
for k in range(20): e(f"v_mul_f32 v{E_+k}, {f32(-1.4426950408889634)}, v{A2+k}")
for k in range(20): e(f"v_exp_f32 v{E_+k}, v{E_+k}")
for k in range(10): e(f"v_pk_mul_f32 {vr(A2+2*k,2)}, {vr(A2+2*k,2)}, {vr(SU+2*k,2)}")
for k in range(10): e(f"v_pk_add_f32 {vr(E_+2*k,2)}, {vr(E_+2*k,2)}, 1.0 op_sel_hi:[1,0]")
for k in range(20): e(f"v_rcp_f32 v{E_+k}, v{E_+k}")
for dt in range(5):
    for k in (0, 1): e(f"v_pk_mul_f32 {vr(A2+4*dt+2*k,2)}, {vr(A2+4*dt+2*k,2)}, {vr(E_+4*dt+2*k,2)}")
    for k in (0, 1): e(f"v_cvt_pk_bf16_f32 v{44+2*dt+k}, v{A2+4*dt+2*k}, v{A2+4*dt+2*k+1}")
    e(f"ds_write_b64 v{RED+4}, {vr(44+2*dt,2)} offset:{32*dt}"); lg.issue("pw")
for k in range(3):
    e(f"ds_read_b64 {vr(RD+4*k,2)}, v{FLA+k}\nds_read_b64 {vr(RD+4*k+2,2)}, v{FLA+k} offset:8"); lg.issue(("pr", k)); lg.issue(("pr", k))
for k in range(3):
    lg.wait(("pr", k))
    for q in range(4):
        e(f"v_lshlrev_b32 v{T+2*q}, 16, v{RD+4*k+q}\nv_and_b32 v{T+1+2*q}, s6, v{RD+4*k+q}")
    for q in range(4): e(f"v_pk_add_f32 {vr(T+2*q,2)}, {vr(T+2*q,2)}, {vr(XU+8*k+2*q,2)}")
    for q in range(4): e(f"v_cvt_pk_bf16_f32 v{RD+16+4*k+q}, v{T+2*q}, v{T+2*q+1}")
    if k == 2: e("s_mov_b32 exec_hi, 0")
    e(f"buffer_store_dwordx4 {vr(RD+16+4*k,4)}, v{FXO+k}, s[68:71], s8 offen{OSP}")
stG("end")
stG.flush(60, 61, (0, 1, 8))
e("s_endpgm")

e("L_IDLE:")
e("v_lshrrev_b32 v1, 3, v0\ns_mul_i32 s6, s3, 160\nv_add_u32 v2, s6, v1\nv_mul_u32_u24 v2, 3456, v2\nv_and_b32 v3, 7, v0\nv_lshl_add_u32 v2, v3, 4, v2")
e("v_lshlrev_b32 v4, 8, v1\nv_lshl_add_u32 v4, v3, 5, v4\ns_lshl_b32 s6, s3, 11\nv_add_u32 v4, s6, v4")
e("s_waitcnt lgkmcnt(0)")
e("s_lshl3_add_u32 s47, s5, s4")
e(f"s_lshl_b32 s9, s47, 7\ns_cmp_ge_u32 s47, 27\ns_cselect_b32 s9, {OOB}, s9")
vm.clear()
g_params()
e("s_barrier")
srd(56, 32, 2211840)
e("s_mov_b32 s0, s9")
for i in range(20):
    e(f"buffer_load_dwordx4 {vr(12+4*i,4)}, v2, s[56:59], s0 offen"); vm.issue("cw")
    if i < 19: e(f"s_add_u32 s0, s0, {8*3456}")
srd(56, 34, 3456)
e("v_lshlrev_b32 v5, 1, v0\nbuffer_load_ushort v7, v5, s[56:59], s9 offen"); vm.issue("cw")
srd(52, 16, 2621440); g_srds()
kappa_tab()
helper()
e("s_waitcnt vmcnt(0)\ns_mov_b32 s6, 0xffff0000")
for i in range(20):
    for k in range(4):
        r = 12 + 4*i + k
        if i == 0: e(f"v_lshlrev_b32 v{100+2*k}, 16, v{r}\nv_and_b32 v{101+2*k}, s6, v{r}")
        else: e(f"v_lshlrev_b32 v{92+2*k}, 16, v{r}\nv_and_b32 v{93+2*k}, s6, v{r}")
    if i:
        for k in range(4): e(f"v_pk_add_f32 {vr(100+2*k,2)}, {vr(100+2*k,2)}, {vr(92+2*k,2)}")
e("ds_write_b128 v4, v[100:103]\nds_write_b128 v4, v[104:107] offset:16")
gcommon()
e("s_cmp_eq_u32 s3, 0\ns_cselect_b32 s6, 1, 12\nv_mov_b32 v11, s6\nds_write_b32 v9, v11")
e("s_cbranch_scc0 L_ID2")
wait_lds(8, 10, "1")
e("v_lshlrev_b32 v5, 2, v0")
for k in range(32): e(f"ds_read_b32 v{12+k}, v5 offset:{256*k}")
e("s_waitcnt lgkmcnt(0)")
for st_ in (16, 8, 4, 2, 1):
    for k in range(st_): e(f"v_add_f32 v{12+k}, v{12+k}, v{12+k+st_}")
e("v_mov_b32 v11, 12\nds_write_b32 v9, v11")
e("v_cvt_pk_bf16_f32 v17, v12, v12\nv_lshl_or_b32 v16, v7, 16, v7\nv_and_b32 v13, 0xffff0000, v17\nv_sub_f32 v13, v12, v13\nv_mov_b32 v19, 0\nv_cvt_pk_bf16_f32 v18, v13, v19")
e(f"v_lshlrev_b32 v5, 4, v0\ns_lshl_b32 s6, s47, 10\ns_add_u32 s6, s6, {WE}\ns_cmp_ge_u32 s47, 27\ns_cselect_b32 s6, {OOB}, s6")
e("buffer_store_dwordx4 v[16:19], v5, s[48:51], s6 offen sc1")
e(f"v_mov_b32 v2, {REL}")
wait_lds(8, 2, "1", sleep=True)
e(f"s_lshr_b32 s6, s47, 1\ns_mul_i32 s6, s6, {FS_}\ns_add_u32 s6, s6, {FL_E}\ns_cmp_ge_u32 s47, 27\ns_cselect_b32 s6, {OOB}, s6")
e("s_cmp_eq_u32 s47, 26\ns_cselect_b32 s7, 2, 1\nv_mov_b32 v5, s7\ns_waitcnt vmcnt(0)\ns_mov_b64 exec, 1")
e("buffer_atomic_add v5, v19, s[48:51], s6 offen sc1\ns_mov_b64 exec, -1")
e("L_ID2:")
g2_bases()
g2_setup()
wait_lds(12, 254, "2", sleep=True)
if OPT.get("warm", "0") == "1":
    e(f"s_and_b32 s6, s4, 1\ns_lshl2_add_u32 s6, s6, s5\ns_mul_i32 s6, s6, 276480\ns_mul_i32 s7, s3, 69120\ns_add_u32 s6, s6, s7\ns_add_u32 s6, s6, {W2F}\ns_mov_b32 s63, 17")
    e("L_WARM:")
    for k in range(4): e(f"buffer_load_dwordx4 {vr(192+4*k,4)}, v1, s[48:51], s6 offen offset:{1024*k} sc1")
    e(f"s_add_u32 s6, s6, 4096\ns_sub_u32 s63, s63, 1\ns_cmp_lg_u32 s63, 0\ns_cbranch_scc1 L_WARM")
for k in range([0, 2, 5][EW]):
    for op in w2_ops(k): op()
e("s_waitcnt vmcnt(0)")
if STAMPS:
    for r in _stG.regs[:4]: e(f"{MT} s[{r}:{r+1}]")
e("s_branch L_G2")

e("L_AUX:")
if OPT.get("cpf", "0") == "1":
    e("s_getpc_b64 s[96:97]")
    e("L_PC:")
    e(f"s_sub_u32 s96, s96, L_PC-{NAME}_kernel\ns_subb_u32 s97, s97, 0")
    e("s_and_b32 s6, s5, 7\ns_lshl_b32 s6, s6, 6\nv_add_u32 v1, s6, v0\nv_lshlrev_b32 v1, 7, v1")
    e(f"v_min_u32 v1, L_LAST-{NAME}_kernel, v1")
    e("s_cmp_lg_u32 s3, 6\ns_cbranch_scc1 L_PC2")
    e("global_load_dword v255, v1, s[96:97]")
    e("L_PC2:")
_stC = Stamper([76,78,80,82,84,86,88,90,92,94])
CSEL = OPT.get("cst", "ka,x,ln,kg,ex,u,cs,cd,st,pub").split(",")
class _C:
    def __call__(self, name):
        if name in CSEL:
            _stC.n = CSEL.index(name); _stC()
    def flush(self, *a):
        _stC.n = 10; _stC.flush(*a)
stC = _C()
zero_cnt(CNT2)
e("s_sub_u32 s13, s3, 4")
e("s_lshl_b32 s14, s4, 5\ns_add_u32 s14, s14, s5")
e("s_mul_i32 s15, s14, 10240")
e("v_lshrrev_b32 v1, 5, v0\ns_lshl_b32 s6, s13, 1\nv_add_u32 v1, s6, v1\nv_and_b32 v2, 31, v0")
e("v_mul_u32_u24 v3, 1280, v1\nv_lshl_add_u32 v3, v2, 3, v3")
chan_id(13)
e("s_lshl_b32 s10, s8, 8\ns_lshl_b32 s11, s8, 1\nv_lshlrev_b32 v12, 2, v0")
e(f"s_mul_i32 s9, s13, {CHSZ}\ns_add_u32 s9, s9, {CH0}")
e(f"v_mov_b32 v14, 0\nv_mov_b32 v15, {REL}\nds_write_b32 v15, v14")
for i in range(5):
    e(f"v_add_u32 v4, {64*i}, v0\nv_mul_u32_u24 v5, 3277, v4\nv_lshrrev_b32 v5, 16, v5")
    e("v_mul_u32_u24 v6, 20, v5\nv_sub_u32 v6, v4, v6\nv_lshlrev_b32 v6, 4, v6")
    e(f"s_movk_i32 s6, 1280\nv_mad_u32_u24 v{64+i}, v5, s6, v6\ns_movk_i32 s6, {SBW}\nv_mad_u32_u24 v{69+i}, v5, s6, v6\nv_add_u32 v{69+i}, {SB}, v{69+i}")
e("s_waitcnt lgkmcnt(0)")
stC("ka")
XS = 20
def x_rows():
    srd(52, 16, 2621440)
    for i in range(5): e(f"buffer_load_dwordx2 {vr(XS+2*i,2)}, v3, s[52:55], s15 offen offset:{256*i}{ntx}")
KFIRST = OPT.get("kfirst", "0") == "1"
def near_half():
    LAM, CC, YC, FY, FA, KT, TM = 84, 88, 80, 128, 160, [112, 116], 64
    EV = {2.0: 192, 32.0: 196, 1.0: 200, 2048.0: 204}
    e("v_and_b32 v10, 15, v0\nv_lshrrev_b32 v11, 4, v0")
    e(f"v_lshlrev_b32 v12, 3, v0\ns_add_u32 s6, s9, {TAB}\nv_add_u32 v12, s6, v12")
    e(f"v_mul_u32_u24 v14, {TPI}, v10\nv_lshl_add_u32 v14, v11, 4, v14\nv_add_u32 v14, s6, v14")
    e(f"v_mov_b32 v{YC}, 1.0\nv_mov_b32 v{YC+1}, 1.0\nv_mov_b32 v{YC+2}, 0\nv_mov_b32 v{YC+3}, 0")
    e(f"s_add_u32 s10, s9, {TBOFF}")
    e("v_lshlrev_b32 v92, 2, v10\nv_lshl_add_u32 v92, v11, 8, v92\nv_add_u32 v92, s10, v92")
    e("v_lshlrev_b32 v93, 1, v10\nv_lshl_add_u32 v93, v11, 7, v93\nv_add_u32 v93, s10, v93")
    e(f"v_subrev_u32 v15, {CNT2-CNT}, v9")
    e("s_waitcnt vmcnt(5)")
    stC("par")
    k_setup_pk(4, LAM, CC, EV, [2.0, 32.0, 1.0, 2048.0], 2.0, (1.0, 2048.0), TM)
    stC("k0")
    L2 = e.lab("NY")
    e(f"s_mov_b32 s10, 4\nv_mov_b32 v13, v12\n{L2}:")
    chain_pk([(YC, EV[2.0], 0), (CC, EV[32.0], 16)], 4, 0, 13, TM)
    e(f"v_add_u32 v13, {4*TPI}, v13\ns_sub_u32 s10, s10, 1\ns_cmp_lg_u32 s10, 0\ns_cbranch_scc1 {L2}")
    stC("k1")
    e("s_waitcnt lgkmcnt(0)")
    frag_reads(FY, 14, 0); frag_reads(FA, 14, 16)
    e(f"v_cvt_pk_bf16_f32 v76, v{EV[2048.0]}, v{EV[2048.0]+2}\nv_cvt_pk_bf16_f32 v77, v{EV[2048.0]+1}, v{EV[2048.0]+3}")
    k_mfma(KT[0], FA, FY)
    e(f"ds_write_b64 v12, v[76:77] offset:{24*TPI}")
    chain_pk([(EV[1.0], EV[32.0], 0)], 8, 16, 12, TM)
    e("s_waitcnt lgkmcnt(0)")
    frag_reads(FA, 14, 16)
    k_mfma(KT[1], FA, FY)
    for r in range(4): e(f"v_cvt_pk_bf16_f32 v{TM+r}, v{KT[0]+r}, v{KT[1]+r}")
    e("s_mov_b32 exec_hi, 0")
    for r in range(4): e(f"ds_write_b32 v92, v{TM+r} offset:{64*r}")
    e("s_mov_b32 exec_lo, 0\ns_mov_b32 exec_hi, -1")
    for r in range(4): e(f"ds_write_b16 v93, v{TM+r} offset:{256+32*r}")
    e("s_mov_b32 exec_hi, 1")
    e(f"ds_write_b16_d16_hi v93, v{TM} offset:{1280-256}")
    e("s_mov_b64 exec, -1")
e("s_cmp_eq_u32 s3, 7\ns_cbranch_scc1 L_A7")
if not KFIRST: x_rows()
param_loads(4, 12, 14, 10, 11, (56, 60, 64, 68))
srd(60, 28, 1280); e("buffer_load_ushort v19, v14, s[60:63], s11 offen")
if KFIRST: x_rows()
e("s_barrier")
srd(48, 44, WS_SIZE); srd(72, 42, 256)
if KFIRST:
    e("s_cmp_ge_u32 s8, 640\ns_cbranch_scc1 L_A0")
    near_half()
    e("L_A0:")
    e("s_waitcnt vmcnt(0)")
else: e("s_waitcnt vmcnt(6)")
e("s_branch L_LN")
e("L_A7:")
srd(48, 44, WS_SIZE); srd(72, 42, 256)
e("s_cmp_lg_u32 s2, 0\ns_cbranch_scc1 L_A1")
e(f"v_mul_u32_u24 v4, {FS_}, v0")
for r in range(32, 36): e(f"v_mov_b32 v{r}, 0")
for i in range(2):
    e(f"s_mov_b32 s6, {FLB+64*FS_*i}")
    e("buffer_store_dwordx4 v[32:35], v4, s[48:51], s6 offen sc1")
e("s_barrier")
e("s_waitcnt vmcnt(0)")
e("v_mov_b32 v32, 1\ns_mov_b64 exec, 1")
e("buffer_store_dword v32, v14, s[72:75], 0 offen sc1")
e("s_mov_b64 exec, -1")
x_rows()
e("s_branch L_A2")
e("L_A1:")
x_rows()
e("s_barrier")
e("L_A2:")
srd(56, 36, 2211840)
e(f"s_lshr_b32 s6, s2, 2\ns_mul_i32 s10, s6, 40960\ns_and_b32 s7, s2, 3\ns_mul_i32 s11, s7, 320\ns_add_u32 s10, s10, s11\ns_add_u32 s11, s10, 20480")
e("s_waitcnt vmcnt(0)")
e("L_LN:")
if NOAUX == "1": e("s_endpgm")
stC("x")
e(f"v_mul_u32_u24 v16, {SBP}, v1\nv_lshl_add_u32 v16, v2, 3, v16\nv_add_u32 v16, {SB}, v16")
e(f"v_lshlrev_b32 v17, 5, v1\nv_add_u32 v17, {SST}, v17")
XF = 32
for k in range(10): e(f"v_lshlrev_b32 v{XF+2*k}, 16, v{XS+k}\nv_and_b32 v{XF+2*k+1}, 0xffff0000, v{XS+k}")
e(f"v_add_f32 v52, v{XF}, v{XF+1}\nv_mul_f32 v54, v{XF}, v{XF}\nv_add_f32 v53, v{XF+2}, v{XF+3}\nv_mul_f32 v55, v{XF+1}, v{XF+1}")
e(f"v_fmac_f32 v54, v{XF+2}, v{XF+2}\nv_fmac_f32 v55, v{XF+3}, v{XF+3}")
for k in range(4, 20): e(f"v_add_f32 v{52+(k&1)}, v{52+(k&1)}, v{XF+k}\nv_fmac_f32 v{54+(k&1)}, v{XF+k}, v{XF+k}")
e("v_add_f32 v52, v52, v53\nv_add_f32 v54, v54, v55")
for m in ("quad_perm:[1,0,3,2]", "quad_perm:[2,3,0,1]", "row_half_mirror", "row_mirror"):
    e(f"v_add_f32_dpp v52, v52, v52 {m} row_mask:0xf bank_mask:0xf")
    e(f"v_add_f32_dpp v54, v54, v54 {m} row_mask:0xf bank_mask:0xf")
e("ds_swizzle_b32 v53, v52 offset:0x401F\nds_swizzle_b32 v55, v54 offset:0x401F\ns_waitcnt lgkmcnt(0)")
e("v_add_f32 v52, v52, v53\nv_add_f32 v54, v54, v55")
e(f"v_mul_f32 v52, {f32(1/640)}, v52\nv_mul_f32 v54, {f32(1/640)}, v54")
e("v_fma_f32 v54, -v52, v52, v54\nv_max_f32 v54, 0, v54")
def std_bf16(dst, var):
    rb(dst, var); e(f"v_add_f32 v{dst}, {f32(1e-5)}, v{dst}"); rb(dst, dst); e(f"v_sqrt_f32 v{dst}, v{dst}"); rb(dst, dst)
rb(56, 52); std_bf16(57, 54)
e("v_rcp_f32 v58, v57")
for k in range(20): e(f"v_sub_f32 v{XF+k}, v{XF+k}, v56")
for k in range(10): e(f"v_cvt_pk_bf16_f32 v{XS+k}, v{XF+2*k}, v{XF+2*k+1}")
for k in range(10): e(f"v_lshlrev_b32 v{XF+2*k}, 16, v{XS+k}\nv_and_b32 v{XF+2*k+1}, 0xffff0000, v{XS+k}")
for k in range(20): e(f"v_mul_f32 v{XF+k}, v{XF+k}, v58")
for k in range(10):
    e(f"v_cvt_pk_bf16_f32 v{XS+k}, v{XF+2*k}, v{XF+2*k+1}")
    if k & 1: e(f"ds_write_b64 v16, {vr(XS+k-1,2)} offset:{128*(k-1)}")
e("v_sub_f32 v59, v52, v56\nv_mul_f32 v59, v59, v58\nv_mul_f32 v60, v54, v58\nv_mul_f32 v60, v60, v58")
rb(59, 59); std_bf16(61, 60)
C0 = -2*0.7978845608028654*1.4426950408889634
e("v_mul_f32 v46, v57, v61\nv_fma_f32 v63, -v59, v57, -v56\nv_rcp_f32 v62, v46\nv_mov_b32 v43, 0\nv_mov_b32 v47, 0")
rb(32, 46); rb(33, 63)
e("v_sub_f32 v32, v46, v32\nv_sub_f32 v33, v63, v33\nv_mul_f32 v44, v62, v62")
e("v_cvt_pk_bf16_f32 v40, v46, v32\nv_cvt_pk_bf16_f32 v41, v63, v33\nv_cvt_pk_bf16_f32 v42, v63, v43")
e(f"v_mul_f32 v45, {f32(C0)}, v62\nv_mul_f32 v44, {f32(0.044715)}, v44\nv_mul_f32 v44, v44, v45")
e("s_mov_b32 s0, 1\ns_mov_b32 s1, 1\ns_mov_b64 exec, s[0:1]")
e("ds_write_b128 v17, v[40:43]\nds_write_b128 v17, v[44:47] offset:16")
e("s_mov_b64 exec, -1")
e("v_mov_b32 v61, 1\nds_write_b32 v9, v61")
stC("ln")
e("s_cmp_eq_u32 s3, 7\ns_cbranch_scc1 L_S")
e("s_cmp_ge_u32 s8, 640\ns_cbranch_scc1 L_END")
if "k" in EXP: e("s_endpgm")

if not KFIRST:
    e("s_waitcnt vmcnt(0)")
    stC("par")
    LAM, CC, YC, FY, FA, KT = 84, 88, 80, 128, 160, [112, 116]
    EV = {2.0: 192, 32.0: 196, 1.0: 200, 2048.0: 204, 8.0: 208, 128.0: 212, 512.0: 216, 516.0: 220}
    if HELP: k_setup(4, LAM, CC, EV, [2.0, 32.0, 1.0, 2048.0], (2.0,), (1.0, 2048.0), 64)
    else: k_setup(4, LAM, CC, EV, list(EV), (2.0, 8.0), (1.0, 2048.0, 512.0, 516.0), 20)
    e("v_and_b32 v10, 15, v0\nv_lshrrev_b32 v11, 4, v0")
    e(f"v_lshlrev_b32 v12, 3, v0\ns_add_u32 s6, s9, {TAB}\nv_add_u32 v12, s6, v12")
    e(f"v_mul_u32_u24 v14, {TPI}, v10\nv_lshl_add_u32 v14, v11, 4, v14\nv_add_u32 v14, s6, v14")
    y_init(YC)
    stC("k0")
    chain_loop([(YC, EV[2.0], 0), (CC, EV[32.0], 16)], 16, 0, 12, 13, 64, 10)
    stC("k1")
    e("s_waitcnt lgkmcnt(0)")
    frag_reads(FY, 14, 0); frag_reads(FA, 14, 16)
    e(f"v_cvt_pk_bf16_f32 v76, v{EV[2048.0]}, v{EV[2048.0]+1}\nv_cvt_pk_bf16_f32 v77, v{EV[2048.0]+2}, v{EV[2048.0]+3}")
    k_mfma(KT[0], FA, FY)
    e(f"ds_write_b64 v12, v[76:77] offset:{24*TPI}")
    chain_loop([(EV[1.0], EV[32.0], 0)], 8, 16, 12, 13, 64, 10)
    e("s_waitcnt lgkmcnt(0)")
    frag_reads(FA, 14, 16)
    e(f"s_add_u32 s10, s9, {TBOFF}")
    e("v_lshlrev_b32 v20, 2, v10\nv_lshl_add_u32 v20, v11, 8, v20\nv_add_u32 v20, s10, v20")
    e("v_lshlrev_b32 v21, 1, v10\nv_lshl_add_u32 v21, v11, 7, v21\nv_add_u32 v21, s10, v21")
    e(f"v_subrev_u32 v15, {CNT2-CNT}, v9")
    if not HELP: y_init(YC)
    k_mfma(KT[1], FA, FY)
    if not HELP:
        chain_loop([(YC, EV[8.0], 0), (EV[512.0], EV[128.0], 16), (EV[516.0], EV[128.0], 28)][:2], 12, 0, 12, 13, 64, 10)
        chain_loop([(YC, EV[8.0], 0), (EV[516.0], EV[128.0], 16)], 4, 12, 12, 13, 64, 10)
        e("s_waitcnt lgkmcnt(0)")
        frag_reads(FY, 14, 0); frag_reads(FA, 14, 16)
        e(f"s_add_u32 s10, s9, {TBOFF}")
        e("v_lshlrev_b32 v22, 2, v10\nv_lshrrev_b32 v23, 1, v11\nv_lshl_add_u32 v22, v23, 1, v22\nv_add_u32 v22, s10, v22")
        k_mfma(120, FA, FY)
        for r in range(4): e(f"v_cvt_pk_bf16_f32 v{32+r}, v{120+r}, v{120+r}")
        e("s_mov_b32 exec_lo, 0xffff\ns_mov_b32 exec_hi, 0xffff0000")
        for r in range(4): e(f"ds_write_b16 v22, v{32+r} offset:{768+64*r}")
        e("s_mov_b32 exec_lo, 0xffff0000\ns_mov_b32 exec_hi, 0xffff")
        for r in range(4): e(f"ds_write_b16 v21, v{32+r} offset:{896+32*r}")
        e("s_mov_b64 exec, -1")
    for r in range(4): e(f"v_cvt_pk_bf16_f32 v{24+r}, v{KT[0]+r}, v{KT[1]+r}")
    e("s_mov_b32 exec_hi, 0")
    for r in range(4): e(f"ds_write_b32 v20, v{24+r} offset:{64*r}")
    e("s_mov_b32 exec_lo, 0\ns_mov_b32 exec_hi, -1")
    for r in range(4): e(f"ds_write_b16 v21, v{24+r} offset:{256+32*r}")
    e("s_mov_b32 exec_hi, 1")
    e(f"ds_write_b16_d16_hi v21, v24 offset:{1280-256}")
    e("s_mov_b64 exec, -1")
wait_lds(17, 15, OPT.get("expat", "11"), sleep=True)
stC("kg")
if "e" in EXP: e("s_endpgm")
UR = 128
UL = e

e("v_lshlrev_b32 v24, 1, v0\nv_sub_u32 v22, 2047, v24\nv_sub_u32 v23, 2046, v24")
e("v_cvt_f32_i32 v22, v22\nv_cvt_f32_i32 v23, v23")
e(f"v_lshlrev_b32 v21, 2, v0\ns_add_u32 s6, s9, {KOFF-12}\nv_add_u32 v21, s6, v21")
e(f"s_add_u32 s6, s9, {TBOFF}\ns_sub_u32 s7, s6, {2*(0x4300-128)}\nv_mov_b32 v26, s7")
e(f"v_mov_b32 v30, {f32(-128.0)}")
e("v_lshlrev_b32 v27, 1, v24\nv_sub_u32 v27, s6, v27\nv_mov_b32 v28, 0")
def exp_rounds(n, lin=False):
    for k in range(n):
        t = 32 + 4*k
        if lin and k == n-1:
            e(f"ds_read_u16 v{t+1}, v27 offset:254\nds_read_u16 v{t+2}, v27 offset:252")
            continue
        e(f"v_cvt_pk_bf16_f32 v{t}, v22, v23")
        e("v_add_f32 v22, v22, v30\nv_add_f32 v23, v23, v30")
        e(f"v_mad_u32_u16 v{t+1}, v{t}, 2, v26")
        e(f"v_mad_u32_u16 v{t+2}, v{t}, 2, v26 op_sel:[1,0,0,0]")
        e(f"ds_read_u16 v{t+1}, v{t+1}\nds_read_u16 v{t+2}, v{t+2}")
    for k in range(n):
        t = 32 + 4*k
        e(f"s_waitcnt lgkmcnt({min(15, 2*(n-1-k) + 4*k)})")
        e(f"v_lshl_or_b32 v{t}, v{t+2}, 16, v{t+1}")
        for c in range(4): e(f"ds_write_b32 v21, v{t} offset:{c*(KCP+4) + 256*k}")
e("s_mov_b32 s10, 3")
e("L_EXP:")
exp_rounds(4)
e("v_add_u32 v21, 1024, v21")
e("s_sub_u32 s10, s10, 1\ns_cmp_lg_u32 s10, 0\ns_waitcnt lgkmcnt(0)\ns_cbranch_scc1 L_EXP")
exp_rounds(4, lin=True)
e("s_mov_b64 exec, 0x7fff")
for c in range(4): e(f"ds_write_b32 v21, v28 offset:{c*(KCP+4) + 1024}")
e("s_mov_b64 exec, -1")
e("v_mov_b32 v28, 2\nds_write_b32 v9, v28")
stC("ex")
e(f"s_mul_i32 s11, s13, {USZ}\ns_add_u32 s11, s11, {UB0}")
e(f"v_mov_b32 v18, {CNT2+192}")
stC("u")
e("v_lshrrev_b32 v12, 1, v10\nv_lshlrev_b32 v12, 6, v12\nv_lshl_add_u32 v12, v11, 4, v12")
e(f"v_and_b32 v13, 1, v10\nv_xor_b32 v13, 1, v13\nv_mul_u32_u24 v13, {U1OFF}, v13\nv_add_u32 v12, v12, v13")
e(f"s_add_u32 s6, s11, 448\nv_add_u32 v12, s6, v12")
e(f"v_and_b32 v13, 3, v10\nv_mul_u32_u24 v13, {KCP}, v13\nv_lshrrev_b32 v14, 2, v10\nv_sub_u32 v14, v11, v14\nv_lshl_add_u32 v13, v14, 4, v13")
e(f"s_add_u32 s6, s9, {KOFF+4080-3584}\nv_add_u32 v13, s6, v13")
CA, BU, BK = 20, [52, 116], [84, 148]
for r in range(CA, CA+32): e(f"v_mov_b32 v{r}, 0")
e("v_lshlrev_b32 v3, 4, v0\nv_add_u32 v3, s11, v3")
wait_lds(17, 18, "3", sleep=True)
for i in range(4):
    e(f"ds_read_b32 v{115+5*i}, v3 offset:{444+1024*i}")
    e(f"ds_read_b128 {vr(136+4*i,4)}, v3 offset:{448+1024*i}")
for i in range(4):
    e(f"s_waitcnt lgkmcnt({6-2*i+i})")
    e(f"v_alignbit_b32 v{152+4*i}, v{136+4*i}, v{115+5*i}, 16")
    for k in (1, 2, 3): e(f"v_alignbit_b32 v{152+4*i+k}, v{136+4*i+k}, v{136+4*i+k-1}, 16")
    e(f"ds_write_b128 v3, {vr(152+4*i,4)} offset:{U1OFF+448+1024*i}")
e("s_waitcnt lgkmcnt(0)")
def conv_reads(b):
    l = []
    for t in range(8):
        l.append(f"ds_read_b128 {vr(BU[b]+4*t,4)}, v12 offset:{512*t}")
        l.append(f"ds_read_b128 {vr(BK[b]+4*t,4)}, v13 offset:{512*(7-t)}")
    l.append("v_subrev_u32 v12, 64, v12\nv_subrev_u32 v13, 64, v13")
    return l
for l in conv_reads(0): e(l)
if OPT.get("gate", "1") == "1": wait_lds(17, 15, "12", sleep=True)
e(f"s_setprio {OPT.get('cprio', '3')}")
stC("cs")
e("s_mov_b32 s10, 4")
e("L_CV:")
for b in (0, 1):
    e("s_waitcnt lgkmcnt(0)")
    rd = conv_reads(1-b)
    n = 0
    for s_ in range(8):
        for t in range(8 - s_):
            a = CA + 4*(s_+t)
            e(f"v_mfma_f32_16x16x32_bf16 {vr(a,4)}, {vr(BU[b]+4*t,4)}, {vr(BK[b]+4*s_,4)}, {vr(a,4)}")
            if n < len(rd): e(rd[n])
            n += 1
e("s_sub_u32 s10, s10, 1\ns_cmp_lg_u32 s10, 0\ns_cbranch_scc1 L_CV")
stC("cd")
e(f"v_lshlrev_b32 v2, 7, v11\nv_lshl_add_u32 v2, v10, 2, v2\nv_add_u32 v3, s11, v2\ns_add_u32 s6, s9, {KOFF}\nv_add_u32 v2, s6, v2")
e("v_lshlrev_b32 v4, 4, v0\nv_add_u32 v5, s6, v4\nv_lshlrev_b32 v19, 16, v19")
e("s_waitcnt lgkmcnt(0)")
for k in range(16): e(f"ds_read_b32 v{52+k}, v3 offset:{448+512*(k//2)+64*(k%2)}")
e(f"s_lshl_b32 s6, s8, 12\ns_add_u32 s6, s6, {ST}")
for k in range(16):
    if k % 4 == 0: e(f"s_waitcnt lgkmcnt({min(15, 12-k+k)})")
    e(f"v_lshlrev_b32 v{68+2*(k%2)}, 16, v{52+k}\nv_and_b32 v{69+2*(k%2)}, 0xffff0000, v{52+k}")
    e(f"v_fmac_f32 v{CA+2*k}, v{68+2*(k%2)}, v19\nv_fmac_f32 v{CA+2*k+1}, v{69+2*(k%2)}, v19")
    e(f"v_cvt_pk_bf16_f32 v{52+k}, v{CA+2*k}, v{CA+2*k+1}")
    e(f"ds_write_b32 v2, v{52+k} offset:{512*(k//2)+64*(k%2)}")
for i in range(4): e(f"ds_read_b128 {vr(72+4*i,4)}, v5 offset:{1024*i}")
for i in range(4):
    e(f"s_waitcnt lgkmcnt({3-i})")
    e(f"buffer_store_dwordx4 {vr(72+4*i,4)}, v4, s[48:51], s6 offen offset:{1024*i} sc1")
stC("st")
e("s_waitcnt vmcnt(0)")
e(f"s_and_b32 s6, s8, 3\ns_lshl2_add_u32 s6, s4, s6\ns_mul_i32 s6, s6, {FS_}\ns_add_u32 s6, s6, {FL_C}")
e("v_mov_b32 v2, 0\nv_mov_b32 v3, 1\ns_mov_b64 exec, 1")
e("buffer_atomic_add v3, v2, s[48:51], s6 offen sc1")
stC("pub")
stC.flush(4, 5, (4, 9, 7))
e("s_endpgm")

e("L_S:")
stS = Stamper([82,84,86,88,90,92,94,96])
for i in range(10): e(f"buffer_load_dwordx4 {vr(128+4*i,4)}, v{64+i%5}, s[56:59], s{10 + i//5} offen{ntw2}")
e(f"v_lshrrev_b32 v1, 4, v0\nv_lshlrev_b32 v16, 2, v0\nv_add_u32 v16, {CNT2}, v16")
e(f"v_bfe_u32 v13, v0, 2, 2\nv_mul_u32_u24 v13, {SBP}, v13\nv_lshl_add_u32 v13, v1, 5, v13")
e(f"v_and_b32 v2, 3, v0\nv_lshl_add_u32 v13, v2, 3, v13\nv_add_u32 v13, {SB}, v13")
e(f"v_lshlrev_b32 v4, 4, v0\nv_add_u32 v6, {SST}, v4")
e("buffer_load_dword v7, v14, s[72:75], 0 offen sc1")
wait_lds(17, 16, "1")
e("s_mov_b64 exec, 0xffff\nds_read_b128 v[20:23], v6\ns_mov_b64 exec, -1")
for i in range(10):
    e(f"ds_read_b64_tr_b16 {vr(80+4*i,2)}, v13 offset:{128*i}")
    e(f"ds_read_b64_tr_b16 {vr(82+4*i,2)}, v13 offset:{128*i+4*SBP}")
e(f"s_lshl_b32 s6, s14, 8\ns_add_u32 s6, s6, {STATS}")
e("s_waitcnt lgkmcnt(15)\ns_mov_b64 exec, 0xffff")
e("buffer_store_dwordx4 v[20:23], v4, s[48:51], s6 offen sc1")
e("s_mov_b64 exec, -1")
stS()
e(f"v_bfe_u32 v1, v0, 2, 3\nv_lshrrev_b32 v3, 5, v0\nv_lshl_add_u32 v1, v3, 4, v1\nv_mul_u32_u24 v1, {SBW}, v1\nv_lshl_add_u32 v1, v2, 3, v1\nv_add_u32 v1, {SB}, v1")
e(f"s_lshr_b32 s6, s2, 2\ns_mul_i32 s10, s6, 5120\ns_and_b32 s7, s2, 3\ns_mul_i32 s7, s7, {2*276480}\ns_add_u32 s10, s10, s7\ns_add_u32 s10, s10, {W2F}")
e(f"s_cmp_ge_u32 s2, 216\ns_cselect_b32 s10, {OOB}, s10\ns_add_u32 s15, s15, {XNB}")
if "H" in EXP: e(f"s_mov_b32 s10, {OOB}\ns_mov_b32 s15, {OOB}")
def relay(val): e(f"v_mov_b32 v8, {val}\nds_write_b32 v15, v8")
SLP = OPT.get("sleep", "1")
def vpoll(load, chk, target, sl, first=True):
    L = e.lab("AG")
    e(f"s_mov_b32 s12, {SPIN_MAX}")
    if not first: e(f"s_branch {L}_c")
    e(f"{L}:")
    e(load); e("s_waitcnt vmcnt(0)")
    e(f"{L}_c:")
    e(f"v_cmp_gt_u32 vcc, {target}, v{chk}\ns_cbranch_vccz {L}_d\ns_sleep {sl}\ns_sub_u32 s12, s12, 1\ns_cbranch_scc0 {L}")
    e(f"{L}_d:")
def arrive(so): e(f"v_mov_b32 v8, 1\ns_mov_b64 exec, 1\nbuffer_atomic_add v8, v14, s[48:51], {so} offen sc1\ns_mov_b64 exec, -1")
e("s_waitcnt vmcnt(0)")
vpoll("buffer_load_dword v7, v14, s[72:75], 0 offen sc1", 7, 1, 8, first=False)
e(f"s_lshr_b32 s6, s14, 4\ns_mul_i32 s6, s6, {FS_}\ns_add_u32 s6, s6, {FL_T}"); arrive("s6")
e("s_cmp_ge_u32 s5, 4\ns_cbranch_scc1 L_S1"); relay(1); e("L_S1:")
stS()
e("s_waitcnt lgkmcnt(0)")
for i in range(10): e(f"ds_write_b128 v{69+i%5}, {vr(128+4*i,4)} offset:{(i//5)*16*SBW}")
e("s_waitcnt lgkmcnt(0)")
for dt in range(10):
    e(f"ds_read_b64_tr_b16 {vr(128+4*dt,2)}, v1 offset:{32*dt}")
    e(f"ds_read_b64_tr_b16 {vr(130+4*dt,2)}, v1 offset:{32*dt+8*SBW}")
for i in range(10):
    if i in (4, 8): e("s_add_u32 s15, s15, 4096")
    e(f"buffer_store_dwordx4 {vr(80+4*i,4)}, v4, s[48:51], s15 offen offset:{1024*(i%4)} sc1")
e("s_waitcnt lgkmcnt(0)")
for half in (0, 1):
    e(f"s_add_u32 s6, s10, {half*276480}\ns_add_u32 s7, s6, 4096")
    for d5 in range(5):
        r = 128 + (half*5+d5)*4
        if d5 < 4: e(f"buffer_store_dwordx4 {vr(r,4)}, v4, s[48:51], s6 offen offset:{1024*d5} sc1")
        else: e(f"buffer_store_dwordx4 {vr(r,4)}, v4, s[48:51], s7 offen sc1")
e(f"v_add_u32 v18, {CNT-CNT2}, v16\nv_and_b32 v5, 7, v0\nv_mul_u32_u24 v5, {FS_}, v5\nv_add_u32 v5, {FL_A}, v5")
e("s_waitcnt vmcnt(0)")
e(f"s_mul_i32 s6, s4, {FS_}\ns_add_u32 s6, s6, {FL_A}"); arrive("s6")
stS()
e("s_cmp_lt_u32 s5, 4\ns_cbranch_scc1 L_S2")
e(f"s_sub_u32 s6, s5, 4\ns_mul_i32 s7, s6, 37\ns_lshr_b32 s7, s7, 8\ns_mul_i32 s0, s7, 7\ns_sub_u32 s0, s6, s0\ns_lshr_b32 s6, s4, 1\ns_lshl2_add_u32 s6, s6, s7\ns_mul_i32 s6, s6, {FS_}\ns_add_u32 s6, s6, {FL_T}")
e("s_add_u32 s40, s44, s6\ns_addc_u32 s41, s45, 0")
e(f"s_and_b32 s6, s4, 1\ns_mul_i32 s6, s6, 7\ns_add_u32 s6, s6, s0\ns_mul_i32 s6, s6, {FS_}\ns_add_u32 s6, s6, {FL_E}\ns_add_u32 s38, s44, s6\ns_addc_u32 s39, s45, 0")
wait_lds(17, 18, OPT.get("tpollat", "7"), sleep=True)
spoll(40, [0], 16, 4); spoll(38, [0], 2, 4); relay(1)
wait_lds(17, 18, OPT.get("apollat", "8"), sleep=True)
e("s_branch L_S3")
e("L_S2:")
if OPT.get("warm", "0") == "1": spoll(44, [FL_A+FS_*k for k in range(8)], 32, OPT.get("isleep", "12"))
else:
    e(f"v_mov_b32 v16, {CNT2}")
    if "k" not in EXP and "e" not in EXP: wait_lds(17, 16, "2", sleep=True)
e("L_S3:")
stS()
vpoll("buffer_load_dword v7, v5, s[48:51], 0 offen sc1", 7, 32, OPT.get("ssleep", "4")); relay(2)
stS()
g2_ids()
e(f"s_mul_i32 s10, s14, 276480\ns_add_u32 s10, s10, {W2F}")
wait_lds(17, 18, OPT.get("wat", "10"), sleep=True)
if OPT.get("w8", "0") == "1":
    e("s_and_b32 s6, s5, 7\ns_mul_i32 s6, s6, 34560\ns_add_u32 s6, s6, s10")
    for k in range(34):
        e(f"buffer_load_dwordx4 {vr(192+4*(k%16),4)}, v4, s[48:51], s6 offen offset:{1024*(k%4)} sc1")
        if k % 4 == 3: e("s_add_u32 s6, s6, 4096")
e("s_mul_i32 s7, s5, 3\ns_lshl1_add_u32 s8, s5, 16\ns_cmp_lt_u32 s5, 16\ns_cselect_b32 s8, s7, s8\ns_mul_i32 s6, s4, 80\ns_add_u32 s8, s8, s6")
e(f"v_lshrrev_b32 v2, 2, v0\nv_and_b32 v6, 3, v0\nv_mul_u32_u24 v3, 10240, v2\nv_lshl_add_u32 v3, v6, 4, v3")
e(f"s_lshl_b32 s6, s8, 4\ns_add_u32 s6, s6, {XNB}")
for r in range(16):
    e(f"buffer_load_dwordx4 {vr(128+4*r,4)}, v3, s[48:51], s6 offen sc1")
    if r < 15: e("s_add_u32 s6, s6, 163840")
e(f"v_mul_u32_u24 v6, {USZ}, v6\nv_lshl_add_u32 v2, v2, 4, v6\nv_add_u32 v2, {UB0}, v2")
for r in range(20, 24): e(f"v_mov_b32 v{r}, 0")
e(f"v_add_u32 v3, {UB0}, v4")
wait_lds(17, 18, "11", sleep=True)
e("s_mov_b64 exec, 0xfffffff")
for ch in range(3): e(f"ds_write_b128 v3, v[20:23] offset:{ch*USZ}\nds_write_b128 v3, v[20:23] offset:{ch*USZ+U1OFF}")
e("s_mov_b32 exec_lo, 0x77777777\ns_mov_b32 exec_hi, 0x77777777")
for r in range(16):
    e(f"s_waitcnt vmcnt({15-r})")
    e(f"ds_write_b128 v2, {vr(128+4*r,4)} offset:{448+256*r}")
e("s_mov_b64 exec, -1")
e("v_mov_b32 v8, 3\nds_write_b32 v9, v8")
e("v_add_u32 v5, 4096, v4")
for k in range(3):
    e(f"s_add_u32 s6, s15, {5+k}\ns_cmp_ge_u32 s6, 14\ns_cselect_b32 s7, 14, 0\ns_sub_u32 s6, s6, s7\ns_lshl_b32 s6, s6, 2")
    for w in range(4):
        e(f"s_add_u32 s7, s6, {w}\ns_mul_i32 s0, s7, 5120\ns_add_u32 s0, s0, s10\ns_cmp_ge_u32 s7, 54\ns_cselect_b32 s0, {OOB}, s0\ns_mov_b32 m0, {(w*3+k)*5120}\ns_nop 0")
        for dt in range(4): e(f"buffer_load_dwordx4 v4, s[48:51], s0 offen offset:{1024*dt} sc1 lds")
        e(f"s_mov_b32 m0, {(w*3+k)*5120+4096}\ns_nop 0\nbuffer_load_dwordx4 v5, s[48:51], s0 offen sc1 lds")
        e(f"s_waitcnt vmcnt({OPT.get('pfd', '30')})")
stS()
e("s_waitcnt vmcnt(0)"); relay(3)
stS()
wait_lds(17, 18, "13", sleep=True)
e(f"s_mul_i32 s6, s14, {4*FS_}\ns_add_u32 s6, s6, {FL_C}\ns_add_u32 s40, s44, s6\ns_addc_u32 s41, s45, 0")
if "k" not in EXP and "e" not in EXP: spoll(40, [FS_*k for k in range(4)], 20, OPT.get("csleep", "4"))
relay(4)
stS()
stS.regs = [76,78,80] + stS.regs; stS.n += 3
stS.flush(8, 9)
e("L_END:")
e("s_endpgm")
for l in tail[:-1]: e(l)
e("L_LAST:")
e(tail[-1])
if "P" in EXP:
    for c_ in e.I:
        if c_.mn == "buffer_store_dwordx4" and ("v4, s[48:51]" in c_.text): c_.text = c_.text.replace(" sc1", "")
nn = e.fix()

hdr = open("cdna_kernels/" + NAME + ".s.ref").read().split("; Override")[0]
s = hdr + f"; @launch grid=(256,1,1) block=(512,1,1) lds={LDS_TOTAL}\n"
s += f""".amdgcn_target "amdgcn-amd-amdhsa--gfx950"
.text
.globl {NAME}_kernel
.p2align 8
.type {NAME}_kernel,@function
{NAME}_kernel:
"""
s += e.text()
s += f""".section .rodata,"a"
.p2align 6
.amdhsa_kernel {NAME}_kernel
  .amdhsa_next_free_vgpr 256
  .amdhsa_next_free_sgpr 102
  .amdhsa_accum_offset 256
  .amdhsa_group_segment_fixed_size 0
  .amdhsa_kernarg_size 120
  .amdhsa_user_sgpr_count 2
  .amdhsa_user_sgpr_kernarg_segment_ptr 1
  .amdhsa_system_sgpr_workgroup_id_x 1
.end_amdhsa_kernel
"""
open(OUT, "w").write(s)
print("instrs", sum(1 for c in e.I if c.cls), "nops inserted", nn, "lds", LDS_TOTAL)
```

```python
import sys, struct
from emit import Em, Q
NAME = "recurrent_scan__ssm_conv_s4d__mixer_channel_mlp__prompt"
DBGST = "--dbg" in sys.argv
AMP = [a[6:] for a in sys.argv if a.startswith("--amp=")]
STAMPS = "--stamps" in sys.argv or DBGST or bool(AMP)
OPT = dict(rot="0", cpf="1", expat="1", tpollat="7", apollat="9", nt="wp", gprio="0", cprio="1")
OPT.update(a[2:].split("=") for a in sys.argv[1:] if a.startswith("--") and "=" in a)
OUT = [a for a in sys.argv[1:] if not a.startswith("--")]
OUT = OUT[0] if OUT else "k.s"
NOAUX = OPT.get("noaux", "0")
EXP = OPT.get("exp", "")
RELAT = int(OPT.get("relat", "16"))
HELP = OPT.get("help", "1") == "1"
OSP = {"": "", "sc1": " sc1", "nt": " nt", "sc01": " sc0 sc1", "sc1nt": " sc1 nt"}[OPT.get("osp", "")]
NT = OPT.get("nt", "")
ntw2 = " nt" if "w" in NT else ""; ntp = " nt" if "p" in NT else ""; ntx = " nt" if "x" in NT else ""; ntg = " nt" if "g" in NT else ""
MT = "s_memtime" if "--cyc" in sys.argv else "s_memrealtime"

FS_ = int(OPT.get("fs", "128"))
FLB = 0x2C0000 if FS_ > 128 else 0
FL_A, FL_H, FL_C, FL_T, FL_E = [FLB + FS_*k for k in (0, 8, 40, 72, 88)]
STATS = 0x4000
XNB = 0x20000
WE = 0x2B0000
W2F = 0x300000
HF = 0x600000
ST = 0xD00000
STAMP = 0xFC0000
WS_SIZE = 0x1000000
OOB = 0x20000000
KSTEP = 8192
XST = 8 * KSTEP
CH0 = XST + 32768
CHSZ = 18176
SB = CH0 + 3 * CHSZ
SBP, SBW, SBF = 1280, 320, 160
CNT = SB + 10240
CNT2 = CNT + 256
SST = CNT2 + 256
REL = CH0 + 1284
LDS_TOTAL = SST + 256
assert LDS_TOTAL <= 163840, LDS_TOTAL
UB0, USZ, U1OFF = 61440, 9152, 4576
assert UB0 + 3*USZ <= CH0
KOFF, KCP = 1312, 4160
TBOFF, TAB, TPI = 0, 1296, 528
SPIN_MAX = 1 << 18
LOG2E = 0x3fb8aa3b
INV2PI = 0x3e22f983

e = Em()
tail = []
def f32(x): return "0x%08x" % struct.unpack("<I", struct.pack("<f", x))[0]
def srd(r, ptr, size):
    e(f"s_mov_b32 s{r}, s{ptr}\ns_mov_b32 s{r+1}, s{ptr+1}\ns_mov_b32 s{r+2}, {size}\ns_mov_b32 s{r+3}, 0x20000")
def vr(a, n): return f"v[{a}:{a+n-1}]"

class Stamper:
    def __init__(self, regs): self.regs = regs; self.n = 0
    def __call__(self):
        if not STAMPS: return
        r = self.regs[self.n]; self.n += 1
        e(f"{MT} s[{r}:{r+1}]")
    def flush(self, v0, v1, dbg=None):
        if not STAMPS: return
        e("s_waitcnt lgkmcnt(0)")
        if AMP:
            aw, ai = (AMP[0].split(":") + [None])[:2] if ":" in AMP[0] else ("0", AMP[0])
            if dbg is None or dbg[0] != int(aw): return
            r = self.regs[int(ai)]
            L = e.lab("AMP")
            e(f"s_cmp_lg_u32 s2, {OPT.get('ampwg', '100')}\ns_cbranch_scc1 {L}_e\ns_cmp_lg_u32 s3, {aw}\ns_cbranch_scc1 {L}_e")
            e(f"s_sub_u32 s6, s{r}, s46\ns_lshl_b32 s6, s6, 2\ns_min_u32 s6, s6, 20000\ns_memrealtime s[8:9]\ns_waitcnt lgkmcnt(0)")
            e(f"{L}:\ns_sleep 1\ns_memrealtime s[10:11]\ns_waitcnt lgkmcnt(0)\ns_sub_u32 s10, s10, s8\ns_cmp_lt_u32 s10, s6\ns_cbranch_scc1 {L}\n{L}_e:")
            return
        if DBGST:
            if dbg is None: return
            wave, off, n = dbg
            L = e.lab("NODBG")
            e(f"s_cmp_lg_u32 s2, 100\ns_cbranch_scc1 {L}\ns_cmp_lg_u32 s3, {wave}\ns_cbranch_scc1 {L}")
            e(f"v_mov_b32 v{v1}, 0\ns_mov_b64 exec, 1")
            for i, r in enumerate(self.regs[:n]):
                e(f"s_sub_u32 s{r}, s{r}, s46\nv_mov_b32 v{v0}, s{r}")
                e(f"buffer_store_dword v{v0}, v{v1}, s[72:75], 0 offen offset:{4*(off+i)}")
                e("s_nop 0")
            e("s_waitcnt vmcnt(0)")
            e(f"{L}:")
            return
        e("s_lshl_b32 s6, s2, 3\ns_add_u32 s6, s6, s3\ns_lshl_b32 s6, s6, 6")
        e(f"s_add_u32 s6, s6, {STAMP}")
        e(f"v_mov_b32 v{v1}, 0")
        e("s_mov_b64 exec, 1")
        for i, r in enumerate([46] + self.regs[:self.n]):
            e(f"v_mov_b32 v{v0}, s{r}")
            e(f"buffer_store_dword v{v0}, v{v1}, s[48:51], s6 offen offset:{4*i}")
            e("s_nop 0")
        e("s_waitcnt vmcnt(0)")

def spin_lds(vchk, vaddr, val, sleep=False, after=(), pre_cmp=True, branch="s_cbranch_vccnz"):
    if NOAUX != "0" and not val.startswith("v"): return
    L = e.lab("SPIN"); B = e.lab("BACK")
    if pre_cmp: e(f"v_cmp_gt_u32 vcc, {val}, v{vchk}")
    e(f"{branch} {L}")
    e(f"{B}:")
    D = f"{L}_d" if after else B
    tail.extend([f"{L}:", f"s_mov_b32 s12, {SPIN_MAX*8}", f"{L}_a:"] + (["s_sleep 1"] if sleep else []) +
                [f"ds_read_b32 v{vchk}, v{vaddr}", "s_waitcnt lgkmcnt(0)",
                 f"v_cmp_gt_u32 vcc, {val}, v{vchk}", f"s_cbranch_vccz {D}", "s_sub_u32 s12, s12, 1", f"s_cbranch_scc0 {L}_a"] +
                ([f"{D}:"] + list(after) if after else []) + [f"s_branch {B}"])
def wait_lds(vchk, vaddr, val, sleep=False):
    e(f"ds_read_b32 v{vchk}, v{vaddr}\ns_waitcnt lgkmcnt(0)")
    spin_lds(vchk, vaddr, val, sleep)
def spoll(base, offs, target, sl, r0=16):
    if NOAUX != "0": return
    L = e.lab("AG")
    e(f"s_mov_b32 s12, {SPIN_MAX}")
    e(f"{L}:")
    for k, o in enumerate(offs): e(f"s_load_dword s{r0+k}, s[{base}:{base+1}], {o} glc")
    e("s_waitcnt lgkmcnt(0)")
    for k in range(1, len(offs)): e(f"s_min_u32 s{r0}, s{r0}, s{r0+k}")
    e(f"s_cmp_ge_u32 s{r0}, {target}\ns_cbranch_scc1 {L}_d\ns_sleep {sl}\ns_sub_u32 s12, s12, 1\ns_cbranch_scc0 {L}")
    e(f"{L}_d:")
def rb(dst, src):
    e(f"v_cvt_pk_bf16_f32 v{dst}, v{src}, v{src}\nv_and_b32 v{dst}, 0xffff0000, v{dst}")
def zero_cnt(base):
    e(f"s_and_b32 s6, s3, 3\ns_lshl_b32 s6, s6, 6\ns_add_u32 s6, s6, {base}")
    e("v_and_b32 v9, 15, v0\nv_lshlrev_b32 v9, 2, v9\nv_add_u32 v9, s6, v9\nv_mov_b32 v11, 0")
    e("ds_write_b32 v9, v11")

e("s_cmp_ge_u32 s2, 256")
e("s_cbranch_scc1 L_END")
if STAMPS: e(f"{MT} s[46:47]")
e("s_load_dwordx16 s[16:31], s[0:1], 0")
e("s_load_dwordx8 s[32:39], s[0:1], 64")
e("s_load_dwordx4 s[40:43], s[0:1], 96")
e("s_load_dwordx2 s[44:45], s[0:1], 112")
e("v_lshrrev_b32 v1, 6, v0")
e("v_and_b32 v0, 63, v0")
e("v_readfirstlane_b32 s3, v1")
e("s_and_b32 s4, s2, 7")
e("s_lshr_b32 s5, s2, 3")
if OPT.get("idlelast", "1") == "1": e("s_add_u32 s5, s5, 4\ns_and_b32 s5, s5, 31")
e("s_cmp_ge_u32 s3, 4")
e("s_cbranch_scc1 L_AUX")

def chan_id(cw):
    e("s_mul_i32 s7, s5, 3\ns_lshl1_add_u32 s8, s5, 16\ns_cmp_lt_u32 s5, 16\ns_cselect_b32 s8, s7, s8\ns_cselect_b32 s7, 3, 2")
    e(f"s_add_u32 s8, s8, s{cw}\ns_mul_i32 s6, s4, 80\ns_add_u32 s8, s8, s6\ns_cmp_ge_u32 s{cw}, s7\ns_cselect_b32 s8, 640, s8")
def param_loads(P, voff, vz, so, so2, R):
    for k, p in enumerate((18, 20, 22, 24)):
        srd(R[k], p, 163840)
        e(f"buffer_load_dword v{P+k}, v{voff}, s[{R[k]}:{R[k]+3}], s{so} offen{ntp}")
    srd(R[0], 26, 1280); e(f"buffer_load_ushort v{P+4}, v{vz}, s[{R[0]}:{R[0]+3}], s{so2} offen")
def k_setup_pk(P, LAM, CC, EV, PS, conj, starts, TM):
    DT = P + 4
    e(f"v_lshlrev_b32 v{DT}, 16, v{DT}\nv_mul_f32 v{DT}, {LOG2E}, v{DT}\nv_exp_f32 v{DT}, v{DT}")
    for k, d in enumerate((LAM, LAM+2, CC, CC+2)): e(f"v_lshlrev_b32 v{d}, 16, v{P+k}\nv_and_b32 v{d+1}, 0xffff0000, v{P+k}")
    rb(DT, DT)
    for n in (0, 1): e(f"v_mul_f32 v{LAM+n}, {LOG2E}, v{LAM+n}")
    for n in (0, 1): e(f"v_exp_f32 v{LAM+n}, v{LAM+n}")
    e(f"v_add_f32 v{P}, v{DT}, v{DT}")
    e(f"v_cvt_pk_bf16_f32 v{P+1}, v{LAM}, v{LAM+1}\nv_lshlrev_b32 v{LAM}, 16, v{P+1}\nv_and_b32 v{LAM+1}, 0xffff0000, v{P+1}")
    for d in (LAM, LAM+2): e(f"v_pk_mul_f32 {vr(d,2)}, {vr(d,2)}, {vr(DT,2)} op_sel_hi:[1,0]")
    for d in (CC, CC+2): e(f"v_pk_mul_f32 {vr(d,2)}, {vr(d,2)}, {vr(P,2)} op_sel_hi:[1,0]")
    for n in (0, 1): e(f"v_mul_f32 v{LAM+n}, {f32(-1.4426950408889634)}, v{LAM+n}\nv_mul_f32 v{LAM+2+n}, {INV2PI}, v{LAM+2+n}")
    for i, p in enumerate(PS):
        for k in range(4): e(f"v_mul_f32 v{TM+4*i+k}, {f32(p)}, v{LAM+k}")
    for i, p in enumerate(PS):
        for n in (0, 1): e(f"v_exp_f32 v{TM+4*i+n}, v{TM+4*i+n}\nv_fract_f32 v{TM+4*i+2+n}, v{TM+4*i+2+n}")
    for i, p in enumerate(PS):
        for n in (0, 1): e(f"v_cos_f32 v{EV[p]+n}, v{TM+4*i+2+n}\nv_sin_f32 v{EV[p]+2+n}, v{TM+4*i+2+n}")
    for i, p in enumerate(PS):
        e(f"v_pk_mul_f32 {vr(EV[p],2)}, {vr(EV[p],2)}, {vr(TM+4*i,2)}")
        e(f"v_pk_mul_f32 {vr(EV[p]+2,2)}, {vr(EV[p]+2,2)}, {vr(TM+4*i,2)}" + (" neg_lo:[1,0] neg_hi:[1,0]" if p == conj else ""))
    pk_step([(EV[p], CC, TM+2*i) for i, p in enumerate(starts)])
def pk_step(g, mid=()):
    for (z, m, t) in g: e(f"v_pk_mul_f32 {vr(t,2)}, {vr(z+2,2)}, {vr(m+2,2)}")
    for l in mid: e(l)
    for (z, m, t) in g: e(f"v_pk_mul_f32 {vr(z+2,2)}, {vr(z+2,2)}, {vr(m,2)}")
    for (z, m, t) in g: e(f"v_pk_fma_f32 {vr(z+2,2)}, {vr(z,2)}, {vr(m+2,2)}, {vr(z+2,2)}")
    for (z, m, t) in g: e(f"v_pk_fma_f32 {vr(z,2)}, {vr(z,2)}, {vr(m,2)}, {vr(t,2)} neg_lo:[0,0,1] neg_hi:[0,0,1]")
def chain_pk(ch, n, row0, VB, TM):
    for u in range(n):
        for i, (z, m, off) in enumerate(ch):
            e(f"v_cvt_pk_bf16_f32 v{TM+4*(u&1)+2*i}, v{z}, v{z+2}\nv_cvt_pk_bf16_f32 v{TM+1+4*(u&1)+2*i}, v{z+1}, v{z+3}")
        wr = [f"ds_write_b64 v{VB}, {vr(TM+4*(u&1)+2*i,2)} offset:{(row0+off+u)*TPI}" for i, (z, m, off) in enumerate(ch)]
        pk_step([(z, m, TM+8+2*i) for i, (z, m, off) in enumerate(ch)], wr)
def k_setup(P, LAM, CC, EV, PS, conj, starts, TM):
    DT = P + 4
    e(f"v_lshlrev_b32 v{DT}, 16, v{DT}\nv_mul_f32 v{DT}, {LOG2E}, v{DT}\nv_exp_f32 v{DT}, v{DT}")
    for n in (0, 1):
        up = (lambda d, s: e(f"v_lshlrev_b32 v{d}, 16, v{s}")) if n == 0 else (lambda d, s: e(f"v_and_b32 v{d}, 0xffff0000, v{s}"))
        up(LAM+2*n, P); up(LAM+2*n+1, P+1); up(CC+2*n, P+2); up(CC+2*n+1, P+3)
    rb(DT, DT)
    for n in (0, 1): e(f"v_mul_f32 v{LAM+2*n}, {LOG2E}, v{LAM+2*n}")
    for n in (0, 1): e(f"v_exp_f32 v{LAM+2*n}, v{LAM+2*n}")
    e(f"v_add_f32 v{P}, v{DT}, v{DT}")
    for n in (0, 1): rb(LAM+2*n, LAM+2*n)
    for n in (0, 1):
        e(f"v_mul_f32 v{LAM+2*n}, v{LAM+2*n}, v{DT}\nv_mul_f32 v{LAM+2*n+1}, v{LAM+2*n+1}, v{DT}")
        e(f"v_mul_f32 v{CC+2*n}, v{CC+2*n}, v{P}\nv_mul_f32 v{CC+2*n+1}, v{CC+2*n+1}, v{P}")
    for n in (0, 1):
        e(f"v_mul_f32 v{LAM+2*n}, {f32(-1.4426950408889634)}, v{LAM+2*n}\nv_mul_f32 v{LAM+2*n+1}, {INV2PI}, v{LAM+2*n+1}")
    it = [(p, n) for p in PS for n in (0, 1)]
    tm = {k: TM + 2*i for i, k in enumerate(it)}
    for (p, n) in it:
        if p == 1.0: e(f"v_exp_f32 v{tm[p,n]}, v{LAM+2*n}\nv_fract_f32 v{tm[p,n]+1}, v{LAM+2*n+1}")
        else: e(f"v_mul_f32 v{tm[p,n]}, {f32(p)}, v{LAM+2*n}\nv_mul_f32 v{tm[p,n]+1}, {f32(p)}, v{LAM+2*n+1}")
    for (p, n) in it:
        if p != 1.0: e(f"v_exp_f32 v{tm[p,n]}, v{tm[p,n]}\nv_fract_f32 v{tm[p,n]+1}, v{tm[p,n]+1}")
    for (p, n) in it: e(f"v_cos_f32 v{EV[p]+2*n}, v{tm[p,n]+1}\nv_sin_f32 v{EV[p]+2*n+1}, v{tm[p,n]+1}")
    for (p, n) in it:
        neg = "-" if p in conj else ""
        e(f"v_mul_f32 v{EV[p]+2*n}, v{EV[p]+2*n}, v{tm[p,n]}")
        e(f"v_mul_f32 v{EV[p]+2*n+1}, {neg}v{EV[p]+2*n+1}, v{tm[p,n]}")
    g_ = [(EV[p]+2*n, CC+2*n, TM+2*i+n) for i, p in enumerate(starts) for n in (0, 1)]
    for (z, m, t) in g_: e(f"v_mul_f32 v{t}, v{z+1}, v{m+1}")
    for (z, m, t) in g_: e(f"v_mul_f32 v{z+1}, v{z+1}, v{m}")
    for (z, m, t) in g_: e(f"v_fmac_f32 v{z+1}, v{z}, v{m+1}")
    for (z, m, t) in g_: e(f"v_fma_f32 v{z}, v{z}, v{m}, -v{t}")
def chain_loop(ch, n, row0, VB, VA, TM, SC):
    L = e.lab("KL")
    UN = min(n, int(OPT.get("kun", "4")))
    if n > UN: e(f"s_mov_b32 s{SC}, {n//UN}")
    e(f"v_add_u32 v{VA}, {row0*TPI}, v{VB}")
    e(f"{L}:")
    for u in range(UN):
        for i, (z, m, off) in enumerate(ch):
            e(f"v_cvt_pk_bf16_f32 v{TM+4*(u&1)+2*i}, v{z}, v{z+1}\nv_cvt_pk_bf16_f32 v{TM+1+4*(u&1)+2*i}, v{z+2}, v{z+3}")
        g = [(z+2*k, m+2*k, TM+8+2*i+k) for i, (z, m, off) in enumerate(ch) for k in (0, 1)]
        for (z, m, t) in g: e(f"v_mul_f32 v{t}, v{z+1}, v{m+1}")
        for i, (z, m, off) in enumerate(ch): e(f"ds_write_b64 v{VA}, {vr(TM+4*(u&1)+2*i,2)} offset:{(off+u)*TPI}")
        for (z, m, t) in g: e(f"v_mul_f32 v{z+1}, v{z+1}, v{m}")
        if u == UN-1 and n > UN: e(f"v_add_u32 v{VA}, {UN*TPI}, v{VA}")
        for (z, m, t) in g: e(f"v_fmac_f32 v{z+1}, v{z}, v{m+1}")
        if u == UN-1 and n > UN: e(f"s_sub_u32 s{SC}, s{SC}, 1\ns_cmp_lg_u32 s{SC}, 0")
        for (z, m, t) in g: e(f"v_fma_f32 v{z}, v{z}, v{m}, -v{t}")
    if n > UN: e(f"s_cbranch_scc1 {L}")
def y_init(Y): e(f"v_mov_b32 v{Y}, 1.0\nv_mov_b32 v{Y+1}, 0\nv_mov_b32 v{Y+2}, 1.0\nv_mov_b32 v{Y+3}, 0")
def frag_reads(dst, VF, row0):
    for s_ in range(8): e(f"ds_read_b128 {vr(dst+4*s_,4)}, v{VF} offset:{64*s_+row0*TPI}")
def k_mfma(K, FA, FY):
    for s_ in range(8):
        e(f"s_waitcnt lgkmcnt({7-s_})")
        e(f"v_mfma_f32_16x16x32_bf16 {vr(K,4)}, {vr(FA+4*s_,4)}, {vr(FY+4*s_,4)}, {vr(K,4) if s_ else 0}")
def g2_ids():
    e("s_and_b32 s6, s5, 7\ns_lshr_b32 s13, s4, 1\ns_lshl3_add_u32 s13, s13, s6\ns_lshr_b32 s7, s5, 3\ns_and_b32 s14, s4, 1\ns_lshl2_add_u32 s14, s14, s7")
    e("s_mul_i32 s15, s7, 7\ns_lshr_b32 s15, s15, 1")

_stG = Stamper([30,32,34,36,38,96,98,100])
GSEL = OPT.get("gst", "c0,g1,ep,hp,hs,g2,rd,end").split(",")
class _G:
    def __call__(self, name):
        if name in GSEL:
            _stG.n = GSEL.index(name); _stG()
    def flush(self, *a):
        _stG.n = 8; _stG.flush(*a)
stG = _G()
vm = Q(e, "vmcnt", 63); lg = Q(e, "lgkmcnt", 15)
XR, VXA, WB = 48, 244, 80
ACC = 112
VCHK, VREL = 250, 251
WEF, XEF, XEC = 176, 192, 196
sK = [76+i for i in range(14)]
HP = 112
e(f"s_setprio {OPT.get('gprio', '2')}")
zero_cnt(CNT)
e("v_lshrrev_b32 v10, 4, v0")
e("v_and_b32 v8, 15, v0")
g2_ids()
if HELP: chan_id(3)
if HELP: e(f"s_lshl_b32 s60, s8, 8\ns_lshl_b32 s61, s8, 1\ns_mov_b32 s62, s8\nv_lshlrev_b32 v117, 2, v0\nv_mov_b32 v118, 0")
e("s_cmp_lt_u32 s5, 4")
e("s_cbranch_scc1 L_IDLE")
e("s_sub_u32 s6, s5, 4\ns_mul_i32 s7, s6, 37\ns_lshr_b32 s7, s7, 8\ns_mul_i32 s8, s7, 7\ns_sub_u32 s6, s6, s8")
e("s_lshr_b32 s8, s4, 1\ns_lshl_b32 s8, s8, 2\ns_add_u32 s8, s8, s7")
e("s_and_b32 s9, s4, 1\ns_mul_i32 s9, s9, 7\ns_add_u32 s9, s9, s6")
e("s_lshl_b32 s11, s9, 8")
ROT = OPT.get("rot", "1") != "0"
sW = list(range(16, 26)); sX = [26, 27, 28, 29, 90, 91, 92, 93, 94, 95]
if ROT:
    e("s_mul_i32 s12, s6, 370\ns_lshr_b32 s12, s12, 8\ns_mul_i32 s7, s7, 5\ns_lshr_b32 s7, s7, 1\ns_add_u32 s12, s12, s7")
    e("s_cmp_ge_u32 s12, 10\ns_cselect_b32 s7, 10, 0\ns_sub_u32 s12, s12, s7")
def rot_tab(ps):
    if not ROT: return
    for p in ps:
        if p: e("s_add_u32 s12, s12, 1\ns_cmp_eq_u32 s12, 10\ns_cselect_b32 s12, 0, s12")
        e(f"s_mul_i32 s{sW[p]}, s12, 221184\ns_add_u32 s{sW[p]}, s{sW[p]}, s11\ns_lshl_b32 s{sX[p]}, s12, 7")
e("v_bfe_u32 v1, v0, 2, 2\ns_lshl_b32 s6, s3, 3\nv_add_u32 v1, s6, v1\nv_mul_u32_u24 v1, 3456, v1")
e("v_lshl_add_u32 v1, v10, 6, v1\nv_and_b32 v2, 3, v0\nv_lshl_add_u32 v1, v2, 4, v1")
e(f"v_add_u32 v2, {4*3456-1024}, v1")
e("s_lshl_b32 s6, s8, 7\ns_lshl_b32 s7, s3, 5\ns_add_u32 s6, s6, s7")
e("v_lshrrev_b32 v5, 3, v0\nv_add_u32 v3, s6, v5\nv_mul_u32_u24 v3, 1280, v3\nv_and_b32 v6, 7, v0\nv_lshrrev_b32 v5, 1, v5\nv_xor_b32 v6, v6, v5")
e(f"v_xor_b32 v5, 4, v6\nv_lshl_add_u32 v4, v5, 4, v3\nv_add_u32 v4, {10240-1024}, v4\nv_lshl_add_u32 v3, v6, 4, v3")
e(f"s_lshl_b32 s10, s3, 13\ns_add_u32 s10, s10, {XST}")
e("s_waitcnt lgkmcnt(0)")
def g_params():
    if not HELP: return
    param_loads(HP, 117, 118, 60, 61, (64, 68, 72, 48))
    for _ in range(5): vm.issue("par")
g_params()
e("s_barrier")
e("s_lshl_b32 s1, s3, 11")
srd(56, 32, 2211840); srd(52, 16, 2621440)
rot_tab(range(1))
def w_ops(step):
    def a():
        if ROT: e(f"s_add_u32 m0, s1, {(step % 8)*KSTEP}\ns_add_u32 s0, s{sW[step//2]}, {(step % 2)*110592}")
        else: e(f"s_add_u32 m0, s1, {(step % 8)*KSTEP}\ns_add_u32 s0, s11, {step*110592}")
        e(f"buffer_load_dwordx4 v1, s[56:59], s0 offen{ntg} lds"); vm.issue(("w", step//2))
    def b():
        e(f"buffer_load_dwordx4 v2, s[56:59], s0 offen offset:1024{ntg} lds"); vm.issue(("w", step//2))
    return [a, b]
def x_ops(u):
    def a():
        if ROT: e(f"s_add_u32 m0, s10, {(u % 4)*2048}\ns_add_u32 s0, s{sX[u//2]}, {(u % 2)*20480}")
        else: e(f"s_add_u32 m0, s10, {(u % 4)*2048}\ns_mov_b32 s0, {(u//2)*128 + (u % 2)*20480}")
        e("buffer_load_dwordx4 v3, s[52:55], s0 offen lds"); vm.issue(("x", u))
    def b():
        e("buffer_load_dwordx4 v4, s[52:55], s0 offen offset:1024 lds"); vm.issue(("x", u))
    return [a, b]
def x_read(c, kk):
    if kk == 0: vm.wait(("x", 2*c+1))
    e(f"ds_read_b128 {vr(XR+(c%2)*16+4*kk,4)}, v{VXA+kk} offset:{(c%2)*4096}"); lg.issue(("xr", c, kk))
for op in w_ops(0) + x_ops(0) + x_ops(1) + w_ops(1): op()
def g_srds(): srd(48, 44, WS_SIZE); srd(64, 38, 1280); srd(68, 40, 2621440); srd(72, 42, 256)
g_srds()
rot_tab(range(1, 10))
NP2 = int(OPT.get("np2", "0"))
late = (w_ops(2) + w_ops(3) + x_ops(2) + x_ops(3))
for op in late[:NP2]: op()
def helper(mid=((), ())):
    if not HELP:
        for op in list(mid[0]) + list(mid[1]): op()
        return
    LAM, CC, TM, YC, FY, FA, KT = 120, 124, 144, 160, 176, 208, 240
    EV = {8.0: 128, 128.0: 132, 512.0: 136, 516.0: 140}
    e("s_cmp_ge_u32 s62, 640" if "n" not in EXP else "s_cmp_ge_u32 s62, 0")
    L = e.lab("NOH")
    e(f"s_cbranch_scc1 {L}")
    e(f"s_mul_i32 s6, s3, {16*TPI}\ns_add_u32 s6, s6, {4*KSTEP}\nv_lshlrev_b32 v244, 3, v0\nv_add_u32 v244, s6, v244")
    e(f"v_mul_u32_u24 v245, {TPI}, v8\nv_lshl_add_u32 v245, v10, 4, v245\nv_add_u32 v245, s6, v245")
    e(f"s_mul_i32 s6, s3, {CHSZ}\ns_add_u32 s6, s6, {CH0+TBOFF}")
    e("v_lshlrev_b32 v247, 1, v8\nv_lshl_add_u32 v247, v10, 7, v247\nv_add_u32 v247, s6, v247")
    e("v_lshlrev_b32 v248, 2, v8\nv_lshrrev_b32 v249, 1, v10\nv_lshl_add_u32 v248, v249, 1, v248\nv_add_u32 v248, s6, v248")
    e(f"v_mov_b32 v{YC}, 1.0\nv_mov_b32 v{YC+1}, 1.0\nv_mov_b32 v{YC+2}, 0\nv_mov_b32 v{YC+3}, 0")
    vm.wait("par")
    stG("par")
    k_setup_pk(HP, LAM, CC, EV, [8.0, 128.0, 512.0, 516.0], 8.0, (512.0, 516.0), TM)
    for op in mid[0]: op()
    L2 = e.lab("HY")
    e(f"s_mov_b32 s63, 4\nv_mov_b32 v246, v244\n{L2}:")
    chain_pk([(YC, EV[8.0], 0)], 4, 0, 246, TM)
    e(f"v_add_u32 v246, {4*TPI}, v246\ns_sub_u32 s63, s63, 1\ns_cmp_lg_u32 s63, 0\ns_cbranch_scc1 {L2}")
    e("s_waitcnt lgkmcnt(0)")
    frag_reads(FY, 245, 0)
    for op in mid[1]: op()
    e("s_waitcnt lgkmcnt(0)")
    chain_pk([(EV[512.0], EV[128.0], 0), (EV[516.0], EV[128.0], 12)], 4, 0, 244, TM)
    chain_pk([(EV[512.0], EV[128.0], 0)], 8, 4, 244, TM)
    e("s_waitcnt lgkmcnt(0)")
    frag_reads(FA, 245, 0)
    k_mfma(KT, FA, FY)
    for r in range(4): e(f"v_cvt_pk_bf16_f32 v{TM+r}, v{KT+r}, v{KT+r}")
    e("s_mov_b32 exec_lo, 0xffff\ns_mov_b32 exec_hi, 0xffff0000")
    for r in range(4): e(f"ds_write_b16 v248, v{TM+r} offset:{768+64*r}")
    e("s_mov_b32 exec_lo, 0xffff0000\ns_mov_b32 exec_hi, 0xffff")
    for r in range(4): e(f"ds_write_b16 v247, v{TM+r} offset:{896+32*r}")
    e("s_mov_b64 exec, -1")
    if mid[0] or mid[1]:
        q = list(vm.q)
        e(f"s_branch {L}_j\n{L}:")
        for op in list(mid[0]) + list(mid[1]): op()
        vm.q = q
        e(f"{L}_j:")
    else: e(f"{L}:")
def kappa_tab():
    e("s_mov_b32 s6, s15")
    for i in range(14):
        if i: e("s_add_u32 s6, s6, 1\ns_cmp_eq_u32 s6, 14\ns_cselect_b32 s6, 0, s6")
        e(f"s_lshl2_add_u32 s7, s6, s3\ns_cmp_ge_u32 s7, 54\ns_cselect_b32 s7, {0x8000000>>10}, s7\ns_lshl_b32 s{sK[i]}, s7, 10")
if OPT.get("kapearly", "0") == "1": kappa_tab()
vq = list(vm.q)
if OPT.get("mid", "1") == "1":
    helper((late[NP2:4], late[4:]))
    vm.q = vq + vm.q[len(vm.q)-(8-NP2):]
else:
    helper()
    vm.q = vq
    for op in late[NP2:]: op()
stG("hlp")
e("v_lshrrev_b32 v7, 5, v0\nv_lshlrev_b32 v5, 11, v7\nv_bfe_u32 v6, v0, 2, 2\nv_lshl_add_u32 v5, v6, 6, v5\nv_bfe_u32 v6, v0, 4, 1\nv_lshl_add_u32 v5, v6, 5, v5\nv_and_b32 v6, 3, v0\nv_lshl_add_u32 v5, v6, 3, v5")
e(f"v_bfe_u32 v6, v0, 1, 3\nv_xor_b32 v6, v6, v7\nv_lshlrev_b32 v6, 4, v6\nv_and_b32 v253, 31, v0\nv_lshl_add_u32 v6, v253, 7, v6")
for kk in range(4): e(f"v_xor_b32 v{VXA+kk}, {32*kk}, v6\nv_add_u32 v{VXA+kk}, s10, v{VXA+kk}")
e(f"v_mov_b32 v252, {OOB}\nv_cmp_gt_u32 vcc, 32, v0\nv_lshlrev_b32 v6, 4, v253\nv_lshlrev_b32 v253, 5, v253\nv_cndmask_b32 v6, v252, v6, vcc\nv_cndmask_b32 v7, v252, v253, vcc")
def gcommon():
    e(f"v_lshlrev_b32 v10, 2, v0\nv_add_u32 v10, {CNT}, v10")
def w2_ops(i):
    ops = []
    for dt in range(5):
        def f(dt=dt):
            if dt == 0: e(f"s_lshl2_add_u32 s0, s{sK[i]}, s10\ns_add_u32 s0, s0, s{sK[i]}")
            if dt == 4: e("s_add_u32 s0, s0, 4096")
            r = 12 + (i % 5)*20 + dt*4
            e(f"buffer_load_dwordx4 {vr(r,4)}, v1, s[48:51], s0 offen offset:{1024*(dt%4)} sc1"); vm.issue(("w2", i))
        ops.append(f)
    return ops
def g2_bases():
    e("v_lshlrev_b32 v1, 4, v0")
    e(f"s_mul_i32 s10, s14, 276480\ns_add_u32 s10, s10, {W2F}")
    e(f"s_mul_i32 s11, s13, 221184\ns_add_u32 s11, s11, {HF}")
gcommon()
EW = int(OPT.get("ew", "0"))
if EW: kappa_tab()
stG("p")
def signal():
    e("v_add_u32 v11, 1, v11")
    e("ds_write_b32 v9, v11"); lg.issue("sig")
CHKR = [VCHK]
def chk_read():
    e(f"ds_read_b32 v{CHKR[0]}, v10"); lg.issue("chk")
def chk_eval():
    lg.wait("chk")
    spin_lds(CHKR[0], 10, "v11")
def tr_one(step, n, hf_):
    kh, t = divmod(n, 4)
    e(f"ds_read_b64_tr_b16 {vr(WB+4*n+2*hf_,2)}, v5 offset:{(step % 8)*KSTEP + 4096*kh + 1024*hf_ + 256*t}"); lg.issue(("w", step, n))
vm.wait(("w", 0))
signal(); chk_read()
for kk in range(4): x_read(0, kk)
chk_eval()
stG("c0")
for n in range(8): tr_one(0, n, 0); tr_one(0, n, 1)
EW = 0
for i in range(20):
    c, k2 = divmod(i, 2)
    stG(f"a{i}")
    side = {n: [] for n in range(8)}
    if i < 19:
        for n in range(8): side[n] += [lambda n=n: tr_one(i+1, n, 0), lambda n=n: tr_one(i+1, n, 1)]
    if i == 0:
        for n, op in zip((0, 1, 2, 3), w_ops(4) + w_ops(5)): side[n].append(op)
    elif i + 5 <= 19:
        for n, op in zip((0, 2), w_ops(i+5)): side[n].append(op)
    if i + 4 <= 19:
        if k2 == 0: side[4].append(lambda c=c: lg.wait(("xr", c, 3)))
        for n, op in zip((4, 6), x_ops(i+4)): side[n].append(op)
    if k2 == 0 and c + 1 <= 9:
        def sg(c=c):
            vm.wait(("w", c+1)); signal()
        side[3].append(sg); side[5].append(chk_read)
    if k2 == 1 and c + 1 <= 9:
        for kk in range(4): side[(1, 3, 5, 7)[kk]].append(lambda kk=kk, c=c: x_read(c+1, kk))
    if i == 15:
        side[5].append(lambda: (e(f"v_mov_b32 v252, {REL}\nds_read_b32 v{VREL}, v252"), lg.issue("rel")))
    if i == RELAT:
        def f():
            if RELAT != 16: e(f"ds_read_b32 v{VREL}, v252"); lg.issue("rel")
            lg.wait("rel")
            spin_lds(VREL, 252, "1")
            e(f"s_lshl_b32 s6, s8, 12\ns_lshl_b32 s7, s3, 10\ns_add_u32 s6, s6, s7\ns_add_u32 s6, s6, {STATS}\ns_lshl_b32 s63, s9, 11\ns_add_u32 s63, s63, {WE}")
            e(f"buffer_load_dwordx4 {vr(XEF,4)}, v7, s[48:51], s6 offen sc1"); vm.issue("xe")
        side[0].append(f)
        side[2].append(lambda: (e(f"buffer_load_dwordx4 {vr(XEC,4)}, v253, s[48:51], s6 offen offset:16 sc1"), vm.issue("xe")))
        for t in range(4):
            side[(1, 4, 6, 7)[t]].append(lambda t=t: (e(f"buffer_load_dwordx4 {vr(WEF+4*t,4)}, v6, s[48:51], s63 offen offset:{512*t} sc1"), vm.issue("xe")))
    if i == 18:
        side[1].append(g2_bases)
        side[3].append(lambda: e("v_bfe_u32 v3, v0, 4, 1\nv_lshlrev_b32 v3, 10, v3\nv_lshrrev_b32 v4, 5, v0\nv_lshl_add_u32 v3, v4, 8, v3"))
        side[5].append(lambda: e("v_and_b32 v4, 15, v0\nv_lshl_add_u32 v255, v4, 4, v3\nv_mov_b32 v2, 0"))
    if i == 19:
        side[0].append(lambda: e(f"s_lshr_b32 s6, s3, 1\ns_lshl_b32 s7, s8, 1\ns_add_u32 s6, s6, s7\ns_mul_i32 s44, s6, 221184"))
        side[1].append(lambda: e(f"s_and_b32 s7, s3, 1\ns_lshl_b32 s7, s7, 11\ns_add_u32 s44, s44, s7\ns_add_u32 s44, s44, {HF}"))
        side[2].append(lambda: e(f"s_mul_i32 s45, s6, {FS_}\ns_add_u32 s45, s45, {FL_H}"))
        side[3].append(lambda: e(f"s_lshl_b32 s6, s9, 14\ns_add_u32 s44, s44, s6\ns_cmp_eq_u32 s9, 13\ns_cselect_b32 s43, {OOB}, s44"))
        side[7].append(signal)
    for n in range(8):
        kh, t = divmod(n, 4)
        need = [("w", i, n), ("w", i, n+1)] if n % 2 == 0 else []
        if t == 0: need += [("xr", c, 2*k2+kh)]
        if need: lg.wait(need)
        a_ = ACC + 16*t
        e(f"v_mfma_f32_32x32x16_bf16 {vr(a_,16)}, {vr(WB+4*n,4)}, {vr(XR+(c%2)*16+4*(2*k2+kh),4)}, {vr(a_,16) if (i or kh) else 0}")
        for f in side[n]: f()
    if k2 == 0 and c + 1 <= 9: chk_eval()
vm.wait("xe")
for t in range(4): e(f"v_mfma_f32_32x32x16_bf16 {vr(ACC+16*t,16)}, {vr(WEF+4*t,4)}, {vr(XEF,4)}, {vr(ACC+16*t,16)}")
e("v_mov_b32 v7, 1")
stG("g1")
TQ, TE, TO = 224, 232, 240
def h_flag(k):
    vm.wait(("hst", k))
    e(f"s_mov_b64 exec, 1\nbuffer_atomic_add v7, v2, s[48:51], s45 offen offset:{4*k} sc1\ns_mov_b64 exec, -1")
for tp in range(4):
    e(f"s_add_u32 s6, s{44 if tp < 2 else 43}, {4096*tp}")
    for mt in (0, 1):
        st = XEC
        P = range(4)
        acc = lambda q: ACC + 16*tp + 8*mt + 2*q
        for q in P: e(f"v_pk_mul_f32 {vr(TQ+2*q,2)}, {vr(acc(q),2)}, {vr(acc(q),2)}")
        for q in P: e(f"v_pk_fma_f32 {vr(TQ+2*q,2)}, {vr(st,2)}, {vr(TQ+2*q,2)}, {vr(st,2)} op_sel:[0,0,1] op_sel_hi:[0,1,1]")
        for q in P: e(f"v_pk_mul_f32 {vr(TQ+2*q,2)}, {vr(TQ+2*q,2)}, {vr(acc(q),2)}")
        for q in range(8): e(f"v_exp_f32 v{TE+q}, v{TQ+q}")
        for q in P: e(f"v_pk_fma_f32 {vr(TE+2*q,2)}, {vr(st+2,2)}, {vr(TE+2*q,2)}, {vr(st+2,2)} op_sel_hi:[0,1,0]")
        for q in range(8): e(f"v_rcp_f32 v{TE+q}, v{TE+q}")
        for q in P: e(f"v_pk_mul_f32 {vr(TE+2*q,2)}, {vr(TE+2*q,2)}, {vr(acc(q),2)}")
        o = TO + 4*mt
        for q in P: e(f"v_cvt_pk_bf16_f32 v{o+q}, v{TE+2*q}, v{TE+2*q+1}")
        e(f"buffer_store_dwordx4 {vr(o,4)}, v255, s[48:51], s6 offen offset:{512*mt} sc1"); vm.issue(("hst", tp))
stG("ep")
signal()
def g2_setup():
    for ml in range(4):
        e(f"s_xor_b32 s6, s3, {ml}\ns_lshl_b32 s6, s6, 10\nv_add_u32 v{3+ml}, s6, v1")
    e(f"s_mul_i32 s6, s13, {FS_}\ns_add_u32 s6, s6, {FL_H}\ns_add_u32 s40, s48, s6\ns_addc_u32 s41, s49, 0")
    e(f"v_mov_b32 v254, {REL}\nv_lshrrev_b32 v8, 4, v0\nv_lshlrev_b32 v8, 3, v8\ns_mul_i32 s8, s14, 160")
HPL = "s_load_dwordx4 s[16:19], s[40:41], 0 glc"
g2_setup()
if not EW: kappa_tab()
vm.wait(("hst", 3))
e(f"s_mov_b64 exec, 1\nbuffer_atomic_add v7, v2, s[48:51], s45 offen sc1\ns_mov_b64 exec, -1")
stG("at")
if OPT.get("self", "1") == "1":
    for tp in range(4):
        e(f"s_add_u32 s6, s{44 if tp < 2 else 43}, {4096*tp}")
        for mt in (0, 1): e(f"buffer_load_dwordx4 {vr(192+8*tp+4*mt,4)}, v1, s[48:51], s6 offen offset:{1024*mt} sc1")
stG("hp")
vm.clear(); lg.clear()
e("L_G2:")
CHKR[0] = 26
A2, HR = 112, 192
e(f"s_setprio {OPT.get('g2prio', '0')}")
e("v_mov_b32 v2, v254")
if not EW: wait_lds(7, 2, "2")
for dt in range(5):
    e(f"buffer_load_dwordx2 {vr(122+2*dt,2)}, v8, s[64:67], s8 offen offset:{32*dt}"); vm.issue("b2")
for k in range([0, 2, 5][EW], 5):
    for op in w2_ops(k): op()
stG("pp")
spoll(40, [0], 28, OPT.get("hsleep", "2")); lg.clear()
stG("hs")
def h_ops(i):
    ops = []
    for ml in range(4):
        def hl(ml=ml):
            if ml == 0: e(f"s_lshl2_add_u32 s6, s{sK[i]}, s11")
            e(f"buffer_load_dwordx4 {vr(HR+(i%4)*16+ml*4,4)}, v{3+ml}, s[48:51], s6 offen sc1"); vm.issue(("h", i))
        ops.append(hl)
    return ops
for op in h_ops(0) + h_ops(1) + h_ops(2) + h_ops(3): op()
FXO, FLA, FX, FS, VSO, VPF = 92, 95, 32, 12, 98, 104
STL = []
for i in range(3):
    if i == 2: STL.append("s_mov_b32 exec_hi, 0")
    STL.append(f"buffer_load_dwordx4 {vr(FS+4*i,4)}, v{VSO}, s[48:51], s{44 if i == 0 else 6} offen sc1")
    if i < 2: STL.append(f"s_add_u32 s6, s44, {32*4096*(i+1)}")
STL.append("s_mov_b64 exec, -1")
RED = 99
for i in range(14):
    vm.wait([("w2", i), ("h", i)])
    lg.wait(("pf", i))
    if i == 7: signal()
    stG(f"b{i}")
    side = {n: [] for n in range(20)}
    def spread(lines, n0, step=1):
        for k, l in enumerate(lines): side[min(19, n0 + k*step)].append(lambda l=l: e(l))
    j = i + 4
    if i >= 1 and j < 8:
        if i == 1: side[0].append(lambda: (e("ds_read_b32 v12, v2\ns_mul_i32 s6, s3, 15360\nv_add_u32 v13, s6, v1\ns_waitcnt lgkmcnt(0)"), spin_lds(12, 2, "3"), e("v_mov_b32 v2, v13"), lg.clear()))
        for dt in range(5):
            side[1+dt].append(lambda dt=dt, j=j: (e(f"ds_read_b128 {vr(12+(j%5)*20+dt*4,4)}, v2 offset:{(j-5)*5120+dt*1024}"), lg.issue(("pf", j))))
    elif i >= 1 and j < 14:
        for n, op in zip((1, 3, 7, 11, 16), w2_ops(j)): side[n].append(op)
    if i + 4 < 14:
        for ml, op in enumerate(h_ops(i+4)): side[5*ml+4].append(op)
    if i == 10:
        L = [f"v_mov_b32 v2, {REL}", "ds_read_b32 v8, v2",
             f"v_lshrrev_b32 v{VSO}, 1, v0", "v_and_b32 v4, 1, v0", f"v_lshlrev_b32 v{VSO}, 12, v{VSO}", f"v_lshl_add_u32 v{VSO}, v4, 4, v{VSO}",
             "s_mul_i32 s44, s14, 327680\ns_lshl_b32 s7, s13, 7", "s_add_u32 s44, s44, s7\ns_lshl_b32 s7, s3, 5", f"s_add_u32 s44, s44, s7\ns_add_u32 s44, s44, {ST}",
             "s_lshl_b32 s6, s13, 6\ns_lshl_b32 s7, s3, 4", "s_add_u32 s6, s6, s7\ns_mul_i32 s6, s6, 1280", f"s_add_u32 s8, s8, s6\ns_mul_i32 s9, s3, 2560", f"s_add_u32 s9, s9, {SB}\ns_movk_i32 s0, 1280\ns_movk_i32 s1, {SBF}"]
        spread(L, 1)
    if i == 11:
        L = []
        for k in range(3):
            L += [f"v_add_u32 v3, {64*k}, v0\nv_mul_u32_u24 v4, 6554, v3", "v_lshrrev_b32 v4, 16, v4\nv_mul_u32_u24 v5, 10, v4", "v_sub_u32 v3, v3, v5\nv_lshlrev_b32 v3, 4, v3",
                  f"v_mad_u32_u24 v{FXO+k}, v4, s0, v3\nv_mad_u32_u24 v{FLA+k}, v4, s1, v3", f"v_add_u32 v{FLA+k}, s9, v{FLA+k}"]
        spread(L, 1)
    if i == 12:
        L = []
        for ml in (1, 2, 3): L += [f"s_xor_b32 s6, s3, {ml}\ns_mul_i32 s6, s6, 15360", f"s_add_u32 s6, s6, {(ml-1)*5120}\nv_add_u32 v{RED+ml-1}, s6, v1"]
        L += [f"s_mul_i32 s6, s3, 15360\nv_add_u32 v{RED+3}, s6, v1", f"v_and_b32 v3, 15, v0\nv_mul_u32_u24 v3, {SBF}, v3", f"v_lshrrev_b32 v5, 4, v0\nv_lshl_add_u32 v3, v5, 3, v3", f"v_add_u32 v{RED+4}, s9, v3",
              "v_add_u32 v3, s9, v1\nv_lshlrev_b32 v4, 3, v0", "v_add_u32 v4, s9, v4"]
        spread(L, 6)
        side[0].append(chk_read)
        for k in range(3):
            def xl(k=k):
                if k == 2: e("s_mov_b32 exec_hi, 0")
                e(f"buffer_load_dwordx4 {vr(FX+4*k,4)}, v{FXO+k}, s[52:55], s8 offen"); vm.issue("fx")
                if k == 2: e("s_mov_b64 exec, -1")
            side[1+2*k].append(xl)
    order = list(range(20)) if 0 < i < 13 else list(range(5, 20)) + list(range(5))
    if i == 0:
        side = {n: [] for n in range(20)}
        for k in range(10): side[k].append(lambda k=k: e(f"v_lshlrev_b32 v{A2+2*k}, 16, v{122+k}\nv_and_b32 v{A2+2*k+1}, 0xffff0000, v{122+k}"))
        o = h_ops(4)
        e(f"s_lshl2_add_u32 s6, s{sK[4]}, s11")
        for k, ml in zip((4, 9, 14, 19), (1, 2, 3, 0)):
            side[k].append(lambda ml=ml: (e(f"buffer_load_dwordx4 {vr(HR+ml*4,4)}, v{3+ml}, s[48:51], s6 offen sc1"), vm.issue(("h", 4))))
    if i == 13:
        for k in range(11):
            n_ = order[k]
            side[k+9].append(lambda n_=n_: (e(f"ds_write_b128 v{RED+n_//5-1}, {vr(A2+n_*4,4)} offset:{1024*(n_%5)}"), lg.issue("red")))
    for k, n in enumerate(order):
        ml, dt = divmod(n, 5)
        a = A2 + n*4
        e(f"v_mfma_f32_16x16x32_bf16 {vr(a,4)}, {vr(12+(i%5)*20+dt*4,4)}, {vr(HR+(i%4)*16+ml*4,4)}, {vr(a,4) if (i or ml == 0) else 0}")
        for f in side[k]: f()
    if i == 10:
        e("s_waitcnt lgkmcnt(0)\nv_cmp_gt_u32 s[42:43], 4, v8"); lg.clear()
        for l in STL:
            e(l)
            if l.startswith("buffer"): vm.issue("sT")
    if i == 12: chk_eval()
stG("g2")
for n_ in range(16, 20):
    e(f"ds_write_b128 v{RED+n_//5-1}, {vr(A2+n_*4,4)} offset:{1024*(n_%5)}"); lg.issue("red")
signal(); chk_read()
e("s_cmp_lg_u64 s[42:43], 0")
spin_lds(8, 2, "4", after=STL, pre_cmp=False, branch="s_cbranch_scc1")
vm.wait_all()
for i in range(3):
    if i == 2: e("s_mov_b32 exec_hi, 0")
    e(f"ds_write_b128 v3, {vr(FS+4*i,4)} offset:{1024*i}"); lg.issue("sw")
e("s_mov_b64 exec, -1")
for dt in range(5):
    e(f"ds_read_b64_tr_b16 {vr(44+2*dt,2)}, v4 offset:{512*dt}"); lg.issue("str")
chk_eval()
stG("rd")
RD = 192
for dt in range(5):
    for s_ in range(3):
        e(f"ds_read_b128 {vr(RD+(s_*5+dt)*4,4)}, v{RED+3} offset:{5120*s_+1024*dt}"); lg.issue(("rd", dt))
SU = 132
e("s_mov_b32 s6, 0xffff0000")
lg.wait("str")
for k in range(10): e(f"v_lshlrev_b32 v{SU+2*k}, 16, v{44+k}\nv_and_b32 v{SU+2*k+1}, s6, v{44+k}")
XU = 152
for k in range(12): e(f"v_lshlrev_b32 v{XU+2*k}, 16, v{FX+k}\nv_and_b32 v{XU+2*k+1}, s6, v{FX+k}")
T = 56
for dt in range(5):
    a = A2 + dt*4
    lg.wait(("rd", dt))
    for k in (0, 1):
        e(f"v_pk_add_f32 {vr(a+2*k,2)}, {vr(a+2*k,2)}, {vr(RD+dt*4+2*k,2)}")
        e(f"v_pk_add_f32 {vr(T+2*k,2)}, {vr(RD+(5+dt)*4+2*k,2)}, {vr(RD+(10+dt)*4+2*k,2)}")
    for k in (0, 1): e(f"v_pk_add_f32 {vr(a+2*k,2)}, {vr(a+2*k,2)}, {vr(T+2*k,2)}")
E_ = 60
for k in range(20): e(f"v_mul_f32 v{E_+k}, {f32(-1.4426950408889634)}, v{A2+k}")
for k in range(20): e(f"v_exp_f32 v{E_+k}, v{E_+k}")
for k in range(10): e(f"v_pk_mul_f32 {vr(A2+2*k,2)}, {vr(A2+2*k,2)}, {vr(SU+2*k,2)}")
for k in range(10): e(f"v_pk_add_f32 {vr(E_+2*k,2)}, {vr(E_+2*k,2)}, 1.0 op_sel_hi:[1,0]")
for k in range(20): e(f"v_rcp_f32 v{E_+k}, v{E_+k}")
for dt in range(5):
    for k in (0, 1): e(f"v_pk_mul_f32 {vr(A2+4*dt+2*k,2)}, {vr(A2+4*dt+2*k,2)}, {vr(E_+4*dt+2*k,2)}")
    for k in (0, 1): e(f"v_cvt_pk_bf16_f32 v{44+2*dt+k}, v{A2+4*dt+2*k}, v{A2+4*dt+2*k+1}")
    e(f"ds_write_b64 v{RED+4}, {vr(44+2*dt,2)} offset:{32*dt}"); lg.issue("pw")
for k in range(3):
    e(f"ds_read_b64 {vr(RD+4*k,2)}, v{FLA+k}\nds_read_b64 {vr(RD+4*k+2,2)}, v{FLA+k} offset:8"); lg.issue(("pr", k)); lg.issue(("pr", k))
for k in range(3):
    lg.wait(("pr", k))
    for q in range(4):
        e(f"v_lshlrev_b32 v{T+2*q}, 16, v{RD+4*k+q}\nv_and_b32 v{T+1+2*q}, s6, v{RD+4*k+q}")
    for q in range(4): e(f"v_pk_add_f32 {vr(T+2*q,2)}, {vr(T+2*q,2)}, {vr(XU+8*k+2*q,2)}")
    for q in range(4): e(f"v_cvt_pk_bf16_f32 v{RD+16+4*k+q}, v{T+2*q}, v{T+2*q+1}")
    if k == 2: e("s_mov_b32 exec_hi, 0")
    e(f"buffer_store_dwordx4 {vr(RD+16+4*k,4)}, v{FXO+k}, s[68:71], s8 offen{OSP}")
stG("end")
stG.flush(60, 61, (0, 1, 8))
e("s_endpgm")

e("L_IDLE:")
e("v_lshrrev_b32 v1, 3, v0\ns_mul_i32 s6, s3, 160\nv_add_u32 v2, s6, v1\nv_mul_u32_u24 v2, 3456, v2\nv_and_b32 v3, 7, v0\nv_lshl_add_u32 v2, v3, 4, v2")
e("v_lshlrev_b32 v4, 8, v1\nv_lshl_add_u32 v4, v3, 5, v4\ns_lshl_b32 s6, s3, 11\nv_add_u32 v4, s6, v4")
e("s_waitcnt lgkmcnt(0)")
e("s_lshl3_add_u32 s47, s5, s4")
e(f"s_lshl_b32 s9, s47, 7\ns_cmp_ge_u32 s47, 27\ns_cselect_b32 s9, {OOB}, s9")
vm.clear()
g_params()
e("s_barrier")
srd(56, 32, 2211840)
e("s_mov_b32 s0, s9")
for i in range(20):
    e(f"buffer_load_dwordx4 {vr(12+4*i,4)}, v2, s[56:59], s0 offen"); vm.issue("cw")
    if i < 19: e(f"s_add_u32 s0, s0, {8*3456}")
srd(56, 34, 3456)
e("v_lshlrev_b32 v5, 1, v0\nbuffer_load_ushort v7, v5, s[56:59], s9 offen"); vm.issue("cw")
srd(52, 16, 2621440); g_srds()
kappa_tab()
helper()
e("s_waitcnt vmcnt(0)\ns_mov_b32 s6, 0xffff0000")
for i in range(20):
    for k in range(4):
        r = 12 + 4*i + k
        if i == 0: e(f"v_lshlrev_b32 v{100+2*k}, 16, v{r}\nv_and_b32 v{101+2*k}, s6, v{r}")
        else: e(f"v_lshlrev_b32 v{92+2*k}, 16, v{r}\nv_and_b32 v{93+2*k}, s6, v{r}")
    if i:
        for k in range(4): e(f"v_pk_add_f32 {vr(100+2*k,2)}, {vr(100+2*k,2)}, {vr(92+2*k,2)}")
e("ds_write_b128 v4, v[100:103]\nds_write_b128 v4, v[104:107] offset:16")
gcommon()
e("s_cmp_eq_u32 s3, 0\ns_cselect_b32 s6, 1, 12\nv_mov_b32 v11, s6\nds_write_b32 v9, v11")
e("s_cbranch_scc0 L_ID2")
wait_lds(8, 10, "1")
e("v_lshlrev_b32 v5, 2, v0")
for k in range(32): e(f"ds_read_b32 v{12+k}, v5 offset:{256*k}")
e("s_waitcnt lgkmcnt(0)")
for st_ in (16, 8, 4, 2, 1):
    for k in range(st_): e(f"v_add_f32 v{12+k}, v{12+k}, v{12+k+st_}")
e("v_mov_b32 v11, 12\nds_write_b32 v9, v11")
e("v_cvt_pk_bf16_f32 v17, v12, v12\nv_lshl_or_b32 v16, v7, 16, v7\nv_and_b32 v13, 0xffff0000, v17\nv_sub_f32 v13, v12, v13\nv_cvt_pk_bf16_f32 v18, v13, v13")
e("v_and_b32 v14, 0xffff0000, v18\nv_sub_f32 v14, v13, v14\nv_cvt_pk_bf16_f32 v19, v12, v14\nv_mov_b32 v20, 0")
e(f"v_lshlrev_b32 v5, 4, v0\ns_lshl_b32 s6, s47, 10\ns_add_u32 s6, s6, {WE}\ns_cmp_ge_u32 s47, 27\ns_cselect_b32 s6, {OOB}, s6")
e("buffer_store_dwordx4 v[16:19], v5, s[48:51], s6 offen sc1")
e(f"v_mov_b32 v2, {REL}")
wait_lds(8, 2, "1", sleep=True)
e(f"s_lshr_b32 s6, s47, 1\ns_mul_i32 s6, s6, {FS_}\ns_add_u32 s6, s6, {FL_E}\ns_cmp_ge_u32 s47, 27\ns_cselect_b32 s6, {OOB}, s6")
e("s_cmp_eq_u32 s47, 26\ns_cselect_b32 s7, 2, 1\nv_mov_b32 v5, s7\ns_waitcnt vmcnt(0)\ns_mov_b64 exec, 1")
e("buffer_atomic_add v5, v20, s[48:51], s6 offen sc1\ns_mov_b64 exec, -1")
e("L_ID2:")
g2_bases()
g2_setup()
wait_lds(12, 254, "2", sleep=True)
if OPT.get("warm", "0") == "1":
    e(f"s_and_b32 s6, s4, 1\ns_lshl2_add_u32 s6, s6, s5\ns_mul_i32 s6, s6, 276480\ns_mul_i32 s7, s3, 69120\ns_add_u32 s6, s6, s7\ns_add_u32 s6, s6, {W2F}\ns_mov_b32 s63, 17")
    e("L_WARM:")
    for k in range(4): e(f"buffer_load_dwordx4 {vr(192+4*k,4)}, v1, s[48:51], s6 offen offset:{1024*k} sc1")
    e(f"s_add_u32 s6, s6, 4096\ns_sub_u32 s63, s63, 1\ns_cmp_lg_u32 s63, 0\ns_cbranch_scc1 L_WARM")
for k in range([0, 2, 5][EW]):
    for op in w2_ops(k): op()
e("s_waitcnt vmcnt(0)")
if STAMPS:
    for r in _stG.regs[:4]: e(f"{MT} s[{r}:{r+1}]")
e("s_branch L_G2")

e("L_AUX:")
if OPT.get("cpf", "0") == "1":
    e("s_getpc_b64 s[96:97]")
    e("L_PC:")
    e(f"s_sub_u32 s96, s96, L_PC-{NAME}_kernel\ns_subb_u32 s97, s97, 0")
    e("s_and_b32 s6, s5, 7\ns_lshl_b32 s6, s6, 6\nv_add_u32 v1, s6, v0\nv_lshlrev_b32 v1, 7, v1")
    e(f"v_min_u32 v1, L_LAST-{NAME}_kernel, v1")
    e("s_cmp_lg_u32 s3, 6\ns_cbranch_scc1 L_PC2")
    e("global_load_dword v255, v1, s[96:97]")
    e("L_PC2:")
_stC = Stamper([76,78,80,82,84,86,88,90,92,94])
CSEL = OPT.get("cst", "ka,x,ln,kg,ex,u,cs,cd,st,pub").split(",")
class _C:
    def __call__(self, name):
        if name in CSEL:
            _stC.n = CSEL.index(name); _stC()
    def flush(self, *a):
        _stC.n = 10; _stC.flush(*a)
stC = _C()
zero_cnt(CNT2)
e("s_sub_u32 s13, s3, 4")
e("s_lshl_b32 s14, s4, 5\ns_add_u32 s14, s14, s5")
e("s_mul_i32 s15, s14, 10240")
e("v_lshrrev_b32 v1, 5, v0\ns_lshl_b32 s6, s13, 1\nv_add_u32 v1, s6, v1\nv_and_b32 v2, 31, v0")
e("v_mul_u32_u24 v3, 1280, v1\nv_lshl_add_u32 v3, v2, 3, v3")
chan_id(13)
e("s_lshl_b32 s10, s8, 8\ns_lshl_b32 s11, s8, 1\nv_lshlrev_b32 v12, 2, v0")
e(f"s_mul_i32 s9, s13, {CHSZ}\ns_add_u32 s9, s9, {CH0}")
e(f"v_mov_b32 v14, 0\nv_mov_b32 v15, {REL}\nds_write_b32 v15, v14")
for i in range(5):
    e(f"v_add_u32 v4, {64*i}, v0\nv_mul_u32_u24 v5, 3277, v4\nv_lshrrev_b32 v5, 16, v5")
    e("v_mul_u32_u24 v6, 20, v5\nv_sub_u32 v6, v4, v6\nv_lshlrev_b32 v6, 4, v6")
    e(f"s_movk_i32 s6, 1280\nv_mad_u32_u24 v{64+i}, v5, s6, v6\ns_movk_i32 s6, {SBW}\nv_mad_u32_u24 v{69+i}, v5, s6, v6\nv_add_u32 v{69+i}, {SB}, v{69+i}")
e("s_waitcnt lgkmcnt(0)")
stC("ka")
XS = 20
def x_rows():
    srd(52, 16, 2621440)
    for i in range(5): e(f"buffer_load_dwordx2 {vr(XS+2*i,2)}, v3, s[52:55], s15 offen offset:{256*i}{ntx}")
KFIRST = OPT.get("kfirst", "0") == "1"
def near_half():
    LAM, CC, YC, FY, FA, KT, TM = 84, 88, 80, 128, 160, [112, 116], 64
    EV = {2.0: 192, 32.0: 196, 1.0: 200, 2048.0: 204}
    e("v_and_b32 v10, 15, v0\nv_lshrrev_b32 v11, 4, v0")
    e(f"v_lshlrev_b32 v12, 3, v0\ns_add_u32 s6, s9, {TAB}\nv_add_u32 v12, s6, v12")
    e(f"v_mul_u32_u24 v14, {TPI}, v10\nv_lshl_add_u32 v14, v11, 4, v14\nv_add_u32 v14, s6, v14")
    e(f"v_mov_b32 v{YC}, 1.0\nv_mov_b32 v{YC+1}, 1.0\nv_mov_b32 v{YC+2}, 0\nv_mov_b32 v{YC+3}, 0")
    e(f"s_add_u32 s10, s9, {TBOFF}")
    e("v_lshlrev_b32 v92, 2, v10\nv_lshl_add_u32 v92, v11, 8, v92\nv_add_u32 v92, s10, v92")
    e("v_lshlrev_b32 v93, 1, v10\nv_lshl_add_u32 v93, v11, 7, v93\nv_add_u32 v93, s10, v93")
    e(f"v_subrev_u32 v15, {CNT2-CNT}, v9")
    e("s_waitcnt vmcnt(5)")
    stC("par")
    k_setup_pk(4, LAM, CC, EV, [2.0, 32.0, 1.0, 2048.0], 2.0, (1.0, 2048.0), TM)
    stC("k0")
    L2 = e.lab("NY")
    e(f"s_mov_b32 s10, 4\nv_mov_b32 v13, v12\n{L2}:")
    chain_pk([(YC, EV[2.0], 0), (CC, EV[32.0], 16)], 4, 0, 13, TM)
    e(f"v_add_u32 v13, {4*TPI}, v13\ns_sub_u32 s10, s10, 1\ns_cmp_lg_u32 s10, 0\ns_cbranch_scc1 {L2}")
    stC("k1")
    e("s_waitcnt lgkmcnt(0)")
    frag_reads(FY, 14, 0); frag_reads(FA, 14, 16)
    e(f"v_cvt_pk_bf16_f32 v76, v{EV[2048.0]}, v{EV[2048.0]+2}\nv_cvt_pk_bf16_f32 v77, v{EV[2048.0]+1}, v{EV[2048.0]+3}")
    k_mfma(KT[0], FA, FY)
    e(f"ds_write_b64 v12, v[76:77] offset:{24*TPI}")
    chain_pk([(EV[1.0], EV[32.0], 0)], 8, 16, 12, TM)
    e("s_waitcnt lgkmcnt(0)")
    frag_reads(FA, 14, 16)
    k_mfma(KT[1], FA, FY)
    for r in range(4): e(f"v_cvt_pk_bf16_f32 v{TM+r}, v{KT[0]+r}, v{KT[1]+r}")
    e("s_mov_b32 exec_hi, 0")
    for r in range(4): e(f"ds_write_b32 v92, v{TM+r} offset:{64*r}")
    e("s_mov_b32 exec_lo, 0\ns_mov_b32 exec_hi, -1")
    for r in range(4): e(f"ds_write_b16 v93, v{TM+r} offset:{256+32*r}")
    e("s_mov_b32 exec_hi, 1")
    e(f"ds_write_b16_d16_hi v93, v{TM} offset:{1280-256}")
    e("s_mov_b64 exec, -1")
e("s_cmp_eq_u32 s3, 7\ns_cbranch_scc1 L_A7")
if not KFIRST: x_rows()
param_loads(4, 12, 14, 10, 11, (56, 60, 64, 68))
srd(60, 28, 1280); e("buffer_load_ushort v19, v14, s[60:63], s11 offen")
if KFIRST: x_rows()
e("s_barrier")
srd(48, 44, WS_SIZE); srd(72, 42, 256)
if KFIRST:
    e("s_cmp_ge_u32 s8, 640\ns_cbranch_scc1 L_A0")
    near_half()
    e("L_A0:")
    e("s_waitcnt vmcnt(0)")
else: e("s_waitcnt vmcnt(6)")
e("s_branch L_LN")
e("L_A7:")
srd(48, 44, WS_SIZE); srd(72, 42, 256)
e("s_cmp_lg_u32 s2, 0\ns_cbranch_scc1 L_A1")
e(f"v_mul_u32_u24 v4, {FS_}, v0")
for r in range(32, 36): e(f"v_mov_b32 v{r}, 0")
for i in range(2):
    e(f"s_mov_b32 s6, {FLB+64*FS_*i}")
    e("buffer_store_dwordx4 v[32:35], v4, s[48:51], s6 offen sc1")
e("s_barrier")
e("s_waitcnt vmcnt(0)")
e("v_mov_b32 v32, 1\ns_mov_b64 exec, 1")
e("buffer_store_dword v32, v14, s[72:75], 0 offen sc1")
e("s_mov_b64 exec, -1")
x_rows()
e("s_branch L_A2")
e("L_A1:")
x_rows()
e("s_barrier")
e("L_A2:")
srd(56, 36, 2211840)
e(f"s_lshr_b32 s6, s2, 2\ns_mul_i32 s10, s6, 40960\ns_and_b32 s7, s2, 3\ns_mul_i32 s11, s7, 320\ns_add_u32 s10, s10, s11\ns_add_u32 s11, s10, 20480")
e("s_waitcnt vmcnt(0)")
e("L_LN:")
if NOAUX == "1": e("s_endpgm")
stC("x")
e(f"v_mul_u32_u24 v16, {SBP}, v1\nv_lshl_add_u32 v16, v2, 3, v16\nv_add_u32 v16, {SB}, v16")
e(f"v_lshlrev_b32 v17, 5, v1\nv_add_u32 v17, {SST}, v17")
XF = 32
for k in range(10): e(f"v_lshlrev_b32 v{XF+2*k}, 16, v{XS+k}\nv_and_b32 v{XF+2*k+1}, 0xffff0000, v{XS+k}")
e(f"v_add_f32 v52, v{XF}, v{XF+1}\nv_mul_f32 v54, v{XF}, v{XF}\nv_add_f32 v53, v{XF+2}, v{XF+3}\nv_mul_f32 v55, v{XF+1}, v{XF+1}")
e(f"v_fmac_f32 v54, v{XF+2}, v{XF+2}\nv_fmac_f32 v55, v{XF+3}, v{XF+3}")
for k in range(4, 20): e(f"v_add_f32 v{52+(k&1)}, v{52+(k&1)}, v{XF+k}\nv_fmac_f32 v{54+(k&1)}, v{XF+k}, v{XF+k}")
e("v_add_f32 v52, v52, v53\nv_add_f32 v54, v54, v55")
for m in ("quad_perm:[1,0,3,2]", "quad_perm:[2,3,0,1]", "row_half_mirror", "row_mirror"):
    e(f"v_add_f32_dpp v52, v52, v52 {m} row_mask:0xf bank_mask:0xf")
    e(f"v_add_f32_dpp v54, v54, v54 {m} row_mask:0xf bank_mask:0xf")
e("ds_swizzle_b32 v53, v52 offset:0x401F\nds_swizzle_b32 v55, v54 offset:0x401F\ns_waitcnt lgkmcnt(0)")
e("v_add_f32 v52, v52, v53\nv_add_f32 v54, v54, v55")
e(f"v_mul_f32 v52, {f32(1/640)}, v52\nv_mul_f32 v54, {f32(1/640)}, v54")
e("v_fma_f32 v54, -v52, v52, v54\nv_max_f32 v54, 0, v54")
def std_bf16(dst, var):
    rb(dst, var); e(f"v_add_f32 v{dst}, {f32(1e-5)}, v{dst}"); rb(dst, dst); e(f"v_sqrt_f32 v{dst}, v{dst}"); rb(dst, dst)
rb(56, 52); std_bf16(57, 54)
e("v_rcp_f32 v58, v57")
for k in range(20): e(f"v_sub_f32 v{XF+k}, v{XF+k}, v56")
for k in range(10): e(f"v_cvt_pk_bf16_f32 v{XS+k}, v{XF+2*k}, v{XF+2*k+1}")
for k in range(10): e(f"v_lshlrev_b32 v{XF+2*k}, 16, v{XS+k}\nv_and_b32 v{XF+2*k+1}, 0xffff0000, v{XS+k}")
for k in range(20): e(f"v_mul_f32 v{XF+k}, v{XF+k}, v58")
for k in range(10):
    e(f"v_cvt_pk_bf16_f32 v{XS+k}, v{XF+2*k}, v{XF+2*k+1}")
    if k & 1: e(f"ds_write_b64 v16, {vr(XS+k-1,2)} offset:{128*(k-1)}")
e("v_sub_f32 v59, v52, v56\nv_mul_f32 v59, v59, v58\nv_mul_f32 v60, v54, v58\nv_mul_f32 v60, v60, v58")
rb(59, 59); std_bf16(61, 60)
C0 = -2*0.7978845608028654*1.4426950408889634
e("v_mul_f32 v46, v57, v61\nv_fma_f32 v63, -v59, v57, -v56\nv_rcp_f32 v62, v46\nv_mov_b32 v47, 0")
rb(32, 46); rb(33, 63)
e("v_sub_f32 v32, v46, v32\nv_sub_f32 v33, v63, v33\nv_mul_f32 v44, v62, v62")
rb(34, 33)
e("v_cvt_pk_bf16_f32 v40, v46, v32\nv_cvt_pk_bf16_f32 v41, v63, v33\nv_sub_f32 v34, v33, v34\nv_mov_b32 v42, v41\nv_cvt_pk_bf16_f32 v43, v34, v63")
e(f"v_mul_f32 v45, {f32(C0)}, v62\nv_mul_f32 v44, {f32(0.044715)}, v44\nv_mul_f32 v44, v44, v45")
e("s_mov_b32 s0, 1\ns_mov_b32 s1, 1\ns_mov_b64 exec, s[0:1]")
e("ds_write_b128 v17, v[40:43]\nds_write_b128 v17, v[44:47] offset:16")
e("s_mov_b64 exec, -1")
e("v_mov_b32 v61, 1\nds_write_b32 v9, v61")
stC("ln")
e("s_cmp_eq_u32 s3, 7\ns_cbranch_scc1 L_S")
e("s_cmp_ge_u32 s8, 640\ns_cbranch_scc1 L_END")
if "k" in EXP: e("s_endpgm")

if not KFIRST:
    e("s_waitcnt vmcnt(0)")
    stC("par")
    LAM, CC, YC, FY, FA, KT = 84, 88, 80, 128, 160, [112, 116]
    EV = {2.0: 192, 32.0: 196, 1.0: 200, 2048.0: 204, 8.0: 208, 128.0: 212, 512.0: 216, 516.0: 220}
    if HELP: k_setup(4, LAM, CC, EV, [2.0, 32.0, 1.0, 2048.0], (2.0,), (1.0, 2048.0), 64)
    else: k_setup(4, LAM, CC, EV, list(EV), (2.0, 8.0), (1.0, 2048.0, 512.0, 516.0), 20)
    e("v_and_b32 v10, 15, v0\nv_lshrrev_b32 v11, 4, v0")
    e(f"v_lshlrev_b32 v12, 3, v0\ns_add_u32 s6, s9, {TAB}\nv_add_u32 v12, s6, v12")
    e(f"v_mul_u32_u24 v14, {TPI}, v10\nv_lshl_add_u32 v14, v11, 4, v14\nv_add_u32 v14, s6, v14")
    y_init(YC)
    stC("k0")
    chain_loop([(YC, EV[2.0], 0), (CC, EV[32.0], 16)], 16, 0, 12, 13, 64, 10)
    stC("k1")
    e("s_waitcnt lgkmcnt(0)")
    frag_reads(FY, 14, 0); frag_reads(FA, 14, 16)
    e(f"v_cvt_pk_bf16_f32 v76, v{EV[2048.0]}, v{EV[2048.0]+1}\nv_cvt_pk_bf16_f32 v77, v{EV[2048.0]+2}, v{EV[2048.0]+3}")
    k_mfma(KT[0], FA, FY)
    e(f"ds_write_b64 v12, v[76:77] offset:{24*TPI}")
    chain_loop([(EV[1.0], EV[32.0], 0)], 8, 16, 12, 13, 64, 10)
    e("s_waitcnt lgkmcnt(0)")
    frag_reads(FA, 14, 16)
    e(f"s_add_u32 s10, s9, {TBOFF}")
    e("v_lshlrev_b32 v20, 2, v10\nv_lshl_add_u32 v20, v11, 8, v20\nv_add_u32 v20, s10, v20")
    e("v_lshlrev_b32 v21, 1, v10\nv_lshl_add_u32 v21, v11, 7, v21\nv_add_u32 v21, s10, v21")
    e(f"v_subrev_u32 v15, {CNT2-CNT}, v9")
    if not HELP: y_init(YC)
    k_mfma(KT[1], FA, FY)
    if not HELP:
        chain_loop([(YC, EV[8.0], 0), (EV[512.0], EV[128.0], 16), (EV[516.0], EV[128.0], 28)][:2], 12, 0, 12, 13, 64, 10)
        chain_loop([(YC, EV[8.0], 0), (EV[516.0], EV[128.0], 16)], 4, 12, 12, 13, 64, 10)
        e("s_waitcnt lgkmcnt(0)")
        frag_reads(FY, 14, 0); frag_reads(FA, 14, 16)
        e(f"s_add_u32 s10, s9, {TBOFF}")
        e("v_lshlrev_b32 v22, 2, v10\nv_lshrrev_b32 v23, 1, v11\nv_lshl_add_u32 v22, v23, 1, v22\nv_add_u32 v22, s10, v22")
        k_mfma(120, FA, FY)
        for r in range(4): e(f"v_cvt_pk_bf16_f32 v{32+r}, v{120+r}, v{120+r}")
        e("s_mov_b32 exec_lo, 0xffff\ns_mov_b32 exec_hi, 0xffff0000")
        for r in range(4): e(f"ds_write_b16 v22, v{32+r} offset:{768+64*r}")
        e("s_mov_b32 exec_lo, 0xffff0000\ns_mov_b32 exec_hi, 0xffff")
        for r in range(4): e(f"ds_write_b16 v21, v{32+r} offset:{896+32*r}")
        e("s_mov_b64 exec, -1")
    for r in range(4): e(f"v_cvt_pk_bf16_f32 v{24+r}, v{KT[0]+r}, v{KT[1]+r}")
    e("s_mov_b32 exec_hi, 0")
    for r in range(4): e(f"ds_write_b32 v20, v{24+r} offset:{64*r}")
    e("s_mov_b32 exec_lo, 0\ns_mov_b32 exec_hi, -1")
    for r in range(4): e(f"ds_write_b16 v21, v{24+r} offset:{256+32*r}")
    e("s_mov_b32 exec_hi, 1")
    e(f"ds_write_b16_d16_hi v21, v24 offset:{1280-256}")
    e("s_mov_b64 exec, -1")
wait_lds(17, 15, OPT.get("expat", "11"), sleep=True)
stC("kg")
if "e" in EXP: e("s_endpgm")
UR = 128
UL = e

e("v_lshlrev_b32 v24, 1, v0\nv_sub_u32 v22, 2047, v24\nv_sub_u32 v23, 2046, v24")
e("v_cvt_f32_i32 v22, v22\nv_cvt_f32_i32 v23, v23")
e(f"v_lshlrev_b32 v21, 2, v0\ns_add_u32 s6, s9, {KOFF-12}\nv_add_u32 v21, s6, v21")
e(f"s_add_u32 s6, s9, {TBOFF}\ns_sub_u32 s7, s6, {2*(0x4300-128)}\nv_mov_b32 v26, s7")
e(f"v_mov_b32 v30, {f32(-128.0)}")
e("v_lshlrev_b32 v27, 1, v24\nv_sub_u32 v27, s6, v27\nv_mov_b32 v28, 0")
def exp_rounds(n, lin=False):
    for k in range(n):
        t = 32 + 4*k
        if lin and k == n-1:
            e(f"ds_read_u16 v{t+1}, v27 offset:254\nds_read_u16 v{t+2}, v27 offset:252")
            continue
        e(f"v_cvt_pk_bf16_f32 v{t}, v22, v23")
        e("v_add_f32 v22, v22, v30\nv_add_f32 v23, v23, v30")
        e(f"v_mad_u32_u16 v{t+1}, v{t}, 2, v26")
        e(f"v_mad_u32_u16 v{t+2}, v{t}, 2, v26 op_sel:[1,0,0,0]")
        e(f"ds_read_u16 v{t+1}, v{t+1}\nds_read_u16 v{t+2}, v{t+2}")
    for k in range(n):
        t = 32 + 4*k
        e(f"s_waitcnt lgkmcnt({min(15, 2*(n-1-k) + 4*k)})")
        e(f"v_lshl_or_b32 v{t}, v{t+2}, 16, v{t+1}")
        for c in range(4): e(f"ds_write_b32 v21, v{t} offset:{c*(KCP+4) + 256*k}")
e("s_mov_b32 s10, 3")
e("L_EXP:")
exp_rounds(4)
e("v_add_u32 v21, 1024, v21")
e("s_sub_u32 s10, s10, 1\ns_cmp_lg_u32 s10, 0\ns_waitcnt lgkmcnt(0)\ns_cbranch_scc1 L_EXP")
exp_rounds(4, lin=True)
e("s_mov_b64 exec, 0x7fff")
for c in range(4): e(f"ds_write_b32 v21, v28 offset:{c*(KCP+4) + 1024}")
e("s_mov_b64 exec, -1")
e("v_mov_b32 v28, 2\nds_write_b32 v9, v28")
stC("ex")
e(f"s_mul_i32 s11, s13, {USZ}\ns_add_u32 s11, s11, {UB0}")
e(f"v_mov_b32 v18, {CNT2+192}")
stC("u")
e("v_lshrrev_b32 v12, 1, v10\nv_lshlrev_b32 v12, 6, v12\nv_lshl_add_u32 v12, v11, 4, v12")
e(f"v_and_b32 v13, 1, v10\nv_xor_b32 v13, 1, v13\nv_mul_u32_u24 v13, {U1OFF}, v13\nv_add_u32 v12, v12, v13")
e(f"s_add_u32 s6, s11, 448\nv_add_u32 v12, s6, v12")
e(f"v_and_b32 v13, 3, v10\nv_mul_u32_u24 v13, {KCP}, v13\nv_lshrrev_b32 v14, 2, v10\nv_sub_u32 v14, v11, v14\nv_lshl_add_u32 v13, v14, 4, v13")
e(f"s_add_u32 s6, s9, {KOFF+4080-3584}\nv_add_u32 v13, s6, v13")
CA, BU, BK = 20, [52, 116], [84, 148]
for r in range(CA, CA+32): e(f"v_mov_b32 v{r}, 0")
e("v_lshlrev_b32 v3, 4, v0\nv_add_u32 v3, s11, v3")
wait_lds(17, 18, "3", sleep=True)
for i in range(4):
    e(f"ds_read_b32 v{115+5*i}, v3 offset:{444+1024*i}")
    e(f"ds_read_b128 {vr(136+4*i,4)}, v3 offset:{448+1024*i}")
for i in range(4):
    e(f"s_waitcnt lgkmcnt({6-2*i+i})")
    e(f"v_alignbit_b32 v{152+4*i}, v{136+4*i}, v{115+5*i}, 16")
    for k in (1, 2, 3): e(f"v_alignbit_b32 v{152+4*i+k}, v{136+4*i+k}, v{136+4*i+k-1}, 16")
    e(f"ds_write_b128 v3, {vr(152+4*i,4)} offset:{U1OFF+448+1024*i}")
e("s_waitcnt lgkmcnt(0)")
def conv_reads(b):
    l = []
    for t in range(8):
        l.append(f"ds_read_b128 {vr(BU[b]+4*t,4)}, v12 offset:{512*t}")
        l.append(f"ds_read_b128 {vr(BK[b]+4*t,4)}, v13 offset:{512*(7-t)}")
    l.append("v_subrev_u32 v12, 64, v12\nv_subrev_u32 v13, 64, v13")
    return l
for l in conv_reads(0): e(l)
if OPT.get("gate", "1") == "1": wait_lds(17, 15, "12", sleep=True)
e(f"s_setprio {OPT.get('cprio', '3')}")
stC("cs")
e("s_mov_b32 s10, 4")
e("L_CV:")
for b in (0, 1):
    e("s_waitcnt lgkmcnt(0)")
    rd = conv_reads(1-b)
    n = 0
    for s_ in range(8):
        for t in range(8 - s_):
            a = CA + 4*(s_+t)
            e(f"v_mfma_f32_16x16x32_bf16 {vr(a,4)}, {vr(BU[b]+4*t,4)}, {vr(BK[b]+4*s_,4)}, {vr(a,4)}")
            if n < len(rd): e(rd[n])
            n += 1
e("s_sub_u32 s10, s10, 1\ns_cmp_lg_u32 s10, 0\ns_cbranch_scc1 L_CV")
stC("cd")
e(f"v_lshlrev_b32 v2, 7, v11\nv_lshl_add_u32 v2, v10, 2, v2\nv_add_u32 v3, s11, v2\ns_add_u32 s6, s9, {KOFF}\nv_add_u32 v2, s6, v2")
e("v_lshlrev_b32 v4, 4, v0\nv_add_u32 v5, s6, v4\nv_lshlrev_b32 v19, 16, v19")
e("s_waitcnt lgkmcnt(0)")
for k in range(16): e(f"ds_read_b32 v{52+k}, v3 offset:{448+512*(k//2)+64*(k%2)}")
e(f"s_lshl_b32 s6, s8, 12\ns_add_u32 s6, s6, {ST}")
for k in range(16):
    if k % 4 == 0: e(f"s_waitcnt lgkmcnt({min(15, 12-k+k)})")
    e(f"v_lshlrev_b32 v{68+2*(k%2)}, 16, v{52+k}\nv_and_b32 v{69+2*(k%2)}, 0xffff0000, v{52+k}")
    e(f"v_fmac_f32 v{CA+2*k}, v{68+2*(k%2)}, v19\nv_fmac_f32 v{CA+2*k+1}, v{69+2*(k%2)}, v19")
    e(f"v_cvt_pk_bf16_f32 v{52+k}, v{CA+2*k}, v{CA+2*k+1}")
    e(f"ds_write_b32 v2, v{52+k} offset:{512*(k//2)+64*(k%2)}")
for i in range(4): e(f"ds_read_b128 {vr(72+4*i,4)}, v5 offset:{1024*i}")
for i in range(4):
    e(f"s_waitcnt lgkmcnt({3-i})")
    e(f"buffer_store_dwordx4 {vr(72+4*i,4)}, v4, s[48:51], s6 offen offset:{1024*i} sc1")
stC("st")
e("s_waitcnt vmcnt(0)")
e(f"s_and_b32 s6, s8, 3\ns_lshl2_add_u32 s6, s4, s6\ns_mul_i32 s6, s6, {FS_}\ns_add_u32 s6, s6, {FL_C}")
e("v_mov_b32 v2, 0\nv_mov_b32 v3, 1\ns_mov_b64 exec, 1")
e("buffer_atomic_add v3, v2, s[48:51], s6 offen sc1")
stC("pub")
stC.flush(4, 5, (4, 9, 7))
e("s_endpgm")

e("L_S:")
stS = Stamper([82,84,86,88,90,92,94,96])
for i in range(10): e(f"buffer_load_dwordx4 {vr(128+4*i,4)}, v{64+i%5}, s[56:59], s{10 + i//5} offen{ntw2}")
e(f"v_lshrrev_b32 v1, 4, v0\nv_lshlrev_b32 v16, 2, v0\nv_add_u32 v16, {CNT2}, v16")
e(f"v_bfe_u32 v13, v0, 2, 2\nv_mul_u32_u24 v13, {SBP}, v13\nv_lshl_add_u32 v13, v1, 5, v13")
e(f"v_and_b32 v2, 3, v0\nv_lshl_add_u32 v13, v2, 3, v13\nv_add_u32 v13, {SB}, v13")
e(f"v_lshlrev_b32 v4, 4, v0\nv_add_u32 v6, {SST}, v4")
e("buffer_load_dword v7, v14, s[72:75], 0 offen sc1")
wait_lds(17, 16, "1")
e("s_mov_b64 exec, 0xffff\nds_read_b128 v[20:23], v6\ns_mov_b64 exec, -1")
for i in range(10):
    e(f"ds_read_b64_tr_b16 {vr(80+4*i,2)}, v13 offset:{128*i}")
    e(f"ds_read_b64_tr_b16 {vr(82+4*i,2)}, v13 offset:{128*i+4*SBP}")
e(f"s_lshl_b32 s6, s14, 8\ns_add_u32 s6, s6, {STATS}")
e("s_waitcnt lgkmcnt(15)\ns_mov_b64 exec, 0xffff")
e("buffer_store_dwordx4 v[20:23], v4, s[48:51], s6 offen sc1")
e("s_mov_b64 exec, -1")
stS()
e(f"v_bfe_u32 v1, v0, 2, 3\nv_lshrrev_b32 v3, 5, v0\nv_lshl_add_u32 v1, v3, 4, v1\nv_mul_u32_u24 v1, {SBW}, v1\nv_lshl_add_u32 v1, v2, 3, v1\nv_add_u32 v1, {SB}, v1")
e(f"s_lshr_b32 s6, s2, 2\ns_mul_i32 s10, s6, 5120\ns_and_b32 s7, s2, 3\ns_mul_i32 s7, s7, {2*276480}\ns_add_u32 s10, s10, s7\ns_add_u32 s10, s10, {W2F}")
e(f"s_cmp_ge_u32 s2, 216\ns_cselect_b32 s10, {OOB}, s10\ns_add_u32 s15, s15, {XNB}")
if "H" in EXP: e(f"s_mov_b32 s10, {OOB}\ns_mov_b32 s15, {OOB}")
def relay(val): e(f"v_mov_b32 v8, {val}\nds_write_b32 v15, v8")
SLP = OPT.get("sleep", "1")
def vpoll(load, chk, target, sl, first=True):
    L = e.lab("AG")
    e(f"s_mov_b32 s12, {SPIN_MAX}")
    if not first: e(f"s_branch {L}_c")
    e(f"{L}:")
    e(load); e("s_waitcnt vmcnt(0)")
    e(f"{L}_c:")
    e(f"v_cmp_gt_u32 vcc, {target}, v{chk}\ns_cbranch_vccz {L}_d\ns_sleep {sl}\ns_sub_u32 s12, s12, 1\ns_cbranch_scc0 {L}")
    e(f"{L}_d:")
def arrive(so): e(f"v_mov_b32 v8, 1\ns_mov_b64 exec, 1\nbuffer_atomic_add v8, v14, s[48:51], {so} offen sc1\ns_mov_b64 exec, -1")
e("s_waitcnt vmcnt(0)")
vpoll("buffer_load_dword v7, v14, s[72:75], 0 offen sc1", 7, 1, 8, first=False)
e(f"s_lshr_b32 s6, s14, 4\ns_mul_i32 s6, s6, {FS_}\ns_add_u32 s6, s6, {FL_T}"); arrive("s6")
e("s_cmp_ge_u32 s5, 4\ns_cbranch_scc1 L_S1"); relay(1); e("L_S1:")
stS()
e("s_waitcnt lgkmcnt(0)")
for i in range(10): e(f"ds_write_b128 v{69+i%5}, {vr(128+4*i,4)} offset:{(i//5)*16*SBW}")
e("s_waitcnt lgkmcnt(0)")
for dt in range(10):
    e(f"ds_read_b64_tr_b16 {vr(128+4*dt,2)}, v1 offset:{32*dt}")
    e(f"ds_read_b64_tr_b16 {vr(130+4*dt,2)}, v1 offset:{32*dt+8*SBW}")
for i in range(10):
    if i in (4, 8): e("s_add_u32 s15, s15, 4096")
    e(f"buffer_store_dwordx4 {vr(80+4*i,4)}, v4, s[48:51], s15 offen offset:{1024*(i%4)} sc1")
e("s_waitcnt lgkmcnt(0)")
for half in (0, 1):
    e(f"s_add_u32 s6, s10, {half*276480}\ns_add_u32 s7, s6, 4096")
    for d5 in range(5):
        r = 128 + (half*5+d5)*4
        if d5 < 4: e(f"buffer_store_dwordx4 {vr(r,4)}, v4, s[48:51], s6 offen offset:{1024*d5} sc1")
        else: e(f"buffer_store_dwordx4 {vr(r,4)}, v4, s[48:51], s7 offen sc1")
e(f"v_add_u32 v18, {CNT-CNT2}, v16\nv_and_b32 v5, 7, v0\nv_mul_u32_u24 v5, {FS_}, v5\nv_add_u32 v5, {FL_A}, v5")
e("s_waitcnt vmcnt(0)")
e(f"s_mul_i32 s6, s4, {FS_}\ns_add_u32 s6, s6, {FL_A}"); arrive("s6")
stS()
e("s_cmp_lt_u32 s5, 4\ns_cbranch_scc1 L_S2")
e(f"s_sub_u32 s6, s5, 4\ns_mul_i32 s7, s6, 37\ns_lshr_b32 s7, s7, 8\ns_mul_i32 s0, s7, 7\ns_sub_u32 s0, s6, s0\ns_lshr_b32 s6, s4, 1\ns_lshl2_add_u32 s6, s6, s7\ns_mul_i32 s6, s6, {FS_}\ns_add_u32 s6, s6, {FL_T}")
e("s_add_u32 s40, s44, s6\ns_addc_u32 s41, s45, 0")
e(f"s_and_b32 s6, s4, 1\ns_mul_i32 s6, s6, 7\ns_add_u32 s6, s6, s0\ns_mul_i32 s6, s6, {FS_}\ns_add_u32 s6, s6, {FL_E}\ns_add_u32 s38, s44, s6\ns_addc_u32 s39, s45, 0")
wait_lds(17, 18, OPT.get("tpollat", "7"), sleep=True)
spoll(40, [0], 16, 4); spoll(38, [0], 2, 4); relay(1)
wait_lds(17, 18, OPT.get("apollat", "8"), sleep=True)
e("s_branch L_S3")
e("L_S2:")
if OPT.get("warm", "0") == "1": spoll(44, [FL_A+FS_*k for k in range(8)], 32, OPT.get("isleep", "12"))
else:
    e(f"v_mov_b32 v16, {CNT2}")
    if "k" not in EXP and "e" not in EXP: wait_lds(17, 16, "2", sleep=True)
e("L_S3:")
stS()
vpoll("buffer_load_dword v7, v5, s[48:51], 0 offen sc1", 7, 32, OPT.get("ssleep", "4")); relay(2)
stS()
g2_ids()
e(f"s_mul_i32 s10, s14, 276480\ns_add_u32 s10, s10, {W2F}")
wait_lds(17, 18, OPT.get("wat", "10"), sleep=True)
if OPT.get("w8", "0") == "1":
    e("s_and_b32 s6, s5, 7\ns_mul_i32 s6, s6, 34560\ns_add_u32 s6, s6, s10")
    for k in range(34):
        e(f"buffer_load_dwordx4 {vr(192+4*(k%16),4)}, v4, s[48:51], s6 offen offset:{1024*(k%4)} sc1")
        if k % 4 == 3: e("s_add_u32 s6, s6, 4096")
e("s_mul_i32 s7, s5, 3\ns_lshl1_add_u32 s8, s5, 16\ns_cmp_lt_u32 s5, 16\ns_cselect_b32 s8, s7, s8\ns_mul_i32 s6, s4, 80\ns_add_u32 s8, s8, s6")
e(f"v_lshrrev_b32 v2, 2, v0\nv_and_b32 v6, 3, v0\nv_mul_u32_u24 v3, 10240, v2\nv_lshl_add_u32 v3, v6, 4, v3")
e(f"s_lshl_b32 s6, s8, 4\ns_add_u32 s6, s6, {XNB}")
for r in range(16):
    e(f"buffer_load_dwordx4 {vr(128+4*r,4)}, v3, s[48:51], s6 offen sc1")
    if r < 15: e("s_add_u32 s6, s6, 163840")
e(f"v_mul_u32_u24 v6, {USZ}, v6\nv_lshl_add_u32 v2, v2, 4, v6\nv_add_u32 v2, {UB0}, v2")
for r in range(20, 24): e(f"v_mov_b32 v{r}, 0")
e(f"v_add_u32 v3, {UB0}, v4")
wait_lds(17, 18, "11", sleep=True)
e("s_mov_b64 exec, 0xfffffff")
for ch in range(3): e(f"ds_write_b128 v3, v[20:23] offset:{ch*USZ}\nds_write_b128 v3, v[20:23] offset:{ch*USZ+U1OFF}")
e("s_mov_b32 exec_lo, 0x77777777\ns_mov_b32 exec_hi, 0x77777777")
for r in range(16):
    e(f"s_waitcnt vmcnt({15-r})")
    e(f"ds_write_b128 v2, {vr(128+4*r,4)} offset:{448+256*r}")
e("s_mov_b64 exec, -1")
e("v_mov_b32 v8, 3\nds_write_b32 v9, v8")
e("v_add_u32 v5, 4096, v4")
for k in range(3):
    e(f"s_add_u32 s6, s15, {5+k}\ns_cmp_ge_u32 s6, 14\ns_cselect_b32 s7, 14, 0\ns_sub_u32 s6, s6, s7\ns_lshl_b32 s6, s6, 2")
    for w in range(4):
        e(f"s_add_u32 s7, s6, {w}\ns_mul_i32 s0, s7, 5120\ns_add_u32 s0, s0, s10\ns_cmp_ge_u32 s7, 54\ns_cselect_b32 s0, {OOB}, s0\ns_mov_b32 m0, {(w*3+k)*5120}\ns_nop 0")
        for dt in range(4): e(f"buffer_load_dwordx4 v4, s[48:51], s0 offen offset:{1024*dt} sc1 lds")
        e(f"s_mov_b32 m0, {(w*3+k)*5120+4096}\ns_nop 0\nbuffer_load_dwordx4 v5, s[48:51], s0 offen sc1 lds")
        e(f"s_waitcnt vmcnt({OPT.get('pfd', '30')})")
stS()
e("s_waitcnt vmcnt(0)"); relay(3)
stS()
wait_lds(17, 18, "13", sleep=True)
e(f"s_mul_i32 s6, s14, {4*FS_}\ns_add_u32 s6, s6, {FL_C}\ns_add_u32 s40, s44, s6\ns_addc_u32 s41, s45, 0")
if "k" not in EXP and "e" not in EXP: spoll(40, [FS_*k for k in range(4)], 20, OPT.get("csleep", "4"))
relay(4)
stS()
stS.regs = [76,78,80] + stS.regs; stS.n += 3
stS.flush(8, 9)
e("L_END:")
e("s_endpgm")
for l in tail[:-1]: e(l)
e("L_LAST:")
e(tail[-1])
if "P" in EXP:
    for c_ in e.I:
        if c_.mn == "buffer_store_dwordx4" and ("v4, s[48:51]" in c_.text): c_.text = c_.text.replace(" sc1", "")
nn = e.fix()

hdr = open("cdna_kernels/" + NAME + ".s.ref").read().split("; Override")[0]
s = hdr + f"; @launch grid=(256,1,1) block=(512,1,1) lds={LDS_TOTAL}\n"
s += f""".amdgcn_target "amdgcn-amd-amdhsa--gfx950"
.text
.globl {NAME}_kernel
.p2align 8
.type {NAME}_kernel,@function
{NAME}_kernel:
"""
s += e.text()
s += f""".section .rodata,"a"
.p2align 6
.amdhsa_kernel {NAME}_kernel
  .amdhsa_next_free_vgpr 256
  .amdhsa_next_free_sgpr 102
  .amdhsa_accum_offset 256
  .amdhsa_group_segment_fixed_size 0
  .amdhsa_kernarg_size 120
  .amdhsa_user_sgpr_count 2
  .amdhsa_user_sgpr_kernarg_segment_ptr 1
  .amdhsa_system_sgpr_workgroup_id_x 1
.end_amdhsa_kernel
"""
open(OUT, "w").write(s)
print("instrs", sum(1 for c in e.I if c.cls), "nops inserted", nn, "lds", LDS_TOTAL)
```

```python
import sys, struct
from emit import Em, Q
NAME = "recurrent_scan__ssm_conv_s4d__mixer_channel_mlp__prompt"
DBGST = "--dbg" in sys.argv
AMP = [a[6:] for a in sys.argv if a.startswith("--amp=")]
STAMPS = "--stamps" in sys.argv or DBGST or bool(AMP)
OPT = dict(rot="0", cpf="1", expat="1", tpollat="7", apollat="9", nt="wp", gprio="0", cprio="1")
OPT.update(a[2:].split("=") for a in sys.argv[1:] if a.startswith("--") and "=" in a)
OUT = [a for a in sys.argv[1:] if not a.startswith("--")]
OUT = OUT[0] if OUT else "k.s"
NOAUX = OPT.get("noaux", "0")
EXP = OPT.get("exp", "")
RELAT = int(OPT.get("relat", "16"))
HELP = OPT.get("help", "1") == "1"
OSP = {"": "", "sc1": " sc1", "nt": " nt", "sc01": " sc0 sc1", "sc1nt": " sc1 nt"}[OPT.get("osp", "")]
NT = OPT.get("nt", "")
ntw2 = " nt" if "w" in NT else ""; ntp = " nt" if "p" in NT else ""; ntx = " nt" if "x" in NT else ""; ntg = " nt" if "g" in NT else ""
MT = "s_memtime" if "--cyc" in sys.argv else "s_memrealtime"

FS_ = int(OPT.get("fs", "128"))
FLB = 0x2C0000 if FS_ > 128 else 0
FL_A, FL_H, FL_C, FL_T, FL_E = [FLB + FS_*k for k in (0, 8, 40, 72, 88)]
STATS = 0x4000
XNB = 0x20000
WE = 0x2B0000
W2F = 0x300000
HF = 0x600000
ST = 0xD00000
STAMP = 0xFC0000
WS_SIZE = 0x1000000
OOB = 0x20000000
KSTEP = 8192
XST = 8 * KSTEP
CH0 = XST + 32768
CHSZ = 18176
SB = CH0 + 3 * CHSZ
SBP, SBW, SBF = 1280, 320, 160
CNT = SB + 10240
CNT2 = CNT + 256
SST = CNT2 + 256
REL = CH0 + 1284
LDS_TOTAL = SST + 256
assert LDS_TOTAL <= 163840, LDS_TOTAL
UB0, USZ, U1OFF = 61440, 9152, 4576
assert UB0 + 3*USZ <= CH0
KOFF, KCP = 1312, 4160
TBOFF, TAB, TPI = 0, 1296, 528
SPIN_MAX = 1 << 18
LOG2E = 0x3fb8aa3b
INV2PI = 0x3e22f983

e = Em()
tail = []
def f32(x): return "0x%08x" % struct.unpack("<I", struct.pack("<f", x))[0]
def srd(r, ptr, size):
    e(f"s_mov_b32 s{r}, s{ptr}\ns_mov_b32 s{r+1}, s{ptr+1}\ns_mov_b32 s{r+2}, {size}\ns_mov_b32 s{r+3}, 0x20000")
def vr(a, n): return f"v[{a}:{a+n-1}]"

class Stamper:
    def __init__(self, regs): self.regs = regs; self.n = 0
    def __call__(self):
        if not STAMPS: return
        r = self.regs[self.n]; self.n += 1
        e(f"{MT} s[{r}:{r+1}]")
    def flush(self, v0, v1, dbg=None):
        if not STAMPS: return
        e("s_waitcnt lgkmcnt(0)")
        if AMP:
            aw, ai = (AMP[0].split(":") + [None])[:2] if ":" in AMP[0] else ("0", AMP[0])
            if dbg is None or dbg[0] != int(aw): return
            r = self.regs[int(ai)]
            L = e.lab("AMP")
            e(f"s_cmp_lg_u32 s2, {OPT.get('ampwg', '100')}\ns_cbranch_scc1 {L}_e\ns_cmp_lg_u32 s3, {aw}\ns_cbranch_scc1 {L}_e")
            e(f"s_sub_u32 s6, s{r}, s46\ns_lshl_b32 s6, s6, 2\ns_min_u32 s6, s6, 20000\ns_memrealtime s[8:9]\ns_waitcnt lgkmcnt(0)")
            e(f"{L}:\ns_sleep 1\ns_memrealtime s[10:11]\ns_waitcnt lgkmcnt(0)\ns_sub_u32 s10, s10, s8\ns_cmp_lt_u32 s10, s6\ns_cbranch_scc1 {L}\n{L}_e:")
            return
        if DBGST:
            if dbg is None: return
            wave, off, n = dbg
            L = e.lab("NODBG")
            e(f"s_cmp_lg_u32 s2, 100\ns_cbranch_scc1 {L}\ns_cmp_lg_u32 s3, {wave}\ns_cbranch_scc1 {L}")
            e(f"v_mov_b32 v{v1}, 0\ns_mov_b64 exec, 1")
            for i, r in enumerate(self.regs[:n]):
                e(f"s_sub_u32 s{r}, s{r}, s46\nv_mov_b32 v{v0}, s{r}")
                e(f"buffer_store_dword v{v0}, v{v1}, s[72:75], 0 offen offset:{4*(off+i)}")
                e("s_nop 0")
            e("s_waitcnt vmcnt(0)")
            e(f"{L}:")
            return
        e("s_lshl_b32 s6, s2, 3\ns_add_u32 s6, s6, s3\ns_lshl_b32 s6, s6, 6")
        e(f"s_add_u32 s6, s6, {STAMP}")
        e(f"v_mov_b32 v{v1}, 0")
        e("s_mov_b64 exec, 1")
        for i, r in enumerate([46] + self.regs[:self.n]):
            e(f"v_mov_b32 v{v0}, s{r}")
            e(f"buffer_store_dword v{v0}, v{v1}, s[48:51], s6 offen offset:{4*i}")
            e("s_nop 0")
        e("s_waitcnt vmcnt(0)")

def spin_lds(vchk, vaddr, val, sleep=False, after=(), pre_cmp=True, branch="s_cbranch_vccnz"):
    if NOAUX != "0" and not val.startswith("v"): return
    L = e.lab("SPIN"); B = e.lab("BACK")
    if pre_cmp: e(f"v_cmp_gt_u32 vcc, {val}, v{vchk}")
    e(f"{branch} {L}")
    e(f"{B}:")
    D = f"{L}_d" if after else B
    tail.extend([f"{L}:", f"s_mov_b32 s12, {SPIN_MAX*8}", f"{L}_a:"] + (["s_sleep 1"] if sleep else []) +
                [f"ds_read_b32 v{vchk}, v{vaddr}", "s_waitcnt lgkmcnt(0)",
                 f"v_cmp_gt_u32 vcc, {val}, v{vchk}", f"s_cbranch_vccz {D}", "s_sub_u32 s12, s12, 1", f"s_cbranch_scc0 {L}_a"] +
                ([f"{D}:"] + list(after) if after else []) + [f"s_branch {B}"])
def wait_lds(vchk, vaddr, val, sleep=False):
    e(f"ds_read_b32 v{vchk}, v{vaddr}\ns_waitcnt lgkmcnt(0)")
    spin_lds(vchk, vaddr, val, sleep)
def spoll(base, offs, target, sl, r0=16):
    if NOAUX != "0": return
    L = e.lab("AG")
    e(f"s_mov_b32 s12, {SPIN_MAX}")
    e(f"{L}:")
    for k, o in enumerate(offs): e(f"s_load_dword s{r0+k}, s[{base}:{base+1}], {o} glc")
    e("s_waitcnt lgkmcnt(0)")
    for k in range(1, len(offs)): e(f"s_min_u32 s{r0}, s{r0}, s{r0+k}")
    e(f"s_cmp_ge_u32 s{r0}, {target}\ns_cbranch_scc1 {L}_d\ns_sleep {sl}\ns_sub_u32 s12, s12, 1\ns_cbranch_scc0 {L}")
    e(f"{L}_d:")
def rb(dst, src):
    e(f"v_cvt_pk_bf16_f32 v{dst}, v{src}, v{src}\nv_and_b32 v{dst}, 0xffff0000, v{dst}")
def zero_cnt(base):
    e(f"s_and_b32 s6, s3, 3\ns_lshl_b32 s6, s6, 6\ns_add_u32 s6, s6, {base}")
    e("v_and_b32 v9, 15, v0\nv_lshlrev_b32 v9, 2, v9\nv_add_u32 v9, s6, v9\nv_mov_b32 v11, 0")
    e("ds_write_b32 v9, v11")

e("s_cmp_ge_u32 s2, 256")
e("s_cbranch_scc1 L_END")
if STAMPS: e(f"{MT} s[46:47]")
e("s_load_dwordx16 s[16:31], s[0:1], 0")
e("s_load_dwordx8 s[32:39], s[0:1], 64")
e("s_load_dwordx4 s[40:43], s[0:1], 96")
e("s_load_dwordx2 s[44:45], s[0:1], 112")
e("v_lshrrev_b32 v1, 6, v0")
e("v_and_b32 v0, 63, v0")
e("v_readfirstlane_b32 s3, v1")
e("s_and_b32 s4, s2, 7")
e("s_lshr_b32 s5, s2, 3")
if OPT.get("idlelast", "1") == "1": e("s_add_u32 s5, s5, 4\ns_and_b32 s5, s5, 31")
e("s_cmp_ge_u32 s3, 4")
e("s_cbranch_scc1 L_AUX")

def chan_id(cw):
    e("s_mul_i32 s7, s5, 3\ns_lshl1_add_u32 s8, s5, 16\ns_cmp_lt_u32 s5, 16\ns_cselect_b32 s8, s7, s8\ns_cselect_b32 s7, 3, 2")
    e(f"s_add_u32 s8, s8, s{cw}\ns_mul_i32 s6, s4, 80\ns_add_u32 s8, s8, s6\ns_cmp_ge_u32 s{cw}, s7\ns_cselect_b32 s8, 640, s8")
def param_loads(P, voff, vz, so, so2, R):
    for k, p in enumerate((18, 20, 22, 24)):
        srd(R[k], p, 163840)
        e(f"buffer_load_dword v{P+k}, v{voff}, s[{R[k]}:{R[k]+3}], s{so} offen{ntp}")
    srd(R[0], 26, 1280); e(f"buffer_load_ushort v{P+4}, v{vz}, s[{R[0]}:{R[0]+3}], s{so2} offen")
def k_setup_pk(P, LAM, CC, EV, PS, conj, starts, TM):
    DT = P + 4
    e(f"v_lshlrev_b32 v{DT}, 16, v{DT}\nv_mul_f32 v{DT}, {LOG2E}, v{DT}\nv_exp_f32 v{DT}, v{DT}")
    for k, d in enumerate((LAM, LAM+2, CC, CC+2)): e(f"v_lshlrev_b32 v{d}, 16, v{P+k}\nv_and_b32 v{d+1}, 0xffff0000, v{P+k}")
    rb(DT, DT)
    for n in (0, 1): e(f"v_mul_f32 v{LAM+n}, {LOG2E}, v{LAM+n}")
    for n in (0, 1): e(f"v_exp_f32 v{LAM+n}, v{LAM+n}")
    e(f"v_add_f32 v{P}, v{DT}, v{DT}")
    e(f"v_cvt_pk_bf16_f32 v{P+1}, v{LAM}, v{LAM+1}\nv_lshlrev_b32 v{LAM}, 16, v{P+1}\nv_and_b32 v{LAM+1}, 0xffff0000, v{P+1}")
    for d in (LAM, LAM+2): e(f"v_pk_mul_f32 {vr(d,2)}, {vr(d,2)}, {vr(DT,2)} op_sel_hi:[1,0]")
    for d in (CC, CC+2): e(f"v_pk_mul_f32 {vr(d,2)}, {vr(d,2)}, {vr(P,2)} op_sel_hi:[1,0]")
    for n in (0, 1): e(f"v_mul_f32 v{LAM+n}, {f32(-1.4426950408889634)}, v{LAM+n}\nv_mul_f32 v{LAM+2+n}, {INV2PI}, v{LAM+2+n}")
    for i, p in enumerate(PS):
        for k in range(4): e(f"v_mul_f32 v{TM+4*i+k}, {f32(p)}, v{LAM+k}")
    for i, p in enumerate(PS):
        for n in (0, 1): e(f"v_exp_f32 v{TM+4*i+n}, v{TM+4*i+n}\nv_fract_f32 v{TM+4*i+2+n}, v{TM+4*i+2+n}")
    for i, p in enumerate(PS):
        for n in (0, 1): e(f"v_cos_f32 v{EV[p]+n}, v{TM+4*i+2+n}\nv_sin_f32 v{EV[p]+2+n}, v{TM+4*i+2+n}")
    for i, p in enumerate(PS):
        e(f"v_pk_mul_f32 {vr(EV[p],2)}, {vr(EV[p],2)}, {vr(TM+4*i,2)}")
        e(f"v_pk_mul_f32 {vr(EV[p]+2,2)}, {vr(EV[p]+2,2)}, {vr(TM+4*i,2)}" + (" neg_lo:[1,0] neg_hi:[1,0]" if p == conj else ""))
    pk_step([(EV[p], CC, TM+2*i) for i, p in enumerate(starts)])
def pk_step(g, mid=()):
    for (z, m, t) in g: e(f"v_pk_mul_f32 {vr(t,2)}, {vr(z+2,2)}, {vr(m+2,2)}")
    for l in mid: e(l)
    for (z, m, t) in g: e(f"v_pk_mul_f32 {vr(z+2,2)}, {vr(z+2,2)}, {vr(m,2)}")
    for (z, m, t) in g: e(f"v_pk_fma_f32 {vr(z+2,2)}, {vr(z,2)}, {vr(m+2,2)}, {vr(z+2,2)}")
    for (z, m, t) in g: e(f"v_pk_fma_f32 {vr(z,2)}, {vr(z,2)}, {vr(m,2)}, {vr(t,2)} neg_lo:[0,0,1] neg_hi:[0,0,1]")
def chain_pk(ch, n, row0, VB, TM):
    for u in range(n):
        for i, (z, m, off) in enumerate(ch):
            e(f"v_cvt_pk_bf16_f32 v{TM+4*(u&1)+2*i}, v{z}, v{z+2}\nv_cvt_pk_bf16_f32 v{TM+1+4*(u&1)+2*i}, v{z+1}, v{z+3}")
        wr = [f"ds_write_b64 v{VB}, {vr(TM+4*(u&1)+2*i,2)} offset:{(row0+off+u)*TPI}" for i, (z, m, off) in enumerate(ch)]
        pk_step([(z, m, TM+8+2*i) for i, (z, m, off) in enumerate(ch)], wr)
def k_setup(P, LAM, CC, EV, PS, conj, starts, TM):
    DT = P + 4
    e(f"v_lshlrev_b32 v{DT}, 16, v{DT}\nv_mul_f32 v{DT}, {LOG2E}, v{DT}\nv_exp_f32 v{DT}, v{DT}")
    for n in (0, 1):
        up = (lambda d, s: e(f"v_lshlrev_b32 v{d}, 16, v{s}")) if n == 0 else (lambda d, s: e(f"v_and_b32 v{d}, 0xffff0000, v{s}"))
        up(LAM+2*n, P); up(LAM+2*n+1, P+1); up(CC+2*n, P+2); up(CC+2*n+1, P+3)
    rb(DT, DT)
    for n in (0, 1): e(f"v_mul_f32 v{LAM+2*n}, {LOG2E}, v{LAM+2*n}")
    for n in (0, 1): e(f"v_exp_f32 v{LAM+2*n}, v{LAM+2*n}")
    e(f"v_add_f32 v{P}, v{DT}, v{DT}")
    for n in (0, 1): rb(LAM+2*n, LAM+2*n)
    for n in (0, 1):
        e(f"v_mul_f32 v{LAM+2*n}, v{LAM+2*n}, v{DT}\nv_mul_f32 v{LAM+2*n+1}, v{LAM+2*n+1}, v{DT}")
        e(f"v_mul_f32 v{CC+2*n}, v{CC+2*n}, v{P}\nv_mul_f32 v{CC+2*n+1}, v{CC+2*n+1}, v{P}")
    for n in (0, 1):
        e(f"v_mul_f32 v{LAM+2*n}, {f32(-1.4426950408889634)}, v{LAM+2*n}\nv_mul_f32 v{LAM+2*n+1}, {INV2PI}, v{LAM+2*n+1}")
    it = [(p, n) for p in PS for n in (0, 1)]
    tm = {k: TM + 2*i for i, k in enumerate(it)}
    for (p, n) in it:
        if p == 1.0: e(f"v_exp_f32 v{tm[p,n]}, v{LAM+2*n}\nv_fract_f32 v{tm[p,n]+1}, v{LAM+2*n+1}")
        else: e(f"v_mul_f32 v{tm[p,n]}, {f32(p)}, v{LAM+2*n}\nv_mul_f32 v{tm[p,n]+1}, {f32(p)}, v{LAM+2*n+1}")
    for (p, n) in it:
        if p != 1.0: e(f"v_exp_f32 v{tm[p,n]}, v{tm[p,n]}\nv_fract_f32 v{tm[p,n]+1}, v{tm[p,n]+1}")
    for (p, n) in it: e(f"v_cos_f32 v{EV[p]+2*n}, v{tm[p,n]+1}\nv_sin_f32 v{EV[p]+2*n+1}, v{tm[p,n]+1}")
    for (p, n) in it:
        neg = "-" if p in conj else ""
        e(f"v_mul_f32 v{EV[p]+2*n}, v{EV[p]+2*n}, v{tm[p,n]}")
        e(f"v_mul_f32 v{EV[p]+2*n+1}, {neg}v{EV[p]+2*n+1}, v{tm[p,n]}")
    g_ = [(EV[p]+2*n, CC+2*n, TM+2*i+n) for i, p in enumerate(starts) for n in (0, 1)]
    for (z, m, t) in g_: e(f"v_mul_f32 v{t}, v{z+1}, v{m+1}")
    for (z, m, t) in g_: e(f"v_mul_f32 v{z+1}, v{z+1}, v{m}")
    for (z, m, t) in g_: e(f"v_fmac_f32 v{z+1}, v{z}, v{m+1}")
    for (z, m, t) in g_: e(f"v_fma_f32 v{z}, v{z}, v{m}, -v{t}")
def chain_loop(ch, n, row0, VB, VA, TM, SC):
    L = e.lab("KL")
    UN = min(n, int(OPT.get("kun", "4")))
    if n > UN: e(f"s_mov_b32 s{SC}, {n//UN}")
    e(f"v_add_u32 v{VA}, {row0*TPI}, v{VB}")
    e(f"{L}:")
    for u in range(UN):
        for i, (z, m, off) in enumerate(ch):
            e(f"v_cvt_pk_bf16_f32 v{TM+4*(u&1)+2*i}, v{z}, v{z+1}\nv_cvt_pk_bf16_f32 v{TM+1+4*(u&1)+2*i}, v{z+2}, v{z+3}")
        g = [(z+2*k, m+2*k, TM+8+2*i+k) for i, (z, m, off) in enumerate(ch) for k in (0, 1)]
        for (z, m, t) in g: e(f"v_mul_f32 v{t}, v{z+1}, v{m+1}")
        for i, (z, m, off) in enumerate(ch): e(f"ds_write_b64 v{VA}, {vr(TM+4*(u&1)+2*i,2)} offset:{(off+u)*TPI}")
        for (z, m, t) in g: e(f"v_mul_f32 v{z+1}, v{z+1}, v{m}")
        if u == UN-1 and n > UN: e(f"v_add_u32 v{VA}, {UN*TPI}, v{VA}")
        for (z, m, t) in g: e(f"v_fmac_f32 v{z+1}, v{z}, v{m+1}")
        if u == UN-1 and n > UN: e(f"s_sub_u32 s{SC}, s{SC}, 1\ns_cmp_lg_u32 s{SC}, 0")
        for (z, m, t) in g: e(f"v_fma_f32 v{z}, v{z}, v{m}, -v{t}")
    if n > UN: e(f"s_cbranch_scc1 {L}")
def y_init(Y): e(f"v_mov_b32 v{Y}, 1.0\nv_mov_b32 v{Y+1}, 0\nv_mov_b32 v{Y+2}, 1.0\nv_mov_b32 v{Y+3}, 0")
def frag_reads(dst, VF, row0):
    for s_ in range(8): e(f"ds_read_b128 {vr(dst+4*s_,4)}, v{VF} offset:{64*s_+row0*TPI}")
def k_mfma(K, FA, FY):
    for s_ in range(8):
        e(f"s_waitcnt lgkmcnt({7-s_})")
        e(f"v_mfma_f32_16x16x32_bf16 {vr(K,4)}, {vr(FA+4*s_,4)}, {vr(FY+4*s_,4)}, {vr(K,4) if s_ else 0}")
def g2_ids():
    e("s_and_b32 s6, s5, 7\ns_lshr_b32 s13, s4, 1\ns_lshl3_add_u32 s13, s13, s6\ns_lshr_b32 s7, s5, 3\ns_and_b32 s14, s4, 1\ns_lshl2_add_u32 s14, s14, s7")
    e("s_mul_i32 s15, s7, 7\ns_lshr_b32 s15, s15, 1")

_stG = Stamper([30,32,34,36,38,96,98,100])
GSEL = OPT.get("gst", "c0,g1,ep,hp,hs,g2,rd,end").split(",")
class _G:
    def __call__(self, name):
        if name in GSEL:
            _stG.n = GSEL.index(name); _stG()
    def flush(self, *a):
        _stG.n = 8; _stG.flush(*a)
stG = _G()
vm = Q(e, "vmcnt", 63); lg = Q(e, "lgkmcnt", 15)
XR, VXA, WB = 48, 244, 80
ACC = 112
VCHK, VREL = 250, 251
WEF, XEF, XEC = 176, 192, 196
sK = [76+i for i in range(14)]
HP = 112
e(f"s_setprio {OPT.get('gprio', '2')}")
zero_cnt(CNT)
e("v_lshrrev_b32 v10, 4, v0")
e("v_and_b32 v8, 15, v0")
g2_ids()
if HELP: chan_id(3)
if HELP: e(f"s_lshl_b32 s60, s8, 8\ns_lshl_b32 s61, s8, 1\ns_mov_b32 s62, s8\nv_lshlrev_b32 v117, 2, v0\nv_mov_b32 v118, 0")
e("s_cmp_lt_u32 s5, 4")
e("s_cbranch_scc1 L_IDLE")
e("s_sub_u32 s6, s5, 4\ns_mul_i32 s7, s6, 37\ns_lshr_b32 s7, s7, 8\ns_mul_i32 s8, s7, 7\ns_sub_u32 s6, s6, s8")
e("s_lshr_b32 s8, s4, 1\ns_lshl_b32 s8, s8, 2\ns_add_u32 s8, s8, s7")
e("s_and_b32 s9, s4, 1\ns_mul_i32 s9, s9, 7\ns_add_u32 s9, s9, s6")
e("s_lshl_b32 s11, s9, 8")
ROT = OPT.get("rot", "1") != "0"
sW = list(range(16, 26)); sX = [26, 27, 28, 29, 90, 91, 92, 93, 94, 95]
if ROT:
    e("s_mul_i32 s12, s6, 370\ns_lshr_b32 s12, s12, 8\ns_mul_i32 s7, s7, 5\ns_lshr_b32 s7, s7, 1\ns_add_u32 s12, s12, s7")
    e("s_cmp_ge_u32 s12, 10\ns_cselect_b32 s7, 10, 0\ns_sub_u32 s12, s12, s7")
def rot_tab(ps):
    if not ROT: return
    for p in ps:
        if p: e("s_add_u32 s12, s12, 1\ns_cmp_eq_u32 s12, 10\ns_cselect_b32 s12, 0, s12")
        e(f"s_mul_i32 s{sW[p]}, s12, 221184\ns_add_u32 s{sW[p]}, s{sW[p]}, s11\ns_lshl_b32 s{sX[p]}, s12, 7")
e("v_bfe_u32 v1, v0, 2, 2\ns_lshl_b32 s6, s3, 3\nv_add_u32 v1, s6, v1\nv_mul_u32_u24 v1, 3456, v1")
e("v_lshl_add_u32 v1, v10, 6, v1\nv_and_b32 v2, 3, v0\nv_lshl_add_u32 v1, v2, 4, v1")
e(f"v_add_u32 v2, {4*3456-1024}, v1")
e("s_lshl_b32 s6, s8, 7\ns_lshl_b32 s7, s3, 5\ns_add_u32 s6, s6, s7")
e("v_lshrrev_b32 v5, 3, v0\nv_add_u32 v3, s6, v5\nv_mul_u32_u24 v3, 1280, v3\nv_and_b32 v6, 7, v0\nv_lshrrev_b32 v5, 1, v5\nv_xor_b32 v6, v6, v5")
e(f"v_xor_b32 v5, 4, v6\nv_lshl_add_u32 v4, v5, 4, v3\nv_add_u32 v4, {10240-1024}, v4\nv_lshl_add_u32 v3, v6, 4, v3")
e(f"s_lshl_b32 s10, s3, 13\ns_add_u32 s10, s10, {XST}")
e("s_waitcnt lgkmcnt(0)")
def g_params():
    if not HELP: return
    param_loads(HP, 117, 118, 60, 61, (64, 68, 72, 48))
    for _ in range(5): vm.issue("par")
g_params()
e("s_barrier")
e("s_lshl_b32 s1, s3, 11")
srd(56, 32, 2211840); srd(52, 16, 2621440)
rot_tab(range(1))
def w_ops(step):
    def a():
        if ROT: e(f"s_add_u32 m0, s1, {(step % 8)*KSTEP}\ns_add_u32 s0, s{sW[step//2]}, {(step % 2)*110592}")
        else: e(f"s_add_u32 m0, s1, {(step % 8)*KSTEP}\ns_add_u32 s0, s11, {step*110592}")
        e(f"buffer_load_dwordx4 v1, s[56:59], s0 offen{ntg} lds"); vm.issue(("w", step//2))
    def b():
        e(f"buffer_load_dwordx4 v2, s[56:59], s0 offen offset:1024{ntg} lds"); vm.issue(("w", step//2))
    return [a, b]
def x_ops(u):
    def a():
        if ROT: e(f"s_add_u32 m0, s10, {(u % 4)*2048}\ns_add_u32 s0, s{sX[u//2]}, {(u % 2)*20480}")
        else: e(f"s_add_u32 m0, s10, {(u % 4)*2048}\ns_mov_b32 s0, {(u//2)*128 + (u % 2)*20480}")
        e("buffer_load_dwordx4 v3, s[52:55], s0 offen lds"); vm.issue(("x", u))
    def b():
        e("buffer_load_dwordx4 v4, s[52:55], s0 offen offset:1024 lds"); vm.issue(("x", u))
    return [a, b]
def x_read(c, kk):
    if kk == 0: vm.wait(("x", 2*c+1))
    e(f"ds_read_b128 {vr(XR+(c%2)*16+4*kk,4)}, v{VXA+kk} offset:{(c%2)*4096}"); lg.issue(("xr", c, kk))
for op in w_ops(0) + x_ops(0) + x_ops(1) + w_ops(1): op()
def g_srds(): srd(48, 44, WS_SIZE); srd(64, 38, 1280); srd(68, 40, 2621440); srd(72, 42, 256)
g_srds()
rot_tab(range(1, 10))
NP2 = int(OPT.get("np2", "0"))
late = (w_ops(2) + w_ops(3) + x_ops(2) + x_ops(3))
for op in late[:NP2]: op()
def helper(mid=((), ())):
    if not HELP:
        for op in list(mid[0]) + list(mid[1]): op()
        return
    LAM, CC, TM, YC, FY, FA, KT = 120, 124, 144, 160, 176, 208, 240
    EV = {8.0: 128, 128.0: 132, 512.0: 136, 516.0: 140}
    e("s_cmp_ge_u32 s62, 640" if "n" not in EXP else "s_cmp_ge_u32 s62, 0")
    L = e.lab("NOH")
    e(f"s_cbranch_scc1 {L}")
    e(f"s_mul_i32 s6, s3, {16*TPI}\ns_add_u32 s6, s6, {4*KSTEP}\nv_lshlrev_b32 v164, 3, v0\nv_add_u32 v164, s6, v164")
    e(f"v_mul_u32_u24 v165, {TPI}, v8\nv_lshl_add_u32 v165, v10, 4, v165\nv_add_u32 v165, s6, v165")
    e(f"s_mul_i32 s6, s3, {CHSZ}\ns_add_u32 s6, s6, {CH0+TBOFF}")
    e("v_lshlrev_b32 v167, 1, v8\nv_lshl_add_u32 v167, v10, 7, v167\nv_add_u32 v167, s6, v167")
    e("v_lshlrev_b32 v168, 2, v8\nv_lshrrev_b32 v169, 1, v10\nv_lshl_add_u32 v168, v169, 1, v168\nv_add_u32 v168, s6, v168")
    e(f"v_mov_b32 v{YC}, 1.0\nv_mov_b32 v{YC+1}, 1.0\nv_mov_b32 v{YC+2}, 0\nv_mov_b32 v{YC+3}, 0")
    vm.wait("par")
    stG("par")
    k_setup_pk(HP, LAM, CC, EV, [8.0, 128.0, 512.0, 516.0], 8.0, (512.0, 516.0), TM)
    for op in mid[0]: op()
    L2 = e.lab("HY")
    e(f"s_mov_b32 s63, 4\nv_mov_b32 v166, v164\n{L2}:")
    chain_pk([(YC, EV[8.0], 0)], 4, 0, 166, TM)
    e(f"v_add_u32 v166, {4*TPI}, v166\ns_sub_u32 s63, s63, 1\ns_cmp_lg_u32 s63, 0\ns_cbranch_scc1 {L2}")
    frag_reads(FY, 165, 0)
    for op in mid[1]: op()
    chain_pk([(EV[512.0], EV[128.0], 0), (EV[516.0], EV[128.0], 12)], 4, 0, 164, TM)
    chain_pk([(EV[512.0], EV[128.0], 0)], 8, 4, 164, TM)
    frag_reads(FA, 165, 0)
    k_mfma(KT, FA, FY)
    for r in range(4): e(f"v_cvt_pk_bf16_f32 v{TM+r}, v{KT+r}, v{KT+r}")
    e("s_mov_b32 exec_lo, 0xffff\ns_mov_b32 exec_hi, 0xffff0000")
    for r in range(4): e(f"ds_write_b16 v168, v{TM+r} offset:{768+64*r}")
    e("s_mov_b32 exec_lo, 0xffff0000\ns_mov_b32 exec_hi, 0xffff")
    for r in range(4): e(f"ds_write_b16 v167, v{TM+r} offset:{896+32*r}")
    e("s_mov_b64 exec, -1")
    if mid[0] or mid[1]:
        q = list(vm.q)
        e(f"s_branch {L}_j\n{L}:")
        for op in list(mid[0]) + list(mid[1]): op()
        vm.q = q
        e(f"{L}_j:")
    else: e(f"{L}:")
def kappa_tab():
    e("s_mov_b32 s6, s15")
    for i in range(14):
        if i: e("s_add_u32 s6, s6, 1\ns_cmp_eq_u32 s6, 14\ns_cselect_b32 s6, 0, s6")
        e(f"s_lshl2_add_u32 s7, s6, s3\ns_cmp_ge_u32 s7, 54\ns_cselect_b32 s7, {0x8000000>>10}, s7\ns_lshl_b32 s{sK[i]}, s7, 10")
if OPT.get("kapearly", "0") == "1": kappa_tab()
e("v_lshrrev_b32 v7, 5, v0\nv_lshlrev_b32 v5, 11, v7\nv_bfe_u32 v6, v0, 2, 2\nv_lshl_add_u32 v5, v6, 6, v5\nv_bfe_u32 v6, v0, 4, 1\nv_lshl_add_u32 v5, v6, 5, v5\nv_and_b32 v6, 3, v0\nv_lshl_add_u32 v5, v6, 3, v5")
e(f"v_bfe_u32 v6, v0, 1, 3\nv_xor_b32 v6, v6, v7\nv_lshlrev_b32 v6, 4, v6\nv_and_b32 v253, 31, v0\nv_lshl_add_u32 v6, v253, 7, v6")
for kk in range(4): e(f"v_xor_b32 v{VXA+kk}, {32*kk}, v6\nv_add_u32 v{VXA+kk}, s10, v{VXA+kk}")
e(f"v_mov_b32 v252, {OOB}\nv_cmp_gt_u32 vcc, 32, v0\nv_lshlrev_b32 v6, 4, v253\nv_lshlrev_b32 v253, 5, v253\nv_cndmask_b32 v6, v252, v6, vcc\nv_cndmask_b32 v7, v252, v253, vcc")
e(f"v_lshlrev_b32 v250, 2, v0\nv_add_u32 v250, {CNT}, v250")
vq = list(vm.q)
if OPT.get("mid", "1") == "1":
    helper((late[NP2:4], late[4:]))
    vm.q = vq + vm.q[len(vm.q)-(8-NP2):]
else:
    helper()
    vm.q = vq
    for op in late[NP2:]: op()
stG("hlp")
def gcommon():
    e(f"v_lshlrev_b32 v10, 2, v0\nv_add_u32 v10, {CNT}, v10")
def w2_ops(i):
    ops = []
    for dt in range(5):
        def f(dt=dt):
            if dt == 0: e(f"s_lshl2_add_u32 s0, s{sK[i]}, s10\ns_add_u32 s0, s0, s{sK[i]}")
            if dt == 4: e("s_add_u32 s0, s0, 4096")
            r = 12 + (i % 5)*20 + dt*4
            e(f"buffer_load_dwordx4 {vr(r,4)}, v1, s[48:51], s0 offen offset:{1024*(dt%4)} sc1"); vm.issue(("w2", i))
        ops.append(f)
    return ops
def g2_bases():
    e("v_lshlrev_b32 v1, 4, v0")
    e(f"s_mul_i32 s10, s14, 276480\ns_add_u32 s10, s10, {W2F}")
    e(f"s_mul_i32 s11, s13, 221184\ns_add_u32 s11, s11, {HF}")
e("v_mov_b32 v10, v250")
EW = int(OPT.get("ew", "0"))
if EW: kappa_tab()
stG("p")
def signal():
    e("v_add_u32 v11, 1, v11")
    e("ds_write_b32 v9, v11"); lg.issue("sig")
CHKR = [VCHK]
def chk_read():
    e(f"ds_read_b32 v{CHKR[0]}, v10"); lg.issue("chk")
def chk_eval():
    lg.wait("chk")
    spin_lds(CHKR[0], 10, "v11")
def tr_one(step, n, hf_):
    kh, t = divmod(n, 4)
    e(f"ds_read_b64_tr_b16 {vr(WB+4*n+2*hf_,2)}, v5 offset:{(step % 8)*KSTEP + 4096*kh + 1024*hf_ + 256*t}"); lg.issue(("w", step, n))
vm.wait(("w", 0))
signal(); chk_read()
for kk in range(4): x_read(0, kk)
chk_eval()
stG("c0")
for n in range(8): tr_one(0, n, 0); tr_one(0, n, 1)
EW = 0
for i in range(20):
    c, k2 = divmod(i, 2)
    stG(f"a{i}")
    side = {n: [] for n in range(8)}
    if i < 19:
        for n in range(8): side[n] += [lambda n=n: tr_one(i+1, n, 0), lambda n=n: tr_one(i+1, n, 1)]
    if i == 0:
        for n, op in zip((0, 1, 2, 3), w_ops(4) + w_ops(5)): side[n].append(op)
    elif i + 5 <= 19:
        for n, op in zip((0, 2), w_ops(i+5)): side[n].append(op)
    if i + 4 <= 19:
        if k2 == 0: side[4].append(lambda c=c: lg.wait(("xr", c, 3)))
        for n, op in zip((4, 6), x_ops(i+4)): side[n].append(op)
    if k2 == 0 and c + 1 <= 9:
        def sg(c=c):
            vm.wait(("w", c+1)); signal()
        side[3].append(sg); side[5].append(chk_read)
    if k2 == 1 and c + 1 <= 9:
        for kk in range(4): side[(1, 3, 5, 7)[kk]].append(lambda kk=kk, c=c: x_read(c+1, kk))
    if i == 15:
        side[5].append(lambda: (e(f"v_mov_b32 v252, {REL}\nds_read_b32 v{VREL}, v252"), lg.issue("rel")))
    if i == RELAT:
        def f():
            if RELAT != 16: e(f"ds_read_b32 v{VREL}, v252"); lg.issue("rel")
            lg.wait("rel")
            spin_lds(VREL, 252, "1")
            e(f"s_lshl_b32 s6, s8, 12\ns_lshl_b32 s7, s3, 10\ns_add_u32 s6, s6, s7\ns_add_u32 s6, s6, {STATS}\ns_lshl_b32 s63, s9, 11\ns_add_u32 s63, s63, {WE}")
            e(f"buffer_load_dwordx4 {vr(XEF,4)}, v7, s[48:51], s6 offen sc1"); vm.issue("xe")
        side[0].append(f)
        side[2].append(lambda: (e(f"buffer_load_dwordx4 {vr(XEC,4)}, v253, s[48:51], s6 offen offset:16 sc1"), vm.issue("xe")))
        for t in range(4):
            side[(1, 4, 6, 7)[t]].append(lambda t=t: (e(f"buffer_load_dwordx4 {vr(WEF+4*t,4)}, v6, s[48:51], s63 offen offset:{512*t} sc1"), vm.issue("xe")))
    if i == 18:
        side[1].append(g2_bases)
        side[3].append(lambda: e("v_bfe_u32 v3, v0, 4, 1\nv_lshlrev_b32 v3, 10, v3\nv_lshrrev_b32 v4, 5, v0\nv_lshl_add_u32 v3, v4, 8, v3"))
        side[5].append(lambda: e("v_and_b32 v4, 15, v0\nv_lshl_add_u32 v255, v4, 4, v3\nv_mov_b32 v2, 0"))
    if i == 19:
        side[0].append(lambda: e(f"s_lshr_b32 s6, s3, 1\ns_lshl_b32 s7, s8, 1\ns_add_u32 s6, s6, s7\ns_mul_i32 s44, s6, 221184"))
        side[1].append(lambda: e(f"s_and_b32 s7, s3, 1\ns_lshl_b32 s7, s7, 11\ns_add_u32 s44, s44, s7\ns_add_u32 s44, s44, {HF}"))
        side[2].append(lambda: e(f"s_mul_i32 s45, s6, {FS_}\ns_add_u32 s45, s45, {FL_H}"))
        side[3].append(lambda: e(f"s_lshl_b32 s6, s9, 14\ns_add_u32 s44, s44, s6\ns_cmp_eq_u32 s9, 13\ns_cselect_b32 s43, {OOB}, s44"))
        side[7].append(signal)
    for n in range(8):
        kh, t = divmod(n, 4)
        need = [("w", i, n), ("w", i, n+1)] if n % 2 == 0 else []
        if t == 0: need += [("xr", c, 2*k2+kh)]
        if need: lg.wait(need)
        a_ = ACC + 16*t
        e(f"v_mfma_f32_32x32x16_bf16 {vr(a_,16)}, {vr(WB+4*n,4)}, {vr(XR+(c%2)*16+4*(2*k2+kh),4)}, {vr(a_,16) if (i or kh) else 0}")
        for f in side[n]: f()
    if k2 == 0 and c + 1 <= 9: chk_eval()
vm.wait("xe")
for t in range(4): e(f"v_mfma_f32_32x32x16_bf16 {vr(ACC+16*t,16)}, {vr(WEF+4*t,4)}, {vr(XEF,4)}, {vr(ACC+16*t,16)}")
e("v_mov_b32 v7, 1")
stG("g1")
TQ, TE, TO = 224, 232, 240
def h_flag(k):
    vm.wait(("hst", k))
    e(f"s_mov_b64 exec, 1\nbuffer_atomic_add v7, v2, s[48:51], s45 offen offset:{4*k} sc1\ns_mov_b64 exec, -1")
for tp in range(4):
    e(f"s_add_u32 s6, s{44 if tp < 2 else 43}, {4096*tp}")
    for mt in (0, 1):
        st = XEC
        P = range(4)
        acc = lambda q: ACC + 16*tp + 8*mt + 2*q
        for q in P: e(f"v_pk_mul_f32 {vr(TQ+2*q,2)}, {vr(acc(q),2)}, {vr(acc(q),2)}")
        for q in P: e(f"v_pk_fma_f32 {vr(TQ+2*q,2)}, {vr(st,2)}, {vr(TQ+2*q,2)}, {vr(st,2)} op_sel:[0,0,1] op_sel_hi:[0,1,1]")
        for q in P: e(f"v_pk_mul_f32 {vr(TQ+2*q,2)}, {vr(TQ+2*q,2)}, {vr(acc(q),2)}")
        for q in range(8): e(f"v_exp_f32 v{TE+q}, v{TQ+q}")
        for q in P: e(f"v_pk_fma_f32 {vr(TE+2*q,2)}, {vr(st+2,2)}, {vr(TE+2*q,2)}, {vr(st+2,2)} op_sel_hi:[0,1,0]")
        for q in range(8): e(f"v_rcp_f32 v{TE+q}, v{TE+q}")
        for q in P: e(f"v_pk_mul_f32 {vr(TE+2*q,2)}, {vr(TE+2*q,2)}, {vr(acc(q),2)}")
        o = TO + 4*mt
        for q in P: e(f"v_cvt_pk_bf16_f32 v{o+q}, v{TE+2*q}, v{TE+2*q+1}")
        e(f"buffer_store_dwordx4 {vr(o,4)}, v255, s[48:51], s6 offen offset:{512*mt} sc1"); vm.issue(("hst", tp))
stG("ep")
signal()
def g2_setup():
    for ml in range(4):
        e(f"s_xor_b32 s6, s3, {ml}\ns_lshl_b32 s6, s6, 10\nv_add_u32 v{3+ml}, s6, v1")
    e(f"s_mul_i32 s6, s13, {FS_}\ns_add_u32 s6, s6, {FL_H}\ns_add_u32 s40, s48, s6\ns_addc_u32 s41, s49, 0")
    e(f"v_mov_b32 v254, {REL}\nv_lshrrev_b32 v8, 4, v0\nv_lshlrev_b32 v8, 3, v8\ns_mul_i32 s8, s14, 160")
HPL = "s_load_dwordx4 s[16:19], s[40:41], 0 glc"
g2_setup()
if not EW: kappa_tab()
vm.wait(("hst", 3))
e(f"s_mov_b64 exec, 1\nbuffer_atomic_add v7, v2, s[48:51], s45 offen sc1\ns_mov_b64 exec, -1")
stG("at")
if OPT.get("self", "1") == "2":
    e("v_lshrrev_b32 v192, 4, v0\nv_lshlrev_b32 v192, 12, v192\nv_and_b32 v193, 15, v0\nv_lshl_add_u32 v192, v193, 7, v192")
    e("s_cmp_eq_u32 s9, 13\ns_cselect_b32 exec_hi, 0, -1\nbuffer_load_dword v194, v192, s[48:51], s44 offen sc1\ns_mov_b64 exec, -1")
if OPT.get("self", "1") == "1":
    for tp in range(4):
        e(f"s_add_u32 s6, s{44 if tp < 2 else 43}, {4096*tp}")
        for mt in (0, 1): e(f"buffer_load_dwordx4 {vr(192+8*tp+4*mt,4)}, v1, s[48:51], s6 offen offset:{1024*mt} sc1")
stG("hp")
vm.clear(); lg.clear()
e("L_G2:")
CHKR[0] = 26
A2, HR = 112, 192
e(f"s_setprio {OPT.get('g2prio', '0')}")
e("v_mov_b32 v2, v254")
if not EW: wait_lds(7, 2, "2")
for dt in range(5):
    e(f"buffer_load_dwordx2 {vr(122+2*dt,2)}, v8, s[64:67], s8 offen offset:{32*dt}"); vm.issue("b2")
for k in range([0, 2, 5][EW], 5 if "R" not in EXP else 1):
    for op in w2_ops(k): op()
stG("pp")
spoll(40, [0], 28, OPT.get("hsleep", "2")); lg.clear()
stG("hs")
def h_ops(i):
    ops = []
    for ml in range(4):
        def hl(ml=ml):
            if ml == 0: e(f"s_lshl2_add_u32 s6, s{sK[i]}, s11")
            e(f"buffer_load_dwordx4 {vr(HR+(i%4)*16+ml*4,4)}, v{3+ml}, s[48:51], s6 offen sc1"); vm.issue(("h", i))
        ops.append(hl)
    return ops
for op in h_ops(0) + h_ops(1) + h_ops(2) + h_ops(3): op()
FXO, FLA, FX, FS, VSO, VPF = 92, 95, 32, 12, 98, 104
STL = []
for i in range(3):
    if i == 2: STL.append("s_mov_b32 exec_hi, 0")
    STL.append(f"buffer_load_dwordx4 {vr(FS+4*i,4)}, v{VSO}, s[48:51], s{44 if i == 0 else 6} offen sc1")
    if i < 2: STL.append(f"s_add_u32 s6, s44, {32*4096*(i+1)}")
STL.append("s_mov_b64 exec, -1")
RED = 99
for i in range(14):
    vm.wait([("w2", i), ("h", i)])
    lg.wait(("pf", i))
    if i == 7: signal()
    stG(f"b{i}")
    side = {n: [] for n in range(20)}
    def spread(lines, n0, step=1):
        for k, l in enumerate(lines): side[min(19, n0 + k*step)].append(lambda l=l: e(l))
    j = i + 4
    if i >= 1 and j < 8:
        if i == 1: side[0].append(lambda: (e("ds_read_b32 v12, v2\ns_mul_i32 s6, s3, 15360\nv_add_u32 v13, s6, v1\ns_waitcnt lgkmcnt(0)"), spin_lds(12, 2, "3"), e("v_mov_b32 v2, v13"), lg.clear()))
        for dt in range(5):
            side[1+dt].append(lambda dt=dt, j=j: (e(f"ds_read_b128 {vr(12+(j%5)*20+dt*4,4)}, v2 offset:{(j-5)*5120+dt*1024}"), lg.issue(("pf", j))))
    elif i >= 1 and j < 14 and "L" not in EXP:
        for n, op in zip((1, 3, 7, 11, 16), w2_ops(j)): side[n].append(op)
    if i + 4 < 14:
        for ml, op in enumerate(h_ops(i+4)): side[5*ml+4].append(op)
    if i == 10:
        L = [f"v_mov_b32 v2, {REL}", "ds_read_b32 v8, v2",
             f"v_lshrrev_b32 v{VSO}, 1, v0", "v_and_b32 v4, 1, v0", f"v_lshlrev_b32 v{VSO}, 12, v{VSO}", f"v_lshl_add_u32 v{VSO}, v4, 4, v{VSO}",
             "s_mul_i32 s44, s14, 327680\ns_lshl_b32 s7, s13, 7", "s_add_u32 s44, s44, s7\ns_lshl_b32 s7, s3, 5", f"s_add_u32 s44, s44, s7\ns_add_u32 s44, s44, {ST}",
             "s_lshl_b32 s6, s13, 6\ns_lshl_b32 s7, s3, 4", "s_add_u32 s6, s6, s7\ns_mul_i32 s6, s6, 1280", f"s_add_u32 s8, s8, s6\ns_mul_i32 s9, s3, 2560", f"s_add_u32 s9, s9, {SB}\ns_movk_i32 s0, 1280\ns_movk_i32 s1, {SBF}"]
        spread(L, 1)
    if i == 11:
        L = []
        for k in range(3):
            L += [f"v_add_u32 v3, {64*k}, v0\nv_mul_u32_u24 v4, 6554, v3", "v_lshrrev_b32 v4, 16, v4\nv_mul_u32_u24 v5, 10, v4", "v_sub_u32 v3, v3, v5\nv_lshlrev_b32 v3, 4, v3",
                  f"v_mad_u32_u24 v{FXO+k}, v4, s0, v3\nv_mad_u32_u24 v{FLA+k}, v4, s1, v3", f"v_add_u32 v{FLA+k}, s9, v{FLA+k}"]
        spread(L, 1)
    if i == 12:
        L = []
        for ml in (1, 2, 3): L += [f"s_xor_b32 s6, s3, {ml}\ns_mul_i32 s6, s6, 15360", f"s_add_u32 s6, s6, {(ml-1)*5120}\nv_add_u32 v{RED+ml-1}, s6, v1"]
        L += [f"s_mul_i32 s6, s3, 15360\nv_add_u32 v{RED+3}, s6, v1", f"v_and_b32 v3, 15, v0\nv_mul_u32_u24 v3, {SBF}, v3", f"v_lshrrev_b32 v5, 4, v0\nv_lshl_add_u32 v3, v5, 3, v3", f"v_add_u32 v{RED+4}, s9, v3",
              "v_add_u32 v3, s9, v1\nv_lshlrev_b32 v4, 3, v0", "v_add_u32 v4, s9, v4"]
        spread(L, 6)
        side[0].append(chk_read)
        for k in range(3):
            def xl(k=k):
                if k == 2: e("s_mov_b32 exec_hi, 0")
                e(f"buffer_load_dwordx4 {vr(FX+4*k,4)}, v{FXO+k}, s[52:55], s8 offen"); vm.issue("fx")
                if k == 2: e("s_mov_b64 exec, -1")
            side[1+2*k].append(xl)
    order = list(range(20)) if 0 < i < 13 else list(range(5, 20)) + list(range(5))
    if i == 0:
        side = {n: [] for n in range(20)}
        for k in range(10): side[k].append(lambda k=k: e(f"v_lshlrev_b32 v{A2+2*k}, 16, v{122+k}\nv_and_b32 v{A2+2*k+1}, 0xffff0000, v{122+k}"))
        o = h_ops(4)
        e(f"s_lshl2_add_u32 s6, s{sK[4]}, s11")
        for k, ml in zip((4, 9, 14, 19), (1, 2, 3, 0)):
            side[k].append(lambda ml=ml: (e(f"buffer_load_dwordx4 {vr(HR+ml*4,4)}, v{3+ml}, s[48:51], s6 offen sc1"), vm.issue(("h", 4))))
    if i == 13:
        for k in range(11):
            n_ = order[k]
            side[k+9].append(lambda n_=n_: (e(f"ds_write_b128 v{RED+n_//5-1}, {vr(A2+n_*4,4)} offset:{1024*(n_%5)}"), lg.issue("red")))
    for k, n in enumerate(order):
        ml, dt = divmod(n, 5)
        a = A2 + n*4
        e(f"v_mfma_f32_16x16x32_bf16 {vr(a,4)}, {vr(12+(i%5)*20+dt*4,4)}, {vr(HR+(i%4)*16+ml*4,4)}, {vr(a,4) if (i or ml == 0) else 0}")
        for f in side[k]: f()
    if i == 10:
        e("s_waitcnt lgkmcnt(0)\nv_cmp_gt_u32 s[42:43], 4, v8"); lg.clear()
        for l in STL:
            e(l)
            if l.startswith("buffer"): vm.issue("sT")
    if i == 12: chk_eval()
stG("g2")
for n_ in range(16, 20):
    e(f"ds_write_b128 v{RED+n_//5-1}, {vr(A2+n_*4,4)} offset:{1024*(n_%5)}"); lg.issue("red")
signal(); chk_read()
e("s_cmp_lg_u64 s[42:43], 0")
spin_lds(8, 2, "4", after=STL, pre_cmp=False, branch="s_cbranch_scc1")
vm.wait_all()
for i in range(3):
    if i == 2: e("s_mov_b32 exec_hi, 0")
    e(f"ds_write_b128 v3, {vr(FS+4*i,4)} offset:{1024*i}"); lg.issue("sw")
e("s_mov_b64 exec, -1")
for dt in range(5):
    e(f"ds_read_b64_tr_b16 {vr(44+2*dt,2)}, v4 offset:{512*dt}"); lg.issue("str")
chk_eval()
stG("rd")
RD = 192
for dt in range(5):
    for s_ in range(3):
        e(f"ds_read_b128 {vr(RD+(s_*5+dt)*4,4)}, v{RED+3} offset:{5120*s_+1024*dt}"); lg.issue(("rd", dt))
SU = 132
e("s_mov_b32 s6, 0xffff0000")
lg.wait("str")
for k in range(10): e(f"v_lshlrev_b32 v{SU+2*k}, 16, v{44+k}\nv_and_b32 v{SU+2*k+1}, s6, v{44+k}")
XU = 152
for k in range(12): e(f"v_lshlrev_b32 v{XU+2*k}, 16, v{FX+k}\nv_and_b32 v{XU+2*k+1}, s6, v{FX+k}")
T = 56
for dt in range(5):
    a = A2 + dt*4
    lg.wait(("rd", dt))
    for k in (0, 1):
        e(f"v_pk_add_f32 {vr(a+2*k,2)}, {vr(a+2*k,2)}, {vr(RD+dt*4+2*k,2)}")
        e(f"v_pk_add_f32 {vr(T+2*k,2)}, {vr(RD+(5+dt)*4+2*k,2)}, {vr(RD+(10+dt)*4+2*k,2)}")
    for k in (0, 1): e(f"v_pk_add_f32 {vr(a+2*k,2)}, {vr(a+2*k,2)}, {vr(T+2*k,2)}")
E_ = 60
e(f"s_mov_b32 s0, {f32(-1.4426950408889634)}")
for k in range(10): e(f"v_pk_mul_f32 {vr(E_+2*k,2)}, {vr(A2+2*k,2)}, s[0:1] op_sel_hi:[1,0]")
for k in range(20): e(f"v_exp_f32 v{E_+k}, v{E_+k}")
for k in range(10): e(f"v_pk_mul_f32 {vr(A2+2*k,2)}, {vr(A2+2*k,2)}, {vr(SU+2*k,2)}")
for k in range(10): e(f"v_pk_add_f32 {vr(E_+2*k,2)}, {vr(E_+2*k,2)}, 1.0 op_sel_hi:[1,0]")
for k in range(20): e(f"v_rcp_f32 v{E_+k}, v{E_+k}")
for dt in range(5):
    for k in (0, 1): e(f"v_pk_mul_f32 {vr(A2+4*dt+2*k,2)}, {vr(A2+4*dt+2*k,2)}, {vr(E_+4*dt+2*k,2)}")
    for k in (0, 1): e(f"v_cvt_pk_bf16_f32 v{44+2*dt+k}, v{A2+4*dt+2*k}, v{A2+4*dt+2*k+1}")
    e(f"ds_write_b64 v{RED+4}, {vr(44+2*dt,2)} offset:{32*dt}"); lg.issue("pw")
for k in range(3):
    e(f"ds_read_b128 {vr(RD+4*k,4)}, v{FLA+k}"); lg.issue(("pr", k))
for k in range(3):
    lg.wait(("pr", k))
    for q in range(4):
        e(f"v_lshlrev_b32 v{T+2*q}, 16, v{RD+4*k+q}\nv_and_b32 v{T+1+2*q}, s6, v{RD+4*k+q}")
    for q in range(4): e(f"v_pk_add_f32 {vr(T+2*q,2)}, {vr(T+2*q,2)}, {vr(XU+8*k+2*q,2)}")
    for q in range(4): e(f"v_cvt_pk_bf16_f32 v{RD+16+4*k+q}, v{T+2*q}, v{T+2*q+1}")
    if k == 2: e("s_mov_b32 exec_hi, 0")
    e(f"buffer_store_dwordx4 {vr(RD+16+4*k,4)}, v{FXO+k}, s[68:71], s8 offen{OSP}")
stG("end")
stG.flush(60, 61, (0, 1, 8))
e("s_endpgm")

e("L_IDLE:")
e("v_lshrrev_b32 v1, 3, v0\ns_mul_i32 s6, s3, 160\nv_add_u32 v2, s6, v1\nv_mul_u32_u24 v2, 3456, v2\nv_and_b32 v3, 7, v0\nv_lshl_add_u32 v2, v3, 4, v2")
e("v_lshlrev_b32 v4, 8, v1\nv_lshl_add_u32 v4, v3, 5, v4\ns_lshl_b32 s6, s3, 11\nv_add_u32 v4, s6, v4")
e("s_waitcnt lgkmcnt(0)")
e("s_lshl3_add_u32 s47, s5, s4")
e(f"s_lshl_b32 s9, s47, 7\ns_cmp_ge_u32 s47, 27\ns_cselect_b32 s9, {OOB}, s9")
vm.clear()
g_params()
e("s_barrier")
srd(56, 32, 2211840)
e("s_mov_b32 s0, s9")
for i in range(20):
    e(f"buffer_load_dwordx4 {vr(12+4*i,4)}, v2, s[56:59], s0 offen"); vm.issue("cw")
    if i < 19: e(f"s_add_u32 s0, s0, {8*3456}")
srd(56, 34, 3456)
e("v_lshlrev_b32 v5, 1, v0\nbuffer_load_ushort v7, v5, s[56:59], s9 offen"); vm.issue("cw")
srd(52, 16, 2621440); g_srds()
kappa_tab()
helper()
e("s_waitcnt vmcnt(0)\ns_mov_b32 s6, 0xffff0000")
for i in range(20):
    for k in range(4):
        r = 12 + 4*i + k
        if i == 0: e(f"v_lshlrev_b32 v{100+2*k}, 16, v{r}\nv_and_b32 v{101+2*k}, s6, v{r}")
        else: e(f"v_lshlrev_b32 v{92+2*k}, 16, v{r}\nv_and_b32 v{93+2*k}, s6, v{r}")
    if i:
        for k in range(4): e(f"v_pk_add_f32 {vr(100+2*k,2)}, {vr(100+2*k,2)}, {vr(92+2*k,2)}")
e("ds_write_b128 v4, v[100:103]\nds_write_b128 v4, v[104:107] offset:16")
gcommon()
e("s_cmp_eq_u32 s3, 0\ns_cselect_b32 s6, 1, 12\nv_mov_b32 v11, s6\nds_write_b32 v9, v11")
e("s_cbranch_scc0 L_ID2")
wait_lds(8, 10, "1")
e("v_lshlrev_b32 v5, 2, v0")
for k in range(32): e(f"ds_read_b32 v{12+k}, v5 offset:{256*k}")
e("s_waitcnt lgkmcnt(0)")
for st_ in (16, 8, 4, 2, 1):
    for k in range(st_): e(f"v_add_f32 v{12+k}, v{12+k}, v{12+k+st_}")
e("v_mov_b32 v11, 12\nds_write_b32 v9, v11")
e("v_cvt_pk_bf16_f32 v17, v12, v12\nv_lshl_or_b32 v16, v7, 16, v7\nv_and_b32 v13, 0xffff0000, v17\nv_sub_f32 v13, v12, v13\nv_cvt_pk_bf16_f32 v18, v13, v13")
e("v_and_b32 v14, 0xffff0000, v18\nv_sub_f32 v14, v13, v14\nv_cvt_pk_bf16_f32 v19, v12, v14\nv_mov_b32 v20, 0")
e(f"v_lshlrev_b32 v5, 4, v0\ns_lshl_b32 s6, s47, 10\ns_add_u32 s6, s6, {WE}\ns_cmp_ge_u32 s47, 27\ns_cselect_b32 s6, {OOB}, s6")
e("buffer_store_dwordx4 v[16:19], v5, s[48:51], s6 offen sc1")
e(f"v_mov_b32 v2, {REL}")
wait_lds(8, 2, "1", sleep=True)
e(f"s_lshr_b32 s6, s47, 1\ns_mul_i32 s6, s6, {FS_}\ns_add_u32 s6, s6, {FL_E}\ns_cmp_ge_u32 s47, 27\ns_cselect_b32 s6, {OOB}, s6")
e("s_cmp_eq_u32 s47, 26\ns_cselect_b32 s7, 2, 1\nv_mov_b32 v5, s7\ns_waitcnt vmcnt(0)\ns_mov_b64 exec, 1")
e("buffer_atomic_add v5, v20, s[48:51], s6 offen sc1\ns_mov_b64 exec, -1")
e("L_ID2:")
g2_bases()
g2_setup()
wait_lds(12, 254, "2", sleep=True)
if OPT.get("warm", "0") == "1":
    e(f"s_and_b32 s6, s4, 1\ns_lshl2_add_u32 s6, s6, s5\ns_mul_i32 s6, s6, 276480\ns_mul_i32 s7, s3, 69120\ns_add_u32 s6, s6, s7\ns_add_u32 s6, s6, {W2F}\ns_mov_b32 s63, 17")
    e("L_WARM:")
    for k in range(4): e(f"buffer_load_dwordx4 {vr(192+4*k,4)}, v1, s[48:51], s6 offen offset:{1024*k} sc1")
    e(f"s_add_u32 s6, s6, 4096\ns_sub_u32 s63, s63, 1\ns_cmp_lg_u32 s63, 0\ns_cbranch_scc1 L_WARM")
for k in range([0, 2, 5][EW]):
    for op in w2_ops(k): op()
e("s_waitcnt vmcnt(0)")
if STAMPS:
    for r in _stG.regs[:4]: e(f"{MT} s[{r}:{r+1}]")
e("s_branch L_G2")

e("L_AUX:")
if OPT.get("cpf", "0") == "1":
    e("s_getpc_b64 s[96:97]")
    e("L_PC:")
    e(f"s_sub_u32 s96, s96, L_PC-{NAME}_kernel\ns_subb_u32 s97, s97, 0")
    e("s_and_b32 s6, s5, 7\ns_lshl_b32 s6, s6, 6\nv_add_u32 v1, s6, v0\nv_lshlrev_b32 v1, 7, v1")
    e(f"v_min_u32 v1, L_LAST-{NAME}_kernel, v1")
    e("s_cmp_lg_u32 s3, 6\ns_cbranch_scc1 L_PC2")
    e("global_load_dword v255, v1, s[96:97]")
    e("L_PC2:")
_stC = Stamper([76,78,80,82,84,86,88,90,92,94])
CSEL = OPT.get("cst", "ka,x,ln,kg,ex,u,cs,cd,st,pub").split(",")
class _C:
    def __call__(self, name):
        if name in CSEL:
            _stC.n = CSEL.index(name); _stC()
    def flush(self, *a):
        _stC.n = 10; _stC.flush(*a)
stC = _C()
zero_cnt(CNT2)
e("s_sub_u32 s13, s3, 4")
e("s_lshl_b32 s14, s4, 5\ns_add_u32 s14, s14, s5")
e("s_mul_i32 s15, s14, 10240")
e("v_lshrrev_b32 v1, 5, v0\ns_lshl_b32 s6, s13, 1\nv_add_u32 v1, s6, v1\nv_and_b32 v2, 31, v0")
e("v_mul_u32_u24 v3, 1280, v1\nv_lshl_add_u32 v3, v2, 3, v3")
chan_id(13)
e("s_lshl_b32 s10, s8, 8\ns_lshl_b32 s11, s8, 1\nv_lshlrev_b32 v12, 2, v0")
e(f"s_mul_i32 s9, s13, {CHSZ}\ns_add_u32 s9, s9, {CH0}")
e(f"v_mov_b32 v14, 0\nv_mov_b32 v15, {REL}\nds_write_b32 v15, v14")
for i in range(5):
    e(f"v_add_u32 v4, {64*i}, v0\nv_mul_u32_u24 v5, 3277, v4\nv_lshrrev_b32 v5, 16, v5")
    e("v_mul_u32_u24 v6, 20, v5\nv_sub_u32 v6, v4, v6\nv_lshlrev_b32 v6, 4, v6")
    e(f"s_movk_i32 s6, 1280\nv_mad_u32_u24 v{64+i}, v5, s6, v6\ns_movk_i32 s6, {SBW}\nv_mad_u32_u24 v{69+i}, v5, s6, v6\nv_add_u32 v{69+i}, {SB}, v{69+i}")
e("s_waitcnt lgkmcnt(0)")
stC("ka")
XS = 20
def x_rows():
    srd(52, 16, 2621440)
    for i in range(5): e(f"buffer_load_dwordx2 {vr(XS+2*i,2)}, v3, s[52:55], s15 offen offset:{256*i}{ntx}")
KFIRST = OPT.get("kfirst", "0") == "1"
def near_half():
    LAM, CC, YC, FY, FA, KT, TM = 84, 88, 80, 128, 160, [112, 116], 64
    EV = {2.0: 192, 32.0: 196, 1.0: 200, 2048.0: 204}
    e("v_and_b32 v10, 15, v0\nv_lshrrev_b32 v11, 4, v0")
    e(f"v_lshlrev_b32 v12, 3, v0\ns_add_u32 s6, s9, {TAB}\nv_add_u32 v12, s6, v12")
    e(f"v_mul_u32_u24 v14, {TPI}, v10\nv_lshl_add_u32 v14, v11, 4, v14\nv_add_u32 v14, s6, v14")
    e(f"v_mov_b32 v{YC}, 1.0\nv_mov_b32 v{YC+1}, 1.0\nv_mov_b32 v{YC+2}, 0\nv_mov_b32 v{YC+3}, 0")
    e(f"s_add_u32 s10, s9, {TBOFF}")
    e("v_lshlrev_b32 v92, 2, v10\nv_lshl_add_u32 v92, v11, 8, v92\nv_add_u32 v92, s10, v92")
    e("v_lshlrev_b32 v93, 1, v10\nv_lshl_add_u32 v93, v11, 7, v93\nv_add_u32 v93, s10, v93")
    e(f"v_subrev_u32 v15, {CNT2-CNT}, v9")
    e("s_waitcnt vmcnt(5)")
    stC("par")
    k_setup_pk(4, LAM, CC, EV, [2.0, 32.0, 1.0, 2048.0], 2.0, (1.0, 2048.0), TM)
    stC("k0")
    L2 = e.lab("NY")
    e(f"s_mov_b32 s10, 4\nv_mov_b32 v13, v12\n{L2}:")
    chain_pk([(YC, EV[2.0], 0), (CC, EV[32.0], 16)], 4, 0, 13, TM)
    e(f"v_add_u32 v13, {4*TPI}, v13\ns_sub_u32 s10, s10, 1\ns_cmp_lg_u32 s10, 0\ns_cbranch_scc1 {L2}")
    stC("k1")
    e("s_waitcnt lgkmcnt(0)")
    frag_reads(FY, 14, 0); frag_reads(FA, 14, 16)
    e(f"v_cvt_pk_bf16_f32 v76, v{EV[2048.0]}, v{EV[2048.0]+2}\nv_cvt_pk_bf16_f32 v77, v{EV[2048.0]+1}, v{EV[2048.0]+3}")
    k_mfma(KT[0], FA, FY)
    e(f"ds_write_b64 v12, v[76:77] offset:{24*TPI}")
    chain_pk([(EV[1.0], EV[32.0], 0)], 8, 16, 12, TM)
    e("s_waitcnt lgkmcnt(0)")
    frag_reads(FA, 14, 16)
    k_mfma(KT[1], FA, FY)
    for r in range(4): e(f"v_cvt_pk_bf16_f32 v{TM+r}, v{KT[0]+r}, v{KT[1]+r}")
    e("s_mov_b32 exec_hi, 0")
    for r in range(4): e(f"ds_write_b32 v92, v{TM+r} offset:{64*r}")
    e("s_mov_b32 exec_lo, 0\ns_mov_b32 exec_hi, -1")
    for r in range(4): e(f"ds_write_b16 v93, v{TM+r} offset:{256+32*r}")
    e("s_mov_b32 exec_hi, 1")
    e(f"ds_write_b16_d16_hi v93, v{TM} offset:{1280-256}")
    e("s_mov_b64 exec, -1")
e("s_cmp_eq_u32 s3, 7\ns_cbranch_scc1 L_A7")
if not KFIRST: x_rows()
param_loads(4, 12, 14, 10, 11, (56, 60, 64, 68))
srd(60, 28, 1280); e("buffer_load_ushort v19, v14, s[60:63], s11 offen")
if KFIRST: x_rows()
e("s_barrier")
srd(48, 44, WS_SIZE); srd(72, 42, 256)
if KFIRST:
    e("s_cmp_ge_u32 s8, 640\ns_cbranch_scc1 L_A0")
    near_half()
    e("L_A0:")
    e("s_waitcnt vmcnt(0)")
else: e("s_waitcnt vmcnt(6)")
e("s_branch L_LN")
e("L_A7:")
srd(48, 44, WS_SIZE); srd(72, 42, 256)
e("s_cmp_lg_u32 s2, 0\ns_cbranch_scc1 L_A1")
e(f"v_mul_u32_u24 v4, {FS_}, v0")
for r in range(32, 36): e(f"v_mov_b32 v{r}, 0")
for i in range(2):
    e(f"s_mov_b32 s6, {FLB+64*FS_*i}")
    e("buffer_store_dwordx4 v[32:35], v4, s[48:51], s6 offen sc1")
e("s_barrier")
e("s_waitcnt vmcnt(0)")
e("v_mov_b32 v32, 1\ns_mov_b64 exec, 1")
e("buffer_store_dword v32, v14, s[72:75], 0 offen sc1")
e("s_mov_b64 exec, -1")
x_rows()
e("s_branch L_A2")
e("L_A1:")
x_rows()
e("s_barrier")
e("L_A2:")
srd(56, 36, 2211840)
e(f"s_lshr_b32 s6, s2, 2\ns_mul_i32 s10, s6, 40960\ns_and_b32 s7, s2, 3\ns_mul_i32 s11, s7, 320\ns_add_u32 s10, s10, s11\ns_add_u32 s11, s10, 20480")
e("s_waitcnt vmcnt(0)")
e("L_LN:")
if NOAUX == "1": e("s_endpgm")
stC("x")
e(f"v_mul_u32_u24 v16, {SBP}, v1\nv_lshl_add_u32 v16, v2, 3, v16\nv_add_u32 v16, {SB}, v16")
e(f"v_lshlrev_b32 v17, 5, v1\nv_add_u32 v17, {SST}, v17")
XF = 32
for k in range(10): e(f"v_lshlrev_b32 v{XF+2*k}, 16, v{XS+k}\nv_and_b32 v{XF+2*k+1}, 0xffff0000, v{XS+k}")
e(f"v_add_f32 v52, v{XF}, v{XF+1}\nv_mul_f32 v54, v{XF}, v{XF}\nv_add_f32 v53, v{XF+2}, v{XF+3}\nv_mul_f32 v55, v{XF+1}, v{XF+1}")
e(f"v_fmac_f32 v54, v{XF+2}, v{XF+2}\nv_fmac_f32 v55, v{XF+3}, v{XF+3}")
for k in range(4, 20): e(f"v_add_f32 v{52+(k&1)}, v{52+(k&1)}, v{XF+k}\nv_fmac_f32 v{54+(k&1)}, v{XF+k}, v{XF+k}")
e("v_add_f32 v52, v52, v53\nv_add_f32 v54, v54, v55")
for m in ("quad_perm:[1,0,3,2]", "quad_perm:[2,3,0,1]", "row_half_mirror", "row_mirror"):
    e(f"v_add_f32_dpp v52, v52, v52 {m} row_mask:0xf bank_mask:0xf")
    e(f"v_add_f32_dpp v54, v54, v54 {m} row_mask:0xf bank_mask:0xf")
e("ds_swizzle_b32 v53, v52 offset:0x401F\nds_swizzle_b32 v55, v54 offset:0x401F\ns_waitcnt lgkmcnt(0)")
e("v_add_f32 v52, v52, v53\nv_add_f32 v54, v54, v55")
e(f"v_mul_f32 v52, {f32(1/640)}, v52\nv_mul_f32 v54, {f32(1/640)}, v54")
e("v_fma_f32 v54, -v52, v52, v54\nv_max_f32 v54, 0, v54")
def std_bf16(dst, var):
    rb(dst, var); e(f"v_add_f32 v{dst}, {f32(1e-5)}, v{dst}"); rb(dst, dst); e(f"v_sqrt_f32 v{dst}, v{dst}"); rb(dst, dst)
rb(56, 52); std_bf16(57, 54)
e("v_rcp_f32 v58, v57")
for k in range(20): e(f"v_sub_f32 v{XF+k}, v{XF+k}, v56")
for k in range(10): e(f"v_cvt_pk_bf16_f32 v{XS+k}, v{XF+2*k}, v{XF+2*k+1}")
for k in range(10): e(f"v_lshlrev_b32 v{XF+2*k}, 16, v{XS+k}\nv_and_b32 v{XF+2*k+1}, 0xffff0000, v{XS+k}")
for k in range(20): e(f"v_mul_f32 v{XF+k}, v{XF+k}, v58")
for k in range(10):
    e(f"v_cvt_pk_bf16_f32 v{XS+k}, v{XF+2*k}, v{XF+2*k+1}")
    if k & 1: e(f"ds_write_b64 v16, {vr(XS+k-1,2)} offset:{128*(k-1)}")
e("v_sub_f32 v59, v52, v56\nv_mul_f32 v59, v59, v58\nv_mul_f32 v60, v54, v58\nv_mul_f32 v60, v60, v58")
rb(59, 59); std_bf16(61, 60)
C0 = -2*0.7978845608028654*1.4426950408889634
e("v_mul_f32 v46, v57, v61\nv_fma_f32 v63, -v59, v57, -v56\nv_rcp_f32 v62, v46\nv_mov_b32 v47, 0")
rb(32, 46); rb(33, 63)
e("v_sub_f32 v32, v46, v32\nv_sub_f32 v33, v63, v33\nv_mul_f32 v44, v62, v62")
rb(34, 33)
e("v_cvt_pk_bf16_f32 v40, v46, v32\nv_cvt_pk_bf16_f32 v41, v63, v33\nv_sub_f32 v34, v33, v34\nv_mov_b32 v42, v41\nv_cvt_pk_bf16_f32 v43, v34, v63")
e(f"v_mul_f32 v45, {f32(C0)}, v62\nv_mul_f32 v44, {f32(0.044715)}, v44\nv_mul_f32 v44, v44, v45")
e("s_mov_b32 s0, 1\ns_mov_b32 s1, 1\ns_mov_b64 exec, s[0:1]")
e("ds_write_b128 v17, v[40:43]\nds_write_b128 v17, v[44:47] offset:16")
e("s_mov_b64 exec, -1")
e("v_mov_b32 v61, 1\nds_write_b32 v9, v61")
stC("ln")
e("s_cmp_eq_u32 s3, 7\ns_cbranch_scc1 L_S")
e("s_cmp_ge_u32 s8, 640\ns_cbranch_scc1 L_END")
if "k" in EXP: e("s_endpgm")

if not KFIRST:
    e("s_waitcnt vmcnt(0)")
    stC("par")
    LAM, CC, YC, FY, FA, KT = 84, 88, 80, 128, 160, [112, 116]
    EV = {2.0: 192, 32.0: 196, 1.0: 200, 2048.0: 204, 8.0: 208, 128.0: 212, 512.0: 216, 516.0: 220}
    if HELP: k_setup(4, LAM, CC, EV, [2.0, 32.0, 1.0, 2048.0], (2.0,), (1.0, 2048.0), 64)
    else: k_setup(4, LAM, CC, EV, list(EV), (2.0, 8.0), (1.0, 2048.0, 512.0, 516.0), 20)
    e("v_and_b32 v10, 15, v0\nv_lshrrev_b32 v11, 4, v0")
    e(f"v_lshlrev_b32 v12, 3, v0\ns_add_u32 s6, s9, {TAB}\nv_add_u32 v12, s6, v12")
    e(f"v_mul_u32_u24 v14, {TPI}, v10\nv_lshl_add_u32 v14, v11, 4, v14\nv_add_u32 v14, s6, v14")
    y_init(YC)
    stC("k0")
    chain_loop([(YC, EV[2.0], 0), (CC, EV[32.0], 16)], 16, 0, 12, 13, 64, 10)
    stC("k1")
    frag_reads(FY, 14, 0); frag_reads(FA, 14, 16)
    e(f"v_cvt_pk_bf16_f32 v76, v{EV[2048.0]}, v{EV[2048.0]+1}\nv_cvt_pk_bf16_f32 v77, v{EV[2048.0]+2}, v{EV[2048.0]+3}")
    e(f"ds_write_b64 v12, v[76:77] offset:{24*TPI}")
    chain_loop([(EV[1.0], EV[32.0], 0)], 8, 16, 12, 13, 64, 10)
    FB_ = 208
    frag_reads(FB_, 14, 16)
    e("s_waitcnt lgkmcnt(8)")
    for s_ in range(8): e(f"v_mfma_f32_16x16x32_bf16 {vr(KT[0],4)}, {vr(FA+4*s_,4)}, {vr(FY+4*s_,4)}, {vr(KT[0],4) if s_ else 0}")
    FA = FB_ if HELP else FA
    e(f"s_add_u32 s10, s9, {TBOFF}")
    e("v_lshlrev_b32 v20, 2, v10\nv_lshl_add_u32 v20, v11, 8, v20\nv_add_u32 v20, s10, v20")
    e("v_lshlrev_b32 v21, 1, v10\nv_lshl_add_u32 v21, v11, 7, v21\nv_add_u32 v21, s10, v21")
    e(f"v_subrev_u32 v15, {CNT2-CNT}, v9")
    if not HELP: y_init(YC)
    k_mfma(KT[1], FA, FY)
    if not HELP:
        chain_loop([(YC, EV[8.0], 0), (EV[512.0], EV[128.0], 16), (EV[516.0], EV[128.0], 28)][:2], 12, 0, 12, 13, 64, 10)
        chain_loop([(YC, EV[8.0], 0), (EV[516.0], EV[128.0], 16)], 4, 12, 12, 13, 64, 10)
        e("s_waitcnt lgkmcnt(0)")
        frag_reads(FY, 14, 0); frag_reads(FA, 14, 16)
        e(f"s_add_u32 s10, s9, {TBOFF}")
        e("v_lshlrev_b32 v22, 2, v10\nv_lshrrev_b32 v23, 1, v11\nv_lshl_add_u32 v22, v23, 1, v22\nv_add_u32 v22, s10, v22")
        k_mfma(120, FA, FY)
        for r in range(4): e(f"v_cvt_pk_bf16_f32 v{32+r}, v{120+r}, v{120+r}")
        e("s_mov_b32 exec_lo, 0xffff\ns_mov_b32 exec_hi, 0xffff0000")
        for r in range(4): e(f"ds_write_b16 v22, v{32+r} offset:{768+64*r}")
        e("s_mov_b32 exec_lo, 0xffff0000\ns_mov_b32 exec_hi, 0xffff")
        for r in range(4): e(f"ds_write_b16 v21, v{32+r} offset:{896+32*r}")
        e("s_mov_b64 exec, -1")
    for r in range(4): e(f"v_cvt_pk_bf16_f32 v{24+r}, v{KT[0]+r}, v{KT[1]+r}")
    e("s_mov_b32 exec_hi, 0")
    for r in range(4): e(f"ds_write_b32 v20, v{24+r} offset:{64*r}")
    e("s_mov_b32 exec_lo, 0\ns_mov_b32 exec_hi, -1")
    for r in range(4): e(f"ds_write_b16 v21, v{24+r} offset:{256+32*r}")
    e("s_mov_b32 exec_hi, 1")
    e(f"ds_write_b16_d16_hi v21, v24 offset:{1280-256}")
    e("s_mov_b64 exec, -1")
wait_lds(17, 15, OPT.get("expat", "11"), sleep=True)
stC("kg")
if "e" in EXP: e("s_endpgm")
UR = 128
UL = e

e("v_lshlrev_b32 v24, 1, v0\nv_sub_u32 v22, 2047, v24\nv_sub_u32 v23, 2046, v24")
e("v_cvt_f32_i32 v22, v22\nv_cvt_f32_i32 v23, v23")
e(f"v_lshlrev_b32 v21, 2, v0\ns_add_u32 s6, s9, {KOFF-12}\nv_add_u32 v21, s6, v21")
e(f"s_add_u32 s6, s9, {TBOFF}\ns_sub_u32 s7, s6, {2*(0x4300-128)}\nv_mov_b32 v26, s7")
e(f"v_mov_b32 v30, {f32(-128.0)}")
e("v_lshlrev_b32 v27, 1, v24\nv_sub_u32 v27, s6, v27\nv_mov_b32 v28, 0")
def exp_rounds(n, lin=False):
    for k in range(n):
        t = 32 + 4*k
        if lin and k == n-1:
            e(f"ds_read_u16 v{t+1}, v27 offset:254\nds_read_u16 v{t+2}, v27 offset:252")
            continue
        e(f"v_cvt_pk_bf16_f32 v{t}, v22, v23")
        e("v_add_f32 v22, v22, v30\nv_add_f32 v23, v23, v30")
        e(f"v_mad_u32_u16 v{t+1}, v{t}, 2, v26")
        e(f"v_mad_u32_u16 v{t+2}, v{t}, 2, v26 op_sel:[1,0,0,0]")
        e(f"ds_read_u16 v{t+1}, v{t+1}\nds_read_u16 v{t+2}, v{t+2}")
    for k in range(n):
        t = 32 + 4*k
        e(f"s_waitcnt lgkmcnt({min(15, 2*(n-1-k) + 4*k)})")
        e(f"v_lshl_or_b32 v{t}, v{t+2}, 16, v{t+1}")
        for c in range(4): e(f"ds_write_b32 v21, v{t} offset:{c*(KCP+4) + 256*k}")
e("s_mov_b32 s10, 3")
e("L_EXP:")
exp_rounds(4)
e("v_add_u32 v21, 1024, v21")
e("s_sub_u32 s10, s10, 1\ns_cmp_lg_u32 s10, 0\ns_waitcnt lgkmcnt(0)\ns_cbranch_scc1 L_EXP")
exp_rounds(4, lin=True)
e("s_mov_b64 exec, 0x7fff")
for c in range(4): e(f"ds_write_b32 v21, v28 offset:{c*(KCP+4) + 1024}")
e("s_mov_b64 exec, -1")
e("v_mov_b32 v28, 2\nds_write_b32 v9, v28")
stC("ex")
e(f"s_mul_i32 s11, s13, {USZ}\ns_add_u32 s11, s11, {UB0}")
e(f"v_mov_b32 v18, {CNT2+192}")
stC("u")
e("v_lshrrev_b32 v12, 1, v10\nv_lshlrev_b32 v12, 6, v12\nv_lshl_add_u32 v12, v11, 4, v12")
e(f"v_and_b32 v13, 1, v10\nv_xor_b32 v13, 1, v13\nv_mul_u32_u24 v13, {U1OFF}, v13\nv_add_u32 v12, v12, v13")
e(f"s_add_u32 s6, s11, 448\nv_add_u32 v12, s6, v12")
e(f"v_and_b32 v13, 3, v10\nv_mul_u32_u24 v13, {KCP}, v13\nv_lshrrev_b32 v14, 2, v10\nv_sub_u32 v14, v11, v14\nv_lshl_add_u32 v13, v14, 4, v13")
e(f"s_add_u32 s6, s9, {KOFF+4080-3584}\nv_add_u32 v13, s6, v13")
CA, BU, BK = 20, [52, 116], [84, 148]
for r in range(CA, CA+32): e(f"v_mov_b32 v{r}, 0")
e("v_lshlrev_b32 v3, 4, v0\nv_add_u32 v3, s11, v3")
wait_lds(17, 18, "3", sleep=True)
for i in range(4):
    e(f"ds_read_b32 v{115+5*i}, v3 offset:{444+1024*i}")
    e(f"ds_read_b128 {vr(136+4*i,4)}, v3 offset:{448+1024*i}")
for i in range(4):
    e(f"s_waitcnt lgkmcnt({6-2*i+i})")
    e(f"v_alignbit_b32 v{152+4*i}, v{136+4*i}, v{115+5*i}, 16")
    for k in (1, 2, 3): e(f"v_alignbit_b32 v{152+4*i+k}, v{136+4*i+k}, v{136+4*i+k-1}, 16")
    e(f"ds_write_b128 v3, {vr(152+4*i,4)} offset:{U1OFF+448+1024*i}")
e("s_waitcnt lgkmcnt(0)")
def conv_reads(b):
    l = []
    for t in range(8):
        l.append(f"ds_read_b128 {vr(BU[b]+4*t,4)}, v12 offset:{512*t}")
        l.append(f"ds_read_b128 {vr(BK[b]+4*t,4)}, v13 offset:{512*(7-t)}")
    l.append("v_subrev_u32 v12, 64, v12\nv_subrev_u32 v13, 64, v13")
    return l
for l in conv_reads(0): e(l)
if OPT.get("gate", "1") == "1": wait_lds(17, 15, "12", sleep=True)
e(f"s_setprio {OPT.get('cprio', '3')}")
stC("cs")
e("s_mov_b32 s10, 4")
e("L_CV:")
for b in (0, 1):
    e("s_waitcnt lgkmcnt(0)")
    rd = conv_reads(1-b)
    n = 0
    for s_ in range(8):
        for t in range(8 - s_):
            a = CA + 4*(s_+t)
            e(f"v_mfma_f32_16x16x32_bf16 {vr(a,4)}, {vr(BU[b]+4*t,4)}, {vr(BK[b]+4*s_,4)}, {vr(a,4)}")
            if n < len(rd): e(rd[n])
            n += 1
e("s_sub_u32 s10, s10, 1\ns_cmp_lg_u32 s10, 0\ns_cbranch_scc1 L_CV")
stC("cd")
e(f"v_lshlrev_b32 v2, 7, v11\nv_lshl_add_u32 v2, v10, 2, v2\nv_add_u32 v3, s11, v2\ns_add_u32 s6, s9, {KOFF}\nv_add_u32 v2, s6, v2")
e("v_lshlrev_b32 v4, 4, v0\nv_add_u32 v5, s6, v4\nv_lshlrev_b32 v19, 16, v19")
e("s_waitcnt lgkmcnt(0)")
for k in range(16): e(f"ds_read_b32 v{52+k}, v3 offset:{448+512*(k//2)+64*(k%2)}")
e(f"s_lshl_b32 s6, s8, 12\ns_add_u32 s6, s6, {ST}")
for k in range(16):
    if k % 4 == 0: e(f"s_waitcnt lgkmcnt({min(15, 12-k+k)})")
    e(f"v_lshlrev_b32 v{68+2*(k%2)}, 16, v{52+k}\nv_and_b32 v{69+2*(k%2)}, 0xffff0000, v{52+k}")
    e(f"v_fmac_f32 v{CA+2*k}, v{68+2*(k%2)}, v19\nv_fmac_f32 v{CA+2*k+1}, v{69+2*(k%2)}, v19")
    e(f"v_cvt_pk_bf16_f32 v{52+k}, v{CA+2*k}, v{CA+2*k+1}")
    e(f"ds_write_b32 v2, v{52+k} offset:{512*(k//2)+64*(k%2)}")
for i in range(4): e(f"ds_read_b128 {vr(72+4*i,4)}, v5 offset:{1024*i}")
for i in range(4):
    e(f"s_waitcnt lgkmcnt({3-i})")
    e(f"buffer_store_dwordx4 {vr(72+4*i,4)}, v4, s[48:51], s6 offen offset:{1024*i} sc1")
stC("st")
e("s_waitcnt vmcnt(0)")
e(f"s_and_b32 s6, s8, 3\ns_lshl2_add_u32 s6, s4, s6\ns_mul_i32 s6, s6, {FS_}\ns_add_u32 s6, s6, {FL_C}")
e("v_mov_b32 v2, 0\nv_mov_b32 v3, 1\ns_mov_b64 exec, 1")
e("buffer_atomic_add v3, v2, s[48:51], s6 offen sc1")
stC("pub")
stC.flush(4, 5, (4, 9, 7))
e("s_endpgm")

e("L_S:")
stS = Stamper([82,84,86,88,90,92,94,96])
for i in range(10): e(f"buffer_load_dwordx4 {vr(128+4*i,4)}, v{64+i%5}, s[56:59], s{10 + i//5} offen{ntw2}")
e(f"v_lshrrev_b32 v1, 4, v0\nv_lshlrev_b32 v16, 2, v0\nv_add_u32 v16, {CNT2}, v16")
e(f"v_bfe_u32 v13, v0, 2, 2\nv_mul_u32_u24 v13, {SBP}, v13\nv_lshl_add_u32 v13, v1, 5, v13")
e(f"v_and_b32 v2, 3, v0\nv_lshl_add_u32 v13, v2, 3, v13\nv_add_u32 v13, {SB}, v13")
e(f"v_lshlrev_b32 v4, 4, v0\nv_add_u32 v6, {SST}, v4")
e("buffer_load_dword v7, v14, s[72:75], 0 offen sc1")
wait_lds(17, 16, "1")
e("s_mov_b64 exec, 0xffff\nds_read_b128 v[20:23], v6\ns_mov_b64 exec, -1")
for i in range(10):
    e(f"ds_read_b64_tr_b16 {vr(80+4*i,2)}, v13 offset:{128*i}")
    e(f"ds_read_b64_tr_b16 {vr(82+4*i,2)}, v13 offset:{128*i+4*SBP}")
e(f"s_lshl_b32 s6, s14, 8\ns_add_u32 s6, s6, {STATS}")
e("s_waitcnt lgkmcnt(15)\ns_mov_b64 exec, 0xffff")
e("buffer_store_dwordx4 v[20:23], v4, s[48:51], s6 offen sc1")
e("s_mov_b64 exec, -1")
stS()
e(f"v_bfe_u32 v1, v0, 2, 3\nv_lshrrev_b32 v3, 5, v0\nv_lshl_add_u32 v1, v3, 4, v1\nv_mul_u32_u24 v1, {SBW}, v1\nv_lshl_add_u32 v1, v2, 3, v1\nv_add_u32 v1, {SB}, v1")
e(f"s_lshr_b32 s6, s2, 2\ns_mul_i32 s10, s6, 5120\ns_and_b32 s7, s2, 3\ns_mul_i32 s7, s7, {2*276480}\ns_add_u32 s10, s10, s7\ns_add_u32 s10, s10, {W2F}")
e(f"s_cmp_ge_u32 s2, 216\ns_cselect_b32 s10, {OOB}, s10\ns_add_u32 s15, s15, {XNB}")
if "H" in EXP: e(f"s_mov_b32 s10, {OOB}\ns_mov_b32 s15, {OOB}")
def relay(val): e(f"v_mov_b32 v8, {val}\nds_write_b32 v15, v8")
SLP = OPT.get("sleep", "1")
def vpoll(load, chk, target, sl, first=True):
    L = e.lab("AG")
    e(f"s_mov_b32 s12, {SPIN_MAX}")
    if not first: e(f"s_branch {L}_c")
    e(f"{L}:")
    e(load); e("s_waitcnt vmcnt(0)")
    e(f"{L}_c:")
    e(f"v_cmp_gt_u32 vcc, {target}, v{chk}\ns_cbranch_vccz {L}_d\ns_sleep {sl}\ns_sub_u32 s12, s12, 1\ns_cbranch_scc0 {L}")
    e(f"{L}_d:")
def arrive(so): e(f"v_mov_b32 v8, 1\ns_mov_b64 exec, 1\nbuffer_atomic_add v8, v14, s[48:51], {so} offen sc1\ns_mov_b64 exec, -1")
e("s_waitcnt vmcnt(0)")
vpoll("buffer_load_dword v7, v14, s[72:75], 0 offen sc1", 7, 1, 8, first=False)
e(f"s_lshr_b32 s6, s14, 4\ns_mul_i32 s6, s6, {FS_}\ns_add_u32 s6, s6, {FL_T}"); arrive("s6")
e("s_cmp_ge_u32 s5, 4\ns_cbranch_scc1 L_S1"); relay(1); e("L_S1:")
stS()
e("s_waitcnt lgkmcnt(0)")
for i in range(10): e(f"ds_write_b128 v{69+i%5}, {vr(128+4*i,4)} offset:{(i//5)*16*SBW}")
e("s_waitcnt lgkmcnt(0)")
for dt in range(10):
    e(f"ds_read_b64_tr_b16 {vr(128+4*dt,2)}, v1 offset:{32*dt}")
    e(f"ds_read_b64_tr_b16 {vr(130+4*dt,2)}, v1 offset:{32*dt+8*SBW}")
for i in range(10):
    if i in (4, 8): e("s_add_u32 s15, s15, 4096")
    e(f"buffer_store_dwordx4 {vr(80+4*i,4)}, v4, s[48:51], s15 offen offset:{1024*(i%4)} sc1")
e("s_waitcnt lgkmcnt(0)")
for half in (0, 1):
    e(f"s_add_u32 s6, s10, {half*276480}\ns_add_u32 s7, s6, 4096")
    for d5 in range(5):
        r = 128 + (half*5+d5)*4
        if d5 < 4: e(f"buffer_store_dwordx4 {vr(r,4)}, v4, s[48:51], s6 offen offset:{1024*d5} sc1")
        else: e(f"buffer_store_dwordx4 {vr(r,4)}, v4, s[48:51], s7 offen sc1")
e(f"v_add_u32 v18, {CNT-CNT2}, v16\nv_and_b32 v5, 7, v0\nv_mul_u32_u24 v5, {FS_}, v5\nv_add_u32 v5, {FL_A}, v5")
e("s_waitcnt vmcnt(0)")
e(f"s_mul_i32 s6, s4, {FS_}\ns_add_u32 s6, s6, {FL_A}"); arrive("s6")
stS()
e("s_cmp_lt_u32 s5, 4\ns_cbranch_scc1 L_S2")
e(f"s_sub_u32 s6, s5, 4\ns_mul_i32 s7, s6, 37\ns_lshr_b32 s7, s7, 8\ns_mul_i32 s0, s7, 7\ns_sub_u32 s0, s6, s0\ns_lshr_b32 s6, s4, 1\ns_lshl2_add_u32 s6, s6, s7\ns_mul_i32 s6, s6, {FS_}\ns_add_u32 s6, s6, {FL_T}")
e("s_add_u32 s40, s44, s6\ns_addc_u32 s41, s45, 0")
e(f"s_and_b32 s6, s4, 1\ns_mul_i32 s6, s6, 7\ns_add_u32 s6, s6, s0\ns_mul_i32 s6, s6, {FS_}\ns_add_u32 s6, s6, {FL_E}\ns_add_u32 s38, s44, s6\ns_addc_u32 s39, s45, 0")
wait_lds(17, 18, OPT.get("tpollat", "7"), sleep=True)
spoll(40, [0], 16, 4); spoll(38, [0], 2, 4); relay(1)
wait_lds(17, 18, OPT.get("apollat", "8"), sleep=True)
e("s_branch L_S3")
e("L_S2:")
if OPT.get("warm", "0") == "1": spoll(44, [FL_A+FS_*k for k in range(8)], 32, OPT.get("isleep", "12"))
else:
    e(f"v_mov_b32 v16, {CNT2}")
    if "k" not in EXP and "e" not in EXP: wait_lds(17, 16, "2", sleep=True)
e("L_S3:")
stS()
vpoll("buffer_load_dword v7, v5, s[48:51], 0 offen sc1", 7, 32, OPT.get("ssleep", "4")); relay(2)
stS()
g2_ids()
e(f"s_mul_i32 s10, s14, 276480\ns_add_u32 s10, s10, {W2F}")
wait_lds(17, 18, OPT.get("wat", "10"), sleep=True)
if OPT.get("w8", "0") == "1":
    e("s_and_b32 s6, s5, 7\ns_mul_i32 s6, s6, 34560\ns_add_u32 s6, s6, s10")
    for k in range(34):
        e(f"buffer_load_dwordx4 {vr(192+4*(k%16),4)}, v4, s[48:51], s6 offen offset:{1024*(k%4)} sc1")
        if k % 4 == 3: e("s_add_u32 s6, s6, 4096")
e("s_mul_i32 s7, s5, 3\ns_lshl1_add_u32 s8, s5, 16\ns_cmp_lt_u32 s5, 16\ns_cselect_b32 s8, s7, s8\ns_mul_i32 s6, s4, 80\ns_add_u32 s8, s8, s6")
e(f"v_lshrrev_b32 v2, 2, v0\nv_and_b32 v6, 3, v0\nv_mul_u32_u24 v3, 10240, v2\nv_lshl_add_u32 v3, v6, 4, v3")
e(f"s_lshl_b32 s6, s8, 4\ns_add_u32 s6, s6, {XNB}")
for r in range(16):
    e(f"buffer_load_dwordx4 {vr(128+4*r,4)}, v3, s[48:51], s6 offen sc1")
    if r < 15: e("s_add_u32 s6, s6, 163840")
e(f"v_mul_u32_u24 v6, {USZ}, v6\nv_lshl_add_u32 v2, v2, 4, v6\nv_add_u32 v2, {UB0}, v2")
for r in range(20, 24): e(f"v_mov_b32 v{r}, 0")
e(f"v_add_u32 v3, {UB0}, v4")
wait_lds(17, 18, "11", sleep=True)
e("s_mov_b64 exec, 0xfffffff")
for ch in range(3): e(f"ds_write_b128 v3, v[20:23] offset:{ch*USZ}\nds_write_b128 v3, v[20:23] offset:{ch*USZ+U1OFF}")
e("s_mov_b32 exec_lo, 0x77777777\ns_mov_b32 exec_hi, 0x77777777")
for r in range(16):
    e(f"s_waitcnt vmcnt({15-r})")
    e(f"ds_write_b128 v2, {vr(128+4*r,4)} offset:{448+256*r}")
e("s_mov_b64 exec, -1")
e("v_mov_b32 v8, 3\nds_write_b32 v9, v8")
e("v_add_u32 v5, 4096, v4")
for k in range(3 if "P" not in EXP else 0):
    e(f"s_add_u32 s6, s15, {5+k}\ns_cmp_ge_u32 s6, 14\ns_cselect_b32 s7, 14, 0\ns_sub_u32 s6, s6, s7\ns_lshl_b32 s6, s6, 2")
    for w in range(4):
        e(f"s_add_u32 s7, s6, {w}\ns_mul_i32 s0, s7, 5120\ns_add_u32 s0, s0, s10\ns_cmp_ge_u32 s7, 54\ns_cselect_b32 s0, {OOB}, s0\ns_mov_b32 m0, {(w*3+k)*5120}\ns_nop 0")
        for dt in range(4): e(f"buffer_load_dwordx4 v4, s[48:51], s0 offen offset:{1024*dt} sc1 lds")
        e(f"s_mov_b32 m0, {(w*3+k)*5120+4096}\ns_nop 0\nbuffer_load_dwordx4 v5, s[48:51], s0 offen sc1 lds")
        e(f"s_waitcnt vmcnt({OPT.get('pfd', '30')})")
stS()
e("s_waitcnt vmcnt(0)"); relay(3)
stS()
wait_lds(17, 18, "13", sleep=True)
e(f"s_mul_i32 s6, s14, {4*FS_}\ns_add_u32 s6, s6, {FL_C}\ns_add_u32 s40, s44, s6\ns_addc_u32 s41, s45, 0")
if "k" not in EXP and "e" not in EXP: spoll(40, [FS_*k for k in range(4)], 20, OPT.get("csleep", "4"))
relay(4)
stS()
stS.regs = [76,78,80] + stS.regs; stS.n += 3
stS.flush(8, 9)
e("L_END:")
e("s_endpgm")
for l in tail[:-1]: e(l)
e("L_LAST:")
e(tail[-1])
if "P" in EXP:
    for c_ in e.I:
        if c_.mn == "buffer_store_dwordx4" and ("v4, s[48:51]" in c_.text): c_.text = c_.text.replace(" sc1", "")
nn = e.fix()

hdr = open("cdna_kernels/" + NAME + ".s.ref").read().split("; Override")[0]
DOC = """; One persistent launch, 256 workgroups (one per CU) x 8 waves, roles by wave:
"""
s = hdr + DOC + f"; @launch grid=(256,1,1) block=(512,1,1) lds={LDS_TOTAL}\n"
s += f""".amdgcn_target "amdgcn-amd-amdhsa--gfx950"
.text
.globl {NAME}_kernel
.p2align 8
.type {NAME}_kernel,@function
{NAME}_kernel:
"""
s += e.text()
s += f""".section .rodata,"a"
.p2align 6
.amdhsa_kernel {NAME}_kernel
  .amdhsa_next_free_vgpr 256
  .amdhsa_next_free_sgpr 102
  .amdhsa_accum_offset 256
  .amdhsa_group_segment_fixed_size 0
  .amdhsa_kernarg_size 120
  .amdhsa_user_sgpr_count 2
  .amdhsa_user_sgpr_kernarg_segment_ptr 1
  .amdhsa_system_sgpr_workgroup_id_x 1
.end_amdhsa_kernel
"""
open(OUT, "w").write(s)
print("instrs", sum(1 for c in e.I if c.cls), "nops inserted", nn, "lds", LDS_TOTAL)
```

```python
import sys, struct
from emit import Em, Q
NAME = "recurrent_scan__ssm_conv_s4d__mixer_channel_mlp__prompt"
DBGST = "--dbg" in sys.argv
AMP = [a[6:] for a in sys.argv if a.startswith("--amp=")]
STAMPS = "--stamps" in sys.argv or DBGST or bool(AMP)
OPT = dict(rot="0", cpf="1", expat="1", tpollat="7", apollat="9", nt="wp", gprio="0", cprio="1", self="2")
OPT.update(a[2:].split("=") for a in sys.argv[1:] if a.startswith("--") and "=" in a)
OUT = [a for a in sys.argv[1:] if not a.startswith("--")]
OUT = OUT[0] if OUT else "k.s"
NOAUX = OPT.get("noaux", "0")
EXP = OPT.get("exp", "")
RELAT = int(OPT.get("relat", "16"))
HELP = OPT.get("help", "1") == "1"
OSP = {"": "", "sc1": " sc1", "nt": " nt", "sc01": " sc0 sc1", "sc1nt": " sc1 nt"}[OPT.get("osp", "")]
NT = OPT.get("nt", "")
ntw2 = " nt" if "w" in NT else ""; ntp = " nt" if "p" in NT else ""; ntx = " nt" if "x" in NT else ""; ntg = " nt" if "g" in NT else ""
MT = "s_memtime" if "--cyc" in sys.argv else "s_memrealtime"

FS_ = int(OPT.get("fs", "128"))
FLB = 0x2C0000 if FS_ > 128 else 0
FL_A, FL_H, FL_C, FL_T, FL_E = [FLB + FS_*k for k in (0, 8, 40, 72, 88)]
STATS = 0x4000
XNB = 0x20000
WE = 0x2B0000
W2F = 0x300000
HF = 0x600000
ST = 0xD00000
STAMP = 0xFC0000
WS_SIZE = 0x1000000
OOB = 0x20000000
KSTEP = 8192
XST = 8 * KSTEP
CH0 = XST + 32768
CHSZ = 18176
SB = CH0 + 3 * CHSZ
SBP, SBW, SBF = 1280, 320, 160
CNT = SB + 10240
CNT2 = CNT + 256
SST = CNT2 + 256
REL = CH0 + 1284
LDS_TOTAL = SST + 256
assert LDS_TOTAL <= 163840, LDS_TOTAL
UB0, USZ, U1OFF = 61440, 9152, 4576
assert UB0 + 3*USZ <= CH0
KOFF, KCP = 1312, 4160
TBOFF, TAB, TPI = 0, 1296, 528
SPIN_MAX = 1 << 18
LOG2E = 0x3fb8aa3b
INV2PI = 0x3e22f983

e = Em()
tail = []
def f32(x): return "0x%08x" % struct.unpack("<I", struct.pack("<f", x))[0]
def srd(r, ptr, size):
    e(f"s_mov_b32 s{r}, s{ptr}\ns_mov_b32 s{r+1}, s{ptr+1}\ns_mov_b32 s{r+2}, {size}\ns_mov_b32 s{r+3}, 0x20000")
def vr(a, n): return f"v[{a}:{a+n-1}]"

class Stamper:
    def __init__(self, regs): self.regs = regs; self.n = 0
    def __call__(self):
        if not STAMPS: return
        r = self.regs[self.n]; self.n += 1
        e(f"{MT} s[{r}:{r+1}]")
    def flush(self, v0, v1, dbg=None):
        if not STAMPS: return
        e("s_waitcnt lgkmcnt(0)")
        if AMP:
            aw, ai = (AMP[0].split(":") + [None])[:2] if ":" in AMP[0] else ("0", AMP[0])
            if dbg is None or dbg[0] != int(aw): return
            r = self.regs[int(ai)]
            L = e.lab("AMP")
            e(f"s_cmp_lg_u32 s2, {OPT.get('ampwg', '100')}\ns_cbranch_scc1 {L}_e\ns_cmp_lg_u32 s3, {aw}\ns_cbranch_scc1 {L}_e")
            e(f"s_sub_u32 s6, s{r}, s46\ns_lshl_b32 s6, s6, 2\ns_min_u32 s6, s6, 20000\ns_memrealtime s[8:9]\ns_waitcnt lgkmcnt(0)")
            e(f"{L}:\ns_sleep 1\ns_memrealtime s[10:11]\ns_waitcnt lgkmcnt(0)\ns_sub_u32 s10, s10, s8\ns_cmp_lt_u32 s10, s6\ns_cbranch_scc1 {L}\n{L}_e:")
            return
        if DBGST:
            if dbg is None: return
            wave, off, n = dbg
            L = e.lab("NODBG")
            e(f"s_cmp_lg_u32 s2, 100\ns_cbranch_scc1 {L}\ns_cmp_lg_u32 s3, {wave}\ns_cbranch_scc1 {L}")
            e(f"v_mov_b32 v{v1}, 0\ns_mov_b64 exec, 1")
            for i, r in enumerate(self.regs[:n]):
                e(f"s_sub_u32 s{r}, s{r}, s46\nv_mov_b32 v{v0}, s{r}")
                e(f"buffer_store_dword v{v0}, v{v1}, s[72:75], 0 offen offset:{4*(off+i)}")
                e("s_nop 0")
            e("s_waitcnt vmcnt(0)")
            e(f"{L}:")
            return
        e("s_lshl_b32 s6, s2, 3\ns_add_u32 s6, s6, s3\ns_lshl_b32 s6, s6, 6")
        e(f"s_add_u32 s6, s6, {STAMP}")
        e(f"v_mov_b32 v{v1}, 0")
        e("s_mov_b64 exec, 1")
        for i, r in enumerate([46] + self.regs[:self.n]):
            e(f"v_mov_b32 v{v0}, s{r}")
            e(f"buffer_store_dword v{v0}, v{v1}, s[48:51], s6 offen offset:{4*i}")
            e("s_nop 0")
        e("s_waitcnt vmcnt(0)")

def spin_lds(vchk, vaddr, val, sleep=False, after=(), pre_cmp=True, branch="s_cbranch_vccnz"):
    if NOAUX != "0" and not val.startswith("v"): return
    L = e.lab("SPIN"); B = e.lab("BACK")
    if pre_cmp: e(f"v_cmp_gt_u32 vcc, {val}, v{vchk}")
    e(f"{branch} {L}")
    e(f"{B}:")
    D = f"{L}_d" if after else B
    tail.extend([f"{L}:", f"s_mov_b32 s12, {SPIN_MAX*8}", f"{L}_a:"] + (["s_sleep 1"] if sleep else []) +
                [f"ds_read_b32 v{vchk}, v{vaddr}", "s_waitcnt lgkmcnt(0)",
                 f"v_cmp_gt_u32 vcc, {val}, v{vchk}", f"s_cbranch_vccz {D}", "s_sub_u32 s12, s12, 1", f"s_cbranch_scc0 {L}_a"] +
                ([f"{D}:"] + list(after) if after else []) + [f"s_branch {B}"])
def wait_lds(vchk, vaddr, val, sleep=False):
    e(f"ds_read_b32 v{vchk}, v{vaddr}\ns_waitcnt lgkmcnt(0)")
    spin_lds(vchk, vaddr, val, sleep)
def spoll(base, offs, target, sl, r0=16):
    if NOAUX != "0": return
    L = e.lab("AG")
    e(f"s_mov_b32 s12, {SPIN_MAX}")
    e(f"{L}:")
    for k, o in enumerate(offs): e(f"s_load_dword s{r0+k}, s[{base}:{base+1}], {o} glc")
    e("s_waitcnt lgkmcnt(0)")
    for k in range(1, len(offs)): e(f"s_min_u32 s{r0}, s{r0}, s{r0+k}")
    e(f"s_cmp_ge_u32 s{r0}, {target}\ns_cbranch_scc1 {L}_d\ns_sleep {sl}\ns_sub_u32 s12, s12, 1\ns_cbranch_scc0 {L}")
    e(f"{L}_d:")
def rb(dst, src):
    e(f"v_cvt_pk_bf16_f32 v{dst}, v{src}, v{src}\nv_and_b32 v{dst}, 0xffff0000, v{dst}")
def zero_cnt(base):
    e(f"s_and_b32 s6, s3, 3\ns_lshl_b32 s6, s6, 6\ns_add_u32 s6, s6, {base}")
    e("v_and_b32 v9, 15, v0\nv_lshlrev_b32 v9, 2, v9\nv_add_u32 v9, s6, v9\nv_mov_b32 v11, 0")
    e("ds_write_b32 v9, v11")

e("s_cmp_ge_u32 s2, 256")
e("s_cbranch_scc1 L_END")
if STAMPS: e(f"{MT} s[46:47]")
e("s_load_dwordx16 s[16:31], s[0:1], 0")
e("s_load_dwordx8 s[32:39], s[0:1], 64")
e("s_load_dwordx4 s[40:43], s[0:1], 96")
e("s_load_dwordx2 s[44:45], s[0:1], 112")
e("v_lshrrev_b32 v1, 6, v0")
e("v_and_b32 v0, 63, v0")
e("v_readfirstlane_b32 s3, v1")
e("s_and_b32 s4, s2, 7")
e("s_lshr_b32 s5, s2, 3")
if OPT.get("idlelast", "1") == "1": e("s_add_u32 s5, s5, 4\ns_and_b32 s5, s5, 31")
e("s_cmp_ge_u32 s3, 4")
e("s_cbranch_scc1 L_AUX")

def chan_id(cw):
    e("s_mul_i32 s7, s5, 3\ns_lshl1_add_u32 s8, s5, 16\ns_cmp_lt_u32 s5, 16\ns_cselect_b32 s8, s7, s8\ns_cselect_b32 s7, 3, 2")
    e(f"s_add_u32 s8, s8, s{cw}\ns_mul_i32 s6, s4, 80\ns_add_u32 s8, s8, s6\ns_cmp_ge_u32 s{cw}, s7\ns_cselect_b32 s8, 640, s8")
def param_loads(P, voff, vz, so, so2, R):
    for k, p in enumerate((18, 20, 22, 24)):
        srd(R[k], p, 163840)
        e(f"buffer_load_dword v{P+k}, v{voff}, s[{R[k]}:{R[k]+3}], s{so} offen{ntp}")
    srd(R[0], 26, 1280); e(f"buffer_load_ushort v{P+4}, v{vz}, s[{R[0]}:{R[0]+3}], s{so2} offen")
def k_setup_pk(P, LAM, CC, EV, PS, conj, starts, TM):
    DT = P + 4
    e(f"v_lshlrev_b32 v{DT}, 16, v{DT}\nv_mul_f32 v{DT}, {LOG2E}, v{DT}\nv_exp_f32 v{DT}, v{DT}")
    for k, d in enumerate((LAM, LAM+2, CC, CC+2)): e(f"v_lshlrev_b32 v{d}, 16, v{P+k}\nv_and_b32 v{d+1}, 0xffff0000, v{P+k}")
    rb(DT, DT)
    for n in (0, 1): e(f"v_mul_f32 v{LAM+n}, {LOG2E}, v{LAM+n}")
    for n in (0, 1): e(f"v_exp_f32 v{LAM+n}, v{LAM+n}")
    e(f"v_add_f32 v{P}, v{DT}, v{DT}")
    e(f"v_cvt_pk_bf16_f32 v{P+1}, v{LAM}, v{LAM+1}\nv_lshlrev_b32 v{LAM}, 16, v{P+1}\nv_and_b32 v{LAM+1}, 0xffff0000, v{P+1}")
    for d in (LAM, LAM+2): e(f"v_pk_mul_f32 {vr(d,2)}, {vr(d,2)}, {vr(DT,2)} op_sel_hi:[1,0]")
    for d in (CC, CC+2): e(f"v_pk_mul_f32 {vr(d,2)}, {vr(d,2)}, {vr(P,2)} op_sel_hi:[1,0]")
    for n in (0, 1): e(f"v_mul_f32 v{LAM+n}, {f32(-1.4426950408889634)}, v{LAM+n}\nv_mul_f32 v{LAM+2+n}, {INV2PI}, v{LAM+2+n}")
    for i, p in enumerate(PS):
        for k in range(4): e(f"v_mul_f32 v{TM+4*i+k}, {f32(p)}, v{LAM+k}")
    for i, p in enumerate(PS):
        for n in (0, 1): e(f"v_exp_f32 v{TM+4*i+n}, v{TM+4*i+n}\nv_fract_f32 v{TM+4*i+2+n}, v{TM+4*i+2+n}")
    for i, p in enumerate(PS):
        for n in (0, 1): e(f"v_cos_f32 v{EV[p]+n}, v{TM+4*i+2+n}\nv_sin_f32 v{EV[p]+2+n}, v{TM+4*i+2+n}")
    for i, p in enumerate(PS):
        e(f"v_pk_mul_f32 {vr(EV[p],2)}, {vr(EV[p],2)}, {vr(TM+4*i,2)}")
        e(f"v_pk_mul_f32 {vr(EV[p]+2,2)}, {vr(EV[p]+2,2)}, {vr(TM+4*i,2)}" + (" neg_lo:[1,0] neg_hi:[1,0]" if p == conj else ""))
    pk_step([(EV[p], CC, TM+2*i) for i, p in enumerate(starts)])
def pk_step(g, mid=()):
    for (z, m, t) in g: e(f"v_pk_mul_f32 {vr(t,2)}, {vr(z+2,2)}, {vr(m+2,2)}")
    for l in mid: e(l)
    for (z, m, t) in g: e(f"v_pk_mul_f32 {vr(z+2,2)}, {vr(z+2,2)}, {vr(m,2)}")
    for (z, m, t) in g: e(f"v_pk_fma_f32 {vr(z+2,2)}, {vr(z,2)}, {vr(m+2,2)}, {vr(z+2,2)}")
    for (z, m, t) in g: e(f"v_pk_fma_f32 {vr(z,2)}, {vr(z,2)}, {vr(m,2)}, {vr(t,2)} neg_lo:[0,0,1] neg_hi:[0,0,1]")
def chain_pk(ch, n, row0, VB, TM):
    for u in range(n):
        for i, (z, m, off) in enumerate(ch):
            e(f"v_cvt_pk_bf16_f32 v{TM+4*(u&1)+2*i}, v{z}, v{z+2}\nv_cvt_pk_bf16_f32 v{TM+1+4*(u&1)+2*i}, v{z+1}, v{z+3}")
        wr = [f"ds_write_b64 v{VB}, {vr(TM+4*(u&1)+2*i,2)} offset:{(row0+off+u)*TPI}" for i, (z, m, off) in enumerate(ch)]
        pk_step([(z, m, TM+8+2*i) for i, (z, m, off) in enumerate(ch)], wr)
def k_setup(P, LAM, CC, EV, PS, conj, starts, TM):
    DT = P + 4
    e(f"v_lshlrev_b32 v{DT}, 16, v{DT}\nv_mul_f32 v{DT}, {LOG2E}, v{DT}\nv_exp_f32 v{DT}, v{DT}")
    for n in (0, 1):
        up = (lambda d, s: e(f"v_lshlrev_b32 v{d}, 16, v{s}")) if n == 0 else (lambda d, s: e(f"v_and_b32 v{d}, 0xffff0000, v{s}"))
        up(LAM+2*n, P); up(LAM+2*n+1, P+1); up(CC+2*n, P+2); up(CC+2*n+1, P+3)
    rb(DT, DT)
    for n in (0, 1): e(f"v_mul_f32 v{LAM+2*n}, {LOG2E}, v{LAM+2*n}")
    for n in (0, 1): e(f"v_exp_f32 v{LAM+2*n}, v{LAM+2*n}")
    e(f"v_add_f32 v{P}, v{DT}, v{DT}")
    for n in (0, 1): rb(LAM+2*n, LAM+2*n)
    for n in (0, 1):
        e(f"v_mul_f32 v{LAM+2*n}, v{LAM+2*n}, v{DT}\nv_mul_f32 v{LAM+2*n+1}, v{LAM+2*n+1}, v{DT}")
        e(f"v_mul_f32 v{CC+2*n}, v{CC+2*n}, v{P}\nv_mul_f32 v{CC+2*n+1}, v{CC+2*n+1}, v{P}")
    for n in (0, 1):
        e(f"v_mul_f32 v{LAM+2*n}, {f32(-1.4426950408889634)}, v{LAM+2*n}\nv_mul_f32 v{LAM+2*n+1}, {INV2PI}, v{LAM+2*n+1}")
    it = [(p, n) for p in PS for n in (0, 1)]
    tm = {k: TM + 2*i for i, k in enumerate(it)}
    for (p, n) in it:
        if p == 1.0: e(f"v_exp_f32 v{tm[p,n]}, v{LAM+2*n}\nv_fract_f32 v{tm[p,n]+1}, v{LAM+2*n+1}")
        else: e(f"v_mul_f32 v{tm[p,n]}, {f32(p)}, v{LAM+2*n}\nv_mul_f32 v{tm[p,n]+1}, {f32(p)}, v{LAM+2*n+1}")
    for (p, n) in it:
        if p != 1.0: e(f"v_exp_f32 v{tm[p,n]}, v{tm[p,n]}\nv_fract_f32 v{tm[p,n]+1}, v{tm[p,n]+1}")
    for (p, n) in it: e(f"v_cos_f32 v{EV[p]+2*n}, v{tm[p,n]+1}\nv_sin_f32 v{EV[p]+2*n+1}, v{tm[p,n]+1}")
    for (p, n) in it:
        neg = "-" if p in conj else ""
        e(f"v_mul_f32 v{EV[p]+2*n}, v{EV[p]+2*n}, v{tm[p,n]}")
        e(f"v_mul_f32 v{EV[p]+2*n+1}, {neg}v{EV[p]+2*n+1}, v{tm[p,n]}")
    g_ = [(EV[p]+2*n, CC+2*n, TM+2*i+n) for i, p in enumerate(starts) for n in (0, 1)]
    for (z, m, t) in g_: e(f"v_mul_f32 v{t}, v{z+1}, v{m+1}")
    for (z, m, t) in g_: e(f"v_mul_f32 v{z+1}, v{z+1}, v{m}")
    for (z, m, t) in g_: e(f"v_fmac_f32 v{z+1}, v{z}, v{m+1}")
    for (z, m, t) in g_: e(f"v_fma_f32 v{z}, v{z}, v{m}, -v{t}")
def chain_loop(ch, n, row0, VB, VA, TM, SC):
    L = e.lab("KL")
    UN = min(n, int(OPT.get("kun", "4")))
    if n > UN: e(f"s_mov_b32 s{SC}, {n//UN}")
    e(f"v_add_u32 v{VA}, {row0*TPI}, v{VB}")
    e(f"{L}:")
    for u in range(UN):
        for i, (z, m, off) in enumerate(ch):
            e(f"v_cvt_pk_bf16_f32 v{TM+4*(u&1)+2*i}, v{z}, v{z+1}\nv_cvt_pk_bf16_f32 v{TM+1+4*(u&1)+2*i}, v{z+2}, v{z+3}")
        g = [(z+2*k, m+2*k, TM+8+2*i+k) for i, (z, m, off) in enumerate(ch) for k in (0, 1)]
        for (z, m, t) in g: e(f"v_mul_f32 v{t}, v{z+1}, v{m+1}")
        for i, (z, m, off) in enumerate(ch): e(f"ds_write_b64 v{VA}, {vr(TM+4*(u&1)+2*i,2)} offset:{(off+u)*TPI}")
        for (z, m, t) in g: e(f"v_mul_f32 v{z+1}, v{z+1}, v{m}")
        if u == UN-1 and n > UN: e(f"v_add_u32 v{VA}, {UN*TPI}, v{VA}")
        for (z, m, t) in g: e(f"v_fmac_f32 v{z+1}, v{z}, v{m+1}")
        if u == UN-1 and n > UN: e(f"s_sub_u32 s{SC}, s{SC}, 1\ns_cmp_lg_u32 s{SC}, 0")
        for (z, m, t) in g: e(f"v_fma_f32 v{z}, v{z}, v{m}, -v{t}")
    if n > UN: e(f"s_cbranch_scc1 {L}")
def y_init(Y): e(f"v_mov_b32 v{Y}, 1.0\nv_mov_b32 v{Y+1}, 0\nv_mov_b32 v{Y+2}, 1.0\nv_mov_b32 v{Y+3}, 0")
def frag_reads(dst, VF, row0):
    for s_ in range(8): e(f"ds_read_b128 {vr(dst+4*s_,4)}, v{VF} offset:{64*s_+row0*TPI}")
def k_mfma(K, FA, FY):
    for s_ in range(8):
        e(f"s_waitcnt lgkmcnt({7-s_})")
        e(f"v_mfma_f32_16x16x32_bf16 {vr(K,4)}, {vr(FA+4*s_,4)}, {vr(FY+4*s_,4)}, {vr(K,4) if s_ else 0}")
def g2_ids():
    e("s_and_b32 s6, s5, 7\ns_lshr_b32 s13, s4, 1\ns_lshl3_add_u32 s13, s13, s6\ns_lshr_b32 s7, s5, 3\ns_and_b32 s14, s4, 1\ns_lshl2_add_u32 s14, s14, s7")
    e("s_mul_i32 s15, s7, 7\ns_lshr_b32 s15, s15, 1")

_stG = Stamper([30,32,34,36,38,96,98,100])
GSEL = OPT.get("gst", "c0,g1,ep,hp,hs,g2,rd,end").split(",")
class _G:
    def __call__(self, name):
        if name in GSEL:
            _stG.n = GSEL.index(name); _stG()
    def flush(self, *a):
        _stG.n = 8; _stG.flush(*a)
stG = _G()
vm = Q(e, "vmcnt", 63); lg = Q(e, "lgkmcnt", 15)
XR, VXA, WB = 48, 244, 80
ACC = 112
VCHK, VREL = 250, 251
WEF, XEF, XEC = 176, 192, 196
sK = [76+i for i in range(14)]
HP = 112
e(f"s_setprio {OPT.get('gprio', '2')}")
zero_cnt(CNT)
e("v_lshrrev_b32 v10, 4, v0")
e("v_and_b32 v8, 15, v0")
g2_ids()
if HELP: chan_id(3)
if HELP: e(f"s_lshl_b32 s60, s8, 8\ns_lshl_b32 s61, s8, 1\ns_mov_b32 s62, s8\nv_lshlrev_b32 v117, 2, v0\nv_mov_b32 v118, 0")
e("s_cmp_lt_u32 s5, 4")
e("s_cbranch_scc1 L_IDLE")
e("s_sub_u32 s6, s5, 4\ns_mul_i32 s7, s6, 37\ns_lshr_b32 s7, s7, 8\ns_mul_i32 s8, s7, 7\ns_sub_u32 s6, s6, s8")
e("s_lshr_b32 s8, s4, 1\ns_lshl_b32 s8, s8, 2\ns_add_u32 s8, s8, s7")
e("s_and_b32 s9, s4, 1\ns_mul_i32 s9, s9, 7\ns_add_u32 s9, s9, s6")
e("s_lshl_b32 s11, s9, 8")
ROT = OPT.get("rot", "1") != "0"
sW = list(range(16, 26)); sX = [26, 27, 28, 29, 90, 91, 92, 93, 94, 95]
if ROT:
    e("s_mul_i32 s12, s6, 370\ns_lshr_b32 s12, s12, 8\ns_mul_i32 s7, s7, 5\ns_lshr_b32 s7, s7, 1\ns_add_u32 s12, s12, s7")
    e("s_cmp_ge_u32 s12, 10\ns_cselect_b32 s7, 10, 0\ns_sub_u32 s12, s12, s7")
def rot_tab(ps):
    if not ROT: return
    for p in ps:
        if p: e("s_add_u32 s12, s12, 1\ns_cmp_eq_u32 s12, 10\ns_cselect_b32 s12, 0, s12")
        e(f"s_mul_i32 s{sW[p]}, s12, 221184\ns_add_u32 s{sW[p]}, s{sW[p]}, s11\ns_lshl_b32 s{sX[p]}, s12, 7")
e("v_bfe_u32 v1, v0, 2, 2\ns_lshl_b32 s6, s3, 3\nv_add_u32 v1, s6, v1\nv_mul_u32_u24 v1, 3456, v1")
e("v_lshl_add_u32 v1, v10, 6, v1\nv_and_b32 v2, 3, v0\nv_lshl_add_u32 v1, v2, 4, v1")
e(f"v_add_u32 v2, {4*3456-1024}, v1")
e("s_lshl_b32 s6, s8, 7\ns_lshl_b32 s7, s3, 5\ns_add_u32 s6, s6, s7")
e("v_lshrrev_b32 v5, 3, v0\nv_add_u32 v3, s6, v5\nv_mul_u32_u24 v3, 1280, v3\nv_and_b32 v6, 7, v0\nv_lshrrev_b32 v5, 1, v5\nv_xor_b32 v6, v6, v5")
e(f"v_xor_b32 v5, 4, v6\nv_lshl_add_u32 v4, v5, 4, v3\nv_add_u32 v4, {10240-1024}, v4\nv_lshl_add_u32 v3, v6, 4, v3")
e(f"s_lshl_b32 s10, s3, 13\ns_add_u32 s10, s10, {XST}")
e("s_waitcnt lgkmcnt(0)")
def g_params():
    if not HELP: return
    param_loads(HP, 117, 118, 60, 61, (64, 68, 72, 48))
    for _ in range(5): vm.issue("par")
g_params()
e("s_barrier")
e("s_lshl_b32 s1, s3, 11")
srd(56, 32, 2211840); srd(52, 16, 2621440)
rot_tab(range(1))
def w_ops(step):
    def a():
        if ROT: e(f"s_add_u32 m0, s1, {(step % 8)*KSTEP}\ns_add_u32 s0, s{sW[step//2]}, {(step % 2)*110592}")
        else: e(f"s_add_u32 m0, s1, {(step % 8)*KSTEP}\ns_add_u32 s0, s11, {step*110592}")
        e(f"buffer_load_dwordx4 v1, s[56:59], s0 offen{ntg} lds"); vm.issue(("w", step//2))
    def b():
        e(f"buffer_load_dwordx4 v2, s[56:59], s0 offen offset:1024{ntg} lds"); vm.issue(("w", step//2))
    return [a, b]
def x_ops(u):
    def a():
        if ROT: e(f"s_add_u32 m0, s10, {(u % 4)*2048}\ns_add_u32 s0, s{sX[u//2]}, {(u % 2)*20480}")
        else: e(f"s_add_u32 m0, s10, {(u % 4)*2048}\ns_mov_b32 s0, {(u//2)*128 + (u % 2)*20480}")
        e("buffer_load_dwordx4 v3, s[52:55], s0 offen lds"); vm.issue(("x", u))
    def b():
        e("buffer_load_dwordx4 v4, s[52:55], s0 offen offset:1024 lds"); vm.issue(("x", u))
    return [a, b]
def x_read(c, kk):
    if kk == 0: vm.wait(("x", 2*c+1))
    e(f"ds_read_b128 {vr(XR+(c%2)*16+4*kk,4)}, v{VXA+kk} offset:{(c%2)*4096}"); lg.issue(("xr", c, kk))
for op in w_ops(0) + x_ops(0) + x_ops(1) + w_ops(1): op()
def g_srds(): srd(48, 44, WS_SIZE); srd(64, 38, 1280); srd(68, 40, 2621440); srd(72, 42, 256)
g_srds()
rot_tab(range(1, 10))
NP2 = int(OPT.get("np2", "0"))
late = (w_ops(2) + w_ops(3) + x_ops(2) + x_ops(3))
for op in late[:NP2]: op()
def helper(mid=((), ())):
    if not HELP:
        for op in list(mid[0]) + list(mid[1]): op()
        return
    LAM, CC, TM, YC, FY, FA, KT = 120, 124, 144, 160, 176, 208, 240
    EV = {8.0: 128, 128.0: 132, 512.0: 136, 516.0: 140}
    e("s_cmp_ge_u32 s62, 640" if "n" not in EXP else "s_cmp_ge_u32 s62, 0")
    L = e.lab("NOH")
    e(f"s_cbranch_scc1 {L}")
    e(f"s_mul_i32 s6, s3, {16*TPI}\ns_add_u32 s6, s6, {4*KSTEP}\nv_lshlrev_b32 v164, 3, v0\nv_add_u32 v164, s6, v164")
    e(f"v_mul_u32_u24 v165, {TPI}, v8\nv_lshl_add_u32 v165, v10, 4, v165\nv_add_u32 v165, s6, v165")
    e(f"s_mul_i32 s6, s3, {CHSZ}\ns_add_u32 s6, s6, {CH0+TBOFF}")
    e("v_lshlrev_b32 v167, 1, v8\nv_lshl_add_u32 v167, v10, 7, v167\nv_add_u32 v167, s6, v167")
    e("v_lshlrev_b32 v168, 2, v8\nv_lshrrev_b32 v169, 1, v10\nv_lshl_add_u32 v168, v169, 1, v168\nv_add_u32 v168, s6, v168")
    e(f"v_mov_b32 v{YC}, 1.0\nv_mov_b32 v{YC+1}, 1.0\nv_mov_b32 v{YC+2}, 0\nv_mov_b32 v{YC+3}, 0")
    vm.wait("par")
    stG("par")
    k_setup_pk(HP, LAM, CC, EV, [8.0, 128.0, 512.0, 516.0], 8.0, (512.0, 516.0), TM)
    for op in mid[0]: op()
    L2 = e.lab("HY")
    e(f"s_mov_b32 s63, 4\nv_mov_b32 v166, v164\n{L2}:")
    chain_pk([(YC, EV[8.0], 0)], 4, 0, 166, TM)
    e(f"v_add_u32 v166, {4*TPI}, v166\ns_sub_u32 s63, s63, 1\ns_cmp_lg_u32 s63, 0\ns_cbranch_scc1 {L2}")
    frag_reads(FY, 165, 0)
    for op in mid[1]: op()
    chain_pk([(EV[512.0], EV[128.0], 0), (EV[516.0], EV[128.0], 12)], 4, 0, 164, TM)
    chain_pk([(EV[512.0], EV[128.0], 0)], 8, 4, 164, TM)
    frag_reads(FA, 165, 0)
    k_mfma(KT, FA, FY)
    for r in range(4): e(f"v_cvt_pk_bf16_f32 v{TM+r}, v{KT+r}, v{KT+r}")
    e("s_mov_b32 exec_lo, 0xffff\ns_mov_b32 exec_hi, 0xffff0000")
    for r in range(4): e(f"ds_write_b16 v168, v{TM+r} offset:{768+64*r}")
    e("s_mov_b32 exec_lo, 0xffff0000\ns_mov_b32 exec_hi, 0xffff")
    for r in range(4): e(f"ds_write_b16 v167, v{TM+r} offset:{896+32*r}")
    e("s_mov_b64 exec, -1")
    if mid[0] or mid[1]:
        q = list(vm.q)
        e(f"s_branch {L}_j\n{L}:")
        for op in list(mid[0]) + list(mid[1]): op()
        vm.q = q
        e(f"{L}_j:")
    else: e(f"{L}:")
def kappa_tab():
    e("s_cmp_lt_u32 s3, 2\ns_cselect_b32 s0, 14, 13\ns_cselect_b64 s[24:25], -1, 0\ns_mov_b32 s6, s15")
    for i in range(14):
        if i: e("s_add_u32 s6, s6, 1\ns_cmp_eq_u32 s6, s0\ns_cselect_b32 s6, 0, s6")
        e(f"s_lshl2_add_u32 s7, s6, s3\ns_lshl_b32 s{sK[i]}, s7, 10")
if OPT.get("kapearly", "0") == "1": kappa_tab()
e("v_lshrrev_b32 v7, 5, v0\nv_lshlrev_b32 v5, 11, v7\nv_bfe_u32 v6, v0, 2, 2\nv_lshl_add_u32 v5, v6, 6, v5\nv_bfe_u32 v6, v0, 4, 1\nv_lshl_add_u32 v5, v6, 5, v5\nv_and_b32 v6, 3, v0\nv_lshl_add_u32 v5, v6, 3, v5")
e(f"v_bfe_u32 v6, v0, 1, 3\nv_xor_b32 v6, v6, v7\nv_lshlrev_b32 v6, 4, v6\nv_and_b32 v253, 31, v0\nv_lshl_add_u32 v6, v253, 7, v6")
for kk in range(4): e(f"v_xor_b32 v{VXA+kk}, {32*kk}, v6\nv_add_u32 v{VXA+kk}, s10, v{VXA+kk}")
e(f"v_mov_b32 v252, {OOB}\nv_cmp_gt_u32 vcc, 32, v0\nv_lshlrev_b32 v6, 4, v253\nv_lshlrev_b32 v253, 5, v253\nv_cndmask_b32 v6, v252, v6, vcc\nv_cndmask_b32 v7, v252, v253, vcc")
e(f"v_lshlrev_b32 v250, 2, v0\nv_add_u32 v250, {CNT}, v250")
vq = list(vm.q)
if OPT.get("mid", "1") == "1":
    helper((late[NP2:4], late[4:]))
    vm.q = vq + vm.q[len(vm.q)-(8-NP2):]
else:
    helper()
    vm.q = vq
    for op in late[NP2:]: op()
stG("hlp")
def gcommon():
    e(f"v_lshlrev_b32 v10, 2, v0\nv_add_u32 v10, {CNT}, v10")
def w2_ops(i):
    ops = []
    for dt in range(5):
        def f(dt=dt):
            if dt == 0: e(f"s_lshl2_add_u32 s0, s{sK[i]}, s10\ns_add_u32 s0, s0, s{sK[i]}")
            if dt == 4: e("s_add_u32 s0, s0, 4096")
            r = 12 + (i % 5)*20 + dt*4
            e(f"buffer_load_dwordx4 {vr(r,4)}, v1, s[48:51], s0 offen offset:{1024*(dt%4)} sc1"); vm.issue(("w2", i))
        ops.append(f)
    return ops
def g2_bases():
    e("v_lshlrev_b32 v1, 4, v0")
    e(f"s_mul_i32 s10, s14, 276480\ns_add_u32 s10, s10, {W2F}")
    e(f"s_mul_i32 s11, s13, 221184\ns_add_u32 s11, s11, {HF}")
e("v_mov_b32 v10, v250")
EW = int(OPT.get("ew", "0"))
if EW: kappa_tab()
stG("p")
def signal():
    e("v_add_u32 v11, 1, v11")
    e("ds_write_b32 v9, v11"); lg.issue("sig")
CHKR = [VCHK]
def chk_read():
    e(f"ds_read_b32 v{CHKR[0]}, v10"); lg.issue("chk")
def chk_eval():
    lg.wait("chk")
    spin_lds(CHKR[0], 10, "v11")
def tr_one(step, n, hf_):
    kh, t = divmod(n, 4)
    e(f"ds_read_b64_tr_b16 {vr(WB+4*n+2*hf_,2)}, v5 offset:{(step % 8)*KSTEP + 4096*kh + 1024*hf_ + 256*t}"); lg.issue(("w", step, n))
vm.wait(("w", 0))
signal(); chk_read()
for kk in range(4): x_read(0, kk)
chk_eval()
stG("c0")
for n in range(8): tr_one(0, n, 0); tr_one(0, n, 1)
EW = 0
for i in range(20):
    c, k2 = divmod(i, 2)
    stG(f"a{i}")
    side = {n: [] for n in range(8)}
    if i < 19:
        for n in range(8): side[n] += [lambda n=n: tr_one(i+1, n, 0), lambda n=n: tr_one(i+1, n, 1)]
    if i == 0:
        for n, op in zip((0, 1, 2, 3), w_ops(4) + w_ops(5)): side[n].append(op)
    elif i + 5 <= 19:
        for n, op in zip((0, 2), w_ops(i+5)): side[n].append(op)
    if i + 4 <= 19:
        if k2 == 0: side[4].append(lambda c=c: lg.wait(("xr", c, 3)))
        for n, op in zip((4, 6), x_ops(i+4)): side[n].append(op)
    if k2 == 0 and c + 1 <= 9:
        def sg(c=c):
            vm.wait(("w", c+1)); signal()
        side[3].append(sg); side[5].append(chk_read)
    if k2 == 1 and c + 1 <= 9:
        for kk in range(4): side[(1, 3, 5, 7)[kk]].append(lambda kk=kk, c=c: x_read(c+1, kk))
    if i == 15:
        side[5].append(lambda: (e(f"v_mov_b32 v252, {REL}\nds_read_b32 v{VREL}, v252"), lg.issue("rel")))
    if i == RELAT:
        def f():
            if RELAT != 16: e(f"ds_read_b32 v{VREL}, v252"); lg.issue("rel")
            lg.wait("rel")
            spin_lds(VREL, 252, "1")
            e(f"s_lshl_b32 s6, s8, 12\ns_lshl_b32 s7, s3, 10\ns_add_u32 s6, s6, s7\ns_add_u32 s6, s6, {STATS}\ns_lshl_b32 s63, s9, 11\ns_add_u32 s63, s63, {WE}")
            e(f"buffer_load_dwordx4 {vr(XEF,4)}, v7, s[48:51], s6 offen sc1"); vm.issue("xe")
        side[0].append(f)
        side[2].append(lambda: (e(f"buffer_load_dwordx4 {vr(XEC,4)}, v253, s[48:51], s6 offen offset:16 sc1"), vm.issue("xe")))
        for t in range(4):
            side[(1, 4, 6, 7)[t]].append(lambda t=t: (e(f"buffer_load_dwordx4 {vr(WEF+4*t,4)}, v6, s[48:51], s63 offen offset:{512*t} sc1"), vm.issue("xe")))
    if i == 18:
        side[1].append(g2_bases)
        side[3].append(lambda: e("v_bfe_u32 v3, v0, 4, 1\nv_lshlrev_b32 v3, 10, v3\nv_lshrrev_b32 v4, 5, v0\nv_lshl_add_u32 v3, v4, 8, v3"))
        side[5].append(lambda: e("v_and_b32 v4, 15, v0\nv_lshl_add_u32 v255, v4, 4, v3\nv_mov_b32 v2, 0"))
    if i == 19:
        side[0].append(lambda: e(f"s_lshr_b32 s6, s3, 1\ns_lshl_b32 s7, s8, 1\ns_add_u32 s6, s6, s7\ns_mul_i32 s44, s6, 221184"))
        side[1].append(lambda: e(f"s_and_b32 s7, s3, 1\ns_lshl_b32 s7, s7, 11\ns_add_u32 s44, s44, s7\ns_add_u32 s44, s44, {HF}"))
        side[2].append(lambda: e(f"s_mul_i32 s45, s6, {FS_}\ns_add_u32 s45, s45, {FL_H}"))
        side[3].append(lambda: e(f"s_lshl_b32 s6, s9, 14\ns_add_u32 s44, s44, s6\ns_cmp_eq_u32 s9, 13\ns_cselect_b32 s43, {OOB}, s44"))
        side[7].append(signal)
    for n in range(8):
        kh, t = divmod(n, 4)
        need = [("w", i, n), ("w", i, n+1)] if n % 2 == 0 else []
        if t == 0: need += [("xr", c, 2*k2+kh)]
        if need: lg.wait(need)
        a_ = ACC + 16*t
        e(f"v_mfma_f32_32x32x16_bf16 {vr(a_,16)}, {vr(WB+4*n,4)}, {vr(XR+(c%2)*16+4*(2*k2+kh),4)}, {vr(a_,16) if (i or kh) else 0}")
        for f in side[n]: f()
    if k2 == 0 and c + 1 <= 9: chk_eval()
vm.wait("xe")
for t in range(4): e(f"v_mfma_f32_32x32x16_bf16 {vr(ACC+16*t,16)}, {vr(WEF+4*t,4)}, {vr(XEF,4)}, {vr(ACC+16*t,16)}")
e("v_mov_b32 v7, 1")
stG("g1")
TQ, TE, TO = 224, 232, 240
def h_flag(k):
    vm.wait(("hst", k))
    e(f"s_mov_b64 exec, 1\nbuffer_atomic_add v7, v2, s[48:51], s45 offen offset:{4*k} sc1\ns_mov_b64 exec, -1")
for tp in range(4):
    e(f"s_add_u32 s6, s{44 if tp < 2 else 43}, {4096*tp}")
    for mt in (0, 1):
        st = XEC
        P = range(4)
        acc = lambda q: ACC + 16*tp + 8*mt + 2*q
        for q in P: e(f"v_pk_mul_f32 {vr(TQ+2*q,2)}, {vr(acc(q),2)}, {vr(acc(q),2)}")
        for q in P: e(f"v_pk_fma_f32 {vr(TQ+2*q,2)}, {vr(st,2)}, {vr(TQ+2*q,2)}, {vr(st,2)} op_sel:[0,0,1] op_sel_hi:[0,1,1]")
        for q in P: e(f"v_pk_mul_f32 {vr(TQ+2*q,2)}, {vr(TQ+2*q,2)}, {vr(acc(q),2)}")
        for q in range(8): e(f"v_exp_f32 v{TE+q}, v{TQ+q}")
        for q in P: e(f"v_pk_fma_f32 {vr(TE+2*q,2)}, {vr(st+2,2)}, {vr(TE+2*q,2)}, {vr(st+2,2)} op_sel_hi:[0,1,0]")
        for q in range(8): e(f"v_rcp_f32 v{TE+q}, v{TE+q}")
        for q in P: e(f"v_pk_mul_f32 {vr(TE+2*q,2)}, {vr(TE+2*q,2)}, {vr(acc(q),2)}")
        o = TO + 4*mt
        for q in P: e(f"v_cvt_pk_bf16_f32 v{o+q}, v{TE+2*q}, v{TE+2*q+1}")
        e(f"buffer_store_dwordx4 {vr(o,4)}, v255, s[48:51], s6 offen offset:{512*mt} sc1"); vm.issue(("hst", tp))
stG("ep")
signal()
def g2_setup():
    for ml in range(4):
        e(f"s_xor_b32 s6, s3, {ml}\ns_lshl_b32 s6, s6, 10\nv_add_u32 v{3+ml}, s6, v1")
    e(f"v_mov_b32 v254, {REL}\nv_lshrrev_b32 v8, 4, v0\nv_lshlrev_b32 v8, 3, v8\ns_mul_i32 s8, s14, 160")
HPL = "s_load_dwordx4 s[16:19], s[40:41], 0 glc"
g2_setup()
if not EW: kappa_tab()
vm.wait(("hst", 3))
e(f"s_mov_b64 exec, 1\nbuffer_atomic_add v7, v2, s[48:51], s45 offen sc1\ns_mov_b64 exec, -1")
stG("at")
if OPT.get("self", "1") == "2":
    e("v_lshrrev_b32 v192, 4, v0\nv_lshlrev_b32 v192, 12, v192\nv_and_b32 v193, 15, v0\nv_lshl_add_u32 v192, v193, 7, v192")
    e("s_cmp_eq_u32 s9, 13\ns_cselect_b32 exec_hi, 0, -1\nbuffer_load_dword v194, v192, s[48:51], s44 offen sc1\ns_mov_b64 exec, -1")
if OPT.get("self", "1") == "1":
    for tp in range(4):
        e(f"s_add_u32 s6, s{44 if tp < 2 else 43}, {4096*tp}")
        for mt in (0, 1): e(f"buffer_load_dwordx4 {vr(192+8*tp+4*mt,4)}, v1, s[48:51], s6 offen offset:{1024*mt} sc1")
stG("hp")
vm.clear(); lg.clear()
e("L_G2:")
CHKR[0] = 26
A2, HR = 112, 192
e(f"s_setprio {OPT.get('g2prio', '0')}")
e("v_mov_b32 v2, v254")
if not EW: wait_lds(7, 2, "2")
e(f"v_add_u32 v8, {SST}, v8")
for dt in range(5): e(f"ds_read_b64 {vr(122+2*dt,2)}, v8 offset:{32*dt}")
for k in range([0, 2, 5][EW], 5 if "R" not in EXP else 1):
    for op in w2_ops(k): op()
stG("pp")
wait_lds(7, 2, "4"); lg.clear()
stG("hs")
def h_ops(i):
    ops = []
    for ml in range(4):
        def hl(ml=ml):
            if ml == 0: e(f"s_lshl2_add_u32 s6, s{sK[i]}, s11")
            e(f"buffer_load_dwordx4 {vr(HR+(i%4)*16+ml*4,4)}, v{3+ml}, s[48:51], s6 offen sc1"); vm.issue(("h", i))
        ops.append(hl)
    return ops
for op in h_ops(0) + h_ops(1) + h_ops(2) + h_ops(3): op()
FXO, FLA, FX, FS, VSO, VPF = 92, 95, 32, 12, 98, 104
STL = []
for i in range(3):
    if i == 2: STL.append("s_mov_b32 exec_hi, 0")
    STL.append(f"buffer_load_dwordx4 {vr(FS+4*i,4)}, v{VSO}, s[48:51], s{44 if i == 0 else 6} offen sc1")
    if i < 2: STL.append(f"s_add_u32 s6, s44, {32*4096*(i+1)}")
STL.append("s_mov_b64 exec, -1")
RED = 99
for i in range(14):
    if i == 13:
        e("s_cmp_ge_u32 s3, 2\ns_cbranch_scc1 L_SKIP13")
        tail.extend(["L_SKIP13:"] + [f"ds_write_b128 v{RED+n_//5-1}, {vr(A2+n_*4,4)} offset:{1024*(n_%5)}" for n_ in range(5, 16)] + ["s_branch L_BACK13"])
    vm.wait([("w2", i), ("h", i)])
    lg.wait(("pf", i))
    if i == 7: signal()
    stG(f"b{i}")
    side = {n: [] for n in range(20)}
    def spread(lines, n0, step=1):
        for k, l in enumerate(lines): side[min(19, n0 + k*step)].append(lambda l=l: e(l))
    j = i + 4
    if i >= 1 and j < 8:
        if i == 1: side[0].append(lambda: e("s_mul_i32 s6, s3, 15360\nv_add_u32 v2, s6, v1"))
        for dt in range(5):
            side[1+dt].append(lambda dt=dt, j=j: (e(f"ds_read_b128 {vr(12+(j%5)*20+dt*4,4)}, v2 offset:{(j-5)*5120+dt*1024}"), lg.issue(("pf", j))))
    elif i >= 1 and j < 14 and "L" not in EXP:
        for n, op in zip((1, 3, 7, 11, 16), w2_ops(j)): side[n].append(op)
    if i + 4 < 14:
        for ml, op in enumerate(h_ops(i+4)): side[5*ml+4].append(op)
    if i == 9:
        for n in range(20):
            if side[n]: side[n] = [lambda: e("s_mov_b64 exec, s[24:25]")] + side[n] + [lambda: e("s_mov_b64 exec, -1")]
    if i == 10:
        L = [f"v_mov_b32 v2, {REL}", "ds_read_b32 v8, v2",
             f"v_lshrrev_b32 v{VSO}, 1, v0", "v_and_b32 v4, 1, v0", f"v_lshlrev_b32 v{VSO}, 12, v{VSO}", f"v_lshl_add_u32 v{VSO}, v4, 4, v{VSO}",
             "s_mul_i32 s44, s14, 327680\ns_lshl_b32 s7, s13, 7", "s_add_u32 s44, s44, s7\ns_lshl_b32 s7, s3, 5", f"s_add_u32 s44, s44, s7\ns_add_u32 s44, s44, {ST}",
             "s_lshl_b32 s6, s13, 6\ns_lshl_b32 s7, s3, 4", "s_add_u32 s6, s6, s7\ns_mul_i32 s6, s6, 1280", f"s_add_u32 s8, s8, s6\ns_mul_i32 s9, s3, 2560", f"s_add_u32 s9, s9, {SB}\ns_movk_i32 s0, 1280\ns_movk_i32 s1, {SBF}"]
        spread(L, 1)
    if i == 11:
        L = []
        for k in range(3):
            L += [f"v_add_u32 v3, {64*k}, v0\nv_mul_u32_u24 v4, 6554, v3", "v_lshrrev_b32 v4, 16, v4\nv_mul_u32_u24 v5, 10, v4", "v_sub_u32 v3, v3, v5\nv_lshlrev_b32 v3, 4, v3",
                  f"v_mad_u32_u24 v{FXO+k}, v4, s0, v3\nv_mad_u32_u24 v{FLA+k}, v4, s1, v3", f"v_add_u32 v{FLA+k}, s9, v{FLA+k}"]
        spread(L, 1)
    if i == 12:
        L = []
        for ml in (1, 2, 3): L += [f"s_xor_b32 s6, s3, {ml}\ns_mul_i32 s6, s6, 15360", f"s_add_u32 s6, s6, {(ml-1)*5120}\nv_add_u32 v{RED+ml-1}, s6, v1"]
        L += [f"s_mul_i32 s6, s3, 15360\nv_add_u32 v{RED+3}, s6, v1", f"v_and_b32 v3, 15, v0\nv_mul_u32_u24 v3, {SBF}, v3", f"v_lshrrev_b32 v5, 4, v0\nv_lshl_add_u32 v3, v5, 3, v3", f"v_add_u32 v{RED+4}, s9, v3",
              "v_add_u32 v3, s9, v1\nv_lshlrev_b32 v4, 3, v0", "v_add_u32 v4, s9, v4"]
        spread(L, 6)
        side[0].append(chk_read)
        for k in range(3):
            def xl(k=k):
                if k == 2: e("s_mov_b32 exec_hi, 0")
                e(f"buffer_load_dwordx4 {vr(FX+4*k,4)}, v{FXO+k}, s[52:55], s8 offen"); vm.issue("fx")
                if k == 2: e("s_mov_b64 exec, -1")
            side[1+2*k].append(xl)
    order = list(range(20)) if 0 < i < 13 else list(range(5, 20)) + list(range(5))
    if i == 0:
        side = {n: [] for n in range(20)}
        for k in range(10): side[k].append(lambda k=k: e(f"v_lshlrev_b32 v{A2+2*k}, 16, v{122+k}\nv_and_b32 v{A2+2*k+1}, 0xffff0000, v{122+k}"))
        o = h_ops(4)
        e(f"s_lshl2_add_u32 s6, s{sK[4]}, s11")
        for k, ml in zip((4, 9, 14, 19), (1, 2, 3, 0)):
            side[k].append(lambda ml=ml: (e(f"buffer_load_dwordx4 {vr(HR+ml*4,4)}, v{3+ml}, s[48:51], s6 offen sc1"), vm.issue(("h", 4))))
    if i == 13:
        for k in range(11):
            n_ = order[k]
            side[k+9].append(lambda n_=n_: (e(f"ds_write_b128 v{RED+n_//5-1}, {vr(A2+n_*4,4)} offset:{1024*(n_%5)}"), lg.issue("red")))
    for k, n in enumerate(order):
        ml, dt = divmod(n, 5)
        a = A2 + n*4
        e(f"v_mfma_f32_16x16x32_bf16 {vr(a,4)}, {vr(12+(i%5)*20+dt*4,4)}, {vr(HR+(i%4)*16+ml*4,4)}, {vr(a,4) if (i or ml == 0) else 0}")
        for f in side[k]: f()
    if i == 10:
        e("s_waitcnt lgkmcnt(0)\nv_cmp_gt_u32 s[42:43], 5, v8"); lg.clear()
        for l in STL:
            e(l)
            if l.startswith("buffer"): vm.issue("sT")
    if i == 12: chk_eval()
e("L_BACK13:")
stG("g2")
for n_ in range(16, 20):
    e(f"ds_write_b128 v{RED+n_//5-1}, {vr(A2+n_*4,4)} offset:{1024*(n_%5)}"); lg.issue("red")
signal(); chk_read()
e("s_cmp_lg_u64 s[42:43], 0")
spin_lds(8, 2, "5", after=STL, pre_cmp=False, branch="s_cbranch_scc1")
vm.wait_all()
for i in range(3):
    if i == 2: e("s_mov_b32 exec_hi, 0")
    e(f"ds_write_b128 v3, {vr(FS+4*i,4)} offset:{1024*i}"); lg.issue("sw")
e("s_mov_b64 exec, -1")
for dt in range(5):
    e(f"ds_read_b64_tr_b16 {vr(44+2*dt,2)}, v4 offset:{512*dt}"); lg.issue("str")
chk_eval()
stG("rd")
RD = 192
for dt in range(5):
    for s_ in range(3):
        e(f"ds_read_b128 {vr(RD+(s_*5+dt)*4,4)}, v{RED+3} offset:{5120*s_+1024*dt}"); lg.issue(("rd", dt))
SU = 132
e("s_mov_b32 s6, 0xffff0000")
lg.wait("str")
for k in range(10): e(f"v_lshlrev_b32 v{SU+2*k}, 16, v{44+k}\nv_and_b32 v{SU+2*k+1}, s6, v{44+k}")
XU = 152
for k in range(12): e(f"v_lshlrev_b32 v{XU+2*k}, 16, v{FX+k}\nv_and_b32 v{XU+2*k+1}, s6, v{FX+k}")
T = 56
for dt in range(5):
    a = A2 + dt*4
    lg.wait(("rd", dt))
    for k in (0, 1):
        e(f"v_pk_add_f32 {vr(a+2*k,2)}, {vr(a+2*k,2)}, {vr(RD+dt*4+2*k,2)}")
        e(f"v_pk_add_f32 {vr(T+2*k,2)}, {vr(RD+(5+dt)*4+2*k,2)}, {vr(RD+(10+dt)*4+2*k,2)}")
    for k in (0, 1): e(f"v_pk_add_f32 {vr(a+2*k,2)}, {vr(a+2*k,2)}, {vr(T+2*k,2)}")
E_ = 60
e(f"s_mov_b32 s0, {f32(-1.4426950408889634)}")
for k in range(10): e(f"v_pk_mul_f32 {vr(E_+2*k,2)}, {vr(A2+2*k,2)}, s[0:1] op_sel_hi:[1,0]")
for k in range(20): e(f"v_exp_f32 v{E_+k}, v{E_+k}")
for k in range(10): e(f"v_pk_mul_f32 {vr(A2+2*k,2)}, {vr(A2+2*k,2)}, {vr(SU+2*k,2)}")
for k in range(10): e(f"v_pk_add_f32 {vr(E_+2*k,2)}, {vr(E_+2*k,2)}, 1.0 op_sel_hi:[1,0]")
for k in range(20): e(f"v_rcp_f32 v{E_+k}, v{E_+k}")
for dt in range(5):
    for k in (0, 1): e(f"v_pk_mul_f32 {vr(A2+4*dt+2*k,2)}, {vr(A2+4*dt+2*k,2)}, {vr(E_+4*dt+2*k,2)}")
    for k in (0, 1): e(f"v_cvt_pk_bf16_f32 v{44+2*dt+k}, v{A2+4*dt+2*k}, v{A2+4*dt+2*k+1}")
    e(f"ds_write_b64 v{RED+4}, {vr(44+2*dt,2)} offset:{32*dt}"); lg.issue("pw")
for k in range(3):
    e(f"ds_read_b128 {vr(RD+4*k,4)}, v{FLA+k}"); lg.issue(("pr", k))
for k in range(3):
    lg.wait(("pr", k))
    for q in range(4):
        e(f"v_lshlrev_b32 v{T+2*q}, 16, v{RD+4*k+q}\nv_and_b32 v{T+1+2*q}, s6, v{RD+4*k+q}")
    for q in range(4): e(f"v_pk_add_f32 {vr(T+2*q,2)}, {vr(T+2*q,2)}, {vr(XU+8*k+2*q,2)}")
    for q in range(4): e(f"v_cvt_pk_bf16_f32 v{RD+16+4*k+q}, v{T+2*q}, v{T+2*q+1}")
    if k == 2: e("s_mov_b32 exec_hi, 0")
    e(f"buffer_store_dwordx4 {vr(RD+16+4*k,4)}, v{FXO+k}, s[68:71], s8 offen{OSP}")
stG("end")
stG.flush(60, 61, (0, 1, 8))
e("s_endpgm")

e("L_IDLE:")
e("v_lshrrev_b32 v1, 3, v0\ns_mul_i32 s6, s3, 160\nv_add_u32 v2, s6, v1\nv_mul_u32_u24 v2, 3456, v2\nv_and_b32 v3, 7, v0\nv_lshl_add_u32 v2, v3, 4, v2")
e("v_lshlrev_b32 v4, 8, v1\nv_lshl_add_u32 v4, v3, 5, v4\ns_lshl_b32 s6, s3, 11\nv_add_u32 v4, s6, v4")
e("s_waitcnt lgkmcnt(0)")
e("s_lshl3_add_u32 s47, s5, s4")
e(f"s_lshl_b32 s9, s47, 7\ns_cmp_ge_u32 s47, 27\ns_cselect_b32 s9, {OOB}, s9")
vm.clear()
g_params()
e("s_barrier")
srd(56, 32, 2211840)
e("s_mov_b32 s0, s9")
for i in range(20):
    e(f"buffer_load_dwordx4 {vr(12+4*i,4)}, v2, s[56:59], s0 offen"); vm.issue("cw")
    if i < 19: e(f"s_add_u32 s0, s0, {8*3456}")
srd(56, 34, 3456)
e("v_lshlrev_b32 v5, 1, v0\nbuffer_load_ushort v7, v5, s[56:59], s9 offen"); vm.issue("cw")
srd(52, 16, 2621440); g_srds()
kappa_tab()
helper()
e("s_waitcnt vmcnt(0)\ns_mov_b32 s6, 0xffff0000")
for i in range(20):
    for k in range(4):
        r = 12 + 4*i + k
        if i == 0: e(f"v_lshlrev_b32 v{100+2*k}, 16, v{r}\nv_and_b32 v{101+2*k}, s6, v{r}")
        else: e(f"v_lshlrev_b32 v{92+2*k}, 16, v{r}\nv_and_b32 v{93+2*k}, s6, v{r}")
    if i:
        for k in range(4): e(f"v_pk_add_f32 {vr(100+2*k,2)}, {vr(100+2*k,2)}, {vr(92+2*k,2)}")
e("ds_write_b128 v4, v[100:103]\nds_write_b128 v4, v[104:107] offset:16")
gcommon()
e("s_cmp_eq_u32 s3, 0\ns_cselect_b32 s6, 1, 12\nv_mov_b32 v11, s6\nds_write_b32 v9, v11")
e("s_cbranch_scc0 L_ID2")
wait_lds(8, 10, "1")
e("v_lshlrev_b32 v5, 2, v0")
for k in range(32): e(f"ds_read_b32 v{12+k}, v5 offset:{256*k}")
e("s_waitcnt lgkmcnt(0)")
for st_ in (16, 8, 4, 2, 1):
    for k in range(st_): e(f"v_add_f32 v{12+k}, v{12+k}, v{12+k+st_}")
e("v_mov_b32 v11, 12\nds_write_b32 v9, v11")
e("v_cvt_pk_bf16_f32 v17, v12, v12\nv_lshl_or_b32 v16, v7, 16, v7\nv_and_b32 v13, 0xffff0000, v17\nv_sub_f32 v13, v12, v13\nv_cvt_pk_bf16_f32 v18, v13, v13")
e("v_and_b32 v14, 0xffff0000, v18\nv_sub_f32 v14, v13, v14\nv_cvt_pk_bf16_f32 v19, v12, v14\nv_mov_b32 v20, 0")
e(f"v_lshlrev_b32 v5, 4, v0\ns_lshl_b32 s6, s47, 10\ns_add_u32 s6, s6, {WE}\ns_cmp_ge_u32 s47, 27\ns_cselect_b32 s6, {OOB}, s6")
e("buffer_store_dwordx4 v[16:19], v5, s[48:51], s6 offen sc1")
e(f"v_mov_b32 v2, {REL}")
wait_lds(8, 2, "1", sleep=True)
e(f"s_lshr_b32 s6, s47, 1\ns_mul_i32 s6, s6, {FS_}\ns_add_u32 s6, s6, {FL_E}\ns_cmp_ge_u32 s47, 27\ns_cselect_b32 s6, {OOB}, s6")
e("s_cmp_eq_u32 s47, 26\ns_cselect_b32 s7, 2, 1\nv_mov_b32 v5, s7\ns_waitcnt vmcnt(0)\ns_mov_b64 exec, 1")
e("buffer_atomic_add v5, v20, s[48:51], s6 offen sc1\ns_mov_b64 exec, -1")
e("L_ID2:")
g2_bases()
g2_setup()
wait_lds(12, 254, "2", sleep=True)
if OPT.get("warm", "0") == "1":
    e(f"s_and_b32 s6, s4, 1\ns_lshl2_add_u32 s6, s6, s5\ns_mul_i32 s6, s6, 276480\ns_mul_i32 s7, s3, 69120\ns_add_u32 s6, s6, s7\ns_add_u32 s6, s6, {W2F}\ns_mov_b32 s63, 17")
    e("L_WARM:")
    for k in range(4): e(f"buffer_load_dwordx4 {vr(192+4*k,4)}, v1, s[48:51], s6 offen offset:{1024*k} sc1")
    e(f"s_add_u32 s6, s6, 4096\ns_sub_u32 s63, s63, 1\ns_cmp_lg_u32 s63, 0\ns_cbranch_scc1 L_WARM")
for k in range([0, 2, 5][EW]):
    for op in w2_ops(k): op()
e("s_waitcnt vmcnt(0)")
if STAMPS:
    for r in _stG.regs[:4]: e(f"{MT} s[{r}:{r+1}]")
e("s_branch L_G2")

e("L_AUX:")
if OPT.get("cpf", "0") == "1":
    e("s_getpc_b64 s[96:97]")
    e("L_PC:")
    e(f"s_sub_u32 s96, s96, L_PC-{NAME}_kernel\ns_subb_u32 s97, s97, 0")
    e("s_and_b32 s6, s5, 7\ns_lshl_b32 s6, s6, 6\nv_add_u32 v1, s6, v0\nv_lshlrev_b32 v1, 7, v1")
    e(f"v_min_u32 v1, L_LAST-{NAME}_kernel, v1")
    e("s_cmp_lg_u32 s3, 6\ns_cbranch_scc1 L_PC2")
    e("global_load_dword v255, v1, s[96:97]")
    e("L_PC2:")
_stC = Stamper([76,78,80,82,84,86,88,90,92,94])
CSEL = OPT.get("cst", "ka,x,ln,kg,ex,u,cs,cd,st,pub").split(",")
class _C:
    def __call__(self, name):
        if name in CSEL:
            _stC.n = CSEL.index(name); _stC()
    def flush(self, *a):
        _stC.n = 10; _stC.flush(*a)
stC = _C()
zero_cnt(CNT2)
e("s_sub_u32 s13, s3, 4")
e("s_lshl_b32 s14, s4, 5\ns_add_u32 s14, s14, s5")
e("s_mul_i32 s15, s14, 10240")
e("v_lshrrev_b32 v1, 5, v0\ns_lshl_b32 s6, s13, 1\nv_add_u32 v1, s6, v1\nv_and_b32 v2, 31, v0")
e("v_mul_u32_u24 v3, 1280, v1\nv_lshl_add_u32 v3, v2, 3, v3")
chan_id(13)
e("s_lshl_b32 s10, s8, 8\ns_lshl_b32 s11, s8, 1\nv_lshlrev_b32 v12, 2, v0")
e(f"s_mul_i32 s9, s13, {CHSZ}\ns_add_u32 s9, s9, {CH0}")
e(f"v_mov_b32 v14, 0\nv_mov_b32 v15, {REL}\nds_write_b32 v15, v14")
for i in range(5):
    e(f"v_add_u32 v4, {64*i}, v0\nv_mul_u32_u24 v5, 3277, v4\nv_lshrrev_b32 v5, 16, v5")
    e("v_mul_u32_u24 v6, 20, v5\nv_sub_u32 v6, v4, v6\nv_lshlrev_b32 v6, 4, v6")
    e(f"s_movk_i32 s6, 1280\nv_mad_u32_u24 v{64+i}, v5, s6, v6\ns_movk_i32 s6, {SBW}\nv_mad_u32_u24 v{69+i}, v5, s6, v6\nv_add_u32 v{69+i}, {SB}, v{69+i}")
e("s_waitcnt lgkmcnt(0)")
stC("ka")
XS = 20
def x_rows():
    srd(52, 16, 2621440)
    for i in range(5): e(f"buffer_load_dwordx2 {vr(XS+2*i,2)}, v3, s[52:55], s15 offen offset:{256*i}{ntx}")
KFIRST = OPT.get("kfirst", "0") == "1"
def near_half():
    LAM, CC, YC, FY, FA, KT, TM = 84, 88, 80, 128, 160, [112, 116], 64
    EV = {2.0: 192, 32.0: 196, 1.0: 200, 2048.0: 204}
    e("v_and_b32 v10, 15, v0\nv_lshrrev_b32 v11, 4, v0")
    e(f"v_lshlrev_b32 v12, 3, v0\ns_add_u32 s6, s9, {TAB}\nv_add_u32 v12, s6, v12")
    e(f"v_mul_u32_u24 v14, {TPI}, v10\nv_lshl_add_u32 v14, v11, 4, v14\nv_add_u32 v14, s6, v14")
    e(f"v_mov_b32 v{YC}, 1.0\nv_mov_b32 v{YC+1}, 1.0\nv_mov_b32 v{YC+2}, 0\nv_mov_b32 v{YC+3}, 0")
    e(f"s_add_u32 s10, s9, {TBOFF}")
    e("v_lshlrev_b32 v92, 2, v10\nv_lshl_add_u32 v92, v11, 8, v92\nv_add_u32 v92, s10, v92")
    e("v_lshlrev_b32 v93, 1, v10\nv_lshl_add_u32 v93, v11, 7, v93\nv_add_u32 v93, s10, v93")
    e(f"v_subrev_u32 v15, {CNT2-CNT}, v9")
    e("s_waitcnt vmcnt(5)")
    stC("par")
    k_setup_pk(4, LAM, CC, EV, [2.0, 32.0, 1.0, 2048.0], 2.0, (1.0, 2048.0), TM)
    stC("k0")
    L2 = e.lab("NY")
    e(f"s_mov_b32 s10, 4\nv_mov_b32 v13, v12\n{L2}:")
    chain_pk([(YC, EV[2.0], 0), (CC, EV[32.0], 16)], 4, 0, 13, TM)
    e(f"v_add_u32 v13, {4*TPI}, v13\ns_sub_u32 s10, s10, 1\ns_cmp_lg_u32 s10, 0\ns_cbranch_scc1 {L2}")
    stC("k1")
    e("s_waitcnt lgkmcnt(0)")
    frag_reads(FY, 14, 0); frag_reads(FA, 14, 16)
    e(f"v_cvt_pk_bf16_f32 v76, v{EV[2048.0]}, v{EV[2048.0]+2}\nv_cvt_pk_bf16_f32 v77, v{EV[2048.0]+1}, v{EV[2048.0]+3}")
    k_mfma(KT[0], FA, FY)
    e(f"ds_write_b64 v12, v[76:77] offset:{24*TPI}")
    chain_pk([(EV[1.0], EV[32.0], 0)], 8, 16, 12, TM)
    e("s_waitcnt lgkmcnt(0)")
    frag_reads(FA, 14, 16)
    k_mfma(KT[1], FA, FY)
    for r in range(4): e(f"v_cvt_pk_bf16_f32 v{TM+r}, v{KT[0]+r}, v{KT[1]+r}")
    e("s_mov_b32 exec_hi, 0")
    for r in range(4): e(f"ds_write_b32 v92, v{TM+r} offset:{64*r}")
    e("s_mov_b32 exec_lo, 0\ns_mov_b32 exec_hi, -1")
    for r in range(4): e(f"ds_write_b16 v93, v{TM+r} offset:{256+32*r}")
    e("s_mov_b32 exec_hi, 1")
    e(f"ds_write_b16_d16_hi v93, v{TM} offset:{1280-256}")
    e("s_mov_b64 exec, -1")
e("s_cmp_eq_u32 s3, 7\ns_cbranch_scc1 L_A7")
if not KFIRST: x_rows()
param_loads(4, 12, 14, 10, 11, (56, 60, 64, 68))
srd(60, 28, 1280); e("buffer_load_ushort v19, v14, s[60:63], s11 offen")
if KFIRST: x_rows()
e("s_barrier")
srd(48, 44, WS_SIZE); srd(72, 42, 256)
if KFIRST:
    e("s_cmp_ge_u32 s8, 640\ns_cbranch_scc1 L_A0")
    near_half()
    e("L_A0:")
    e("s_waitcnt vmcnt(0)")
else: e("s_waitcnt vmcnt(6)")
e("s_branch L_LN")
e("L_A7:")
srd(48, 44, WS_SIZE); srd(72, 42, 256)
e("s_cmp_lg_u32 s2, 0\ns_cbranch_scc1 L_A1")
e(f"v_mul_u32_u24 v4, {FS_}, v0")
for r in range(32, 36): e(f"v_mov_b32 v{r}, 0")
for i in range(2):
    e(f"s_mov_b32 s6, {FLB+64*FS_*i}")
    e("buffer_store_dwordx4 v[32:35], v4, s[48:51], s6 offen sc1")
e("s_barrier")
e("s_waitcnt vmcnt(0)")
e("v_mov_b32 v32, 1\ns_mov_b64 exec, 1")
e("buffer_store_dword v32, v14, s[72:75], 0 offen sc1")
e("s_mov_b64 exec, -1")
x_rows()
e("s_branch L_A2")
e("L_A1:")
x_rows()
e("s_barrier")
e("L_A2:")
srd(60, 38, 1280)
srd(56, 36, 2211840)
e(f"s_lshr_b32 s6, s2, 2\ns_mul_i32 s10, s6, 40960\ns_and_b32 s7, s2, 3\ns_mul_i32 s11, s7, 320\ns_add_u32 s10, s10, s11\ns_add_u32 s11, s10, 20480")
e("s_waitcnt vmcnt(0)")
e("L_LN:")
if NOAUX == "1": e("s_endpgm")
stC("x")
e(f"v_mul_u32_u24 v16, {SBP}, v1\nv_lshl_add_u32 v16, v2, 3, v16\nv_add_u32 v16, {SB}, v16")
e(f"v_lshlrev_b32 v17, 5, v1\nv_add_u32 v17, {SST}, v17")
XF = 32
for k in range(10): e(f"v_lshlrev_b32 v{XF+2*k}, 16, v{XS+k}\nv_and_b32 v{XF+2*k+1}, 0xffff0000, v{XS+k}")
e(f"v_add_f32 v52, v{XF}, v{XF+1}\nv_mul_f32 v54, v{XF}, v{XF}\nv_add_f32 v53, v{XF+2}, v{XF+3}\nv_mul_f32 v55, v{XF+1}, v{XF+1}")
e(f"v_fmac_f32 v54, v{XF+2}, v{XF+2}\nv_fmac_f32 v55, v{XF+3}, v{XF+3}")
for k in range(4, 20): e(f"v_add_f32 v{52+(k&1)}, v{52+(k&1)}, v{XF+k}\nv_fmac_f32 v{54+(k&1)}, v{XF+k}, v{XF+k}")
e("v_add_f32 v52, v52, v53\nv_add_f32 v54, v54, v55")
for m in ("quad_perm:[1,0,3,2]", "quad_perm:[2,3,0,1]", "row_half_mirror", "row_mirror"):
    e(f"v_add_f32_dpp v52, v52, v52 {m} row_mask:0xf bank_mask:0xf")
    e(f"v_add_f32_dpp v54, v54, v54 {m} row_mask:0xf bank_mask:0xf")
e("ds_swizzle_b32 v53, v52 offset:0x401F\nds_swizzle_b32 v55, v54 offset:0x401F\ns_waitcnt lgkmcnt(0)")
e("v_add_f32 v52, v52, v53\nv_add_f32 v54, v54, v55")
e(f"v_mul_f32 v52, {f32(1/640)}, v52\nv_mul_f32 v54, {f32(1/640)}, v54")
e("v_fma_f32 v54, -v52, v52, v54\nv_max_f32 v54, 0, v54")
def std_bf16(dst, var):
    rb(dst, var); e(f"v_add_f32 v{dst}, {f32(1e-5)}, v{dst}"); rb(dst, dst); e(f"v_sqrt_f32 v{dst}, v{dst}"); rb(dst, dst)
rb(56, 52); std_bf16(57, 54)
e("v_rcp_f32 v58, v57")
for k in range(20): e(f"v_sub_f32 v{XF+k}, v{XF+k}, v56")
for k in range(10): e(f"v_cvt_pk_bf16_f32 v{XS+k}, v{XF+2*k}, v{XF+2*k+1}")
for k in range(10): e(f"v_lshlrev_b32 v{XF+2*k}, 16, v{XS+k}\nv_and_b32 v{XF+2*k+1}, 0xffff0000, v{XS+k}")
for k in range(20): e(f"v_mul_f32 v{XF+k}, v{XF+k}, v58")
for k in range(10):
    e(f"v_cvt_pk_bf16_f32 v{XS+k}, v{XF+2*k}, v{XF+2*k+1}")
    if k & 1: e(f"ds_write_b64 v16, {vr(XS+k-1,2)} offset:{128*(k-1)}")
e("v_sub_f32 v59, v52, v56\nv_mul_f32 v59, v59, v58\nv_mul_f32 v60, v54, v58\nv_mul_f32 v60, v60, v58")
rb(59, 59); std_bf16(61, 60)
C0 = -2*0.7978845608028654*1.4426950408889634
e("v_mul_f32 v46, v57, v61\nv_fma_f32 v63, -v59, v57, -v56\nv_rcp_f32 v62, v46\nv_mov_b32 v47, 0")
rb(32, 46); rb(33, 63)
e("v_sub_f32 v32, v46, v32\nv_sub_f32 v33, v63, v33\nv_mul_f32 v44, v62, v62")
rb(34, 33)
e("v_cvt_pk_bf16_f32 v40, v46, v32\nv_cvt_pk_bf16_f32 v41, v63, v33\nv_sub_f32 v34, v33, v34\nv_mov_b32 v42, v41\nv_cvt_pk_bf16_f32 v43, v34, v63")
e(f"v_mul_f32 v45, {f32(C0)}, v62\nv_mul_f32 v44, {f32(0.044715)}, v44\nv_mul_f32 v44, v44, v45")
e("s_mov_b32 s0, 1\ns_mov_b32 s1, 1\ns_mov_b64 exec, s[0:1]")
e("ds_write_b128 v17, v[40:43]\nds_write_b128 v17, v[44:47] offset:16")
e("s_mov_b64 exec, -1")
e("v_mov_b32 v61, 1\nds_write_b32 v9, v61")
stC("ln")
e("s_cmp_eq_u32 s3, 7\ns_cbranch_scc1 L_S")
e("s_cmp_ge_u32 s8, 640\ns_cbranch_scc1 L_END")
if "k" in EXP: e("s_endpgm")

if not KFIRST:
    e("s_waitcnt vmcnt(0)")
    stC("par")
    LAM, CC, YC, FY, FA, KT = 84, 88, 80, 128, 160, [112, 116]
    EV = {2.0: 192, 32.0: 196, 1.0: 200, 2048.0: 204, 8.0: 208, 128.0: 212, 512.0: 216, 516.0: 220}
    if HELP: k_setup(4, LAM, CC, EV, [2.0, 32.0, 1.0, 2048.0], (2.0,), (1.0, 2048.0), 64)
    else: k_setup(4, LAM, CC, EV, list(EV), (2.0, 8.0), (1.0, 2048.0, 512.0, 516.0), 20)
    e("v_and_b32 v10, 15, v0\nv_lshrrev_b32 v11, 4, v0")
    e(f"v_lshlrev_b32 v12, 3, v0\ns_add_u32 s6, s9, {TAB}\nv_add_u32 v12, s6, v12")
    e(f"v_mul_u32_u24 v14, {TPI}, v10\nv_lshl_add_u32 v14, v11, 4, v14\nv_add_u32 v14, s6, v14")
    y_init(YC)
    stC("k0")
    chain_loop([(YC, EV[2.0], 0), (CC, EV[32.0], 16)], 16, 0, 12, 13, 64, 10)
    stC("k1")
    frag_reads(FY, 14, 0); frag_reads(FA, 14, 16)
    e(f"v_cvt_pk_bf16_f32 v76, v{EV[2048.0]}, v{EV[2048.0]+1}\nv_cvt_pk_bf16_f32 v77, v{EV[2048.0]+2}, v{EV[2048.0]+3}")
    e(f"ds_write_b64 v12, v[76:77] offset:{24*TPI}")
    chain_loop([(EV[1.0], EV[32.0], 0)], 8, 16, 12, 13, 64, 10)
    FB_ = 208
    frag_reads(FB_, 14, 16)
    e("s_waitcnt lgkmcnt(8)")
    for s_ in range(8): e(f"v_mfma_f32_16x16x32_bf16 {vr(KT[0],4)}, {vr(FA+4*s_,4)}, {vr(FY+4*s_,4)}, {vr(KT[0],4) if s_ else 0}")
    FA = FB_ if HELP else FA
    e(f"s_add_u32 s10, s9, {TBOFF}")
    e("v_lshlrev_b32 v20, 2, v10\nv_lshl_add_u32 v20, v11, 8, v20\nv_add_u32 v20, s10, v20")
    e("v_lshlrev_b32 v21, 1, v10\nv_lshl_add_u32 v21, v11, 7, v21\nv_add_u32 v21, s10, v21")
    e(f"v_subrev_u32 v15, {CNT2-CNT}, v9")
    if not HELP: y_init(YC)
    k_mfma(KT[1], FA, FY)
    if not HELP:
        chain_loop([(YC, EV[8.0], 0), (EV[512.0], EV[128.0], 16), (EV[516.0], EV[128.0], 28)][:2], 12, 0, 12, 13, 64, 10)
        chain_loop([(YC, EV[8.0], 0), (EV[516.0], EV[128.0], 16)], 4, 12, 12, 13, 64, 10)
        e("s_waitcnt lgkmcnt(0)")
        frag_reads(FY, 14, 0); frag_reads(FA, 14, 16)
        e(f"s_add_u32 s10, s9, {TBOFF}")
        e("v_lshlrev_b32 v22, 2, v10\nv_lshrrev_b32 v23, 1, v11\nv_lshl_add_u32 v22, v23, 1, v22\nv_add_u32 v22, s10, v22")
        k_mfma(120, FA, FY)
        for r in range(4): e(f"v_cvt_pk_bf16_f32 v{32+r}, v{120+r}, v{120+r}")
        e("s_mov_b32 exec_lo, 0xffff\ns_mov_b32 exec_hi, 0xffff0000")
        for r in range(4): e(f"ds_write_b16 v22, v{32+r} offset:{768+64*r}")
        e("s_mov_b32 exec_lo, 0xffff0000\ns_mov_b32 exec_hi, 0xffff")
        for r in range(4): e(f"ds_write_b16 v21, v{32+r} offset:{896+32*r}")
        e("s_mov_b64 exec, -1")
    for r in range(4): e(f"v_cvt_pk_bf16_f32 v{24+r}, v{KT[0]+r}, v{KT[1]+r}")
    e("s_mov_b32 exec_hi, 0")
    for r in range(4): e(f"ds_write_b32 v20, v{24+r} offset:{64*r}")
    e("s_mov_b32 exec_lo, 0\ns_mov_b32 exec_hi, -1")
    for r in range(4): e(f"ds_write_b16 v21, v{24+r} offset:{256+32*r}")
    e("s_mov_b32 exec_hi, 1")
    e(f"ds_write_b16_d16_hi v21, v24 offset:{1280-256}")
    e("s_mov_b64 exec, -1")
wait_lds(17, 15, OPT.get("expat", "11"), sleep=True)
stC("kg")
if "e" in EXP: e("s_endpgm")
UR = 128
UL = e

e("v_lshlrev_b32 v24, 1, v0\nv_sub_u32 v22, 2047, v24\nv_sub_u32 v23, 2046, v24")
e("v_cvt_f32_i32 v22, v22\nv_cvt_f32_i32 v23, v23")
e(f"v_lshlrev_b32 v21, 2, v0\ns_add_u32 s6, s9, {KOFF-12}\nv_add_u32 v21, s6, v21")
e(f"s_add_u32 s6, s9, {TBOFF}\ns_sub_u32 s7, s6, {2*(0x4300-128)}\nv_mov_b32 v26, s7")
e(f"v_mov_b32 v30, {f32(-128.0)}")
e("v_lshlrev_b32 v27, 1, v24\nv_sub_u32 v27, s6, v27\nv_mov_b32 v28, 0")
def exp_rounds(n, lin=False):
    for k in range(n):
        t = 32 + 4*k
        if lin and k == n-1:
            e(f"ds_read_u16 v{t+1}, v27 offset:254\nds_read_u16 v{t+2}, v27 offset:252")
            continue
        e(f"v_cvt_pk_bf16_f32 v{t}, v22, v23")
        e("v_add_f32 v22, v22, v30\nv_add_f32 v23, v23, v30")
        e(f"v_mad_u32_u16 v{t+1}, v{t}, 2, v26")
        e(f"v_mad_u32_u16 v{t+2}, v{t}, 2, v26 op_sel:[1,0,0,0]")
        e(f"ds_read_u16 v{t+1}, v{t+1}\nds_read_u16 v{t+2}, v{t+2}")
    for k in range(n):
        t = 32 + 4*k
        e(f"s_waitcnt lgkmcnt({min(15, 2*(n-1-k) + 4*k)})")
        e(f"v_lshl_or_b32 v{t}, v{t+2}, 16, v{t+1}")
        for c in range(4): e(f"ds_write_b32 v21, v{t} offset:{c*(KCP+4) + 256*k}")
e("s_mov_b32 s10, 3")
e("L_EXP:")
exp_rounds(4)
e("v_add_u32 v21, 1024, v21")
e("s_sub_u32 s10, s10, 1\ns_cmp_lg_u32 s10, 0\ns_waitcnt lgkmcnt(0)\ns_cbranch_scc1 L_EXP")
exp_rounds(4, lin=True)
e("s_mov_b64 exec, 0x7fff")
for c in range(4): e(f"ds_write_b32 v21, v28 offset:{c*(KCP+4) + 1024}")
e("s_mov_b64 exec, -1")
e("v_mov_b32 v28, 2\nds_write_b32 v9, v28")
stC("ex")
e(f"s_mul_i32 s11, s13, {USZ}\ns_add_u32 s11, s11, {UB0}")
e(f"v_mov_b32 v18, {CNT2+192}")
stC("u")
e("v_lshrrev_b32 v12, 1, v10\nv_lshlrev_b32 v12, 6, v12\nv_lshl_add_u32 v12, v11, 4, v12")
e(f"v_and_b32 v13, 1, v10\nv_xor_b32 v13, 1, v13\nv_mul_u32_u24 v13, {U1OFF}, v13\nv_add_u32 v12, v12, v13")
e(f"s_add_u32 s6, s11, 448\nv_add_u32 v12, s6, v12")
e(f"v_and_b32 v13, 3, v10\nv_mul_u32_u24 v13, {KCP}, v13\nv_lshrrev_b32 v14, 2, v10\nv_sub_u32 v14, v11, v14\nv_lshl_add_u32 v13, v14, 4, v13")
e(f"s_add_u32 s6, s9, {KOFF+4080-3584}\nv_add_u32 v13, s6, v13")
CA, BU, BK = 20, [52, 116], [84, 148]
for r in range(CA, CA+32): e(f"v_mov_b32 v{r}, 0")
e("v_lshlrev_b32 v3, 4, v0\nv_add_u32 v3, s11, v3")
wait_lds(17, 18, "3", sleep=True)
for i in range(4):
    e(f"ds_read_b32 v{115+5*i}, v3 offset:{444+1024*i}")
    e(f"ds_read_b128 {vr(136+4*i,4)}, v3 offset:{448+1024*i}")
for i in range(4):
    e(f"s_waitcnt lgkmcnt({6-2*i+i})")
    e(f"v_alignbit_b32 v{152+4*i}, v{136+4*i}, v{115+5*i}, 16")
    for k in (1, 2, 3): e(f"v_alignbit_b32 v{152+4*i+k}, v{136+4*i+k}, v{136+4*i+k-1}, 16")
    e(f"ds_write_b128 v3, {vr(152+4*i,4)} offset:{U1OFF+448+1024*i}")
e("s_waitcnt lgkmcnt(0)")
def conv_reads(b):
    l = []
    for t in range(8):
        l.append(f"ds_read_b128 {vr(BU[b]+4*t,4)}, v12 offset:{512*t}")
        l.append(f"ds_read_b128 {vr(BK[b]+4*t,4)}, v13 offset:{512*(7-t)}")
    l.append("v_subrev_u32 v12, 64, v12\nv_subrev_u32 v13, 64, v13")
    return l
for l in conv_reads(0): e(l)
if OPT.get("gate", "1") == "1": wait_lds(17, 15, "12", sleep=True)
e(f"s_setprio {OPT.get('cprio', '3')}")
stC("cs")
e("s_mov_b32 s10, 4")
e("L_CV:")
for b in (0, 1):
    e("s_waitcnt lgkmcnt(0)")
    rd = conv_reads(1-b)
    n = 0
    for s_ in range(8):
        for t in range(8 - s_):
            a = CA + 4*(s_+t)
            e(f"v_mfma_f32_16x16x32_bf16 {vr(a,4)}, {vr(BU[b]+4*t,4)}, {vr(BK[b]+4*s_,4)}, {vr(a,4)}")
            if n < len(rd): e(rd[n])
            n += 1
e("s_sub_u32 s10, s10, 1\ns_cmp_lg_u32 s10, 0\ns_cbranch_scc1 L_CV")
stC("cd")
e(f"v_lshlrev_b32 v2, 7, v11\nv_lshl_add_u32 v2, v10, 2, v2\nv_add_u32 v3, s11, v2\ns_add_u32 s6, s9, {KOFF}\nv_add_u32 v2, s6, v2")
e("v_lshlrev_b32 v4, 4, v0\nv_add_u32 v5, s6, v4\nv_lshlrev_b32 v19, 16, v19")
e("s_waitcnt lgkmcnt(0)")
for k in range(16): e(f"ds_read_b32 v{52+k}, v3 offset:{448+512*(k//2)+64*(k%2)}")
e(f"s_lshl_b32 s6, s8, 12\ns_add_u32 s6, s6, {ST}")
for k in range(16):
    if k % 4 == 0: e(f"s_waitcnt lgkmcnt({min(15, 12-k+k)})")
    e(f"v_lshlrev_b32 v{68+2*(k%2)}, 16, v{52+k}\nv_and_b32 v{69+2*(k%2)}, 0xffff0000, v{52+k}")
    e(f"v_fmac_f32 v{CA+2*k}, v{68+2*(k%2)}, v19\nv_fmac_f32 v{CA+2*k+1}, v{69+2*(k%2)}, v19")
    e(f"v_cvt_pk_bf16_f32 v{52+k}, v{CA+2*k}, v{CA+2*k+1}")
    e(f"ds_write_b32 v2, v{52+k} offset:{512*(k//2)+64*(k%2)}")
for i in range(4): e(f"ds_read_b128 {vr(72+4*i,4)}, v5 offset:{1024*i}")
for i in range(4):
    e(f"s_waitcnt lgkmcnt({3-i})")
    e(f"buffer_store_dwordx4 {vr(72+4*i,4)}, v4, s[48:51], s6 offen offset:{1024*i} sc1")
stC("st")
e("s_waitcnt vmcnt(0)")
e(f"s_and_b32 s6, s8, 3\ns_lshl2_add_u32 s6, s4, s6\ns_mul_i32 s6, s6, {FS_}\ns_add_u32 s6, s6, {FL_C}")
e("v_mov_b32 v2, 0\nv_mov_b32 v3, 1\ns_mov_b64 exec, 1")
e("buffer_atomic_add v3, v2, s[48:51], s6 offen sc1")
stC("pub")
stC.flush(4, 5, (4, 9, 7))
e("s_endpgm")

e("L_S:")
stS = Stamper([82,84,86,88,90,92,94,96])
for i in range(10): e(f"buffer_load_dwordx4 {vr(128+4*i,4)}, v{64+i%5}, s[56:59], s{10 + i//5} offen{ntw2}")
e(f"v_lshrrev_b32 v1, 4, v0\nv_lshlrev_b32 v16, 2, v0\nv_add_u32 v16, {CNT2}, v16")
e(f"v_bfe_u32 v13, v0, 2, 2\nv_mul_u32_u24 v13, {SBP}, v13\nv_lshl_add_u32 v13, v1, 5, v13")
e(f"v_and_b32 v2, 3, v0\nv_lshl_add_u32 v13, v2, 3, v13\nv_add_u32 v13, {SB}, v13")
e(f"v_lshlrev_b32 v4, 4, v0\nv_add_u32 v6, {SST}, v4")
e("buffer_load_dword v7, v14, s[72:75], 0 offen sc1")
wait_lds(17, 16, "1")
e("s_mov_b64 exec, 0xffff\nds_read_b128 v[20:23], v6\ns_mov_b64 exec, -1")
for i in range(10):
    e(f"ds_read_b64_tr_b16 {vr(80+4*i,2)}, v13 offset:{128*i}")
    e(f"ds_read_b64_tr_b16 {vr(82+4*i,2)}, v13 offset:{128*i+4*SBP}")
e(f"s_lshl_b32 s6, s14, 8\ns_add_u32 s6, s6, {STATS}")
e("s_waitcnt lgkmcnt(15)\ns_mov_b64 exec, 0xffff")
e("buffer_store_dwordx4 v[20:23], v4, s[48:51], s6 offen sc1")
e("s_mov_b64 exec, -1")
stS()
e(f"v_bfe_u32 v1, v0, 2, 3\nv_lshrrev_b32 v3, 5, v0\nv_lshl_add_u32 v1, v3, 4, v1\nv_mul_u32_u24 v1, {SBW}, v1\nv_lshl_add_u32 v1, v2, 3, v1\nv_add_u32 v1, {SB}, v1")
e(f"s_lshr_b32 s6, s2, 2\ns_mul_i32 s10, s6, 5120\ns_and_b32 s7, s2, 3\ns_mul_i32 s7, s7, {2*276480}\ns_add_u32 s10, s10, s7\ns_add_u32 s10, s10, {W2F}")
e(f"s_cmp_ge_u32 s2, 216\ns_cselect_b32 s10, {OOB}, s10\ns_add_u32 s15, s15, {XNB}")
if "H" in EXP: e(f"s_mov_b32 s10, {OOB}\ns_mov_b32 s15, {OOB}")
def relay(val): e(f"v_mov_b32 v8, {val}\nds_write_b32 v15, v8")
SLP = OPT.get("sleep", "1")
def vpoll(load, chk, target, sl, first=True):
    L = e.lab("AG")
    e(f"s_mov_b32 s12, {SPIN_MAX}")
    if not first: e(f"s_branch {L}_c")
    e(f"{L}:")
    e(load); e("s_waitcnt vmcnt(0)")
    e(f"{L}_c:")
    e(f"v_cmp_gt_u32 vcc, {target}, v{chk}\ns_cbranch_vccz {L}_d\ns_sleep {sl}\ns_sub_u32 s12, s12, 1\ns_cbranch_scc0 {L}")
    e(f"{L}_d:")
def arrive(so): e(f"v_mov_b32 v8, 1\ns_mov_b64 exec, 1\nbuffer_atomic_add v8, v14, s[48:51], {so} offen sc1\ns_mov_b64 exec, -1")
e("s_waitcnt vmcnt(0)")
vpoll("buffer_load_dword v7, v14, s[72:75], 0 offen sc1", 7, 1, 8, first=False)
e(f"s_lshr_b32 s6, s14, 4\ns_mul_i32 s6, s6, {FS_}\ns_add_u32 s6, s6, {FL_T}"); arrive("s6")
e("s_cmp_ge_u32 s5, 4\ns_cbranch_scc1 L_S1"); relay(1); e("L_S1:")
stS()
e("s_waitcnt lgkmcnt(0)")
for i in range(10): e(f"ds_write_b128 v{69+i%5}, {vr(128+4*i,4)} offset:{(i//5)*16*SBW}")
e("s_waitcnt lgkmcnt(0)")
for dt in range(10):
    e(f"ds_read_b64_tr_b16 {vr(128+4*dt,2)}, v1 offset:{32*dt}")
    e(f"ds_read_b64_tr_b16 {vr(130+4*dt,2)}, v1 offset:{32*dt+8*SBW}")
for i in range(10):
    if i in (4, 8): e("s_add_u32 s15, s15, 4096")
    e(f"buffer_store_dwordx4 {vr(80+4*i,4)}, v4, s[48:51], s15 offen offset:{1024*(i%4)} sc1")
e("s_waitcnt lgkmcnt(0)")
for half in (0, 1):
    e(f"s_add_u32 s6, s10, {half*276480}\ns_add_u32 s7, s6, 4096")
    for d5 in range(5):
        r = 128 + (half*5+d5)*4
        if d5 < 4: e(f"buffer_store_dwordx4 {vr(r,4)}, v4, s[48:51], s6 offen offset:{1024*d5} sc1")
        else: e(f"buffer_store_dwordx4 {vr(r,4)}, v4, s[48:51], s7 offen sc1")
e(f"v_add_u32 v18, {CNT-CNT2}, v16\nv_and_b32 v5, 7, v0\nv_mul_u32_u24 v5, {FS_}, v5\nv_add_u32 v5, {FL_A}, v5")
e("s_waitcnt vmcnt(0)")
e(f"s_mul_i32 s6, s4, {FS_}\ns_add_u32 s6, s6, {FL_A}"); arrive("s6")
stS()
e("s_cmp_lt_u32 s5, 4\ns_cbranch_scc1 L_S2")
e(f"s_sub_u32 s6, s5, 4\ns_mul_i32 s7, s6, 37\ns_lshr_b32 s7, s7, 8\ns_mul_i32 s0, s7, 7\ns_sub_u32 s0, s6, s0\ns_lshr_b32 s6, s4, 1\ns_lshl2_add_u32 s6, s6, s7\ns_mul_i32 s6, s6, {FS_}\ns_add_u32 s6, s6, {FL_T}")
e("s_add_u32 s40, s44, s6\ns_addc_u32 s41, s45, 0")
e(f"s_and_b32 s6, s4, 1\ns_mul_i32 s6, s6, 7\ns_add_u32 s6, s6, s0\ns_mul_i32 s6, s6, {FS_}\ns_add_u32 s6, s6, {FL_E}\ns_add_u32 s38, s44, s6\ns_addc_u32 s39, s45, 0")
wait_lds(17, 18, OPT.get("tpollat", "7"), sleep=True)
spoll(40, [0], 16, 4); spoll(38, [0], 2, 4); relay(1)
wait_lds(17, 18, OPT.get("apollat", "8"), sleep=True)
e("s_branch L_S3")
e("L_S2:")
if OPT.get("warm", "0") == "1": spoll(44, [FL_A+FS_*k for k in range(8)], 32, OPT.get("isleep", "12"))
else:
    e(f"v_mov_b32 v16, {CNT2}")
    if "k" not in EXP and "e" not in EXP: wait_lds(17, 16, "2", sleep=True)
e("L_S3:")
stS()
g2_ids()
e(f"s_mul_i32 s10, s14, 276480\ns_add_u32 s10, s10, {W2F}\ns_mul_i32 s6, s14, 160")
e("s_mov_b64 exec, 0x3ff\nbuffer_load_dwordx4 v[20:23], v4, s[60:63], s6 offen\ns_mov_b64 exec, -1")
vpoll("buffer_load_dword v7, v5, s[48:51], 0 offen sc1", 7, 32, OPT.get("ssleep", "4"))
e(f"s_mov_b64 exec, 0x3ff\nds_write_b128 v6, v[20:23]\ns_mov_b64 exec, -1")
relay(2)
stS()
wait_lds(17, 18, OPT.get("wat", "10"), sleep=True)
if OPT.get("w8", "0") == "1":
    e("s_and_b32 s6, s5, 7\ns_mul_i32 s6, s6, 34560\ns_add_u32 s6, s6, s10")
    for k in range(34):
        e(f"buffer_load_dwordx4 {vr(192+4*(k%16),4)}, v4, s[48:51], s6 offen offset:{1024*(k%4)} sc1")
        if k % 4 == 3: e("s_add_u32 s6, s6, 4096")
e("s_mul_i32 s7, s5, 3\ns_lshl1_add_u32 s8, s5, 16\ns_cmp_lt_u32 s5, 16\ns_cselect_b32 s8, s7, s8\ns_mul_i32 s6, s4, 80\ns_add_u32 s8, s8, s6")
e(f"v_lshrrev_b32 v2, 2, v0\nv_and_b32 v6, 3, v0\nv_mul_u32_u24 v3, 10240, v2\nv_lshl_add_u32 v3, v6, 4, v3")
e(f"s_lshl_b32 s6, s8, 4\ns_add_u32 s6, s6, {XNB}")
for r in range(16):
    e(f"buffer_load_dwordx4 {vr(128+4*r,4)}, v3, s[48:51], s6 offen sc1")
    if r < 15: e("s_add_u32 s6, s6, 163840")
e(f"v_mul_u32_u24 v6, {USZ}, v6\nv_lshl_add_u32 v2, v2, 4, v6\nv_add_u32 v2, {UB0}, v2")
for r in range(20, 24): e(f"v_mov_b32 v{r}, 0")
e(f"v_add_u32 v3, {UB0}, v4")
wait_lds(17, 18, "11", sleep=True)
e("s_mov_b64 exec, 0xfffffff")
for ch in range(3): e(f"ds_write_b128 v3, v[20:23] offset:{ch*USZ}\nds_write_b128 v3, v[20:23] offset:{ch*USZ+U1OFF}")
e("s_mov_b32 exec_lo, 0x77777777\ns_mov_b32 exec_hi, 0x77777777")
for r in range(16):
    e(f"s_waitcnt vmcnt({15-r})")
    e(f"ds_write_b128 v2, {vr(128+4*r,4)} offset:{448+256*r}")
e("s_mov_b64 exec, -1")
e("v_mov_b32 v8, 3\nds_write_b32 v9, v8")
e("v_add_u32 v5, 4096, v4")
for k in range(3 if "P" not in EXP else 0):
    for w in range(4):
        md = 14 if w < 2 else 13
        if w in (0, 2): e(f"s_add_u32 s6, s15, {5+k}\ns_cmp_ge_u32 s6, {md}\ns_cselect_b32 s7, {md}, 0\ns_sub_u32 s6, s6, s7\ns_lshl_b32 s6, s6, 2")
        e(f"s_add_u32 s7, s6, {w}\ns_mul_i32 s0, s7, 5120\ns_add_u32 s0, s0, s10\ns_mov_b32 m0, {(w*3+k)*5120}\ns_nop 0")
        for dt in range(4): e(f"buffer_load_dwordx4 v4, s[48:51], s0 offen offset:{1024*dt} sc1 lds")
        e(f"s_mov_b32 m0, {(w*3+k)*5120+4096}\ns_nop 0\nbuffer_load_dwordx4 v5, s[48:51], s0 offen sc1 lds")
        e(f"s_waitcnt vmcnt({OPT.get('pfd', '30')})")
stS()
e(f"s_mul_i32 s6, s13, {FS_}\ns_add_u32 s6, s6, {FL_H}\ns_add_u32 s40, s44, s6\ns_addc_u32 s41, s45, 0")
e("s_waitcnt vmcnt(0)")
wait_lds(17, 18, "12", sleep=True)
spoll(40, [0], 28, OPT.get("hsleep", "2")); relay(4)
stS()
wait_lds(17, 18, "13", sleep=True)
e(f"s_mul_i32 s6, s14, {4*FS_}\ns_add_u32 s6, s6, {FL_C}\ns_add_u32 s40, s44, s6\ns_addc_u32 s41, s45, 0")
if "k" not in EXP and "e" not in EXP: spoll(40, [FS_*k for k in range(4)], 20, OPT.get("csleep", "4"))
relay(5)
stS()
stS.regs = [76,78,80] + stS.regs; stS.n += 3
stS.flush(8, 9)
e("L_END:")
e("s_endpgm")
for l in tail[:-1]: e(l)
e("L_LAST:")
e(tail[-1])
if "P" in EXP:
    for c_ in e.I:
        if c_.mn == "buffer_store_dwordx4" and ("v4, s[48:51]" in c_.text): c_.text = c_.text.replace(" sc1", "")
nn = e.fix()

hdr = open("cdna_kernels/" + NAME + ".s.ref").read().split("; Override")[0]
DOC = """; One persistent launch, 256 workgroups (one per CU) x 8 waves, roles by wave:
"""
s = hdr + DOC + f"; @launch grid=(256,1,1) block=(512,1,1) lds={LDS_TOTAL}\n"
s += f""".amdgcn_target "amdgcn-amd-amdhsa--gfx950"
.text
.globl {NAME}_kernel
.p2align 8
.type {NAME}_kernel,@function
{NAME}_kernel:
"""
s += e.text()
s += f""".section .rodata,"a"
.p2align 6
.amdhsa_kernel {NAME}_kernel
  .amdhsa_next_free_vgpr 256
  .amdhsa_next_free_sgpr 102
  .amdhsa_accum_offset 256
  .amdhsa_group_segment_fixed_size 0
  .amdhsa_kernarg_size 120
  .amdhsa_user_sgpr_count 2
  .amdhsa_user_sgpr_kernarg_segment_ptr 1
  .amdhsa_system_sgpr_workgroup_id_x 1
.end_amdhsa_kernel
"""
open(OUT, "w").write(s)
print("instrs", sum(1 for c in e.I if c.cls), "nops inserted", nn, "lds", LDS_TOTAL)
```

```python
import sys, struct
from emit import Em, Q
NAME = "recurrent_scan__ssm_conv_s4d__mixer_channel_mlp__prompt"
DBGST = "--dbg" in sys.argv
AMP = [a[6:] for a in sys.argv if a.startswith("--amp=")]
STAMPS = "--stamps" in sys.argv or DBGST or bool(AMP)
OPT = dict(rot="0", cpf="1", expat="1", tpollat="7", apollat="9", nt="wp", gprio="0", cprio="1", self="2")
OPT.update(a[2:].split("=") for a in sys.argv[1:] if a.startswith("--") and "=" in a)
OUT = [a for a in sys.argv[1:] if not a.startswith("--")]
OUT = OUT[0] if OUT else "k.s"
NOAUX = OPT.get("noaux", "0")
EXP = OPT.get("exp", "")
RELAT = int(OPT.get("relat", "16"))
HELP = OPT.get("help", "1") == "1"
OSP = {"": "", "sc1": " sc1", "nt": " nt", "sc01": " sc0 sc1", "sc1nt": " sc1 nt"}[OPT.get("osp", "")]
NT = OPT.get("nt", "")
ntw2 = " nt" if "w" in NT else ""; ntp = " nt" if "p" in NT else ""; ntx = " nt" if "x" in NT else ""; ntg = " nt" if "g" in NT else ""
MT = "s_memtime" if "--cyc" in sys.argv else "s_memrealtime"

FS_ = int(OPT.get("fs", "128"))
FLB = 0x2C0000 if FS_ > 128 else 0
FL_A, FL_H, FL_C, FL_T, FL_E = [FLB + FS_*k for k in (0, 8, 40, 72, 88)]
STATS = 0x4000
XNB = 0x20000
WE = 0x2B0000
W2F = 0x300000
HF = 0x600000
ST = 0xD00000
STAMP = 0xFC0000
WS_SIZE = 0x1000000
OOB = 0x20000000
KSTEP = 8192
XST = 8 * KSTEP
CH0 = XST + 32768
CHSZ = 18176
SB = CH0 + 3 * CHSZ
SBP, SBW, SBF = 1280, 320, 160
CNT = SB + 10240
CNT2 = CNT + 256
SST = CNT2 + 256
REL = CH0 + 1284
LDS_TOTAL = SST + 256
assert LDS_TOTAL <= 163840, LDS_TOTAL
UB0, USZ, U1OFF = 61440, 9152, 4576
assert UB0 + 3*USZ <= CH0
KOFF, KCP = 1312, 4160
TBOFF, TAB, TPI = 0, 1296, 528
SPIN_MAX = 1 << 18
LOG2E = 0x3fb8aa3b
INV2PI = 0x3e22f983

e = Em()
tail = []
def f32(x): return "0x%08x" % struct.unpack("<I", struct.pack("<f", x))[0]
def srd(r, ptr, size):
    e(f"s_mov_b32 s{r}, s{ptr}\ns_mov_b32 s{r+1}, s{ptr+1}\ns_mov_b32 s{r+2}, {size}\ns_mov_b32 s{r+3}, 0x20000")
def vr(a, n): return f"v[{a}:{a+n-1}]"

class Stamper:
    def __init__(self, regs): self.regs = regs; self.n = 0
    def __call__(self):
        if not STAMPS: return
        r = self.regs[self.n]; self.n += 1
        e(f"{MT} s[{r}:{r+1}]")
    def flush(self, v0, v1, dbg=None):
        if not STAMPS: return
        e("s_waitcnt lgkmcnt(0)")
        if AMP:
            aw, ai = (AMP[0].split(":") + [None])[:2] if ":" in AMP[0] else ("0", AMP[0])
            if dbg is None or dbg[0] != int(aw): return
            r = self.regs[int(ai)]
            L = e.lab("AMP")
            e(f"s_cmp_lg_u32 s2, {OPT.get('ampwg', '100')}\ns_cbranch_scc1 {L}_e\ns_cmp_lg_u32 s3, {aw}\ns_cbranch_scc1 {L}_e")
            e(f"s_sub_u32 s6, s{r}, s46\ns_lshl_b32 s6, s6, 2\ns_min_u32 s6, s6, 20000\ns_memrealtime s[8:9]\ns_waitcnt lgkmcnt(0)")
            e(f"{L}:\ns_sleep 1\ns_memrealtime s[10:11]\ns_waitcnt lgkmcnt(0)\ns_sub_u32 s10, s10, s8\ns_cmp_lt_u32 s10, s6\ns_cbranch_scc1 {L}\n{L}_e:")
            return
        if DBGST:
            if dbg is None: return
            wave, off, n = dbg
            L = e.lab("NODBG")
            e(f"s_cmp_lg_u32 s2, 100\ns_cbranch_scc1 {L}\ns_cmp_lg_u32 s3, {wave}\ns_cbranch_scc1 {L}")
            e(f"v_mov_b32 v{v1}, 0\ns_mov_b64 exec, 1")
            for i, r in enumerate(self.regs[:n]):
                e(f"s_sub_u32 s{r}, s{r}, s46\nv_mov_b32 v{v0}, s{r}")
                e(f"buffer_store_dword v{v0}, v{v1}, s[72:75], 0 offen offset:{4*(off+i)}")
                e("s_nop 0")
            e("s_waitcnt vmcnt(0)")
            e(f"{L}:")
            return
        e("s_lshl_b32 s6, s2, 3\ns_add_u32 s6, s6, s3\ns_lshl_b32 s6, s6, 6")
        e(f"s_add_u32 s6, s6, {STAMP}")
        e(f"v_mov_b32 v{v1}, 0")
        e("s_mov_b64 exec, 1")
        for i, r in enumerate([46] + self.regs[:self.n]):
            e(f"v_mov_b32 v{v0}, s{r}")
            e(f"buffer_store_dword v{v0}, v{v1}, s[48:51], s6 offen offset:{4*i}")
            e("s_nop 0")
        e("s_waitcnt vmcnt(0)")

def spin_lds(vchk, vaddr, val, sleep=False, after=(), pre_cmp=True, branch="s_cbranch_vccnz"):
    if NOAUX != "0" and not val.startswith("v"): return
    L = e.lab("SPIN"); B = e.lab("BACK")
    if pre_cmp: e(f"v_cmp_gt_u32 vcc, {val}, v{vchk}")
    e(f"{branch} {L}")
    e(f"{B}:")
    D = f"{L}_d" if after else B
    tail.extend([f"{L}:", f"s_mov_b32 s12, {SPIN_MAX*8}", f"{L}_a:"] + (["s_sleep 1"] if sleep else []) +
                [f"ds_read_b32 v{vchk}, v{vaddr}", "s_waitcnt lgkmcnt(0)",
                 f"v_cmp_gt_u32 vcc, {val}, v{vchk}", f"s_cbranch_vccz {D}", "s_sub_u32 s12, s12, 1", f"s_cbranch_scc0 {L}_a"] +
                ([f"{D}:"] + list(after) if after else []) + [f"s_branch {B}"])
def wait_lds(vchk, vaddr, val, sleep=False):
    e(f"ds_read_b32 v{vchk}, v{vaddr}\ns_waitcnt lgkmcnt(0)")
    spin_lds(vchk, vaddr, val, sleep)
def spoll(base, offs, target, sl, r0=16):
    if NOAUX != "0": return
    L = e.lab("AG")
    e(f"s_mov_b32 s12, {SPIN_MAX}")
    e(f"{L}:")
    for k, o in enumerate(offs): e(f"s_load_dword s{r0+k}, s[{base}:{base+1}], {o} glc")
    e("s_waitcnt lgkmcnt(0)")
    for k in range(1, len(offs)): e(f"s_min_u32 s{r0}, s{r0}, s{r0+k}")
    e(f"s_cmp_ge_u32 s{r0}, {target}\ns_cbranch_scc1 {L}_d\ns_sleep {sl}\ns_sub_u32 s12, s12, 1\ns_cbranch_scc0 {L}")
    e(f"{L}_d:")
def rb(dst, src):
    e(f"v_cvt_pk_bf16_f32 v{dst}, v{src}, v{src}\nv_and_b32 v{dst}, 0xffff0000, v{dst}")
def zero_cnt(base):
    e(f"s_and_b32 s6, s3, 3\ns_lshl_b32 s6, s6, 6\ns_add_u32 s6, s6, {base}")
    e("v_and_b32 v9, 15, v0\nv_lshlrev_b32 v9, 2, v9\nv_add_u32 v9, s6, v9\nv_mov_b32 v11, 0")
    e("ds_write_b32 v9, v11")

e("s_cmp_ge_u32 s2, 256")
e("s_cbranch_scc1 L_END")
if STAMPS: e(f"{MT} s[46:47]")
e("s_load_dwordx16 s[16:31], s[0:1], 0")
e("s_load_dwordx8 s[32:39], s[0:1], 64")
e("s_load_dwordx4 s[40:43], s[0:1], 96")
e("s_load_dwordx2 s[44:45], s[0:1], 112")
e("v_lshrrev_b32 v1, 6, v0")
e("v_and_b32 v0, 63, v0")
e("v_readfirstlane_b32 s3, v1")
e("s_and_b32 s4, s2, 7")
e("s_lshr_b32 s5, s2, 3")
if OPT.get("idlelast", "1") == "1": e("s_add_u32 s5, s5, 4\ns_and_b32 s5, s5, 31")
e("s_cmp_ge_u32 s3, 4")
e("s_cbranch_scc1 L_AUX")

def chan_id(cw):
    e("s_mul_i32 s7, s5, 3\ns_lshl1_add_u32 s8, s5, 16\ns_cmp_lt_u32 s5, 16\ns_cselect_b32 s8, s7, s8\ns_cselect_b32 s7, 3, 2")
    e(f"s_add_u32 s8, s8, s{cw}\ns_mul_i32 s6, s4, 80\ns_add_u32 s8, s8, s6\ns_cmp_ge_u32 s{cw}, s7\ns_cselect_b32 s8, 640, s8")
def param_loads(P, voff, vz, so, so2, R):
    for k, p in enumerate((18, 20, 22, 24)):
        srd(R[k], p, 163840)
        e(f"buffer_load_dword v{P+k}, v{voff}, s[{R[k]}:{R[k]+3}], s{so} offen{ntp}")
    srd(R[0], 26, 1280); e(f"buffer_load_ushort v{P+4}, v{vz}, s[{R[0]}:{R[0]+3}], s{so2} offen")
def k_setup_pk(P, LAM, CC, EV, PS, conj, starts, TM):
    DT = P + 4
    e(f"v_lshlrev_b32 v{DT}, 16, v{DT}\nv_mul_f32 v{DT}, {LOG2E}, v{DT}\nv_exp_f32 v{DT}, v{DT}")
    for k, d in enumerate((LAM, LAM+2, CC, CC+2)): e(f"v_lshlrev_b32 v{d}, 16, v{P+k}\nv_and_b32 v{d+1}, 0xffff0000, v{P+k}")
    rb(DT, DT)
    for n in (0, 1): e(f"v_mul_f32 v{LAM+n}, {LOG2E}, v{LAM+n}")
    for n in (0, 1): e(f"v_exp_f32 v{LAM+n}, v{LAM+n}")
    e(f"v_add_f32 v{P}, v{DT}, v{DT}")
    e(f"v_cvt_pk_bf16_f32 v{P+1}, v{LAM}, v{LAM+1}\nv_lshlrev_b32 v{LAM}, 16, v{P+1}\nv_and_b32 v{LAM+1}, 0xffff0000, v{P+1}")
    for d in (LAM, LAM+2): e(f"v_pk_mul_f32 {vr(d,2)}, {vr(d,2)}, {vr(DT,2)} op_sel_hi:[1,0]")
    for d in (CC, CC+2): e(f"v_pk_mul_f32 {vr(d,2)}, {vr(d,2)}, {vr(P,2)} op_sel_hi:[1,0]")
    for n in (0, 1): e(f"v_mul_f32 v{LAM+n}, {f32(-1.4426950408889634)}, v{LAM+n}\nv_mul_f32 v{LAM+2+n}, {INV2PI}, v{LAM+2+n}")
    for i, p in enumerate(PS):
        for k in range(4): e(f"v_mul_f32 v{TM+4*i+k}, {f32(p)}, v{LAM+k}")
    for i, p in enumerate(PS):
        for n in (0, 1): e(f"v_exp_f32 v{TM+4*i+n}, v{TM+4*i+n}\nv_fract_f32 v{TM+4*i+2+n}, v{TM+4*i+2+n}")
    for i, p in enumerate(PS):
        for n in (0, 1): e(f"v_cos_f32 v{EV[p]+n}, v{TM+4*i+2+n}\nv_sin_f32 v{EV[p]+2+n}, v{TM+4*i+2+n}")
    for i, p in enumerate(PS):
        e(f"v_pk_mul_f32 {vr(EV[p],2)}, {vr(EV[p],2)}, {vr(TM+4*i,2)}")
        e(f"v_pk_mul_f32 {vr(EV[p]+2,2)}, {vr(EV[p]+2,2)}, {vr(TM+4*i,2)}" + (" neg_lo:[1,0] neg_hi:[1,0]" if p == conj else ""))
    pk_step([(EV[p], CC, TM+2*i) for i, p in enumerate(starts)])
def pk_step(g, mid=()):
    for (z, m, t) in g: e(f"v_pk_mul_f32 {vr(t,2)}, {vr(z+2,2)}, {vr(m+2,2)}")
    for l in mid: e(l)
    for (z, m, t) in g: e(f"v_pk_mul_f32 {vr(z+2,2)}, {vr(z+2,2)}, {vr(m,2)}")
    for (z, m, t) in g: e(f"v_pk_fma_f32 {vr(z+2,2)}, {vr(z,2)}, {vr(m+2,2)}, {vr(z+2,2)}")
    for (z, m, t) in g: e(f"v_pk_fma_f32 {vr(z,2)}, {vr(z,2)}, {vr(m,2)}, {vr(t,2)} neg_lo:[0,0,1] neg_hi:[0,0,1]")
def chain_pk(ch, n, row0, VB, TM):
    for u in range(n):
        for i, (z, m, off) in enumerate(ch):
            e(f"v_cvt_pk_bf16_f32 v{TM+4*(u&1)+2*i}, v{z}, v{z+2}\nv_cvt_pk_bf16_f32 v{TM+1+4*(u&1)+2*i}, v{z+1}, v{z+3}")
        wr = [f"ds_write_b64 v{VB}, {vr(TM+4*(u&1)+2*i,2)} offset:{(row0+off+u)*TPI}" for i, (z, m, off) in enumerate(ch)]
        pk_step([(z, m, TM+8+2*i) for i, (z, m, off) in enumerate(ch)], wr)
def k_setup(P, LAM, CC, EV, PS, conj, starts, TM):
    DT = P + 4
    e(f"v_lshlrev_b32 v{DT}, 16, v{DT}\nv_mul_f32 v{DT}, {LOG2E}, v{DT}\nv_exp_f32 v{DT}, v{DT}")
    for n in (0, 1):
        up = (lambda d, s: e(f"v_lshlrev_b32 v{d}, 16, v{s}")) if n == 0 else (lambda d, s: e(f"v_and_b32 v{d}, 0xffff0000, v{s}"))
        up(LAM+2*n, P); up(LAM+2*n+1, P+1); up(CC+2*n, P+2); up(CC+2*n+1, P+3)
    rb(DT, DT)
    for n in (0, 1): e(f"v_mul_f32 v{LAM+2*n}, {LOG2E}, v{LAM+2*n}")
    for n in (0, 1): e(f"v_exp_f32 v{LAM+2*n}, v{LAM+2*n}")
    e(f"v_add_f32 v{P}, v{DT}, v{DT}")
    for n in (0, 1): rb(LAM+2*n, LAM+2*n)
    for n in (0, 1):
        e(f"v_mul_f32 v{LAM+2*n}, v{LAM+2*n}, v{DT}\nv_mul_f32 v{LAM+2*n+1}, v{LAM+2*n+1}, v{DT}")
        e(f"v_mul_f32 v{CC+2*n}, v{CC+2*n}, v{P}\nv_mul_f32 v{CC+2*n+1}, v{CC+2*n+1}, v{P}")
    for n in (0, 1):
        e(f"v_mul_f32 v{LAM+2*n}, {f32(-1.4426950408889634)}, v{LAM+2*n}\nv_mul_f32 v{LAM+2*n+1}, {INV2PI}, v{LAM+2*n+1}")
    it = [(p, n) for p in PS for n in (0, 1)]
    tm = {k: TM + 2*i for i, k in enumerate(it)}
    for (p, n) in it:
        if p == 1.0: e(f"v_exp_f32 v{tm[p,n]}, v{LAM+2*n}\nv_fract_f32 v{tm[p,n]+1}, v{LAM+2*n+1}")
        else: e(f"v_mul_f32 v{tm[p,n]}, {f32(p)}, v{LAM+2*n}\nv_mul_f32 v{tm[p,n]+1}, {f32(p)}, v{LAM+2*n+1}")
    for (p, n) in it:
        if p != 1.0: e(f"v_exp_f32 v{tm[p,n]}, v{tm[p,n]}\nv_fract_f32 v{tm[p,n]+1}, v{tm[p,n]+1}")
    for (p, n) in it: e(f"v_cos_f32 v{EV[p]+2*n}, v{tm[p,n]+1}\nv_sin_f32 v{EV[p]+2*n+1}, v{tm[p,n]+1}")
    for (p, n) in it:
        neg = "-" if p in conj else ""
        e(f"v_mul_f32 v{EV[p]+2*n}, v{EV[p]+2*n}, v{tm[p,n]}")
        e(f"v_mul_f32 v{EV[p]+2*n+1}, {neg}v{EV[p]+2*n+1}, v{tm[p,n]}")
    g_ = [(EV[p]+2*n, CC+2*n, TM+2*i+n) for i, p in enumerate(starts) for n in (0, 1)]
    for (z, m, t) in g_: e(f"v_mul_f32 v{t}, v{z+1}, v{m+1}")
    for (z, m, t) in g_: e(f"v_mul_f32 v{z+1}, v{z+1}, v{m}")
    for (z, m, t) in g_: e(f"v_fmac_f32 v{z+1}, v{z}, v{m+1}")
    for (z, m, t) in g_: e(f"v_fma_f32 v{z}, v{z}, v{m}, -v{t}")
def chain_loop(ch, n, row0, VB, VA, TM, SC):
    L = e.lab("KL")
    UN = min(n, int(OPT.get("kun", "4")))
    if n > UN: e(f"s_mov_b32 s{SC}, {n//UN}")
    e(f"v_add_u32 v{VA}, {row0*TPI}, v{VB}")
    e(f"{L}:")
    for u in range(UN):
        for i, (z, m, off) in enumerate(ch):
            e(f"v_cvt_pk_bf16_f32 v{TM+4*(u&1)+2*i}, v{z}, v{z+1}\nv_cvt_pk_bf16_f32 v{TM+1+4*(u&1)+2*i}, v{z+2}, v{z+3}")
        g = [(z+2*k, m+2*k, TM+8+2*i+k) for i, (z, m, off) in enumerate(ch) for k in (0, 1)]
        for (z, m, t) in g: e(f"v_mul_f32 v{t}, v{z+1}, v{m+1}")
        for i, (z, m, off) in enumerate(ch): e(f"ds_write_b64 v{VA}, {vr(TM+4*(u&1)+2*i,2)} offset:{(off+u)*TPI}")
        for (z, m, t) in g: e(f"v_mul_f32 v{z+1}, v{z+1}, v{m}")
        if u == UN-1 and n > UN: e(f"v_add_u32 v{VA}, {UN*TPI}, v{VA}")
        for (z, m, t) in g: e(f"v_fmac_f32 v{z+1}, v{z}, v{m+1}")
        if u == UN-1 and n > UN: e(f"s_sub_u32 s{SC}, s{SC}, 1\ns_cmp_lg_u32 s{SC}, 0")
        for (z, m, t) in g: e(f"v_fma_f32 v{z}, v{z}, v{m}, -v{t}")
    if n > UN: e(f"s_cbranch_scc1 {L}")
def y_init(Y): e(f"v_mov_b32 v{Y}, 1.0\nv_mov_b32 v{Y+1}, 0\nv_mov_b32 v{Y+2}, 1.0\nv_mov_b32 v{Y+3}, 0")
def frag_reads(dst, VF, row0):
    for s_ in range(8): e(f"ds_read_b128 {vr(dst+4*s_,4)}, v{VF} offset:{64*s_+row0*TPI}")
def k_mfma(K, FA, FY):
    for s_ in range(8):
        e(f"s_waitcnt lgkmcnt({7-s_})")
        e(f"v_mfma_f32_16x16x32_bf16 {vr(K,4)}, {vr(FA+4*s_,4)}, {vr(FY+4*s_,4)}, {vr(K,4) if s_ else 0}")
def g2_ids():
    e("s_and_b32 s6, s5, 7\ns_lshr_b32 s13, s4, 1\ns_lshl3_add_u32 s13, s13, s6\ns_lshr_b32 s7, s5, 3\ns_and_b32 s14, s4, 1\ns_lshl2_add_u32 s14, s14, s7")
    e("s_mul_i32 s15, s7, 7\ns_lshr_b32 s15, s15, 1")

_stG = Stamper([30,32,34,36,38,96,98,100])
GSEL = OPT.get("gst", "c0,g1,ep,hp,hs,g2,rd,end").split(",")
class _G:
    def __call__(self, name):
        if name in GSEL:
            _stG.n = GSEL.index(name); _stG()
    def flush(self, *a):
        _stG.n = 8; _stG.flush(*a)
stG = _G()
vm = Q(e, "vmcnt", 63); lg = Q(e, "lgkmcnt", 15)
XR, VXA, WB = 48, 244, 80
ACC = 112
VCHK, VREL = 250, 251
WEF, XEF, XEC = 176, 192, 196
sK = [76+i for i in range(14)]
HP = 112
e(f"s_setprio {OPT.get('gprio', '2')}")
zero_cnt(CNT)
e("v_lshrrev_b32 v10, 4, v0")
e("v_and_b32 v8, 15, v0")
g2_ids()
if HELP: chan_id(3)
if HELP: e(f"s_lshl_b32 s60, s8, 8\ns_lshl_b32 s61, s8, 1\ns_mov_b32 s62, s8\nv_lshlrev_b32 v117, 2, v0\nv_mov_b32 v118, 0")
e("s_cmp_lt_u32 s5, 4")
e("s_cbranch_scc1 L_IDLE")
e("s_sub_u32 s6, s5, 4\ns_mul_i32 s7, s6, 37\ns_lshr_b32 s7, s7, 8\ns_mul_i32 s8, s7, 7\ns_sub_u32 s6, s6, s8")
e("s_lshr_b32 s8, s4, 1\ns_lshl_b32 s8, s8, 2\ns_add_u32 s8, s8, s7")
e("s_and_b32 s9, s4, 1\ns_mul_i32 s9, s9, 7\ns_add_u32 s9, s9, s6")
e("s_lshl_b32 s11, s9, 8")
ROT = OPT.get("rot", "1") != "0"
sW = list(range(16, 26)); sX = [26, 27, 28, 29, 90, 91, 92, 93, 94, 95]
if ROT:
    e("s_mul_i32 s12, s6, 370\ns_lshr_b32 s12, s12, 8\ns_mul_i32 s7, s7, 5\ns_lshr_b32 s7, s7, 1\ns_add_u32 s12, s12, s7")
    e("s_cmp_ge_u32 s12, 10\ns_cselect_b32 s7, 10, 0\ns_sub_u32 s12, s12, s7")
def rot_tab(ps):
    if not ROT: return
    for p in ps:
        if p: e("s_add_u32 s12, s12, 1\ns_cmp_eq_u32 s12, 10\ns_cselect_b32 s12, 0, s12")
        e(f"s_mul_i32 s{sW[p]}, s12, 221184\ns_add_u32 s{sW[p]}, s{sW[p]}, s11\ns_lshl_b32 s{sX[p]}, s12, 7")
e("v_bfe_u32 v1, v0, 2, 2\ns_lshl_b32 s6, s3, 3\nv_add_u32 v1, s6, v1\nv_mul_u32_u24 v1, 3456, v1")
e("v_lshl_add_u32 v1, v10, 6, v1\nv_and_b32 v2, 3, v0\nv_lshl_add_u32 v1, v2, 4, v1")
e(f"v_add_u32 v2, {4*3456-1024}, v1")
e("s_lshl_b32 s6, s8, 7\ns_lshl_b32 s7, s3, 5\ns_add_u32 s6, s6, s7")
e("v_lshrrev_b32 v5, 3, v0\nv_add_u32 v3, s6, v5\nv_mul_u32_u24 v3, 1280, v3\nv_and_b32 v6, 7, v0\nv_lshrrev_b32 v5, 1, v5\nv_xor_b32 v6, v6, v5")
e(f"v_xor_b32 v5, 4, v6\nv_lshl_add_u32 v4, v5, 4, v3\nv_add_u32 v4, {10240-1024}, v4\nv_lshl_add_u32 v3, v6, 4, v3")
e(f"s_lshl_b32 s10, s3, 13\ns_add_u32 s10, s10, {XST}")
e("s_waitcnt lgkmcnt(0)")
def g_params():
    if not HELP: return
    param_loads(HP, 117, 118, 60, 61, (64, 68, 72, 48))
    for _ in range(5): vm.issue("par")
g_params()
e("s_barrier")
e("s_lshl_b32 s1, s3, 11")
srd(56, 32, 2211840); srd(52, 16, 2621440)
rot_tab(range(1))
def w_ops(step):
    def a():
        if ROT: e(f"s_add_u32 m0, s1, {(step % 8)*KSTEP}\ns_add_u32 s0, s{sW[step//2]}, {(step % 2)*110592}")
        else: e(f"s_add_u32 m0, s1, {(step % 8)*KSTEP}\ns_add_u32 s0, s11, {step*110592}")
        e(f"buffer_load_dwordx4 v1, s[56:59], s0 offen{ntg} lds"); vm.issue(("w", step//2))
    def b():
        e(f"buffer_load_dwordx4 v2, s[56:59], s0 offen offset:1024{ntg} lds"); vm.issue(("w", step//2))
    return [a, b]
def x_ops(u):
    def a():
        if ROT: e(f"s_add_u32 m0, s10, {(u % 4)*2048}\ns_add_u32 s0, s{sX[u//2]}, {(u % 2)*20480}")
        else: e(f"s_add_u32 m0, s10, {(u % 4)*2048}\ns_mov_b32 s0, {(u//2)*128 + (u % 2)*20480}")
        e("buffer_load_dwordx4 v3, s[52:55], s0 offen lds"); vm.issue(("x", u))
    def b():
        e("buffer_load_dwordx4 v4, s[52:55], s0 offen offset:1024 lds"); vm.issue(("x", u))
    return [a, b]
def x_read(c, kk):
    if kk == 0: vm.wait(("x", 2*c+1))
    e(f"ds_read_b128 {vr(XR+(c%2)*16+4*kk,4)}, v{VXA+kk} offset:{(c%2)*4096}"); lg.issue(("xr", c, kk))
for op in w_ops(0) + x_ops(0) + x_ops(1) + w_ops(1): op()
def g_srds(): srd(48, 44, WS_SIZE); srd(64, 38, 1280); srd(68, 40, 2621440); srd(72, 42, 256)
g_srds()
rot_tab(range(1, 10))
NP2 = int(OPT.get("np2", "0"))
late = (w_ops(2) + w_ops(3) + x_ops(2) + x_ops(3))
for op in late[:NP2]: op()
def helper(mid=((), ())):
    if not HELP:
        for op in list(mid[0]) + list(mid[1]): op()
        return
    LAM, CC, TM, YC, FY, FA, KT = 120, 124, 144, 160, 176, 208, 240
    EV = {8.0: 128, 128.0: 132, 512.0: 136, 516.0: 140}
    e("s_cmp_ge_u32 s62, 640" if "n" not in EXP else "s_cmp_ge_u32 s62, 0")
    L = e.lab("NOH")
    e(f"s_cbranch_scc1 {L}")
    e(f"s_mul_i32 s6, s3, {16*TPI}\ns_add_u32 s6, s6, {4*KSTEP}\nv_lshlrev_b32 v164, 3, v0\nv_add_u32 v164, s6, v164")
    e(f"v_mul_u32_u24 v165, {TPI}, v8\nv_lshl_add_u32 v165, v10, 4, v165\nv_add_u32 v165, s6, v165")
    e(f"s_mul_i32 s6, s3, {CHSZ}\ns_add_u32 s6, s6, {CH0+TBOFF}")
    e("v_lshlrev_b32 v167, 1, v8\nv_lshl_add_u32 v167, v10, 7, v167\nv_add_u32 v167, s6, v167")
    e("v_lshlrev_b32 v168, 2, v8\nv_lshrrev_b32 v169, 1, v10\nv_lshl_add_u32 v168, v169, 1, v168\nv_add_u32 v168, s6, v168")
    e(f"v_mov_b32 v{YC}, 1.0\nv_mov_b32 v{YC+1}, 1.0\nv_mov_b32 v{YC+2}, 0\nv_mov_b32 v{YC+3}, 0")
    vm.wait("par")
    stG("par")
    k_setup_pk(HP, LAM, CC, EV, [8.0, 128.0, 512.0, 516.0], 8.0, (512.0, 516.0), TM)
    for op in mid[0]: op()
    L2 = e.lab("HY")
    e(f"s_mov_b32 s63, 4\nv_mov_b32 v166, v164\n{L2}:")
    chain_pk([(YC, EV[8.0], 0)], 4, 0, 166, TM)
    e(f"v_add_u32 v166, {4*TPI}, v166\ns_sub_u32 s63, s63, 1\ns_cmp_lg_u32 s63, 0\ns_cbranch_scc1 {L2}")
    frag_reads(FY, 165, 0)
    for op in mid[1]: op()
    chain_pk([(EV[512.0], EV[128.0], 0), (EV[516.0], EV[128.0], 12)], 4, 0, 164, TM)
    chain_pk([(EV[512.0], EV[128.0], 0)], 8, 4, 164, TM)
    frag_reads(FA, 165, 0)
    k_mfma(KT, FA, FY)
    for r in range(4): e(f"v_cvt_pk_bf16_f32 v{TM+r}, v{KT+r}, v{KT+r}")
    e("s_mov_b32 exec_lo, 0xffff\ns_mov_b32 exec_hi, 0xffff0000")
    for r in range(4): e(f"ds_write_b16 v168, v{TM+r} offset:{768+64*r}")
    e("s_mov_b32 exec_lo, 0xffff0000\ns_mov_b32 exec_hi, 0xffff")
    for r in range(4): e(f"ds_write_b16 v167, v{TM+r} offset:{896+32*r}")
    e("s_mov_b64 exec, -1")
    if mid[0] or mid[1]:
        q = list(vm.q)
        e(f"s_branch {L}_j\n{L}:")
        for op in list(mid[0]) + list(mid[1]): op()
        vm.q = q
        e(f"{L}_j:")
    else: e(f"{L}:")
def kappa_tab():
    e("s_cmp_lt_u32 s3, 2\ns_cselect_b32 s0, 14, 13\ns_cselect_b64 s[24:25], -1, 0\ns_mov_b32 s6, s15")
    for i in range(14):
        if i: e("s_add_u32 s6, s6, 1\ns_cmp_eq_u32 s6, s0\ns_cselect_b32 s6, 0, s6")
        e(f"s_lshl2_add_u32 s7, s6, s3\ns_lshl_b32 s{sK[i]}, s7, 10")
if OPT.get("kapearly", "0") == "1": kappa_tab()
e("v_lshrrev_b32 v7, 5, v0\nv_lshlrev_b32 v5, 11, v7\nv_bfe_u32 v6, v0, 2, 2\nv_lshl_add_u32 v5, v6, 6, v5\nv_bfe_u32 v6, v0, 4, 1\nv_lshl_add_u32 v5, v6, 5, v5\nv_and_b32 v6, 3, v0\nv_lshl_add_u32 v5, v6, 3, v5")
e(f"v_bfe_u32 v6, v0, 1, 3\nv_xor_b32 v6, v6, v7\nv_lshlrev_b32 v6, 4, v6\nv_and_b32 v253, 31, v0\nv_lshl_add_u32 v6, v253, 7, v6")
for kk in range(4): e(f"v_xor_b32 v{VXA+kk}, {32*kk}, v6\nv_add_u32 v{VXA+kk}, s10, v{VXA+kk}")
e(f"v_mov_b32 v252, {OOB}\nv_cmp_gt_u32 vcc, 32, v0\nv_lshlrev_b32 v6, 4, v253\nv_lshlrev_b32 v253, 5, v253\nv_cndmask_b32 v6, v252, v6, vcc\nv_cndmask_b32 v7, v252, v253, vcc")
e(f"v_lshlrev_b32 v250, 2, v0\nv_add_u32 v250, {CNT}, v250")
vq = list(vm.q)
if OPT.get("mid", "1") == "1":
    helper((late[NP2:4], late[4:]))
    vm.q = vq + vm.q[len(vm.q)-(8-NP2):]
else:
    helper()
    vm.q = vq
    for op in late[NP2:]: op()
stG("hlp")
def gcommon():
    e(f"v_lshlrev_b32 v10, 2, v0\nv_add_u32 v10, {CNT}, v10")
def w2_ops(i):
    ops = []
    for dt in range(5):
        def f(dt=dt):
            if dt == 0: e(f"s_lshl2_add_u32 s0, s{sK[i]}, s10\ns_add_u32 s0, s0, s{sK[i]}")
            if dt == 4: e("s_add_u32 s0, s0, 4096")
            r = 12 + (i % 5)*20 + dt*4
            e(f"buffer_load_dwordx4 {vr(r,4)}, v1, s[48:51], s0 offen offset:{1024*(dt%4)} sc1"); vm.issue(("w2", i))
        ops.append(f)
    return ops
def g2_bases():
    e("v_lshlrev_b32 v1, 4, v0")
    e(f"s_mul_i32 s10, s14, 276480\ns_add_u32 s10, s10, {W2F}")
    e(f"s_mul_i32 s11, s13, 221184\ns_add_u32 s11, s11, {HF}")
e("v_mov_b32 v10, v250")
EW = int(OPT.get("ew", "0"))
if EW: kappa_tab()
stG("p")
def signal():
    e("v_add_u32 v11, 1, v11")
    e("ds_write_b32 v9, v11"); lg.issue("sig")
CHKR = [VCHK]
def chk_read():
    e(f"ds_read_b32 v{CHKR[0]}, v10"); lg.issue("chk")
def chk_eval():
    lg.wait("chk")
    spin_lds(CHKR[0], 10, "v11")
def tr_one(step, n, hf_):
    kh, t = divmod(n, 4)
    e(f"ds_read_b64_tr_b16 {vr(WB+4*n+2*hf_,2)}, v5 offset:{(step % 8)*KSTEP + 4096*kh + 1024*hf_ + 256*t}"); lg.issue(("w", step, n))
vm.wait(("w", 0))
signal(); chk_read()
for kk in range(4): x_read(0, kk)
chk_eval()
stG("c0")
for n in range(8): tr_one(0, n, 0); tr_one(0, n, 1)
EW = 0
for i in range(20):
    c, k2 = divmod(i, 2)
    stG(f"a{i}")
    side = {n: [] for n in range(8)}
    if i < 19:
        for n in range(8): side[n] += [lambda n=n: tr_one(i+1, n, 0), lambda n=n: tr_one(i+1, n, 1)]
    if i == 0:
        for n, op in zip((0, 1, 2, 3), w_ops(4) + w_ops(5)): side[n].append(op)
    elif i + 5 <= 19:
        for n, op in zip((0, 2), w_ops(i+5)): side[n].append(op)
    if i + 4 <= 19:
        if k2 == 0: side[4].append(lambda c=c: lg.wait(("xr", c, 3)))
        for n, op in zip((4, 6), x_ops(i+4)): side[n].append(op)
    if k2 == 0 and c + 1 <= 9:
        def sg(c=c):
            vm.wait(("w", c+1)); signal()
        side[3].append(sg); side[5].append(chk_read)
    if k2 == 1 and c + 1 <= 9:
        for kk in range(4): side[(1, 3, 5, 7)[kk]].append(lambda kk=kk, c=c: x_read(c+1, kk))
    if i == 15:
        side[5].append(lambda: (e(f"v_mov_b32 v252, {REL}\nds_read_b32 v{VREL}, v252"), lg.issue("rel")))
    if i == RELAT:
        def f():
            if RELAT != 16: e(f"ds_read_b32 v{VREL}, v252"); lg.issue("rel")
            lg.wait("rel")
            spin_lds(VREL, 252, "1")
            e(f"s_lshl_b32 s6, s8, 12\ns_lshl_b32 s7, s3, 10\ns_add_u32 s6, s6, s7\ns_add_u32 s6, s6, {STATS}\ns_lshl_b32 s63, s9, 11\ns_add_u32 s63, s63, {WE}")
            e(f"buffer_load_dwordx4 {vr(XEF,4)}, v7, s[48:51], s6 offen sc1"); vm.issue("xe")
        side[0].append(f)
        side[2].append(lambda: (e(f"buffer_load_dwordx4 {vr(XEC,4)}, v253, s[48:51], s6 offen offset:16 sc1"), vm.issue("xe")))
        for t in range(4):
            side[(1, 4, 6, 7)[t]].append(lambda t=t: (e(f"buffer_load_dwordx4 {vr(WEF+4*t,4)}, v6, s[48:51], s63 offen offset:{512*t} sc1"), vm.issue("xe")))
    if i == 18:
        side[1].append(g2_bases)
        side[3].append(lambda: e("v_bfe_u32 v3, v0, 4, 1\nv_lshlrev_b32 v3, 10, v3\nv_lshrrev_b32 v4, 5, v0\nv_lshl_add_u32 v3, v4, 8, v3"))
        side[5].append(lambda: e("v_and_b32 v4, 15, v0\nv_lshl_add_u32 v255, v4, 4, v3\nv_mov_b32 v2, 0"))
    if i == 19:
        side[0].append(lambda: e(f"s_lshr_b32 s6, s3, 1\ns_lshl_b32 s7, s8, 1\ns_add_u32 s6, s6, s7\ns_mul_i32 s44, s6, 221184"))
        side[1].append(lambda: e(f"s_and_b32 s7, s3, 1\ns_lshl_b32 s7, s7, 11\ns_add_u32 s44, s44, s7\ns_add_u32 s44, s44, {HF}"))
        side[2].append(lambda: e(f"s_mul_i32 s45, s6, {FS_}\ns_add_u32 s45, s45, {FL_H}"))
        side[3].append(lambda: e(f"s_lshl_b32 s6, s9, 14\ns_add_u32 s44, s44, s6\ns_cmp_eq_u32 s9, 13\ns_cselect_b32 s43, {OOB}, s44"))
        side[7].append(signal)
    for n in range(8):
        kh, t = divmod(n, 4)
        need = [("w", i, n), ("w", i, n+1)] if n % 2 == 0 else []
        if t == 0: need += [("xr", c, 2*k2+kh)]
        if need: lg.wait(need)
        a_ = ACC + 16*t
        e(f"v_mfma_f32_32x32x16_bf16 {vr(a_,16)}, {vr(WB+4*n,4)}, {vr(XR+(c%2)*16+4*(2*k2+kh),4)}, {vr(a_,16) if (i or kh) else 0}")
        for f in side[n]: f()
    if k2 == 0 and c + 1 <= 9: chk_eval()
vm.wait("xe")
for t in range(4): e(f"v_mfma_f32_32x32x16_bf16 {vr(ACC+16*t,16)}, {vr(WEF+4*t,4)}, {vr(XEF,4)}, {vr(ACC+16*t,16)}")
e("v_mov_b32 v7, 1")
stG("g1")
TQ, TE, TO = 224, 232, 240
def h_flag(k):
    vm.wait(("hst", k))
    e(f"s_mov_b64 exec, 1\nbuffer_atomic_add v7, v2, s[48:51], s45 offen offset:{4*k} sc1\ns_mov_b64 exec, -1")
for tp in range(4):
    e(f"s_add_u32 s6, s{44 if tp < 2 else 43}, {4096*tp}")
    for mt in (0, 1):
        st = XEC
        P = range(4)
        acc = lambda q: ACC + 16*tp + 8*mt + 2*q
        for q in P: e(f"v_pk_mul_f32 {vr(TQ+2*q,2)}, {vr(acc(q),2)}, {vr(acc(q),2)}")
        for q in P: e(f"v_pk_fma_f32 {vr(TQ+2*q,2)}, {vr(st,2)}, {vr(TQ+2*q,2)}, {vr(st,2)} op_sel:[0,0,1] op_sel_hi:[0,1,1]")
        for q in P: e(f"v_pk_mul_f32 {vr(TQ+2*q,2)}, {vr(TQ+2*q,2)}, {vr(acc(q),2)}")
        for q in range(8): e(f"v_exp_f32 v{TE+q}, v{TQ+q}")
        for q in P: e(f"v_pk_fma_f32 {vr(TE+2*q,2)}, {vr(st+2,2)}, {vr(TE+2*q,2)}, {vr(st+2,2)} op_sel_hi:[0,1,0]")
        for q in range(8): e(f"v_rcp_f32 v{TE+q}, v{TE+q}")
        for q in P: e(f"v_pk_mul_f32 {vr(TE+2*q,2)}, {vr(TE+2*q,2)}, {vr(acc(q),2)}")
        o = TO + 4*mt
        for q in P: e(f"v_cvt_pk_bf16_f32 v{o+q}, v{TE+2*q}, v{TE+2*q+1}")
        e(f"buffer_store_dwordx4 {vr(o,4)}, v255, s[48:51], s6 offen offset:{512*mt} sc1"); vm.issue(("hst", tp))
stG("ep")
signal()
def g2_setup():
    for ml in range(4):
        e(f"s_xor_b32 s6, s3, {ml}\ns_lshl_b32 s6, s6, 10\nv_add_u32 v{3+ml}, s6, v1")
    e(f"v_mov_b32 v254, {REL}\nv_lshrrev_b32 v8, 4, v0\nv_lshlrev_b32 v8, 3, v8\ns_mul_i32 s8, s14, 160")
HPL = "s_load_dwordx4 s[16:19], s[40:41], 0 glc"
g2_setup()
if not EW: kappa_tab()
vm.wait(("hst", 3))
e(f"s_mov_b64 exec, 1\nbuffer_atomic_add v7, v2, s[48:51], s45 offen sc1\ns_mov_b64 exec, -1")
stG("at")
if OPT.get("self", "1") == "2":
    e("v_lshrrev_b32 v192, 4, v0\nv_lshlrev_b32 v192, 12, v192\nv_and_b32 v193, 15, v0\nv_lshl_add_u32 v192, v193, 7, v192")
    e("s_cmp_eq_u32 s9, 13\ns_cselect_b32 exec_hi, 0, -1\nbuffer_load_dword v194, v192, s[48:51], s44 offen sc1\ns_mov_b64 exec, -1")
if OPT.get("self", "1") == "1":
    for tp in range(4):
        e(f"s_add_u32 s6, s{44 if tp < 2 else 43}, {4096*tp}")
        for mt in (0, 1): e(f"buffer_load_dwordx4 {vr(192+8*tp+4*mt,4)}, v1, s[48:51], s6 offen offset:{1024*mt} sc1")
stG("hp")
vm.clear(); lg.clear()
e("L_G2:")
CHKR[0] = 26
A2, HR = 112, 192
e(f"s_setprio {OPT.get('g2prio', '0')}")
e("v_mov_b32 v2, v254")
if not EW: wait_lds(7, 2, "2")
e(f"v_add_u32 v8, {SST}, v8")
for dt in range(5): e(f"ds_read_b64 {vr(122+2*dt,2)}, v8 offset:{32*dt}")
for k in range([0, 2, 5][EW], 5 if "R" not in EXP else 1):
    for op in w2_ops(k): op()
stG("pp")
wait_lds(7, 2, "4"); lg.clear()
stG("hs")
def h_ops(i):
    ops = []
    for ml in range(4):
        def hl(ml=ml):
            if ml == 0: e(f"s_lshl2_add_u32 s6, s{sK[i]}, s11")
            e(f"buffer_load_dwordx4 {vr(HR+(i%4)*16+ml*4,4)}, v{3+ml}, s[48:51], s6 offen sc1"); vm.issue(("h", i))
        ops.append(hl)
    return ops
for op in h_ops(0) + h_ops(1) + h_ops(2) + h_ops(3): op()
FXO, FLA, FX, FS, VSO, VPF = 92, 95, 32, 12, 98, 104
STL = []
for i in range(3):
    if i == 2: STL.append("s_mov_b32 exec_hi, 0")
    STL.append(f"buffer_load_dwordx4 {vr(FS+4*i,4)}, v{VSO}, s[48:51], s{44 if i == 0 else 6} offen sc1")
    if i < 2: STL.append(f"s_add_u32 s6, s44, {32*4096*(i+1)}")
STL.append("s_mov_b64 exec, -1")
RED = 99
for i in range(14):
    if i == 13:
        e("s_cmp_ge_u32 s3, 2\ns_cbranch_scc1 L_SKIP13")
        tail.extend(["L_SKIP13:"] + [f"ds_write_b128 v{RED+n_//5-1}, {vr(A2+n_*4,4)} offset:{1024*(n_%5)}" for n_ in range(5, 16)] + ["s_branch L_BACK13"])
    vm.wait([("w2", i), ("h", i)])
    lg.wait(("pf", i))
    if i == 7: signal()
    stG(f"b{i}")
    side = {n: [] for n in range(20)}
    def spread(lines, n0, step=1):
        for k, l in enumerate(lines): side[min(19, n0 + k*step)].append(lambda l=l: e(l))
    j = i + 4
    if i >= 1 and j < 8:
        if i == 1: side[0].append(lambda: e("s_mul_i32 s6, s3, 15360\nv_add_u32 v2, s6, v1"))
        for dt in range(5):
            side[1+dt].append(lambda dt=dt, j=j: (e(f"ds_read_b128 {vr(12+(j%5)*20+dt*4,4)}, v2 offset:{(j-5)*5120+dt*1024}"), lg.issue(("pf", j))))
    elif i >= 1 and j < 14 and "L" not in EXP:
        for n, op in zip((1, 3, 7, 11, 16), w2_ops(j)): side[n].append(op)
    if i + 4 < 14:
        for ml, op in enumerate(h_ops(i+4)): side[5*ml+4].append(op)
    if i == 9:
        for n in range(20):
            if side[n]: side[n] = [lambda: e("s_mov_b64 exec, s[24:25]")] + side[n] + [lambda: e("s_mov_b64 exec, -1")]
    if i == 10:
        L = [f"v_mov_b32 v2, {REL}", "ds_read_b32 v8, v2",
             f"v_lshrrev_b32 v{VSO}, 1, v0", "v_and_b32 v4, 1, v0", f"v_lshlrev_b32 v{VSO}, 12, v{VSO}", f"v_lshl_add_u32 v{VSO}, v4, 4, v{VSO}",
             "s_mul_i32 s44, s14, 327680\ns_lshl_b32 s7, s13, 7", "s_add_u32 s44, s44, s7\ns_lshl_b32 s7, s3, 5", f"s_add_u32 s44, s44, s7\ns_add_u32 s44, s44, {ST}",
             "s_lshl_b32 s6, s13, 6\ns_lshl_b32 s7, s3, 4", "s_add_u32 s6, s6, s7\ns_mul_i32 s6, s6, 1280", f"s_add_u32 s8, s8, s6\ns_mul_i32 s9, s3, 2560", f"s_add_u32 s9, s9, {SB}\ns_movk_i32 s0, 1280\ns_movk_i32 s1, {SBF}"]
        spread(L, 1)
    if i == 11:
        L = []
        for k in range(3):
            L += [f"v_add_u32 v3, {64*k}, v0\nv_mul_u32_u24 v4, 6554, v3", "v_lshrrev_b32 v4, 16, v4\nv_mul_u32_u24 v5, 10, v4", "v_sub_u32 v3, v3, v5\nv_lshlrev_b32 v3, 4, v3",
                  f"v_mad_u32_u24 v{FXO+k}, v4, s0, v3\nv_mad_u32_u24 v{FLA+k}, v4, s1, v3", f"v_add_u32 v{FLA+k}, s9, v{FLA+k}"]
        spread(L, 1)
    if i == 12:
        L = []
        for ml in (1, 2, 3): L += [f"s_xor_b32 s6, s3, {ml}\ns_mul_i32 s6, s6, 15360", f"s_add_u32 s6, s6, {(ml-1)*5120}\nv_add_u32 v{RED+ml-1}, s6, v1"]
        L += [f"s_mul_i32 s6, s3, 15360\nv_add_u32 v{RED+3}, s6, v1", f"v_and_b32 v3, 15, v0\nv_mul_u32_u24 v3, {SBF}, v3", f"v_lshrrev_b32 v5, 4, v0\nv_lshl_add_u32 v3, v5, 3, v3", f"v_add_u32 v{RED+4}, s9, v3",
              "v_add_u32 v3, s9, v1\nv_lshlrev_b32 v4, 3, v0", "v_add_u32 v4, s9, v4"]
        spread(L, 6)
        side[0].append(chk_read)
        for k in range(3):
            def xl(k=k):
                if k == 2: e("s_mov_b32 exec_hi, 0")
                e(f"buffer_load_dwordx4 {vr(FX+4*k,4)}, v{FXO+k}, s[52:55], s8 offen"); vm.issue("fx")
                if k == 2: e("s_mov_b64 exec, -1")
            side[1+2*k].append(xl)
    order = list(range(20)) if 0 < i < 13 else list(range(5, 20)) + list(range(5))
    if i == 0:
        side = {n: [] for n in range(20)}
        for k in range(10): side[k].append(lambda k=k: e(f"v_lshlrev_b32 v{A2+2*k}, 16, v{122+k}\nv_and_b32 v{A2+2*k+1}, 0xffff0000, v{122+k}"))
        o = h_ops(4)
        e(f"s_lshl2_add_u32 s6, s{sK[4]}, s11")
        for k, ml in zip((4, 9, 14, 19), (1, 2, 3, 0)):
            side[k].append(lambda ml=ml: (e(f"buffer_load_dwordx4 {vr(HR+ml*4,4)}, v{3+ml}, s[48:51], s6 offen sc1"), vm.issue(("h", 4))))
    if i == 13:
        for k in range(11):
            n_ = order[k]
            side[k+9].append(lambda n_=n_: (e(f"ds_write_b128 v{RED+n_//5-1}, {vr(A2+n_*4,4)} offset:{1024*(n_%5)}"), lg.issue("red")))
    for k, n in enumerate(order):
        ml, dt = divmod(n, 5)
        a = A2 + n*4
        e(f"v_mfma_f32_16x16x32_bf16 {vr(a,4)}, {vr(12+(i%5)*20+dt*4,4)}, {vr(HR+(i%4)*16+ml*4,4)}, {vr(a,4) if (i or ml == 0) else 0}")
        for f in side[k]: f()
    if i == 10:
        e("s_waitcnt lgkmcnt(0)\nv_cmp_gt_u32 s[42:43], 5, v8"); lg.clear()
        for l in STL:
            e(l)
            if l.startswith("buffer"): vm.issue("sT")
    if i == 12: chk_eval()
e("L_BACK13:")
stG("g2")
for n_ in range(16, 20):
    e(f"ds_write_b128 v{RED+n_//5-1}, {vr(A2+n_*4,4)} offset:{1024*(n_%5)}"); lg.issue("red")
signal(); chk_read()
e("s_cmp_lg_u64 s[42:43], 0")
spin_lds(8, 2, "5", after=STL, pre_cmp=False, branch="s_cbranch_scc1")
vm.wait_all()
for i in range(3):
    if i == 2: e("s_mov_b32 exec_hi, 0")
    e(f"ds_write_b128 v3, {vr(FS+4*i,4)} offset:{1024*i}"); lg.issue("sw")
e("s_mov_b64 exec, -1")
for dt in range(5):
    e(f"ds_read_b64_tr_b16 {vr(44+2*dt,2)}, v4 offset:{512*dt}"); lg.issue("str")
chk_eval()
stG("rd")
RD = 192
for dt in range(5):
    for s_ in range(3):
        e(f"ds_read_b128 {vr(RD+(s_*5+dt)*4,4)}, v{RED+3} offset:{5120*s_+1024*dt}"); lg.issue(("rd", dt))
SU = 132
e("s_mov_b32 s6, 0xffff0000")
lg.wait("str")
for k in range(10): e(f"v_lshlrev_b32 v{SU+2*k}, 16, v{44+k}\nv_and_b32 v{SU+2*k+1}, s6, v{44+k}")
XU = 152
for k in range(12): e(f"v_lshlrev_b32 v{XU+2*k}, 16, v{FX+k}\nv_and_b32 v{XU+2*k+1}, s6, v{FX+k}")
T = 56
for dt in range(5):
    a = A2 + dt*4
    lg.wait(("rd", dt))
    for k in (0, 1):
        e(f"v_pk_add_f32 {vr(a+2*k,2)}, {vr(a+2*k,2)}, {vr(RD+dt*4+2*k,2)}")
        e(f"v_pk_add_f32 {vr(T+2*k,2)}, {vr(RD+(5+dt)*4+2*k,2)}, {vr(RD+(10+dt)*4+2*k,2)}")
    for k in (0, 1): e(f"v_pk_add_f32 {vr(a+2*k,2)}, {vr(a+2*k,2)}, {vr(T+2*k,2)}")
E_ = 60
e(f"s_mov_b32 s0, {f32(-1.4426950408889634)}")
for k in range(10): e(f"v_pk_mul_f32 {vr(E_+2*k,2)}, {vr(A2+2*k,2)}, s[0:1] op_sel_hi:[1,0]")
for k in range(20): e(f"v_exp_f32 v{E_+k}, v{E_+k}")
for k in range(10): e(f"v_pk_mul_f32 {vr(A2+2*k,2)}, {vr(A2+2*k,2)}, {vr(SU+2*k,2)}")
for k in range(10): e(f"v_pk_add_f32 {vr(E_+2*k,2)}, {vr(E_+2*k,2)}, 1.0 op_sel_hi:[1,0]")
for k in range(20): e(f"v_rcp_f32 v{E_+k}, v{E_+k}")
for dt in range(5):
    for k in (0, 1): e(f"v_pk_mul_f32 {vr(A2+4*dt+2*k,2)}, {vr(A2+4*dt+2*k,2)}, {vr(E_+4*dt+2*k,2)}")
    for k in (0, 1): e(f"v_cvt_pk_bf16_f32 v{44+2*dt+k}, v{A2+4*dt+2*k}, v{A2+4*dt+2*k+1}")
    e(f"ds_write_b64 v{RED+4}, {vr(44+2*dt,2)} offset:{32*dt}"); lg.issue("pw")
for k in range(3):
    e(f"ds_read_b128 {vr(RD+4*k,4)}, v{FLA+k}"); lg.issue(("pr", k))
for k in range(3):
    lg.wait(("pr", k))
    for q in range(4):
        e(f"v_lshlrev_b32 v{T+2*q}, 16, v{RD+4*k+q}\nv_and_b32 v{T+1+2*q}, s6, v{RD+4*k+q}")
    for q in range(4): e(f"v_pk_add_f32 {vr(T+2*q,2)}, {vr(T+2*q,2)}, {vr(XU+8*k+2*q,2)}")
    for q in range(4): e(f"v_cvt_pk_bf16_f32 v{RD+16+4*k+q}, v{T+2*q}, v{T+2*q+1}")
    if k == 2: e("s_mov_b32 exec_hi, 0")
    e(f"buffer_store_dwordx4 {vr(RD+16+4*k,4)}, v{FXO+k}, s[68:71], s8 offen{OSP}")
stG("end")
stG.flush(60, 61, (0, 1, 8))
e("s_endpgm")

e("L_IDLE:")
e("v_lshrrev_b32 v1, 3, v0\ns_mul_i32 s6, s3, 160\nv_add_u32 v2, s6, v1\nv_mul_u32_u24 v2, 3456, v2\nv_and_b32 v3, 7, v0\nv_lshl_add_u32 v2, v3, 4, v2")
e("v_lshlrev_b32 v4, 8, v1\nv_lshl_add_u32 v4, v3, 5, v4\ns_lshl_b32 s6, s3, 11\nv_add_u32 v4, s6, v4")
e("s_waitcnt lgkmcnt(0)")
e("s_lshl3_add_u32 s47, s5, s4")
e(f"s_lshl_b32 s9, s47, 7\ns_cmp_ge_u32 s47, 27\ns_cselect_b32 s9, {OOB}, s9")
vm.clear()
g_params()
e("s_barrier")
srd(56, 32, 2211840)
e("s_mov_b32 s0, s9")
for i in range(20):
    e(f"buffer_load_dwordx4 {vr(12+4*i,4)}, v2, s[56:59], s0 offen"); vm.issue("cw")
    if i < 19: e(f"s_add_u32 s0, s0, {8*3456}")
srd(56, 34, 3456)
e("v_lshlrev_b32 v5, 1, v0\nbuffer_load_ushort v7, v5, s[56:59], s9 offen"); vm.issue("cw")
srd(52, 16, 2621440); g_srds()
kappa_tab()
helper()
e("s_waitcnt vmcnt(0)\ns_mov_b32 s6, 0xffff0000")
for i in range(20):
    for k in range(4):
        r = 12 + 4*i + k
        if i == 0: e(f"v_lshlrev_b32 v{100+2*k}, 16, v{r}\nv_and_b32 v{101+2*k}, s6, v{r}")
        else: e(f"v_lshlrev_b32 v{92+2*k}, 16, v{r}\nv_and_b32 v{93+2*k}, s6, v{r}")
    if i:
        for k in range(4): e(f"v_pk_add_f32 {vr(100+2*k,2)}, {vr(100+2*k,2)}, {vr(92+2*k,2)}")
e("ds_write_b128 v4, v[100:103]\nds_write_b128 v4, v[104:107] offset:16")
gcommon()
e("s_cmp_eq_u32 s3, 0\ns_cselect_b32 s6, 1, 12\nv_mov_b32 v11, s6\nds_write_b32 v9, v11")
e("s_cbranch_scc0 L_ID2")
wait_lds(8, 10, "1")
e("v_lshlrev_b32 v5, 2, v0")
for k in range(32): e(f"ds_read_b32 v{12+k}, v5 offset:{256*k}")
e("s_waitcnt lgkmcnt(0)")
for st_ in (16, 8, 4, 2, 1):
    for k in range(st_): e(f"v_add_f32 v{12+k}, v{12+k}, v{12+k+st_}")
e("v_mov_b32 v11, 12\nds_write_b32 v9, v11")
e("v_cvt_pk_bf16_f32 v17, v12, v12\nv_lshl_or_b32 v16, v7, 16, v7\nv_and_b32 v13, 0xffff0000, v17\nv_sub_f32 v13, v12, v13\nv_cvt_pk_bf16_f32 v18, v13, v13")
e("v_and_b32 v14, 0xffff0000, v18\nv_sub_f32 v14, v13, v14\nv_cvt_pk_bf16_f32 v19, v12, v14\nv_mov_b32 v20, 0")
e(f"v_lshlrev_b32 v5, 4, v0\ns_lshl_b32 s6, s47, 10\ns_add_u32 s6, s6, {WE}\ns_cmp_ge_u32 s47, 27\ns_cselect_b32 s6, {OOB}, s6")
e("buffer_store_dwordx4 v[16:19], v5, s[48:51], s6 offen sc1")
e(f"v_mov_b32 v2, {REL}")
wait_lds(8, 2, "1", sleep=True)
e(f"s_lshr_b32 s6, s47, 1\ns_mul_i32 s6, s6, {FS_}\ns_add_u32 s6, s6, {FL_E}\ns_cmp_ge_u32 s47, 27\ns_cselect_b32 s6, {OOB}, s6")
e("s_cmp_eq_u32 s47, 26\ns_cselect_b32 s7, 2, 1\nv_mov_b32 v5, s7\ns_waitcnt vmcnt(0)\ns_mov_b64 exec, 1")
e("buffer_atomic_add v5, v20, s[48:51], s6 offen sc1\ns_mov_b64 exec, -1")
e("L_ID2:")
g2_bases()
g2_setup()
wait_lds(12, 254, "2", sleep=True)
if OPT.get("warm", "0") == "1":
    e(f"s_and_b32 s6, s4, 1\ns_lshl2_add_u32 s6, s6, s5\ns_mul_i32 s6, s6, 276480\ns_mul_i32 s7, s3, 69120\ns_add_u32 s6, s6, s7\ns_add_u32 s6, s6, {W2F}\ns_mov_b32 s63, 17")
    e("L_WARM:")
    for k in range(4): e(f"buffer_load_dwordx4 {vr(192+4*k,4)}, v1, s[48:51], s6 offen offset:{1024*k} sc1")
    e(f"s_add_u32 s6, s6, 4096\ns_sub_u32 s63, s63, 1\ns_cmp_lg_u32 s63, 0\ns_cbranch_scc1 L_WARM")
for k in range([0, 2, 5][EW]):
    for op in w2_ops(k): op()
e("s_waitcnt vmcnt(0)")
if STAMPS:
    for r in _stG.regs[:4]: e(f"{MT} s[{r}:{r+1}]")
e("s_branch L_G2")

e("L_AUX:")
if OPT.get("cpf", "0") == "1":
    e("s_getpc_b64 s[96:97]")
    e("L_PC:")
    e(f"s_sub_u32 s96, s96, L_PC-{NAME}_kernel\ns_subb_u32 s97, s97, 0")
    e("s_and_b32 s6, s5, 7\ns_lshl_b32 s6, s6, 6\nv_add_u32 v1, s6, v0\nv_lshlrev_b32 v1, 7, v1")
    e(f"v_min_u32 v1, L_LAST-{NAME}_kernel, v1")
    e("s_cmp_lg_u32 s3, 6\ns_cbranch_scc1 L_PC2")
    e("global_load_dword v255, v1, s[96:97]")
    e("L_PC2:")
_stC = Stamper([76,78,80,82,84,86,88,90,92,94])
CSEL = OPT.get("cst", "ka,x,ln,kg,ex,u,cs,cd,st,pub").split(",")
class _C:
    def __call__(self, name):
        if name in CSEL:
            _stC.n = CSEL.index(name); _stC()
    def flush(self, *a):
        _stC.n = 10; _stC.flush(*a)
stC = _C()
zero_cnt(CNT2)
e("s_sub_u32 s13, s3, 4")
e("s_lshl_b32 s14, s4, 5\ns_add_u32 s14, s14, s5")
e("s_mul_i32 s15, s14, 10240")
e("v_lshrrev_b32 v1, 5, v0\ns_lshl_b32 s6, s13, 1\nv_add_u32 v1, s6, v1\nv_and_b32 v2, 31, v0")
e("v_mul_u32_u24 v3, 1280, v1\nv_lshl_add_u32 v3, v2, 3, v3")
chan_id(13)
e("s_lshl_b32 s10, s8, 8\ns_lshl_b32 s11, s8, 1\nv_lshlrev_b32 v12, 2, v0")
e(f"s_mul_i32 s9, s13, {CHSZ}\ns_add_u32 s9, s9, {CH0}")
e(f"v_mov_b32 v14, 0\nv_mov_b32 v15, {REL}\nds_write_b32 v15, v14")
for i in range(5):
    e(f"v_add_u32 v4, {64*i}, v0\nv_mul_u32_u24 v5, 3277, v4\nv_lshrrev_b32 v5, 16, v5")
    e("v_mul_u32_u24 v6, 20, v5\nv_sub_u32 v6, v4, v6\nv_lshlrev_b32 v6, 4, v6")
    e(f"s_movk_i32 s6, 1280\nv_mad_u32_u24 v{64+i}, v5, s6, v6\ns_movk_i32 s6, {SBW}\nv_mad_u32_u24 v{69+i}, v5, s6, v6\nv_add_u32 v{69+i}, {SB}, v{69+i}")
e("s_waitcnt lgkmcnt(0)")
stC("ka")
XS = 20
def x_rows():
    srd(52, 16, 2621440)
    for i in range(5): e(f"buffer_load_dwordx2 {vr(XS+2*i,2)}, v3, s[52:55], s15 offen offset:{256*i}{ntx}")
KFIRST = OPT.get("kfirst", "0") == "1"
def near_half():
    LAM, CC, YC, FY, FA, KT, TM = 84, 88, 80, 128, 160, [112, 116], 64
    EV = {2.0: 192, 32.0: 196, 1.0: 200, 2048.0: 204}
    e("v_and_b32 v10, 15, v0\nv_lshrrev_b32 v11, 4, v0")
    e(f"v_lshlrev_b32 v12, 3, v0\ns_add_u32 s6, s9, {TAB}\nv_add_u32 v12, s6, v12")
    e(f"v_mul_u32_u24 v14, {TPI}, v10\nv_lshl_add_u32 v14, v11, 4, v14\nv_add_u32 v14, s6, v14")
    e(f"v_mov_b32 v{YC}, 1.0\nv_mov_b32 v{YC+1}, 1.0\nv_mov_b32 v{YC+2}, 0\nv_mov_b32 v{YC+3}, 0")
    e(f"s_add_u32 s10, s9, {TBOFF}")
    e("v_lshlrev_b32 v92, 2, v10\nv_lshl_add_u32 v92, v11, 8, v92\nv_add_u32 v92, s10, v92")
    e("v_lshlrev_b32 v93, 1, v10\nv_lshl_add_u32 v93, v11, 7, v93\nv_add_u32 v93, s10, v93")
    e(f"v_subrev_u32 v15, {CNT2-CNT}, v9")
    e("s_waitcnt vmcnt(5)")
    stC("par")
    k_setup_pk(4, LAM, CC, EV, [2.0, 32.0, 1.0, 2048.0], 2.0, (1.0, 2048.0), TM)
    stC("k0")
    L2 = e.lab("NY")
    e(f"s_mov_b32 s10, 4\nv_mov_b32 v13, v12\n{L2}:")
    chain_pk([(YC, EV[2.0], 0), (CC, EV[32.0], 16)], 4, 0, 13, TM)
    e(f"v_add_u32 v13, {4*TPI}, v13\ns_sub_u32 s10, s10, 1\ns_cmp_lg_u32 s10, 0\ns_cbranch_scc1 {L2}")
    stC("k1")
    e("s_waitcnt lgkmcnt(0)")
    frag_reads(FY, 14, 0); frag_reads(FA, 14, 16)
    e(f"v_cvt_pk_bf16_f32 v76, v{EV[2048.0]}, v{EV[2048.0]+2}\nv_cvt_pk_bf16_f32 v77, v{EV[2048.0]+1}, v{EV[2048.0]+3}")
    k_mfma(KT[0], FA, FY)
    e(f"ds_write_b64 v12, v[76:77] offset:{24*TPI}")
    chain_pk([(EV[1.0], EV[32.0], 0)], 8, 16, 12, TM)
    e("s_waitcnt lgkmcnt(0)")
    frag_reads(FA, 14, 16)
    k_mfma(KT[1], FA, FY)
    for r in range(4): e(f"v_cvt_pk_bf16_f32 v{TM+r}, v{KT[0]+r}, v{KT[1]+r}")
    e("s_mov_b32 exec_hi, 0")
    for r in range(4): e(f"ds_write_b32 v92, v{TM+r} offset:{64*r}")
    e("s_mov_b32 exec_lo, 0\ns_mov_b32 exec_hi, -1")
    for r in range(4): e(f"ds_write_b16 v93, v{TM+r} offset:{256+32*r}")
    e("s_mov_b32 exec_hi, 1")
    e(f"ds_write_b16_d16_hi v93, v{TM} offset:{1280-256}")
    e("s_mov_b64 exec, -1")
e("s_cmp_eq_u32 s3, 7\ns_cbranch_scc1 L_A7")
if not KFIRST: x_rows()
param_loads(4, 12, 14, 10, 11, (56, 60, 64, 68))
srd(60, 28, 1280); e("buffer_load_ushort v19, v14, s[60:63], s11 offen")
if KFIRST: x_rows()
e("s_barrier")
srd(48, 44, WS_SIZE); srd(72, 42, 256)
if KFIRST:
    e("s_cmp_ge_u32 s8, 640\ns_cbranch_scc1 L_A0")
    near_half()
    e("L_A0:")
    e("s_waitcnt vmcnt(0)")
else: e("s_waitcnt vmcnt(6)")
e("s_branch L_LN")
e("L_A7:")
srd(48, 44, WS_SIZE); srd(72, 42, 256)
e("s_cmp_lg_u32 s2, 0\ns_cbranch_scc1 L_A1")
e(f"v_mul_u32_u24 v4, {FS_}, v0")
for r in range(32, 36): e(f"v_mov_b32 v{r}, 0")
for i in range(2):
    e(f"s_mov_b32 s6, {FLB+64*FS_*i}")
    e("buffer_store_dwordx4 v[32:35], v4, s[48:51], s6 offen sc1")
e("s_barrier")
e("s_waitcnt vmcnt(0)")
e("v_mov_b32 v32, 1\ns_mov_b64 exec, 1")
e("buffer_store_dword v32, v14, s[72:75], 0 offen sc1")
e("s_mov_b64 exec, -1")
x_rows()
e("s_branch L_A2")
e("L_A1:")
x_rows()
e("s_barrier")
e("L_A2:")
srd(60, 38, 1280)
srd(56, 36, 2211840)
e(f"s_lshr_b32 s6, s2, 2\ns_mul_i32 s10, s6, 40960\ns_and_b32 s7, s2, 3\ns_mul_i32 s11, s7, 320\ns_add_u32 s10, s10, s11\ns_add_u32 s11, s10, 20480")
e("s_waitcnt vmcnt(0)")
e("L_LN:")
if NOAUX == "1": e("s_endpgm")
stC("x")
e(f"v_mul_u32_u24 v16, {SBP}, v1\nv_lshl_add_u32 v16, v2, 3, v16\nv_add_u32 v16, {SB}, v16")
e(f"v_lshlrev_b32 v17, 5, v1\nv_add_u32 v17, {SST}, v17")
XF = 32
for k in range(10): e(f"v_lshlrev_b32 v{XF+2*k}, 16, v{XS+k}\nv_and_b32 v{XF+2*k+1}, 0xffff0000, v{XS+k}")
e(f"v_add_f32 v52, v{XF}, v{XF+1}\nv_mul_f32 v54, v{XF}, v{XF}\nv_add_f32 v53, v{XF+2}, v{XF+3}\nv_mul_f32 v55, v{XF+1}, v{XF+1}")
e(f"v_fmac_f32 v54, v{XF+2}, v{XF+2}\nv_fmac_f32 v55, v{XF+3}, v{XF+3}")
for k in range(4, 20): e(f"v_add_f32 v{52+(k&1)}, v{52+(k&1)}, v{XF+k}\nv_fmac_f32 v{54+(k&1)}, v{XF+k}, v{XF+k}")
e("v_add_f32 v52, v52, v53\nv_add_f32 v54, v54, v55")
for m in ("quad_perm:[1,0,3,2]", "quad_perm:[2,3,0,1]", "row_half_mirror", "row_mirror"):
    e(f"v_add_f32_dpp v52, v52, v52 {m} row_mask:0xf bank_mask:0xf")
    e(f"v_add_f32_dpp v54, v54, v54 {m} row_mask:0xf bank_mask:0xf")
e("ds_swizzle_b32 v53, v52 offset:0x401F\nds_swizzle_b32 v55, v54 offset:0x401F\ns_waitcnt lgkmcnt(0)")
e("v_add_f32 v52, v52, v53\nv_add_f32 v54, v54, v55")
e(f"v_mul_f32 v52, {f32(1/640)}, v52\nv_mul_f32 v54, {f32(1/640)}, v54")
e("v_fma_f32 v54, -v52, v52, v54\nv_max_f32 v54, 0, v54")
def std_bf16(dst, var):
    rb(dst, var); e(f"v_add_f32 v{dst}, {f32(1e-5)}, v{dst}"); rb(dst, dst); e(f"v_sqrt_f32 v{dst}, v{dst}"); rb(dst, dst)
rb(56, 52); std_bf16(57, 54)
e("v_rcp_f32 v58, v57")
for k in range(20): e(f"v_sub_f32 v{XF+k}, v{XF+k}, v56")
for k in range(10): e(f"v_cvt_pk_bf16_f32 v{XS+k}, v{XF+2*k}, v{XF+2*k+1}")
for k in range(10): e(f"v_lshlrev_b32 v{XF+2*k}, 16, v{XS+k}\nv_and_b32 v{XF+2*k+1}, 0xffff0000, v{XS+k}")
for k in range(20): e(f"v_mul_f32 v{XF+k}, v{XF+k}, v58")
for k in range(10):
    e(f"v_cvt_pk_bf16_f32 v{XS+k}, v{XF+2*k}, v{XF+2*k+1}")
    if k & 1: e(f"ds_write_b64 v16, {vr(XS+k-1,2)} offset:{128*(k-1)}")
e("v_sub_f32 v59, v52, v56\nv_mul_f32 v59, v59, v58\nv_mul_f32 v60, v54, v58\nv_mul_f32 v60, v60, v58")
rb(59, 59); std_bf16(61, 60)
C0 = -2*0.7978845608028654*1.4426950408889634
e("v_mul_f32 v46, v57, v61\nv_fma_f32 v63, -v59, v57, -v56\nv_rcp_f32 v62, v46\nv_mov_b32 v47, 0")
rb(32, 46); rb(33, 63)
e("v_sub_f32 v32, v46, v32\nv_sub_f32 v33, v63, v33\nv_mul_f32 v44, v62, v62")
rb(34, 33)
e("v_cvt_pk_bf16_f32 v40, v46, v32\nv_cvt_pk_bf16_f32 v41, v63, v33\nv_sub_f32 v34, v33, v34\nv_mov_b32 v42, v41\nv_cvt_pk_bf16_f32 v43, v34, v63")
e(f"v_mul_f32 v45, {f32(C0)}, v62\nv_mul_f32 v44, {f32(0.044715)}, v44\nv_mul_f32 v44, v44, v45")
e("s_mov_b32 s0, 1\ns_mov_b32 s1, 1\ns_mov_b64 exec, s[0:1]")
e("ds_write_b128 v17, v[40:43]\nds_write_b128 v17, v[44:47] offset:16")
e("s_mov_b64 exec, -1")
e("v_mov_b32 v61, 1\nds_write_b32 v9, v61")
stC("ln")
e("s_cmp_eq_u32 s3, 7\ns_cbranch_scc1 L_S")
e("s_cmp_ge_u32 s8, 640\ns_cbranch_scc1 L_END")
if "k" in EXP: e("s_endpgm")

if not KFIRST:
    e("s_waitcnt vmcnt(0)")
    stC("par")
    LAM, CC, YC, FY, FA, KT = 84, 88, 80, 128, 160, [112, 116]
    EV = {2.0: 192, 32.0: 196, 1.0: 200, 2048.0: 204, 8.0: 208, 128.0: 212, 512.0: 216, 516.0: 220}
    if HELP: k_setup(4, LAM, CC, EV, [2.0, 32.0, 1.0, 2048.0], (2.0,), (1.0, 2048.0), 64)
    else: k_setup(4, LAM, CC, EV, list(EV), (2.0, 8.0), (1.0, 2048.0, 512.0, 516.0), 20)
    e("v_and_b32 v10, 15, v0\nv_lshrrev_b32 v11, 4, v0")
    e(f"v_lshlrev_b32 v12, 3, v0\ns_add_u32 s6, s9, {TAB}\nv_add_u32 v12, s6, v12")
    e(f"v_mul_u32_u24 v14, {TPI}, v10\nv_lshl_add_u32 v14, v11, 4, v14\nv_add_u32 v14, s6, v14")
    y_init(YC)
    stC("k0")
    chain_loop([(YC, EV[2.0], 0), (CC, EV[32.0], 16)], 16, 0, 12, 13, 64, 10)
    stC("k1")
    frag_reads(FY, 14, 0); frag_reads(FA, 14, 16)
    e(f"v_cvt_pk_bf16_f32 v76, v{EV[2048.0]}, v{EV[2048.0]+1}\nv_cvt_pk_bf16_f32 v77, v{EV[2048.0]+2}, v{EV[2048.0]+3}")
    e(f"ds_write_b64 v12, v[76:77] offset:{24*TPI}")
    chain_loop([(EV[1.0], EV[32.0], 0)], 8, 16, 12, 13, 64, 10)
    FB_ = 208
    frag_reads(FB_, 14, 16)
    e("s_waitcnt lgkmcnt(8)")
    for s_ in range(8): e(f"v_mfma_f32_16x16x32_bf16 {vr(KT[0],4)}, {vr(FA+4*s_,4)}, {vr(FY+4*s_,4)}, {vr(KT[0],4) if s_ else 0}")
    FA = FB_ if HELP else FA
    e(f"s_add_u32 s10, s9, {TBOFF}")
    e("v_lshlrev_b32 v20, 2, v10\nv_lshl_add_u32 v20, v11, 8, v20\nv_add_u32 v20, s10, v20")
    e("v_lshlrev_b32 v21, 1, v10\nv_lshl_add_u32 v21, v11, 7, v21\nv_add_u32 v21, s10, v21")
    e(f"v_subrev_u32 v15, {CNT2-CNT}, v9")
    if not HELP: y_init(YC)
    k_mfma(KT[1], FA, FY)
    if not HELP:
        chain_loop([(YC, EV[8.0], 0), (EV[512.0], EV[128.0], 16), (EV[516.0], EV[128.0], 28)][:2], 12, 0, 12, 13, 64, 10)
        chain_loop([(YC, EV[8.0], 0), (EV[516.0], EV[128.0], 16)], 4, 12, 12, 13, 64, 10)
        e("s_waitcnt lgkmcnt(0)")
        frag_reads(FY, 14, 0); frag_reads(FA, 14, 16)
        e(f"s_add_u32 s10, s9, {TBOFF}")
        e("v_lshlrev_b32 v22, 2, v10\nv_lshrrev_b32 v23, 1, v11\nv_lshl_add_u32 v22, v23, 1, v22\nv_add_u32 v22, s10, v22")
        k_mfma(120, FA, FY)
        for r in range(4): e(f"v_cvt_pk_bf16_f32 v{32+r}, v{120+r}, v{120+r}")
        e("s_mov_b32 exec_lo, 0xffff\ns_mov_b32 exec_hi, 0xffff0000")
        for r in range(4): e(f"ds_write_b16 v22, v{32+r} offset:{768+64*r}")
        e("s_mov_b32 exec_lo, 0xffff0000\ns_mov_b32 exec_hi, 0xffff")
        for r in range(4): e(f"ds_write_b16 v21, v{32+r} offset:{896+32*r}")
        e("s_mov_b64 exec, -1")
    for r in range(4): e(f"v_cvt_pk_bf16_f32 v{24+r}, v{KT[0]+r}, v{KT[1]+r}")
    e("s_mov_b32 exec_hi, 0")
    for r in range(4): e(f"ds_write_b32 v20, v{24+r} offset:{64*r}")
    e("s_mov_b32 exec_lo, 0\ns_mov_b32 exec_hi, -1")
    for r in range(4): e(f"ds_write_b16 v21, v{24+r} offset:{256+32*r}")
    e("s_mov_b32 exec_hi, 1")
    e(f"ds_write_b16_d16_hi v21, v24 offset:{1280-256}")
    e("s_mov_b64 exec, -1")
wait_lds(17, 15, OPT.get("expat", "11"), sleep=True)
stC("kg")
if "e" in EXP: e("s_endpgm")
UR = 128
UL = e

e("v_lshlrev_b32 v24, 1, v0\nv_sub_u32 v22, 2047, v24\nv_sub_u32 v23, 2046, v24")
e("v_cvt_f32_i32 v22, v22\nv_cvt_f32_i32 v23, v23")
e(f"v_lshlrev_b32 v21, 2, v0\ns_add_u32 s6, s9, {KOFF-12}\nv_add_u32 v21, s6, v21")
e(f"s_add_u32 s6, s9, {TBOFF}\ns_sub_u32 s7, s6, {2*(0x4300-128)}\nv_mov_b32 v26, s7")
e(f"v_mov_b32 v30, {f32(-128.0)}")
e("v_lshlrev_b32 v27, 1, v24\nv_sub_u32 v27, s6, v27\nv_mov_b32 v28, 0")
def exp_rounds(n, lin=False):
    for k in range(n):
        t = 32 + 4*k
        if lin and k == n-1:
            e(f"ds_read_u16 v{t+1}, v27 offset:254\nds_read_u16 v{t+2}, v27 offset:252")
            continue
        e(f"v_cvt_pk_bf16_f32 v{t}, v22, v23")
        e("v_add_f32 v22, v22, v30\nv_add_f32 v23, v23, v30")
        e(f"v_mad_u32_u16 v{t+1}, v{t}, 2, v26")
        e(f"v_mad_u32_u16 v{t+2}, v{t}, 2, v26 op_sel:[1,0,0,0]")
        e(f"ds_read_u16 v{t+1}, v{t+1}\nds_read_u16 v{t+2}, v{t+2}")
    for k in range(n):
        t = 32 + 4*k
        e(f"s_waitcnt lgkmcnt({min(15, 2*(n-1-k) + 4*k)})")
        e(f"v_lshl_or_b32 v{t}, v{t+2}, 16, v{t+1}")
        for c in range(4): e(f"ds_write_b32 v21, v{t} offset:{c*(KCP+4) + 256*k}")
e("s_mov_b32 s10, 3")
e("L_EXP:")
exp_rounds(4)
e("v_add_u32 v21, 1024, v21")
e("s_sub_u32 s10, s10, 1\ns_cmp_lg_u32 s10, 0\ns_waitcnt lgkmcnt(0)\ns_cbranch_scc1 L_EXP")
exp_rounds(4, lin=True)
e("s_mov_b64 exec, 0x7fff")
for c in range(4): e(f"ds_write_b32 v21, v28 offset:{c*(KCP+4) + 1024}")
e("s_mov_b64 exec, -1")
e("v_mov_b32 v28, 2\nds_write_b32 v9, v28")
stC("ex")
e(f"s_mul_i32 s11, s13, {USZ}\ns_add_u32 s11, s11, {UB0}")
e(f"v_mov_b32 v18, {CNT2+192}")
stC("u")
e("v_lshrrev_b32 v12, 1, v10\nv_lshlrev_b32 v12, 6, v12\nv_lshl_add_u32 v12, v11, 4, v12")
e(f"v_and_b32 v13, 1, v10\nv_xor_b32 v13, 1, v13\nv_mul_u32_u24 v13, {U1OFF}, v13\nv_add_u32 v12, v12, v13")
e(f"s_add_u32 s6, s11, 448\nv_add_u32 v12, s6, v12")
e(f"v_and_b32 v13, 3, v10\nv_mul_u32_u24 v13, {KCP}, v13\nv_lshrrev_b32 v14, 2, v10\nv_sub_u32 v14, v11, v14\nv_lshl_add_u32 v13, v14, 4, v13")
e(f"s_add_u32 s6, s9, {KOFF+4080-3584}\nv_add_u32 v13, s6, v13")
CA, BU, BK = 20, [52, 116], [84, 148]
for r in range(CA, CA+32): e(f"v_mov_b32 v{r}, 0")
e("v_lshlrev_b32 v3, 4, v0\nv_add_u32 v3, s11, v3")
wait_lds(17, 18, "3", sleep=True)
for i in range(4):
    e(f"ds_read_b32 v{115+5*i}, v3 offset:{444+1024*i}")
    e(f"ds_read_b128 {vr(136+4*i,4)}, v3 offset:{448+1024*i}")
for i in range(4):
    e(f"s_waitcnt lgkmcnt({6-2*i+i})")
    e(f"v_alignbit_b32 v{152+4*i}, v{136+4*i}, v{115+5*i}, 16")
    for k in (1, 2, 3): e(f"v_alignbit_b32 v{152+4*i+k}, v{136+4*i+k}, v{136+4*i+k-1}, 16")
    e(f"ds_write_b128 v3, {vr(152+4*i,4)} offset:{U1OFF+448+1024*i}")
e("s_waitcnt lgkmcnt(0)")
def conv_reads(b):
    l = []
    for t in range(8):
        l.append(f"ds_read_b128 {vr(BU[b]+4*t,4)}, v12 offset:{512*t}")
        l.append(f"ds_read_b128 {vr(BK[b]+4*t,4)}, v13 offset:{512*(7-t)}")
    l.append("v_subrev_u32 v12, 64, v12\nv_subrev_u32 v13, 64, v13")
    return l
for l in conv_reads(0): e(l)
if OPT.get("gate", "1") == "1": wait_lds(17, 15, "12", sleep=True)
e(f"s_setprio {OPT.get('cprio', '3')}")
stC("cs")
e("s_mov_b32 s10, 4")
e("L_CV:")
for b in (0, 1):
    e("s_waitcnt lgkmcnt(0)")
    rd = conv_reads(1-b)
    n = 0
    for s_ in range(8):
        for t in range(8 - s_):
            a = CA + 4*(s_+t)
            e(f"v_mfma_f32_16x16x32_bf16 {vr(a,4)}, {vr(BU[b]+4*t,4)}, {vr(BK[b]+4*s_,4)}, {vr(a,4)}")
            if n < len(rd): e(rd[n])
            n += 1
e("s_sub_u32 s10, s10, 1\ns_cmp_lg_u32 s10, 0\ns_cbranch_scc1 L_CV")
stC("cd")
e(f"v_lshlrev_b32 v2, 7, v11\nv_lshl_add_u32 v2, v10, 2, v2\nv_add_u32 v3, s11, v2\ns_add_u32 s6, s9, {KOFF}\nv_add_u32 v2, s6, v2")
e("v_lshlrev_b32 v4, 4, v0\nv_add_u32 v5, s6, v4\nv_lshlrev_b32 v19, 16, v19")
e("s_waitcnt lgkmcnt(0)")
for k in range(16): e(f"ds_read_b32 v{52+k}, v3 offset:{448+512*(k//2)+64*(k%2)}")
e(f"s_lshl_b32 s6, s8, 12\ns_add_u32 s6, s6, {ST}")
for k in range(16):
    if k % 4 == 0: e(f"s_waitcnt lgkmcnt({min(15, 12-k+k)})")
    e(f"v_lshlrev_b32 v{68+2*(k%2)}, 16, v{52+k}\nv_and_b32 v{69+2*(k%2)}, 0xffff0000, v{52+k}")
    e(f"v_fmac_f32 v{CA+2*k}, v{68+2*(k%2)}, v19\nv_fmac_f32 v{CA+2*k+1}, v{69+2*(k%2)}, v19")
    e(f"v_cvt_pk_bf16_f32 v{52+k}, v{CA+2*k}, v{CA+2*k+1}")
    e(f"ds_write_b32 v2, v{52+k} offset:{512*(k//2)+64*(k%2)}")
for i in range(4): e(f"ds_read_b128 {vr(72+4*i,4)}, v5 offset:{1024*i}")
for i in range(4):
    e(f"s_waitcnt lgkmcnt({3-i})")
    e(f"buffer_store_dwordx4 {vr(72+4*i,4)}, v4, s[48:51], s6 offen offset:{1024*i} sc1")
stC("st")
e("s_waitcnt vmcnt(0)")
e(f"s_and_b32 s6, s8, 3\ns_lshl2_add_u32 s6, s4, s6\ns_mul_i32 s6, s6, {FS_}\ns_add_u32 s6, s6, {FL_C}")
e("v_mov_b32 v2, 0\nv_mov_b32 v3, 1\ns_mov_b64 exec, 1")
e("buffer_atomic_add v3, v2, s[48:51], s6 offen sc1")
stC("pub")
stC.flush(4, 5, (4, 9, 7))
e("s_endpgm")

e("L_S:")
stS = Stamper([82,84,86,88,90,92,94,96])
for i in range(10): e(f"buffer_load_dwordx4 {vr(128+4*i,4)}, v{64+i%5}, s[56:59], s{10 + i//5} offen{ntw2}")
e(f"v_lshrrev_b32 v1, 4, v0\nv_lshlrev_b32 v16, 2, v0\nv_add_u32 v16, {CNT2}, v16")
e(f"v_bfe_u32 v13, v0, 2, 2\nv_mul_u32_u24 v13, {SBP}, v13\nv_lshl_add_u32 v13, v1, 5, v13")
e(f"v_and_b32 v2, 3, v0\nv_lshl_add_u32 v13, v2, 3, v13\nv_add_u32 v13, {SB}, v13")
e(f"v_lshlrev_b32 v4, 4, v0\nv_add_u32 v6, {SST}, v4")
e("buffer_load_dword v7, v14, s[72:75], 0 offen sc1")
wait_lds(17, 16, "1")
e("s_mov_b64 exec, 0xffff\nds_read_b128 v[20:23], v6\ns_mov_b64 exec, -1")
for i in range(10):
    e(f"ds_read_b64_tr_b16 {vr(80+4*i,2)}, v13 offset:{128*i}")
    e(f"ds_read_b64_tr_b16 {vr(82+4*i,2)}, v13 offset:{128*i+4*SBP}")
e(f"s_lshl_b32 s6, s14, 8\ns_add_u32 s6, s6, {STATS}")
e("s_waitcnt lgkmcnt(15)\ns_mov_b64 exec, 0xffff")
e("buffer_store_dwordx4 v[20:23], v4, s[48:51], s6 offen sc1")
e("s_mov_b64 exec, -1")
stS()
e(f"v_bfe_u32 v1, v0, 2, 3\nv_lshrrev_b32 v3, 5, v0\nv_lshl_add_u32 v1, v3, 4, v1\nv_mul_u32_u24 v1, {SBW}, v1\nv_lshl_add_u32 v1, v2, 3, v1\nv_add_u32 v1, {SB}, v1")
e(f"s_lshr_b32 s6, s2, 2\ns_mul_i32 s10, s6, 5120\ns_and_b32 s7, s2, 3\ns_mul_i32 s7, s7, {2*276480}\ns_add_u32 s10, s10, s7\ns_add_u32 s10, s10, {W2F}")
e(f"s_cmp_ge_u32 s2, 216\ns_cselect_b32 s10, {OOB}, s10\ns_add_u32 s15, s15, {XNB}")
if "H" in EXP: e(f"s_mov_b32 s10, {OOB}\ns_mov_b32 s15, {OOB}")
def relay(val): e(f"v_mov_b32 v8, {val}\nds_write_b32 v15, v8")
SLP = OPT.get("sleep", "1")
def vpoll(load, chk, target, sl, first=True):
    L = e.lab("AG")
    e(f"s_mov_b32 s12, {SPIN_MAX}")
    if not first: e(f"s_branch {L}_c")
    e(f"{L}:")
    e(load); e("s_waitcnt vmcnt(0)")
    e(f"{L}_c:")
    e(f"v_cmp_gt_u32 vcc, {target}, v{chk}\ns_cbranch_vccz {L}_d\ns_sleep {sl}\ns_sub_u32 s12, s12, 1\ns_cbranch_scc0 {L}")
    e(f"{L}_d:")
def arrive(so): e(f"v_mov_b32 v8, 1\ns_mov_b64 exec, 1\nbuffer_atomic_add v8, v14, s[48:51], {so} offen sc1\ns_mov_b64 exec, -1")
e("s_waitcnt vmcnt(0)")
vpoll("buffer_load_dword v7, v14, s[72:75], 0 offen sc1", 7, 1, 8, first=False)
e(f"s_lshr_b32 s6, s14, 4\ns_mul_i32 s6, s6, {FS_}\ns_add_u32 s6, s6, {FL_T}"); arrive("s6")
e("s_cmp_ge_u32 s5, 4\ns_cbranch_scc1 L_S1"); relay(1); e("L_S1:")
stS()
e("s_waitcnt lgkmcnt(0)")
for i in range(10): e(f"ds_write_b128 v{69+i%5}, {vr(128+4*i,4)} offset:{(i//5)*16*SBW}")
e("s_waitcnt lgkmcnt(0)")
for dt in range(10):
    e(f"ds_read_b64_tr_b16 {vr(128+4*dt,2)}, v1 offset:{32*dt}")
    e(f"ds_read_b64_tr_b16 {vr(130+4*dt,2)}, v1 offset:{32*dt+8*SBW}")
PACE = int(OPT.get("pace", "0"))
e(f"v_add_u32 v18, {CNT-CNT2}, v16")
nst = [0]
def paced():
    if PACE and nst[0] and nst[0] % PACE == 0: wait_lds(17, 18, str(int(OPT.get("pace0", "1")) + nst[0]//PACE), sleep=True)
    nst[0] += 1
for i in range(10):
    if i in (4, 8): e("s_add_u32 s15, s15, 4096")
    paced()
    e(f"buffer_store_dwordx4 {vr(80+4*i,4)}, v4, s[48:51], s15 offen offset:{1024*(i%4)} sc1")
e("s_waitcnt lgkmcnt(0)")
for half in (0, 1):
    e(f"s_add_u32 s6, s10, {half*276480}\ns_add_u32 s7, s6, 4096")
    for d5 in range(5):
        r = 128 + (half*5+d5)*4
        paced()
        if d5 < 4: e(f"buffer_store_dwordx4 {vr(r,4)}, v4, s[48:51], s6 offen offset:{1024*d5} sc1")
        else: e(f"buffer_store_dwordx4 {vr(r,4)}, v4, s[48:51], s7 offen sc1")
e(f"v_add_u32 v18, {CNT-CNT2}, v16\nv_and_b32 v5, 7, v0\nv_mul_u32_u24 v5, {FS_}, v5\nv_add_u32 v5, {FL_A}, v5")
e("s_waitcnt vmcnt(0)")
e(f"s_mul_i32 s6, s4, {FS_}\ns_add_u32 s6, s6, {FL_A}"); arrive("s6")
stS()
e("s_cmp_lt_u32 s5, 4\ns_cbranch_scc1 L_S2")
e(f"s_sub_u32 s6, s5, 4\ns_mul_i32 s7, s6, 37\ns_lshr_b32 s7, s7, 8\ns_mul_i32 s0, s7, 7\ns_sub_u32 s0, s6, s0\ns_lshr_b32 s6, s4, 1\ns_lshl2_add_u32 s6, s6, s7\ns_mul_i32 s6, s6, {FS_}\ns_add_u32 s6, s6, {FL_T}")
e("s_add_u32 s40, s44, s6\ns_addc_u32 s41, s45, 0")
e(f"s_and_b32 s6, s4, 1\ns_mul_i32 s6, s6, 7\ns_add_u32 s6, s6, s0\ns_mul_i32 s6, s6, {FS_}\ns_add_u32 s6, s6, {FL_E}\ns_add_u32 s38, s44, s6\ns_addc_u32 s39, s45, 0")
wait_lds(17, 18, OPT.get("tpollat", "7"), sleep=True)
spoll(40, [0], 16, 4); spoll(38, [0], 2, 4); relay(1)
wait_lds(17, 18, OPT.get("apollat", "8"), sleep=True)
e("s_branch L_S3")
e("L_S2:")
if OPT.get("warm", "0") == "1": spoll(44, [FL_A+FS_*k for k in range(8)], 32, OPT.get("isleep", "12"))
else:
    e(f"v_mov_b32 v16, {CNT2}")
    if "k" not in EXP and "e" not in EXP: wait_lds(17, 16, "2", sleep=True)
e("L_S3:")
stS()
g2_ids()
e(f"s_mul_i32 s10, s14, 276480\ns_add_u32 s10, s10, {W2F}\ns_mul_i32 s6, s14, 160")
e("s_mov_b64 exec, 0x3ff\nbuffer_load_dwordx4 v[20:23], v4, s[60:63], s6 offen\ns_mov_b64 exec, -1")
vpoll("buffer_load_dword v7, v5, s[48:51], 0 offen sc1", 7, 32, OPT.get("ssleep", "4"))
e(f"s_mov_b64 exec, 0x3ff\nds_write_b128 v6, v[20:23]\ns_mov_b64 exec, -1")
relay(2)
stS()
wait_lds(17, 18, OPT.get("wat", "10"), sleep=True)
if OPT.get("w8", "0") == "1":
    e("s_and_b32 s6, s5, 7\ns_mul_i32 s6, s6, 34560\ns_add_u32 s6, s6, s10")
    for k in range(34):
        e(f"buffer_load_dwordx4 {vr(192+4*(k%16),4)}, v4, s[48:51], s6 offen offset:{1024*(k%4)} sc1")
        if k % 4 == 3: e("s_add_u32 s6, s6, 4096")
e("s_mul_i32 s7, s5, 3\ns_lshl1_add_u32 s8, s5, 16\ns_cmp_lt_u32 s5, 16\ns_cselect_b32 s8, s7, s8\ns_mul_i32 s6, s4, 80\ns_add_u32 s8, s8, s6")
e(f"v_lshrrev_b32 v2, 2, v0\nv_and_b32 v6, 3, v0\nv_mul_u32_u24 v3, 10240, v2\nv_lshl_add_u32 v3, v6, 4, v3")
e(f"s_lshl_b32 s6, s8, 4\ns_add_u32 s6, s6, {XNB}")
for r in range(16):
    e(f"buffer_load_dwordx4 {vr(128+4*r,4)}, v3, s[48:51], s6 offen sc1")
    if r < 15: e("s_add_u32 s6, s6, 163840")
e(f"v_mul_u32_u24 v6, {USZ}, v6\nv_lshl_add_u32 v2, v2, 4, v6\nv_add_u32 v2, {UB0}, v2")
for r in range(20, 24): e(f"v_mov_b32 v{r}, 0")
e(f"v_add_u32 v3, {UB0}, v4")
wait_lds(17, 18, "11", sleep=True)
e("s_mov_b64 exec, 0xfffffff")
for ch in range(3): e(f"ds_write_b128 v3, v[20:23] offset:{ch*USZ}\nds_write_b128 v3, v[20:23] offset:{ch*USZ+U1OFF}")
e("s_mov_b32 exec_lo, 0x77777777\ns_mov_b32 exec_hi, 0x77777777")
for r in range(16):
    e(f"s_waitcnt vmcnt({15-r})")
    e(f"ds_write_b128 v2, {vr(128+4*r,4)} offset:{448+256*r}")
e("s_mov_b64 exec, -1")
e("v_mov_b32 v8, 3\nds_write_b32 v9, v8")
e("v_add_u32 v5, 4096, v4")
for k in range(3 if "P" not in EXP else 0):
    for w in range(4):
        md = 14 if w < 2 else 13
        if w in (0, 2): e(f"s_add_u32 s6, s15, {5+k}\ns_cmp_ge_u32 s6, {md}\ns_cselect_b32 s7, {md}, 0\ns_sub_u32 s6, s6, s7\ns_lshl_b32 s6, s6, 2")
        e(f"s_add_u32 s7, s6, {w}\ns_mul_i32 s0, s7, 5120\ns_add_u32 s0, s0, s10\ns_mov_b32 m0, {(w*3+k)*5120}\ns_nop 0")
        for dt in range(4): e(f"buffer_load_dwordx4 v4, s[48:51], s0 offen offset:{1024*dt} sc1 lds")
        e(f"s_mov_b32 m0, {(w*3+k)*5120+4096}\ns_nop 0\nbuffer_load_dwordx4 v5, s[48:51], s0 offen sc1 lds")
        e(f"s_waitcnt vmcnt({OPT.get('pfd', '30')})")
stS()
e(f"s_mul_i32 s6, s13, {FS_}\ns_add_u32 s6, s6, {FL_H}\ns_add_u32 s40, s44, s6\ns_addc_u32 s41, s45, 0")
e("s_waitcnt vmcnt(0)")
wait_lds(17, 18, "12", sleep=True)
spoll(40, [0], 28, OPT.get("hsleep", "2")); relay(4)
stS()
wait_lds(17, 18, "13", sleep=True)
e(f"s_mul_i32 s6, s14, {4*FS_}\ns_add_u32 s6, s6, {FL_C}\ns_add_u32 s40, s44, s6\ns_addc_u32 s41, s45, 0")
if "k" not in EXP and "e" not in EXP: spoll(40, [FS_*k for k in range(4)], 20, OPT.get("csleep", "4"))
relay(5)
stS()
stS.regs = [76,78,80] + stS.regs; stS.n += 3
stS.flush(8, 9)
e("L_END:")
e("s_endpgm")
for l in tail[:-1]: e(l)
e("L_LAST:")
e(tail[-1])
if "P" in EXP:
    for c_ in e.I:
        if c_.mn == "buffer_store_dwordx4" and ("v4, s[48:51]" in c_.text): c_.text = c_.text.replace(" sc1", "")
nn = e.fix()

hdr = open("cdna_kernels/" + NAME + ".s.ref").read().split("; Override")[0]
DOC = """; One persistent launch, 256 workgroups (one per CU) x 8 waves, roles by wave:
"""
s = hdr + DOC + f"; @launch grid=(256,1,1) block=(512,1,1) lds={LDS_TOTAL}\n"
s += f""".amdgcn_target "amdgcn-amd-amdhsa--gfx950"
.text
.globl {NAME}_kernel
.p2align 8
.type {NAME}_kernel,@function
{NAME}_kernel:
"""
s += e.text()
s += f""".section .rodata,"a"
.p2align 6
.amdhsa_kernel {NAME}_kernel
  .amdhsa_next_free_vgpr 256
  .amdhsa_next_free_sgpr 102
  .amdhsa_accum_offset 256
  .amdhsa_group_segment_fixed_size 0
  .amdhsa_kernarg_size 120
  .amdhsa_user_sgpr_count 2
  .amdhsa_user_sgpr_kernarg_segment_ptr 1
  .amdhsa_system_sgpr_workgroup_id_x 1
.end_amdhsa_kernel
"""
open(OUT, "w").write(s)
print("instrs", sum(1 for c in e.I if c.cls), "nops inserted", nn, "lds", LDS_TOTAL)
```
